```python
import torch

def _softmax(x, axis=-1):
    return torch.softmax(x, dim=axis)

def _gelu(x):
    return torch.nn.functional.gelu(x, approximate='tanh')

def _silu(x):
    return torch.nn.functional.silu(x)

def _sigmoid(x):
    return torch.sigmoid(x)

def _layernorm(x, axis=-1, eps=1e-05):
    m = x.mean(dim=axis, keepdim=True)
    v = x.var(dim=axis, keepdim=True, unbiased=False)
    return (x - m) / torch.sqrt(v + eps)

def _scatter_add(tgt, idx, src, axis=0):
    return tgt.clone().index_add_(axis, idx, src)

def _segment_sum(src, seg, n):
    out = torch.zeros((n,) + src.shape[1:], dtype=src.dtype)
    return out.index_add_(0, seg, src)

def _pad(x, pw):
    flat = tuple((v for pair in reversed(pw) for v in pair))
    return torch.nn.functional.pad(x, flat)
kernel_name = 'concat_heads__ssm_conv_s5__memory_aug_recurrent_mem_tr__prompt'

def setup_inputs():

    _w = lambda a: (lambda t: t.to(torch.bfloat16) if t.is_floating_point() else t)(torch.as_tensor(a))

    def _A_setup():
        B, S, D = (1, 2048, 1024)
        P = D
        Lambda_re = -0.5 * (lambda _x: torch.exp(torch.as_tensor(_x)))((lambda *s: torch.randn(*s, dtype=torch.bfloat16) * 0.8)(P))
        Lambda_im = (lambda *s: torch.randn(*s, dtype=torch.bfloat16) * 0.8)(P) * 1.0
        B_re = (lambda *s: torch.randn(*s, dtype=torch.bfloat16) * 0.8)(P, D) * D ** (-0.5)
        B_im = (lambda *s: torch.randn(*s, dtype=torch.bfloat16) * 0.8)(P, D) * D ** (-0.5)
        C_re = (lambda *s: torch.randn(*s, dtype=torch.bfloat16) * 0.8)(D, P) * P ** (-0.5)
        C_im = (lambda *s: torch.randn(*s, dtype=torch.bfloat16) * 0.8)(D, P) * P ** (-0.5)
        log_dt = (lambda *s: torch.randn(*s, dtype=torch.bfloat16) * 0.8)(P) * 0.3 - 2.0
        Dskip = (lambda *s: torch.randn(*s, dtype=torch.bfloat16) * 0.8)(D)
        return {'x': _w((lambda *s: torch.randn(*s, dtype=torch.bfloat16) * 0.05)(B, S, D)), 'Lambda_re': _w(Lambda_re), 'Lambda_im': _w(Lambda_im), 'B_re': _w(B_re), 'B_im': _w(B_im), 'C_re': _w(C_re), 'C_im': _w(C_im), 'log_dt': _w(log_dt), 'Dskip': _w(Dskip)}
    _A_in = _A_setup()

    def _B_setup():
        B, S, Dm = (1, 2048, 1024)
        H, Dh = (32, 128)
        M, seg = (8, 32)
        seg = min(seg, S)
        S = S // seg * seg
        return {'x': _w((lambda *s: torch.randn(*s, dtype=torch.bfloat16) * 0.05)(B, S, Dm)), 'mem0': _w((lambda *s: torch.randn(*s, dtype=torch.bfloat16) * 0.8)(B, M, Dm)), 'Wq': _w((lambda *s: torch.randn(*s, dtype=torch.bfloat16) * 3.2)(Dm, H, Dh) * Dm ** (-0.5)), 'Wk': _w((lambda *s: torch.randn(*s, dtype=torch.bfloat16) * 3.2)(Dm, H, Dh) * Dm ** (-0.5)), 'Wv': _w((lambda *s: torch.randn(*s, dtype=torch.bfloat16) * 0.8)(Dm, H, Dh) * Dm ** (-0.5)), 'Wo': _w((lambda *s: torch.randn(*s, dtype=torch.bfloat16) * 0.8)(H, Dh, Dm) * (H * Dh) ** (-0.5)), 'seg_len': seg}
    _B_in = _B_setup()
    return {'A_x': _A_in['x'], 'A_Lambda_re': _A_in['Lambda_re'], 'A_Lambda_im': _A_in['Lambda_im'], 'A_B_re': _A_in['B_re'], 'A_B_im': _A_in['B_im'], 'A_C_re': _A_in['C_re'], 'A_C_im': _A_in['C_im'], 'A_log_dt': _A_in['log_dt'], 'A_Dskip': _A_in['Dskip'], 'B_x': _B_in['x'], 'B_mem0': _B_in['mem0'], 'B_Wq': _B_in['Wq'], 'B_Wk': _B_in['Wk'], 'B_Wv': _B_in['Wv'], 'B_Wo': _B_in['Wo'], 'B_seg_len': _B_in['seg_len']}

def reference(A_x, A_Lambda_re, A_Lambda_im, A_B_re, A_B_im, A_C_re, A_C_im, A_log_dt, A_Dskip, B_x, B_mem0, B_Wq, B_Wk, B_Wv, B_Wo, B_seg_len):

    def _A_ref(x, Lambda_re, Lambda_im, B_re, B_im, C_re, C_im, log_dt, Dskip):
        Bsz, L, H = x.shape
        Lam = Lambda_re + 1j * Lambda_im
        Bmat = B_re + 1j * B_im
        Cmat = C_re + 1j * C_im
        dt = torch.exp(log_dt)
        Lam_bar = torch.exp(dt * Lam)
        B_bar = ((Lam_bar - 1.0) / Lam)[:, None] * Bmat
        Bu = torch.einsum('bld,pd->blp', x + 0j, B_bar)
        h = torch.zeros_like(Bu[:, 0, :])
        hs = []
        for t in range(L):
            h = Lam_bar[None, :] * h + Bu[:, t, :]
            hs.append(h)
        hseq = torch.stack(hs, 1)
        y = 2.0 * torch.einsum('blp,dp->bld', hseq, Cmat).real + x * Dskip[None, None, :]
        return y

    def _B_ref(x, mem0, Wq, Wk, Wv, Wo, seg_len):
        B, S, Dm = x.shape
        H, Dh = (Wq.shape[1], Wq.shape[2])
        M = mem0.shape[1]
        scale = Dh ** (-0.5)
        n_seg = S // seg_len
        L = M + seg_len
        idx = torch.arange(L)
        mask = (idx[:, None] < M) | (idx[:, None] >= idx[None, :])
        mem = mem0
        outs = []
        for s in range(n_seg):
            xs = x[:, s * seg_len:(s + 1) * seg_len, :].clone()
            h = torch.concatenate([mem, xs], axis=1)
            q = torch.einsum('btd,dhe->bhte', h, Wq)
            k = torch.einsum('btd,dhe->bhte', h, Wk)
            v = torch.einsum('btd,dhe->bhte', h, Wv)
            scores = torch.einsum('bhqe,bhke->bhqk', q, k) * scale
            scores = torch.where(mask[None, None], scores, -1000000000.0)
            p = _softmax(scores, axis=-1)
            o = torch.einsum('bhqk,bhke->bhqe', p, v)
            o = torch.einsum('bhte,hed->btd', o, Wo)
            mem = o[:, :M, :].clone()
            outs.append(o[:, M:, :])
        return torch.concatenate(outs, axis=1)
    a = _A_ref(A_x, A_Lambda_re, A_Lambda_im, A_B_re, A_B_im, A_C_re, A_C_im, A_log_dt, A_Dskip)
    b = _B_ref(B_x, B_mem0, B_Wq, B_Wk, B_Wv, B_Wo, B_seg_len)
    return torch.concatenate([a, b], axis=-1)
```

```python
class Asm:
    def __init__(self):
        self.lines = []
        self._uid = 0

    def I(self, s):
        self.lines.append("    " + s)

    def C(self, s):
        self.lines.append("    ; " + s)

    def L(self, label):
        self.lines.append(label + ":")

    def raw(self, s):
        self.lines.append(s)

    def uid(self, base):
        self._uid += 1
        return "%s_%d" % (base, self._uid)

    def text(self):
        return "\n".join(l.strip() for l in self.lines) + "\n"

    def smov(self, sreg, val):
        val &= 0xFFFFFFFF
        self.I("s_mov_b32 s%d, 0x%x" % (sreg, val))

    def vmov(self, vreg, val):
        val &= 0xFFFFFFFF
        self.I("v_mov_b32 v%d, 0x%x" % (vreg, val))

    def srd(self, d, ptr, off, size):
        assert d % 4 == 0
        if off == 0:
            self.I("s_mov_b32 s%d, s%d" % (d, ptr))
            self.I("s_and_b32 s%d, s%d, 0xffff" % (d + 1, ptr + 1))
        else:
            self.I("s_add_u32 s%d, s%d, 0x%x" % (d, ptr, off & 0xFFFFFFFF))
            self.I("s_addc_u32 s%d, s%d, 0" % (d + 1, ptr + 1))
            self.I("s_and_b32 s%d, s%d, 0xffff" % (d + 1, d + 1))
        self.I("s_mov_b32 s%d, 0x%x" % (d + 2, size))
        self.I("s_mov_b32 s%d, 0x00020000" % (d + 3))


def vr(a, n=1):
    return "v%d" % a if n == 1 else "v[%d:%d]" % (a, a + n - 1)


def ar(a, n=1):
    return "a%d" % a if n == 1 else "a[%d:%d]" % (a, a + n - 1)


def sr(a, n=1):
    return "s%d" % a if n == 1 else "s[%d:%d]" % (a, a + n - 1)


def kernel_desc(name, vgpr=512, accum=256, sgpr=102):
    return """.section .rodata,"a"
.p2align 6
.amdhsa_kernel %s
  .amdhsa_next_free_vgpr %d
  .amdhsa_next_free_sgpr %d
  .amdhsa_accum_offset %d
  .amdhsa_group_segment_fixed_size 0
  .amdhsa_kernarg_size 152
  .amdhsa_user_sgpr_count 2
  .amdhsa_user_sgpr_kernarg_segment_ptr 1
  .amdhsa_system_sgpr_workgroup_id_x 1
  .amdhsa_float_denorm_mode_32 3
  .amdhsa_float_denorm_mode_16_64 3
.end_amdhsa_kernel
""" % (name, vgpr, sgpr, accum)
```

```python
from asmlib import *
from layout import *
import os

E = lambda k, d: int(os.environ.get(k, str(d)))
EMU = E("EMU", 1)
NREP = E("NREPL", 2)
KRE = E("KRE", 2)
NSC = E("NSC", 2)
D_A, D_E = E("D_A", 24), E("D_E", 24)
PACE = E("PACE", 12)
D_C, G_C = E("D_C", 4), E("G_C", 24)
D_G, G_G = E("D_G", 80), E("G_G", 40)
STAMP = E("STAMP", 0)
KVW = E("KVW", 0)
PUBW = E("PUBW", 1)
POIW = E("POIW", 2)
W0L = E("W0L", 8)
PRIO = E("PRIO", 3)

S_WS = 8
S_TMPSRD = 12
S_X, S_J, S_W, S_STEP = 16, 17, 18, 19
S_T0, S_T1, S_T2, S_T3 = 20, 21, 22, 23
S_M8 = 24
S_M8H = 26
S_MM = 28
S_ROT = 30
S_KV = 31
S_SPIN = 33
S_SENT = 34
S_PXB = 35
S_BMEM = 36
S_BSX = 37
S_MEMC, S_MEMN, S_SX, S_OX, S_PX = 38, 39, 40, 41, 42
S_LKV = 43
S_C = 44
S_SCL = 46
S_L32 = 48
S_L16 = 50
S_PXB2 = 52
S_ONE = 53
S_CKV = 54
S_ST = 64
S_ACC = 84

V_LIN = 1
V_XLD = 2
V_IDX = 6
V_CHK = 7
V_MEMST, V_SXST, V_SXM, V_OXST, V_PXST = 8, 9, 10, 11, 12
V_SXLD = 13
V_SXLM = 16
V_PXLD = 17
V_TW = 20
V_RVW, V_RVR = 21, 22
V_KFR, V_VTR = 25, 26
V_KLD, V_VTLD = 27, 29
V_KMST, V_VMW = 30, 32
V_M0LD = 33
V_SMP = 34
V_SENT = 36
V_SEL = 40
V_ONE = 44
V_M = 48
V_ACC = 64
V_OA = 88
V_TA = 96
V_TD = 104
V_QK = 112
V_KX = 116
V_S0, V_S1, V_SM = 124, 128, 132
V_VT = 136
V_VM = 144
V_T = 148
V_TM = 152
V_X = 153
V_PB = 160
V_PM = 164
V_O = 168
V_SUM = 176
V_OB = 180
V_R = 168
V_L = 200
V_PT = 248
V_SEL2 = 252

L_T = 0
L_RV = 8192
L_RO = 16384
L_KV = 24576
L_KM = 32768
L_VM = 33792
L_ROLE = 0
L_STAGE = 32768

SPIN_LIMIT = 1 << 20
ABL = os.environ.get('ABL', '')
ABORT = [None]
COLD = []
HOOK = {}
W = "s[%d:%d]" % (S_WS, S_WS + 3)


def a_qkv(M, t, b):
    return ((M * 2 + t) * 4 + b) * 8


def a_wo(ct, b):
    return 192 + (ct * 4 + b) * 8


def acc(M, t):
    return V_ACC + (16 + 4 * t if M == 2 else 8 * t + 4 * M)


def vr4(r):
    return "v[%d:%d]" % (r, r + 3)


def vr2(r):
    return "v[%d:%d]" % (r, r + 1)


def nops(a, n):
    while n > 0:
        k = min(n, 16)
        a.I("s_nop %d" % (k - 1))
        n -= k


def exec_(a, m):
    a.I("s_mov_b64 exec, -1" if m is None else "s_mov_b64 exec, s[%d:%d]" % (m, m + 1))


def pk(a, d, x, y, op="add"):
    a.I("v_pk_%s_f32 %s, %s, %s" % (op, vr2(d), vr2(x), vr2(y)))


def spin(out, back=None):
    out.append("    s_add_u32 s%d, s%d, 1" % (S_SPIN, S_SPIN))
    out.append("    s_cmp_gt_u32 s%d, 0x%x" % (S_SPIN, SPIN_LIMIT))
    if back:
        out.append("    s_cbranch_scc0 %s" % back)
        out.append("    s_branch %s" % ABORT[0])
    else:
        out.append("    s_cbranch_scc1 %s" % ABORT[0])


def stamp(a, i):
    if STAMP == 1:
        a.I("s_memtime s[%d:%d]" % (S_ST + 2 * i, S_ST + 2 * i + 1))


def gather(a, soff, consume, tag, fill=()):
    I = a.I
    n = 4
    fill = list(fill)
    ld = lambda i: "buffer_load_dwordx4 %s, v%d, %s, s%d offen sc1" % (vr4(V_M + 4 * i), V_XLD + i, W, soff)
    for i in range(n):
        I(ld(i))
        if i < n - 1:
            k = PACE
            while fill and k > 0:
                I(fill.pop(0))
                k -= 1
            nops(a, k)
    for l in fill:
        I(l)
    chk = lambda i: ["v_max3_u32 v%d, v%d, v%d, v%d" % (V_CHK, V_M + 4 * i, V_M + 4 * i + 1, V_M + 4 * i + 2),
                     "v_max_u32 v%d, v%d, v%d" % (V_CHK, V_CHK, V_M + 4 * i + 3),
                     "v_cmp_eq_u32 vcc, s%d, v%d" % (S_SENT, V_CHK)]
    done = a.uid("L_gd_" + tag)
    labels, todo = {}, []

    def lab(key):
        if key not in labels:
            labels[key] = a.uid("L_q_" + tag)
            todo.append(key)
        return labels[key]

    def after_fail(i, jn, P):
        return lab(('f', i, jn, P)) if jn < n else lab(('p', P))
    I("s_waitcnt vmcnt(3)")
    for l in chk(0):
        I(l)
    I("s_cbranch_vccnz %s" % after_fail(0, 1, (0,)))
    for i in range(n):
        m = consume(i)
        if i == n - 1:
            for l in m:
                I(l)
            break
        c = chk(i + 1)
        I(m[0])
        I("s_waitcnt vmcnt(%d)" % (n - 2 - i))
        I(c[0])
        I(c[1])
        if len(m) > 2:
            I(m[1])
            I(c[2])
            for l in m[2:]:
                I(l)
        else:
            I(c[2])
            I(m[1])
        I("s_cbranch_vccnz %s" % after_fail(i + 1, i + 2, (i + 1,)))
    a.L(done)
    seen = set()
    while todo:
        key = todo.pop()
        if key in seen:
            continue
        seen.add(key)
        C = lambda l: COLD.append("    " + l)
        COLD.append("%s:" % lab(key))
        if key[0] == 'f':
            _, i0, jn, P = key
            C(ld(P[0]))
            Pn = P[1:] + P[:1]
            C("s_waitcnt vmcnt(%d)" % (n - 1 - i0))
            for l in chk(jn):
                C(l)
            C("s_cbranch_vccnz %s" % after_fail(i0, jn + 1, (jn,) + Pn))
            for l in consume(jn):
                C(l)
            C("s_branch %s" % after_fail(i0, jn + 1, Pn))
        else:
            P = key[1]
            oks = []
            for k, ci in enumerate(P):
                C(ld(ci))
                C("s_waitcnt vmcnt(%d)" % KRE)
                nx = P[(k + 1) % len(P)]
                for l in chk(nx):
                    C(l)
                ok = a.uid("L_ok_" + tag)
                oks.append((ok, nx))
                C("s_cbranch_vccz %s" % ok)
            spin(COLD, lab(key))
            for ok, ci in oks:
                COLD.append(ok + ":")
                for l in consume(ci):
                    C(l)
                rest = tuple(x for x in P if x != ci)
                C("s_branch %s" % (lab(('p', tuple(sorted(rest)))) if rest else done))


def rot_poll(a, nset, loads, summ, regs, ok, first_reissue, extra=0):
    C = lambda l: COLD.append("    " + l)
    nl = len(loads(0))
    if not first_reissue:
        for r in range(1, nset):
            c = []
            summ(c, r, nl * (nset - 1 - r) + extra)
            for l in c:
                C(l)
            C("s_cbranch_vccz %s" % ok)
        for r in range(1, nset):
            for l in loads(r):
                C(l)
            C("s_nop 11")
    rt = a.uid("L_rt")
    COLD.append(rt + ":")
    for k in range(nset):
        r = (k + 1) % nset
        for l in loads(k):
            C(l)
        c = []
        summ(c, r, nl * (nset - 1))
        for l in c:
            C(l)
        C("s_cbranch_vccz %s" % ok)
    spin(COLD)
    C("s_and_b32 s%d, s%d, 63" % (S_T0, S_SPIN))
    C("s_cbranch_scc1 %s" % rt)
    regs = list(regs)
    C("v_cmp_eq_u32 vcc, s%d, v%d" % (S_SENT, regs[0]))
    for r in regs[1:]:
        C("v_cmp_eq_u32 s[%d:%d], s%d, v%d" % (S_T0, S_T1, S_SENT, r))
        C("s_or_b64 vcc, vcc, s[%d:%d]" % (S_T0, S_T1))
    C("s_cbranch_vccnz %s" % rt)
    C("s_branch %s" % ok)


def block_bases(a, s_init, s_even, s_odd, tmp):
    I = a.I
    I("s_lshr_b32 s%d, s%d, 16" % (tmp, s_init))
    I("s_cmp_gt_u32 s%d, 64" % tmp)
    I("s_cselect_b32 s%d, 0x%x, 0x%x" % ((tmp, 0, 0x2000) if 'polx' in ABL else (tmp, 0x2000, 0)))
    I("s_add_u32 s%d, s%d, 0x1fffff" % (s_even, ptr(D_WS)))
    I("s_and_b32 s%d, s%d, 0xffe00000" % (s_even, s_even))
    I("s_sub_u32 s%d, s%d, s%d" % (s_odd, s_even, ptr(D_WS)))
    I("s_add_u32 s%d, s%d, s%d" % (s_even, s_odd, tmp))
    I("s_xor_b32 s%d, s%d, 0x2000" % (tmp, tmp))
    I("s_add_u32 s%d, s%d, s%d" % (s_odd, s_odd, tmp))


def prologue_addrs(a):
    I = a.I
    a.C("---- chain address registers")
    for s, lo, hi in ((S_M8, 0x00ff00ff, 0x00ff00ff), (S_M8H, 0xff00ff00, 0xff00ff00), (S_MM, 0, 0x00ff00ff),
                      (S_L32, 0xffffffff, 0), (S_L16, 0xffff, 0)):
        I("s_mov_b32 s%d, 0x%x" % (s, lo))
        I("s_mov_b32 s%d, 0x%x" % (s + 1, hi))
    c = 0x3fb8aa3b if EMU else 0x3e0293ee
    I("s_mov_b32 s%d, 0x%x" % (S_C, c))
    I("s_mov_b32 s%d, 0x%x" % (S_C + 1, c))
    I("s_mov_b32 s%d, 0x3db504f3" % S_SCL)
    I("s_mov_b32 s%d, 0x3db504f3" % (S_SCL + 1))
    I("s_mov_b32 s%d, 0x%x" % (S_SENT, SENT))
    I("s_lshl_b32 s%d, s%d, 14" % (S_BMEM, S_X))
    I("s_add_u32 s%d, s%d, 0x%x" % (S_BMEM, S_BMEM, X_MEM))
    I("s_lshl_b32 s%d, s%d, 16" % (S_BSX, S_X))
    I("s_add_u32 s%d, s%d, 0x%x" % (S_BSX, S_BSX, X_SX))
    for i in range(4):
        I("v_mov_b32 v%d, s%d" % (V_SENT + i, S_SENT))
        I("v_mov_b32 v%d, 0x3f803f80" % (V_ONE + i))
    n, g, l, w, t0, t1, t2 = range(V_PT, V_PT + 7)
    I("v_and_b32 v%d, 63, v0" % l)
    I("v_and_b32 v%d, 15, v0" % n)
    I("v_bfe_u32 v%d, v0, 4, 2" % g)
    I("v_lshrrev_b32 v%d, 6, v0" % w)
    I("v_lshlrev_b32 v%d, 4, v%d" % (V_LIN, l))
    I("s_lshl_b32 s%d, s%d, 10" % (S_T0, S_X))
    I("s_lshl_b32 s%d, s%d, 5" % (S_T1, S_J))
    I("s_add_u32 s%d, s%d, s%d" % (S_T0, S_T0, S_T1))
    I("s_and_b32 s%d, s%d, 3" % (S_ROT, S_J))
    I("v_lshl_add_u32 v%d, v%d, 12, v%d" % (t0, w, V_LIN))
    for i in range(4):
        I("s_add_u32 s%d, s%d, %d" % (S_T1, S_ROT, i))
        I("s_and_b32 s%d, s%d, 3" % (S_T1, S_T1))
        I("s_lshl_b32 s%d, s%d, 10" % (S_T1, S_T1))
        I("v_add_u32 v%d, s%d, v%d" % (V_XLD + i, S_T1, t0))
    I("v_mov_b32 v%d, 0x44444444" % V_IDX)
    I("v_mov_b32 v%d, 0xeeeeeeee" % t0)
    I("v_cndmask_b32 v%d, v%d, v%d, s[%d:%d]" % (V_IDX, V_IDX, t0, S_M8H, S_M8H + 1))
    I("v_bfe_u32 v%d, v%d, 1, 3" % (t0, l))
    I("v_and_b32 v%d, 1, v%d" % (t1, l))
    I("v_lshlrev_b32 v%d, 11, v%d" % (V_M0LD, t0))
    I("v_lshl_add_u32 v%d, v%d, 3, v%d" % (V_M0LD, t1, V_M0LD))
    I("v_lshl_add_u32 v%d, v%d, 4, v%d" % (V_M0LD, g, V_M0LD))
    I("s_lshl_b32 s%d, s%d, 6" % (S_T1, S_J))
    I("v_add_u32 v%d, s%d, v%d" % (V_M0LD, S_T1, V_M0LD))
    I("v_lshlrev_b32 v%d, 3, v%d" % (V_MEMST, l))
    I("s_lshl_b32 s%d, s%d, 9" % (S_T1, S_J))
    I("v_add_u32 v%d, s%d, v%d" % (V_MEMST, S_T1, V_MEMST))
    I("v_lshlrev_b32 v%d, 4, v%d" % (V_OXST, n))
    I("v_lshl_add_u32 v%d, v%d, 7, v%d" % (V_OXST, g, V_OXST))
    I("v_add_u32 v%d, s%d, v%d" % (V_OXST, S_T1, V_OXST))
    I("s_lshr_b32 s%d, s%d, 2" % (S_T2, S_J))
    I("s_lshl_b32 s%d, s%d, 13" % (S_T2, S_T2))
    for k in range(4):
        I("s_add_u32 s%d, s%d, %d" % (S_T1, S_J, k))
        I("s_and_b32 s%d, s%d, 3" % (S_T1, S_T1))
        I("s_lshl_b32 s%d, s%d, 10" % (S_T1, S_T1))
        I("s_add_u32 s%d, s%d, s%d" % (S_T1, S_T1, S_T2))
        I("v_add_u32 v%d, s%d, v%d" % (V_SXST if k == 0 else V_SXLD + k - 1, S_T1, V_LIN))
    I("s_add_u32 s%d, s%d, 4096" % (S_T2, S_T2))
    I("v_add_u32 v%d, s%d, v%d" % (V_SXLM, S_T2, V_LIN))
    I("s_and_b32 s%d, s%d, 3" % (S_T1, S_J))
    I("s_lshl_b32 s%d, s%d, 8" % (S_T1, S_T1))
    I("s_add_u32 s%d, s%d, s%d" % (S_T1, S_T1, S_T2))
    I("v_and_b32 v%d, 1, v%d" % (t1, g))
    I("v_lshlrev_b32 v%d, 4, v%d" % (V_SXM, n))
    I("v_lshl_add_u32 v%d, v%d, 7, v%d" % (V_SXM, t1, V_SXM))
    I("v_add_u32 v%d, s%d, v%d" % (V_SXM, S_T1, V_SXM))
    I("v_lshl_add_u32 v%d, v%d, 11, v%d" % (V_TW, w, V_LIN))
    I("v_lshrrev_b32 v%d, 1, v%d" % (t0, g))
    I("v_lshl_add_u32 v%d, v%d, 1, v%d" % (t0, w, t0))
    I("v_lshlrev_b32 v%d, 10, v%d" % (V_RVW, t0))
    I("v_lshl_add_u32 v%d, v%d, 5, v%d" % (V_RVW, n, V_RVW))
    I("v_lshl_add_u32 v%d, v%d, 4, v%d" % (V_RVW, t1, V_RVW))
    I("v_add_u32 v%d, %d, v%d" % (V_RVW, L_RV, V_RVW))
    I("v_lshlrev_b32 v%d, 5, v%d" % (V_RVR, n))
    I("v_lshl_add_u32 v%d, v%d, 3, v%d" % (V_RVR, g, V_RVR))
    I("v_add_u32 v%d, %d, v%d" % (V_RVR, L_RV, V_RVR))
    I("v_lshrrev_b32 v%d, 2, v%d" % (t1, n))
    I("v_and_b32 v%d, 3, v%d" % (t0, n))
    I("v_lshl_add_u32 v%d, v%d, 3, v%d" % (t1, t1, t0))
    I("v_add_u32 v%d, %d, v%d" % (V_KFR, L_KV, V_LIN))
    I("v_add_u32 v%d, %d, v%d" % (V_VTR, L_KV + 2048, V_LIN))
    I("v_lshlrev_b32 v%d, 4, v%d" % (V_VMW, t1))
    I("v_lshl_add_u32 v%d, v%d, 9, v%d" % (V_VTLD, g, V_VMW))
    I("v_lshl_add_u32 v%d, v%d, 2, v%d" % (V_VMW, g, V_VMW))
    I("v_add_u32 v%d, %d, v%d" % (V_VMW, L_VM, V_VMW))
    for xo in range(4):
        I("s_add_u32 s%d, s%d, %d" % (S_T1, S_X, xo))
        I("s_and_b32 s%d, s%d, 3" % (S_T1, S_T1))
        I("s_lshl_b32 s%d, s%d, 18" % (S_T1, S_T1))
        I("s_lshr_b32 s%d, s%d, 1" % (S_T2, S_J))
        I("s_lshl_b32 s%d, s%d, 14" % (S_T2, S_T2))
        I("s_add_u32 s%d, s%d, s%d" % (S_T1, S_T1, S_T2))
        I("s_and_b32 s%d, s%d, 1" % (S_T2, S_J))
        I("s_lshl_b32 s%d, s%d, 12" % (S_T2, S_T2))
        I("s_add_u32 s%d, s%d, s%d" % (S_T3 if xo == 0 else S_T1, S_T1, S_T2))
        I("v_add_u32 v%d, s%d, v%d" % (V_PXST if xo == 0 else V_PXLD + xo - 1, S_T3 if xo == 0 else S_T1, V_LIN))
    I("v_add_u32 v%d, s%d, v%d" % (V_VTLD, S_T3, V_VTLD))
    I("v_and_b32 v%d, 8, v%d" % (t1, n))
    I("v_add_u32 v%d, v%d, v%d" % (t1, t1, n))
    I("v_lshlrev_b32 v%d, 4, v%d" % (V_KLD, t1))
    I("v_lshl_add_u32 v%d, v%d, 9, v%d" % (V_KLD, g, V_KLD))
    I("v_add_u32 v%d, s%d, v%d" % (V_KLD, S_T3, V_KLD))
    I("v_bfe_u32 v%d, v%d, 2, 1" % (t1, n))
    I("v_lshl_add_u32 v%d, v%d, 1, v%d" % (t0, t0, t1))
    I("v_cndmask_b32 v%d, v%d, v%d, s[%d:%d]" % (t0, n, t0, S_M8H, S_M8H + 1))
    I("v_lshlrev_b32 v%d, 4, v%d" % (V_KMST, t0))
    I("v_lshl_add_u32 v%d, v%d, 7, v%d" % (V_KMST, g, V_KMST))
    I("v_add_u32 v%d, s%d, v%d" % (V_KMST, S_T3, V_KMST))
    I("v_and_b32 v%d, 1, v%d" % (t1, t0))
    I("v_lshlrev_b32 v%d, 4, v%d" % (t1, t1))
    I("v_mov_b32 v%d, 0x3f80" % t2)
    I("v_lshlrev_b32 v%d, v%d, v%d" % (t2, t1, t2))
    I("v_lshrrev_b32 v%d, 2, v%d" % (t1, t0))
    I("v_xor_b32 v%d, v%d, v%d" % (t1, t1, g))
    I("v_and_b32 v%d, 1, v%d" % (t1, t1))
    I("v_bfe_u32 v%d, v%d, 1, 1" % (t0, t0))
    I("v_lshl_add_u32 v%d, v%d, 2, v%d" % (t0, t1, t0))
    I("v_lshrrev_b32 v%d, 3, v%d" % (t1, n))
    I("v_lshl_add_u32 v%d, v%d, 1, v%d" % (t0, t1, t0))
    for r in range(4):
        I("v_cmp_eq_u32 vcc, %d, v%d" % (r, t0))
        I("s_nop 1")
        I("v_cndmask_b32 v%d, 0, v%d, vcc" % (V_SEL + r, t2))


def load_weights(a):
    I = a.I
    a.C("---- load weights")
    t0, t1, va, vg, vg2 = V_PT, V_PT + 1, V_PT + 2, V_PT + 3, V_PT + 4
    vq, vo, vw = 240, 242, 244
    I("v_bfe_u32 v%d, v0, 4, 2" % t0)
    I("v_lshlrev_b32 v%d, 1, v%d" % (va, t0))
    I("v_bfe_u32 v%d, v0, 2, 1" % t0)
    I("v_add_u32 v%d, v%d, v%d" % (va, va, t0))
    I("v_bfe_u32 v%d, v0, 3, 1" % t0)
    I("v_lshl_add_u32 v%d, v%d, 3, v%d" % (va, t0, va))
    I("v_lshrrev_b32 v%d, 6, v0" % t0)
    I("v_lshl_add_u32 v%d, v%d, 8, v%d" % (va, t0, va))
    I("v_and_b32 v%d, 3, v0" % t1)
    I("v_lshlrev_b32 v%d, 13, v%d" % (vg, va))
    I("v_lshl_add_u32 v%d, v%d, 4, v%d" % (vg, t1, vg))
    I("s_lshl_b32 s%d, s%d, 1" % (S_T1, S_T0))
    I("v_add_u32 v%d, s%d, v%d" % (vg, S_T1, vg))
    I("s_lshl_b32 s%d, s%d, 10" % (S_T1, S_X))
    I("v_add_u32 v%d, s%d, v%d" % (vg2, S_T1, va))
    I("v_lshlrev_b32 v%d, 11, v%d" % (vg2, vg2))
    I("v_lshl_add_u32 v%d, v%d, 4, v%d" % (vg2, t1, vg2))
    I("s_lshl_b32 s%d, s%d, 6" % (S_T1, S_J))
    I("v_add_u32 v%d, s%d, v%d" % (vg2, S_T1, vg2))
    I("v_bfe_u32 v%d, v0, 4, 2" % t0)
    I("v_lshlrev_b32 v%d, 3, v%d" % (t0, t0))
    I("v_bfe_u32 v%d, v0, 2, 2" % vo)
    I("v_add_u32 v%d, v%d, v%d" % (t0, t0, vo))
    I("v_lshlrev_b32 v%d, 6, v%d" % (vo, t0))
    I("v_lshrrev_b32 v%d, 6, v0" % t0)
    I("v_lshl_add_u32 v%d, v%d, 14, v%d" % (vo, t0, vo))
    I("v_lshl_add_u32 v%d, v%d, 3, v%d" % (vq, t1, vo))
    I("v_and_b32 v%d, 2, v%d" % (vq + 1, t1))
    I("v_lshl_add_u32 v%d, v%d, 3, v%d" % (vq, vq + 1, vq))
    I("v_lshl_add_u32 v%d, v%d, 4, v%d" % (vo, t1, vo))
    I("v_add_u32 v%d, 0x10000, v%d" % (vq + 1, vq))
    I("v_add_u32 v%d, 0x10000, v%d" % (vo + 1, vo))
    I("v_lshl_add_u32 v%d, v%d, 14, v%d" % (vw, t0, V_LIN))
    I("v_add_u32 v%d, 0x10000, v%d" % (vw + 1, vw))
    I("s_lshl_b32 s%d, s%d, 14" % (S_T2, S_W))
    I("s_add_u32 s%d, s%d, %d" % (S_T2, S_T2, L_STAGE))

    def soff(i, stride):
        I("s_add_u32 s%d, s%d, %d" % (S_T3, S_ROT, i >> 2))
        I("s_and_b32 s%d, s%d, 3" % (S_T3, S_T3))
        I("s_lshl_b32 s%d, s%d, 2" % (S_T3, S_T3))
        I("s_add_u32 s%d, s%d, %d" % (S_T3, S_T3, i & 3))
        I("s_mul_i32 s%d, s%d, %d" % (S_T3, S_T3, 16 * stride))

    def issue(src, half, vaddr, stride):
        a.srd(S_TMPSRD, ptr(src), 0, 8 * MB)
        for i in range(16):
            I("s_add_u32 m0, s%d, %d" % (S_T2, half * 65536 + i * 1024))
            soff(i, stride)
            I("buffer_load_dwordx4 v%d, s[%d:%d], s%d offen lds" % (vaddr, S_TMPSRD, S_TMPSRD + 3, S_T3))

    def issue_reg(src, vbase, vaddr, stride):
        a.srd(S_TMPSRD, ptr(src), 0, 8 * MB)
        for i in range(16):
            soff(i, stride)
            I("buffer_load_dwordx4 %s, v%d, s[%d:%d], s%d offen" % (vr4(vbase + 4 * i), vaddr, S_TMPSRD, S_TMPSRD + 3, S_T3))

    def reg_to_lds(vbase, half):
        for i in range(16):
            I("ds_write_b128 v%d, %s offset:%d" % (vw + half, vr4(vbase + 4 * i), L_STAGE + i * 1024))
        I("s_waitcnt lgkmcnt(0)")

    def reads(areg, half, va_, tstep):
        for b in range(4):
            for t in range(2):
                d = areg(t, b)
                for u, o in enumerate((0, 256, 2048, 2304)):
                    off = L_STAGE + b * 4096 + o + t * tstep
                    I("ds_read_b64_tr_b16 a[%d:%d], v%d offset:%d" % (d + 2 * u, d + 2 * u + 1, va_ + half, off))
            I("s_waitcnt lgkmcnt(0)")
    RV_, RO_ = 112, 48
    issue(B_WQ, 0, vg, 8192)
    issue(B_WK, 1, vg, 8192)
    issue_reg(B_WV, RV_, vg, 8192)
    I("s_waitcnt vmcnt(32)")
    issue_reg(B_WO, RO_, vg2, 2048)
    reads(lambda t, b: a_qkv(0, t, b), 0, vq, 16)
    I("s_waitcnt vmcnt(32)")
    reads(lambda t, b: a_qkv(1, t, b), 1, vq, 16)
    I("s_waitcnt vmcnt(16)")
    reg_to_lds(RV_, 0)
    reads(lambda t, b: a_qkv(2, t, b), 0, vo, 8)
    I("s_waitcnt vmcnt(0)")
    reg_to_lds(RO_, 1)
    reads(a_wo, 1, vo, 8)
    t2 = V_PT + 2
    I("v_bfe_u32 v%d, v0, 1, 1" % t1)
    I("v_lshlrev_b32 v%d, 4, v%d" % (t1, t1))
    I("v_mov_b32 v%d, 0x3f80" % t2)
    I("v_lshlrev_b32 v%d, v%d, v%d" % (t2, t1, t2))
    I("v_bfe_u32 v%d, v0, 3, 1" % t0)
    I("v_bfe_u32 v%d, v0, 4, 1" % t1)
    I("v_xor_b32 v%d, v%d, v%d" % (t1, t1, t0))
    I("v_bfe_u32 v%d, v0, 2, 1" % t0)
    I("v_lshl_add_u32 v%d, v%d, 2, v%d" % (t0, t1, t0))
    I("v_and_b32 v%d, 1, v0" % t1)
    I("v_lshl_add_u32 v%d, v%d, 1, v%d" % (t0, t1, t0))
    for r in range(4):
        I("v_cmp_eq_u32 vcc, %d, v%d" % (r, t0))
        I("s_nop 1")
        I("v_cndmask_b32 v%d, 0, v%d, vcc" % (V_SEL2 + r, t2))
    for i in range(24):
        I("v_mov_b32 v%d, 0" % (V_ACC + i))
    for r in (V_VM + 1, V_VM + 3, V_PM + 1):
        I("v_mov_b32 v%d, 0" % r)


def kv_prefetch(a, parts=(0, 1, 2, 3)):
    I = a.I
    for i, (va, off) in enumerate(((V_KLD, 0), (V_KLD, 128), (V_VTLD, 2048), (V_VTLD, 2048 + 64))):
        if i not in parts:
            continue
        I("s_add_u32 m0, s%d, %d" % (S_LKV, i * 1024 - off))
        I("s_nop 0")
        I("buffer_load_dwordx4 v%d, %s, s%d offen offset:%d lds" % (va, W, S_KV, off))
    I("s_xor_b32 s%d, s%d, 4096" % (S_LKV, S_LKV))


def cnt_wait(a, kind, s_seg=None):
    I = a.I
    if 'nowork' in ABL and kind != 'init':
        return
    rt, ok = a.uid("L_dw"), a.uid("L_dwok")
    if kind != 'init':
        I("s_lshl_b32 s%d, s%d, 7" % (S_T1, s_seg))
    if kind == 'kv':
        I("s_add_u32 s%d, s%d, 0x%x" % (S_T1, S_T1, C_KV))
    I("v_mov_b32 v%d, 0" % V_SMP)
    a.L(rt)
    if kind == 'init':
        I("buffer_load_dword v%d, v%d, s[%d:%d], 0 offen sc1" % (V_SMP + 1, V_SMP, S_TMPSRD, S_TMPSRD + 3))
    elif kind == 'kv':
        I("buffer_load_dword v%d, v%d, %s, s%d offen sc1" % (V_SMP + 1, V_SMP, W, S_T1))
    else:
        I("s_load_dword s%d, s[%d:%d], s%d glc" % (S_T0, S_CKV, S_CKV + 1, S_T1))
    I("s_add_u32 s%d, s%d, 1" % (S_SPIN, S_SPIN))
    I("s_cmp_gt_u32 s%d, 0x%x" % (S_SPIN, SPIN_LIMIT))
    I("s_waitcnt lgkmcnt(0)" if kind == 'kvs' else "s_waitcnt vmcnt(0)")
    I("s_cbranch_scc1 %s" % ABORT[0])
    if kind != 'kvs':
        I("v_readfirstlane_b32 s%d, v%d" % (S_T0, V_SMP + 1))
    if kind == 'init':
        I("s_and_b32 s%d, s%d, 0xffff" % (S_T2, S_T0))
        I("s_cmp_ge_u32 s%d, 256" % S_T2)
    else:
        I("s_cmp_ge_u32 s%d, 64" % S_T0)
    I("s_cbranch_scc1 %s" % ok)
    I("s_sleep 2")
    I("s_branch %s" % rt)
    a.L(ok)


def publish_kv(a, soff, qk):
    I = a.I
    if qk is None:
        qk = V_R
        I("ds_read_b128 %s, v%d offset:%d" % (vr4(V_R), V_LIN, L_KM))
    I("ds_read_b128 %s, v%d offset:%d" % (vr4(V_R + 4), V_LIN, L_VM))
    exec_(a, S_M8H)
    I("s_waitcnt lgkmcnt(1)")
    I("buffer_store_dwordx4 %s, v%d, %s, s%d offen offset:%d sc1" % (vr4(qk), V_KMST, W, soff, KM_OFF))
    exec_(a, S_L32)
    I("s_waitcnt lgkmcnt(0)")
    I("buffer_store_dwordx4 %s, v%d, %s, s%d offen offset:%d sc1" % (vr4(V_R + 4), V_PXST, W, soff, VM_OFF))
    exec_(a, None)


def slots(step=S_STEP):
    return ["s_and_b32 s%d, s%d, 3" % (S_T0, step),
            "s_lshl_b32 s%d, s%d, 16" % (S_T1, S_T0),
            "s_add_u32 s%d, s%d, s%d" % (S_MEMC, S_BMEM, S_T1),
            "s_add_u32 s%d, s%d, 0x%x" % (S_OX, S_MEMC, X_OX - X_MEM),
            "s_lshl_b32 s%d, s%d, 18" % (S_T1, S_T0),
            "s_add_u32 s%d, s%d, s%d" % (S_SX, S_BSX, S_T1),
            "s_add_u32 s%d, s%d, 0x%x" % (S_PX, S_KV, WS_P - WS_B),
            "s_add_u32 s%d, s%d, 1" % (S_T1, step),
            "s_bitcmp1_b32 s%d, 1" % S_T1,
            "s_cselect_b32 s%d, s%d, s%d" % (S_KV, S_PXB2, S_PXB),
            "s_lshl_b32 s%d, s%d, 20" % (S_T1, S_T1),
            "s_add_u32 s%d, s%d, s%d" % (S_KV, S_KV, S_T1),
            "s_add_u32 s%d, s%d, 1" % (S_T0, S_T0),
            "s_and_b32 s%d, s%d, 3" % (S_T0, S_T0),
            "s_lshl_b32 s%d, s%d, 16" % (S_T0, S_T0),
            "s_add_u32 s%d, s%d, s%d" % (S_MEMN, S_BMEM, S_T0)]


def smf(c, w, b):
    return "v_smfmac_f32_16x16x64_bf16 %s, %s, a[%d:%d], v%d" % (vr4(c), vr4(V_M + 4 * b), w, w + 7, V_IDX)


def mfma32(d, x, y, c=None):
    return "v_mfma_f32_16x16x32_bf16 %s, %s, %s, %s" % (vr4(d), vr4(x), vr4(y), "0" if c is None else vr4(c))


def mfma16(d, x, y):
    return "v_mfma_f32_16x16x16_bf16 %s, %s, %s, 0" % (vr4(d), vr2(x), vr2(y))


def cvt(d, x, y):
    return "v_cvt_pk_bf16_f32 v%d, v%d, v%d" % (d, x, y)


def step_loop(a, name, lsc):
    I = a.I
    loop, done = a.uid("L_step"), name + "_done"
    Lh1, Lb3, Lh2, Lb4, Lfin = (a.uid(x) for x in ("L_help1", "L_bar3", "L_help2", "L_bar4", "L_fin"))
    a.L(loop)
    a.C("==== A: gather the memory, q / k projection partials")
    nops(a, D_A)
    zo = ["v_mov_b32 v%d, 0" % (V_OA + i) for i in range(8)]
    kx = ["ds_read_b128 %s, v%d" % (vr4(V_KX), V_KFR), "ds_read_b128 %s, v%d offset:1024" % (vr4(V_KX + 4), V_KFR),
          "v_xor_b32 v%d, 0x1000, v%d" % (V_KFR, V_KFR)]
    gather(a, S_MEMC, lambda b: [smf(acc(M, t), a_qkv(M, t, b), b) for t in range(2) for M in range(2)], "a", zo + kx)
    stamp(a, 1)
    a.C("---- B: round the partials, transpose them with a selection MFMA (also adds the two K halves)")
    q0, k0, q1, k1 = acc(0, 0), acc(1, 0), acc(0, 1), acc(1, 1)
    I(cvt(V_TA, q0, q0 + 1))
    I(cvt(V_TA + 1, q0 + 2, q0 + 3))
    I(cvt(V_TA + 2, k0, k0 + 1))
    I(cvt(V_TA + 3, k0 + 2, k0 + 3))
    I("s_cmp_lg_u32 s%d, 0" % S_W)
    I(cvt(V_TA + 4, q1, q1 + 1))
    I(mfma32(V_TD, V_TA, V_SEL))
    I(cvt(V_TA + 5, q1 + 2, q1 + 3))
    I(cvt(V_TA + 6, k1, k1 + 1))
    I(cvt(V_TA + 7, k1 + 2, k1 + 3))
    I("s_nop 1")
    I(mfma32(V_TD + 4, V_TA + 4, V_SEL))
    I("s_cbranch_scc0 %s" % (Lh1 + "_w0"))
    I("s_nop 0")
    I("ds_write_b128 v%d, %s" % (V_TW, vr4(V_TD)))
    I("s_nop 4")
    I("ds_write_b128 v%d, %s offset:1024" % (V_TW, vr4(V_TD + 4)))
    I("s_waitcnt lgkmcnt(0)")
    I("s_barrier")
    a.C("---- wave 2: poison the exchange slots everybody is done with")
    lpe = a.uid("L_poe")
    I("s_cmp_lg_u32 s%d, 2" % S_W)
    I("s_cbranch_scc1 %s" % lpe)
    I("s_sub_u32 s%d, s%d, 1" % (S_T0, S_STEP))
    I("s_and_b32 s%d, s%d, 3" % (S_T0, S_T0))
    I("s_lshl_b32 s%d, s%d, 16" % (S_T1, S_T0))
    I("s_add_u32 s%d, s%d, s%d" % (S_T1, S_T1, S_BMEM))
    I("s_add_u32 s%d, s%d, 0x%x" % (S_T2, S_T1, X_OX - X_MEM))
    I("s_lshl_b32 s%d, s%d, 18" % (S_T3, S_T0))
    I("s_add_u32 s%d, s%d, s%d" % (S_T3, S_T3, S_BSX))
    I("buffer_store_dwordx2 %s, v%d, %s, s%d offen%s" % (vr2(V_SENT), V_MEMST, W, S_T1, lsc))
    I("buffer_store_dwordx2 %s, v%d, %s, s%d offen%s" % (vr2(V_SENT), V_MEMST, W, S_T2, lsc))
    I("buffer_store_dwordx4 %s, v%d, %s, s%d offen%s" % (vr4(V_SENT), V_SXST, W, S_T3, lsc))
    exec_(a, S_MM)
    I("buffer_store_dwordx4 %s, v%d, %s, s%d offen%s" % (vr4(V_SENT), V_SXM, W, S_T3, lsc))
    exec_(a, None)
    a.L(lpe)
    vp = [smf(acc(2, t), a_qkv(2, t, b), b) for b in range(4) for t in range(2)]
    for l in vp:
        I(l)
    I("s_nop 4")
    I("ds_write_b128 v%d, %s" % (V_RVW, vr4(acc(2, 0))))
    I("s_nop 1")
    I("ds_write_b128 v%d, %s offset:512" % (V_RVW, vr4(acc(2, 1))))
    I("s_waitcnt lgkmcnt(0)")
    I("s_barrier")
    lv, L2b = a.uid("L_vred"), a.uid("L_bar2b")
    I("s_cmp_eq_u32 s%d, 1" % S_W)
    I("s_cbranch_scc1 %s" % lv)
    a.L(L2b)
    I("s_waitcnt lgkmcnt(0)")
    I("s_barrier")
    if POIW == 2 and 'prepois' not in ABL:
        lq = a.uid("L_np")
        I("s_cmp_lg_u32 s%d, 1" % S_W)
        I("s_cbranch_scc1 %s" % lq)
        I("s_add_u32 s%d, s%d, 0x400000" % (S_T0, S_PX))
        for r in range(NREP):
            I("buffer_store_dwordx4 %s, v%d, %s, s%d offen offset:%d sc1" % (vr4(V_SENT), V_PXST, W, S_T0, r * 1024))
        a.L(lq)
    if PUBW == 2 and 'nopub' not in ABL:
        lq = a.uid("L_np")
        I("s_cmp_lg_u32 s%d, 2" % S_W)
        I("s_cbranch_scc1 %s" % lq)
        publish_kv(a, S_PX, None)
        a.L(lq)
    I("s_cmp_lg_u32 s%d, 3" % S_W)
    I("s_cbranch_scc1 %s" % Lb3)
    a.C("---- wave 3: k_x / v_x^T of the next step -> LDS")
    lg0 = a.uid("L_gated")
    I("s_cmp_ge_u32 s%d, 2" % S_STEP)
    I("s_cbranch_scc1 %s" % lg0)
    I("s_add_u32 s%d, s%d, 1" % (S_T3, S_STEP))
    cnt_wait(a, 'kv', S_T3)
    a.L(lg0)
    if 'nokv' not in ABL:
        kv_prefetch(a, (0, 1, 2, 3) if KVW == 0 else (0, 1))
    I("s_branch %s" % Lb3)
    a.L(lv)
    a.C("---- wave 1: v_m = sum of the 8 partial planes")
    for p in range(8):
        for t in range(2):
            I("ds_read_b64 %s, v%d offset:%d" % (vr2(V_R + 4 * p + 2 * t), V_RVR, p * 1024 + t * 512))
            if p == 7 and t == 0:
                I("s_waitcnt lgkmcnt(11)")
    I("s_waitcnt lgkmcnt(8)")
    for (d, s_) in ((0, 1), (2, 3), (0, 2)):
        for t in range(2):
            pk(a, V_R + 4 * d + 2 * t, V_R + 4 * d + 2 * t, V_R + 4 * s_ + 2 * t)
    I("s_waitcnt lgkmcnt(0)")
    for (d, s_) in ((4, 5), (6, 7), (0, 4), (0, 6)):
        for t in range(2):
            pk(a, V_R + 4 * d + 2 * t, V_R + 4 * d + 2 * t, V_R + 4 * s_ + 2 * t)
    I(cvt(V_VM, V_R, V_R + 1))
    I(cvt(V_VM + 2, V_R + 2, V_R + 3))
    I("ds_write2_b32 v%d, v%d, v%d offset0:0 offset1:16" % (V_VMW, V_VM, V_VM + 2))
    I("s_branch %s" % L2b)
    a.L(Lh1 + "_w0")
    for l in vp:
        I(l)
    I("s_nop 4")
    I("ds_write_b128 v%d, %s" % (V_RVW, vr4(acc(2, 0))))
    I("s_nop 1")
    I("ds_write_b128 v%d, %s offset:512" % (V_RVW, vr4(acc(2, 1))))
    I("s_barrier")
    stamp(a, 2)
    for w in range(1, 4):
        for t in range(2):
            I("ds_read_b128 %s, v%d offset:%d" % (vr4(V_R + 8 * (w - 1) + 4 * t), V_LIN, L_T + w * 2048 + t * 1024))
    for w in range(3):
        I("s_waitcnt lgkmcnt(%d)" % (4 - 2 * w))
        for i in range(0, 8, 2):
            pk(a, V_TD + i, V_TD + i, V_R + 8 * w + i)
    for i in range(4):
        I(cvt(V_QK + i, V_TD + 2 * i, V_TD + 2 * i + 1))
    exec_(a, S_M8)
    I("s_nop 0")
    I(mfma32(V_S0, V_KX, V_QK))
    I(mfma32(V_S1, V_KX + 4, V_QK))
    I(mfma32(V_SM, V_QK, V_QK))
    I("s_nop 3")
    I("buffer_store_dwordx4 %s, v%d, %s, s%d offen%s" % (vr4(V_S0), V_SXST, W, S_SX, lsc))
    I("s_nop 0")
    I("buffer_store_dwordx4 %s, v%d, %s, s%d offen offset:128%s" % (vr4(V_S1), V_SXST, W, S_SX, lsc))
    exec_(a, S_MM)
    I("buffer_store_dwordx4 %s, v%d, %s, s%d offen%s" % (vr4(V_SM), V_SXM, W, S_SX, lsc))
    exec_(a, None)
    stamp(a, 3)
    I("s_barrier")
    a.C("---- C: partial scores of the other three workgroups of the head")
    I("ds_write_b128 v%d, %s offset:%d" % (V_LIN, vr4(V_QK), L_KM))
    for t in range(2):
        I("ds_read_b128 %s, v%d offset:%d" % (vr4(V_VT + 4 * t), V_VTR, t * 1024))
    for i in range(4):
        I("v_mov_b32_dpp v%d, v%d row_shr:8 row_mask:0xf bank_mask:0xc" % (V_S0 + i, V_S1 + i))
    I("v_xor_b32 v%d, 0x1000, v%d" % (V_VTR, V_VTR))
    I("s_cmp_eq_u32 s%d, 63" % S_STEP)
    I("s_cbranch_scc1 %s" % L2b)
    nops(a, D_C)

    def sx_loads(r):
        b = V_L + 16 * r
        return ["buffer_load_dwordx4 %s, v%d, %s, s%d offen sc1" % (vr4(b), V_SXLM, W, S_SX)] + \
               ["buffer_load_dwordx4 %s, v%d, %s, s%d offen sc1" % (vr4(b + 4 + 4 * k), V_SXLD + k, W, S_SX) for k in range(3)]
    for r in range(NSC):
        for l in sx_loads(r):
            I(l)
        if r < NSC - 1:
            nops(a, G_C)
    cok = a.uid("L_cok")

    def sx_sum(out, r, nlater):
        b = V_L + 16 * r
        P = lambda d, x, y: "v_pk_add_f32 %s, %s, %s" % (vr2(d), vr2(x), vr2(y))
        out += ["s_waitcnt vmcnt(%d)" % (3 + nlater),
                "v_permlane32_swap_b32 v%d, v%d" % (b, b + 2),
                "v_permlane32_swap_b32 v%d, v%d" % (b + 1, b + 3),
                "s_waitcnt vmcnt(%d)" % (2 + nlater),
                P(V_X + 1, b, b + 2),
                P(V_T, V_S0, b + 4),
                P(V_T + 2, V_S0 + 2, b + 6),
                "v_permlane16_swap_b32 v%d, v%d" % (V_X + 1, V_X + 2),
                "s_waitcnt vmcnt(%d)" % (1 + nlater),
                P(V_T, V_T, b + 8),
                P(V_T + 2, V_T + 2, b + 10),
                "v_add_f32 v%d, v%d, v%d" % (V_TM, V_X + 1, V_X + 2),
                "s_waitcnt vmcnt(%d)" % nlater,
                P(V_T, V_T, b + 12),
                P(V_T + 2, V_T + 2, b + 14),
                P(V_X + 1, V_T, V_T + 2),
                "v_add_f32 v%d, v%d, v%d" % (V_X + 1, V_X + 1, V_TM),
                "v_cmp_u_f32 vcc, v%d, v%d" % (V_X + 1, V_X + 2)]
    hot = []
    sx_sum(hot, 0, 4 * (NSC - 1))
    for l in hot:
        I(l)
    cf = a.uid("L_cf")
    COLD.append(cf + ":")
    rot_poll(a, NSC, sx_loads, sx_sum, range(V_L, V_L + 16), cok, True)
    vals = [V_T, V_T + 1, V_T + 2, V_T + 3, V_TM]
    mx, t1 = V_X + 1, V_X + 3
    if EMU:
        head = ["v_cvt_pk_bf16_f32 v%d, 0, v%d" % (V_PB + i if i < 4 else V_SUM, v) for i, v in enumerate(vals)]
    else:
        head = ["v_max3_f32 v%d, v%d, v%d, v%d" % (mx, V_T, V_T + 1, V_T + 2),
                "v_max3_f32 v%d, v%d, v%d, v%d" % (mx, mx, V_T + 3, V_TM),
                "s_nop 1",
                "v_max_f32_dpp v%d, v%d, v%d row_ror:8 row_mask:0xf bank_mask:0xf" % (mx, mx, mx)]
    for l in head:
        I(l)
    I("s_cbranch_vccnz %s" % cf)
    lskip = a.uid("L_chead")
    COLD.append(cok + ":")
    COLD.extend("    " + l for l in head)
    COLD.append("    s_branch %s" % lskip)
    a.L(lskip)
    stamp(a, 4)
    I("s_waitcnt lgkmcnt(0)")
    I("s_barrier")
    I("ds_read_b32 v%d, v%d" % (V_VM, V_VMW))
    I("ds_read_b32 v%d, v%d offset:64" % (V_VM + 2, V_VMW))
    a.C("---- D: softmax and P V")
    if EMU:
        I("v_pk_mul_f32 %s, %s, s[%d:%d]" % (vr2(V_T), vr2(V_PB), S_SCL, S_SCL + 1))
        I("v_pk_mul_f32 %s, %s, s[%d:%d]" % (vr2(V_T + 2), vr2(V_PB + 2), S_SCL, S_SCL + 1))
        I("v_mul_f32 v%d, s%d, v%d" % (V_TM, S_SCL, V_SUM))
        for v in vals:
            I("v_cvt_pk_bf16_f32 v%d, 0, v%d" % (v, v))
        I("v_max3_f32 v%d, v%d, v%d, v%d" % (mx, V_T, V_T + 1, V_T + 2))
        I("v_max3_f32 v%d, v%d, v%d, v%d" % (mx, mx, V_T + 3, V_TM))
        I("s_nop 1")
        I("v_max_f32_dpp v%d, v%d, v%d row_ror:8 row_mask:0xf bank_mask:0xf" % (mx, mx, mx))
    for sw in ("v_permlane16_swap_b32", "v_permlane32_swap_b32"):
        I("v_mov_b32 v%d, v%d" % (t1, mx))
        I("s_nop 1")
        I("%s v%d, v%d" % (sw, mx, t1))
        I("v_max_f32 v%d, v%d, v%d" % (mx, mx, t1))
    I("v_mul_f32 v%d, s%d, v%d" % (mx, S_C, mx))
    I("v_fma_f32 v%d, v%d, s%d, -v%d" % (V_TM, V_TM, S_C, mx))
    pf = "v_pk_fma_f32 %s, %s, s[%d:%d], %s op_sel_hi:[1,1,0] neg_lo:[0,0,1] neg_hi:[0,0,1]"
    I("v_exp_f32 v%d, v%d" % (V_TM, V_TM))
    I(pf % (vr2(V_T), vr2(V_T), S_C, S_C + 1, vr2(mx)))
    I(pf % (vr2(V_T + 2), vr2(V_T + 2), S_C, S_C + 1, vr2(mx)))
    I("v_mov_b32_dpp v%d, v%d row_ror:8 row_mask:0xf bank_mask:0xf" % (t1, V_TM))
    I("v_exp_f32 v%d, v%d" % (V_T, V_T))
    I(cvt(V_PM, V_TM, t1))
    I("v_exp_f32 v%d, v%d" % (V_T + 1, V_T + 1))
    I("v_exp_f32 v%d, v%d" % (V_T + 2, V_T + 2))
    I(mfma16(V_SUM, V_ONE, V_PM))
    I("v_exp_f32 v%d, v%d" % (V_T + 3, V_T + 3))
    I("s_waitcnt lgkmcnt(0)")
    I(cvt(V_PB, V_T, V_T + 1))
    I(mfma16(V_O, V_VM, V_PM))
    I(cvt(V_PB + 1, V_T + 2, V_T + 3))
    I("v_mov_b32_dpp v%d, v%d row_ror:8 row_mask:0xf bank_mask:0xf" % (V_PB + 2, V_PB))
    I(mfma16(V_O + 4, V_VM + 2, V_PM))
    I("v_mov_b32_dpp v%d, v%d row_ror:8 row_mask:0xf bank_mask:0xf" % (V_PB + 3, V_PB + 1))
    I("s_nop 0")
    exec_(a, S_M8)
    I(mfma32(V_SUM, V_ONE, V_PB, V_SUM))
    I(mfma32(V_O, V_VT, V_PB, V_O))
    I(mfma32(V_O + 4, V_VT + 4, V_PB, V_O + 4))
    I("s_nop 3")
    I("v_rcp_f32 v%d, v%d" % (V_SUM, V_SUM))
    I("s_nop 0")
    pm = "v_pk_mul_f32 %s, %s, %s op_sel_hi:[1,0]"
    I(pm % (vr2(V_O), vr2(V_O), vr2(V_SUM)))
    I(pm % (vr2(V_O + 2), vr2(V_O + 2), vr2(V_SUM)))
    I(pm % (vr2(V_O + 4), vr2(V_O + 4), vr2(V_SUM)))
    I(pm % (vr2(V_O + 6), vr2(V_O + 6), vr2(V_SUM)))
    for i in range(4):
        I(cvt(V_OB + i, V_O + 2 * i, V_O + 2 * i + 1))
    I("buffer_store_dwordx4 %s, v%d, %s, s%d offen%s" % (vr4(V_OB), V_OXST, W, S_OX, lsc))
    exec_(a, None)
    stamp(a, 5)
    I("s_barrier")
    nops(a, W0L)
    I("s_branch %s" % (Lb3 + "_e"))
    a.L(Lb3)
    I("s_waitcnt lgkmcnt(0)")
    I("s_barrier")
    I("s_cmp_eq_u32 s%d, 63" % S_STEP)
    I("s_cbranch_scc1 %s" % Lfin)
    a.L(Lb3 + "_e")
    a.C("==== E: gather the attention output of the XCD's heads, output projection partials")
    nops(a, max(D_E - 4, 0))
    za = ["v_mov_b32 v%d, 0" % (V_ACC + i) for i in range(24)]
    gather(a, S_OX, lambda b: [smf(V_OA + 4 * ct, a_wo(ct, b), b) for ct in range(2)], "e", za)
    stamp(a, 6)
    I("s_add_u32 s%d, s%d, 1" % (S_STEP, S_STEP))
    I("s_cmp_lg_u32 s%d, 0" % S_W)
    I("s_nop 2")
    I(cvt(V_TA, V_OA, V_OA + 1))
    I(cvt(V_TA + 1, V_OA + 2, V_OA + 3))
    I("s_nop 0")
    I(cvt(V_TA + 2, V_OA + 4, V_OA + 5))
    I(cvt(V_TA + 3, V_OA + 6, V_OA + 7))
    I("s_nop 1")
    I(mfma32(V_TD, V_TA, V_SEL2))
    I("s_cbranch_scc1 %s" % Lh2)
    I("s_barrier")
    stamp(a, 7)
    a.C("---- F / G (wave 0): XCD partial -> PX, sum of the four partials -> MEMX")
    for w in range(1, 4):
        I("ds_read_b128 %s, v%d offset:%d" % (vr4(V_R + 4 * w), V_LIN, L_RO + w * 2048))
    for w in range(1, 4):
        I("s_waitcnt lgkmcnt(%d)" % (3 - w))
        src = V_TD if w == 1 else V_R
        pk(a, V_R, src, V_R + 4 * w)
        pk(a, V_R + 2, src + 2, V_R + 4 * w + 2)
    for r in range(NREP):
        I("buffer_store_dwordx4 %s, v%d, %s, s%d offen offset:%d sc1" % (vr4(V_R), V_PXST, W, S_PX, r * 1024))
    stamp(a, 8)
    I("s_mov_b32 s%d, s%d" % (S_T2, S_PX))
    I("s_mov_b32 s%d, s%d" % (S_T3, S_MEMN))
    sl = slots()
    for l in sl:
        I(l)
    nops(a, max(D_G - len(sl) - 2, 0))

    def px_loads(r):
        return ["buffer_load_dwordx4 %s, v%d, %s, s%d offen offset:%d sc1" % (vr4(V_L + 12 * r + 4 * k), V_PXLD + k, W, S_T2, r * 1024) for k in range(3)]
    for r in range(NREP):
        for l in px_loads(r):
            I(l)
        if r < NREP - 1:
            nops(a, G_G)

    NSH = 0
    if PUBW == 1 and 'nopub' not in ABL:
        publish_kv(a, S_T2, V_QK)
        NSH += 2
    if KVW == 2 and 'nokv' not in ABL:
        I("s_sub_u32 s%d, s%d, 0x%x" % (S_T0, S_PX, WS_P - WS_B))
        n0 = len(a.lines)
        kv_prefetch(a, (2, 3))
        a.lines[n0:] = [l.replace("s%d offen" % S_KV, "s%d offen" % S_T0) for l in a.lines[n0:]]
        NSH += 2
    if POIW == 0 and 'prepois' not in ABL:
        I("s_add_u32 s%d, s%d, 0x400000" % (S_T0, S_T2))
        for r in range(NREP):
            I("buffer_store_dwordx4 %s, v%d, %s, s%d offen offset:%d sc1" % (vr4(V_SENT), V_PXST, W, S_T0, r * 1024))
        NSH += NREP

    def px_sum(out, r, nlater):
        b = V_L + 12 * r
        P = lambda d, x, y: "v_pk_add_f32 %s, %s, %s" % (vr2(d), vr2(x), vr2(y))
        for k in range(3):
            out += ["s_waitcnt vmcnt(%d)" % (2 - k + nlater),
                    P(V_T, V_R if k == 0 else V_T, b + 4 * k),
                    P(V_T + 2, V_R + 2 if k == 0 else V_T + 2, b + 4 * k + 2)]
        out += [P(V_X + 1, V_T, V_T + 2),
                "v_cmp_u_f32 vcc, v%d, v%d" % (V_X + 1, V_X + 2),
                cvt(V_OB, V_T, V_T + 1), cvt(V_OB + 1, V_T + 2, V_T + 3)]
    hot = []
    px_sum(hot, 0, 3 * (NREP - 1) + NSH)
    for l in hot:
        I(l)
    gf, gok, grt = a.uid("L_gf"), a.uid("L_gok"), a.uid("L_grt")
    I("s_cbranch_vccnz %s" % gf)
    a.L(gok)
    COLD.append(gf + ":")
    rot_poll(a, NREP, px_loads, px_sum, range(V_L, V_L + 12), gok, False, NSH)
    I("buffer_store_dwordx2 %s, v%d, %s, s%d offen%s" % (vr2(V_OB), V_MEMST, W, S_T3, lsc))
    stamp(a, 9)
    I("s_barrier")
    nops(a, W0L)
    if STAMP == 2:
        I("s_cmp_lg_u32 s%d, 5" % S_STEP)
        I("s_cbranch_scc1 %s" % loop)
        I("s_memrealtime s[%d:%d]" % (S_ST, S_ST + 1))
        I("s_mov_b32 s%d, 0" % S_SPIN)
        I("s_branch %s" % loop)
    elif STAMP:
        I("s_waitcnt lgkmcnt(0)")
        for i in range(9):
            I("s_sub_u32 s%d, s%d, s%d" % (S_T0, S_ST + 2 * i + 2, S_ST + 2 * i))
            I("s_add_u32 s%d, s%d, s%d" % (S_ACC + i, S_ACC + i, S_T0))
        I("s_mov_b32 s%d, s%d" % (S_ST, S_ST + 18))
        I("s_cmp_lg_u32 s%d, 5" % S_STEP)
        I("s_cbranch_scc1 %s" % (loop + "_nd"))
        for i in range(9):
            I("s_mov_b32 s%d, 0" % (S_ACC + i))
        I("s_mov_b32 s%d, 0" % S_SPIN)
        I("s_branch %s" % (loop + "_nd"))
    else:
        I("s_branch %s" % loop)
    a.L(Lh2)
    I("s_nop 2")
    I("ds_write_b128 v%d, %s offset:%d" % (V_TW, vr4(V_TD), L_RO))
    I("s_waitcnt lgkmcnt(0)")
    I("s_barrier")
    for l in sl:
        I(l)
    l3 = a.uid("L_w3")
    I("s_cmp_eq_u32 s%d, 3" % S_W)
    I("s_cbranch_scc1 %s" % l3)
    a.C("---- wave 2 of one workgroup: one more segment's k_m / v_m are complete everywhere")
    I("s_xor_b32 s%d, s%d, 2" % (S_T0, S_W))
    I("s_or_b32 s%d, s%d, s%d" % (S_T0, S_T0, S_X))
    I("s_or_b32 s%d, s%d, s%d" % (S_T0, S_T0, S_J))
    I("s_cbranch_scc1 %s" % Lb4)
    I("s_cmp_lt_u32 s%d, %d" % (S_STEP, 3 if PUBW == 1 else 2))
    I("s_cbranch_scc1 %s" % Lb4)
    I("s_atomic_add s%d, s[%d:%d], 0x%x" % (S_ONE, ptr(D_DBG), ptr(D_DBG) + 1, DB_PROG))
    I("s_branch %s" % Lb4)
    a.L(l3)
    a.C("---- wave 3 of one workgroup: hold the chain until the segment fetched in the step after next exists")
    I("s_or_b32 s%d, s%d, s%d" % (S_T0, S_X, S_J))
    I("s_cbranch_scc1 %s" % Lb4)
    I("s_add_u32 s%d, s%d, 2" % (S_T3, S_STEP))
    I("s_min_u32 s%d, s%d, 63" % (S_T3, S_T3))
    cnt_wait(a, 'kvs', S_T3)
    a.L(Lb4)
    if STAMP:
        I("s_cmp_eq_u32 s%d, 5" % S_STEP)
        I("s_cselect_b32 s%d, 0, s%d" % (S_SPIN, S_SPIN))
    I("s_barrier")
    I("s_branch %s" % loop)
    a.L(Lfin)
    I("s_cmp_lg_u32 s%d, 2" % S_W)
    I("s_cbranch_scc1 %s" % done)
    if PUBW == 1:
        publish_kv(a, S_PX, None)
    I("s_lshl_b32 s%d, s%d, 2" % (S_T0, S_X))
    I("s_add_u32 s%d, s%d, %d" % (S_T0, S_T0, DB_FIN))
    I("s_waitcnt vmcnt(0)")
    I("s_atomic_add s%d, s[%d:%d], s%d" % (S_ONE, ptr(D_DBG), ptr(D_DBG) + 1, S_T0))
    I("s_branch %s" % done)
    return loop


def chain_main(a, name):
    I = a.I
    a.srd(S_WS, ptr(D_WS), 0, WS_SIZE)
    ABORT[0] = name + "_abort"
    I("s_mov_b32 s%d, 0" % S_SPIN)
    prologue_addrs(a)
    load_weights(a)
    HOOK.get('weights', lambda: None)()
    a.C("---- initial memory -> MEMX slot 0, first prefetches")
    a.srd(S_TMPSRD, ptr(B_MEM0), 0, 16384)
    I("buffer_load_dwordx2 %s, v%d, s[%d:%d], 0 offen" % (vr2(V_R), V_M0LD, S_TMPSRD, S_TMPSRD + 3))
    I("s_waitcnt vmcnt(0)")
    a.srd(S_TMPSRD, ptr(D_DBG), 0, 256)
    I("s_mov_b32 s%d, 0" % S_STEP)
    I("s_mov_b32 s%d, 1" % S_ONE)
    I("s_mov_b32 s%d, %d" % (S_LKV, L_KV))
    I("s_add_u32 s%d, s%d, 0x%x" % (S_CKV, ptr(D_WS), C_KV))
    I("s_addc_u32 s%d, s%d, 0" % (S_CKV + 1, ptr(D_WS) + 1))
    cnt_wait(a, 'init')
    block_bases(a, S_T0, S_PXB, S_PXB2, S_T1)
    I("s_mov_b32 s%d, s%d" % (S_KV, S_PXB))
    l3 = a.uid("L_init3")
    I("s_cmp_lg_u32 s%d, 3" % S_W)
    I("s_cbranch_scc1 %s" % l3)
    cnt_wait(a, 'kv', S_STEP)
    kv_prefetch(a)
    if 'nokv' in ABL:
        kv_prefetch(a)
    I("s_waitcnt vmcnt(0)")
    a.L(l3)
    for l in slots():
        I(l)
    lab = a.uid("L_init")
    I("s_cmp_lg_u32 s%d, 0" % S_W)
    I("s_cbranch_scc1 %s" % lab)
    for i in range(2):
        I("v_cmp_eq_u32 vcc, s%d, v%d" % (S_SENT, V_R + i))
        I("s_nop 1")
        I("v_cndmask_b32 v%d, v%d, -1, vcc" % (V_R + i, V_R + i))
    I("buffer_store_dwordx2 %s, v%d, %s, s%d offen" % (vr2(V_R), V_MEMST, W, S_MEMC))
    kv_prefetch(a, ())
    I("s_setprio %d" % PRIO)
    a.L(lab)
    I("s_barrier")
    HOOK.get('loopstart', lambda: None)()
    if STAMP:
        for i in range(10):
            I("s_mov_b32 s%d, 0" % (S_ACC + i))
        I("s_memtime s[%d:%d]" % (S_ST, S_ST + 1))
    n0 = len(a.lines)
    loop = step_loop(a, name, "")
    if STAMP == 1:
        k = next(i for i in range(n0, len(a.lines)) if "buffer_load" in a.lines[i])
        a.lines.insert(k, loop + "_nd:")
    for line in COLD:
        a.raw(line)
    del COLD[:]
    a.L(ABORT[0])
    I("s_mov_b64 exec, 1")
    I("v_mov_b32 v1, s%d" % S_STEP)
    I("v_or_b32 v1, 0xdead0000, v1")
    I("v_mov_b32 v2, 124")
    I("buffer_store_dword v1, v2, s[%d:%d], 0 offen" % (S_TMPSRD, S_TMPSRD + 3))
    a.L(name + "_done")
    if STAMP == 2:
        I("s_memrealtime s[%d:%d]" % (S_ST + 2, S_ST + 3))
        I("s_waitcnt lgkmcnt(0)")
        I("s_sub_u32 s%d, s%d, s%d" % (S_ACC, S_ST + 2, S_ST))
        I("s_mul_i32 s%d, s%d, 10" % (S_ACC, S_ACC))
    if STAMP:
        I("s_mov_b64 exec, -1")
        I("v_mov_b32 v%d, 0" % V_R)
        for i in range(9):
            I("v_writelane_b32 v%d, s%d, %d" % (V_R, S_ACC + i, i))
        I("v_writelane_b32 v%d, s%d, 15" % (V_R, S_SPIN))
        I("s_lshl_b32 s56, s%d, 5" % S_X)
        I("s_add_u32 s56, s56, s%d" % S_J)
        I("s_lshl_b32 s56, s56, 2")
        I("s_add_u32 s56, s56, s%d" % S_W)
        I("s_lshl_b32 s56, s56, 8")
        I("s_add_u32 s56, s56, 0x%x" % (WS_DBG + 4096))
        I("v_lshrrev_b32 v%d, 2, v%d" % (V_R + 1, V_LIN))
        I("buffer_store_dword v%d, v%d, %s, s56 offen" % (V_R, V_R + 1, W))
    HOOK.get('done', lambda: None)()
    I("s_endpgm")
```

```python
A_X, A_LRE, A_LIM, A_BRE, A_BIM, A_CRE, A_CIM, A_LOGDT, A_DSKIP, B_X, B_MEM0, B_WQ, B_WK, B_WV, B_WO, B_SEG, D_OUT, D_DBG, D_WS = range(19)
MB = 1 << 20
PTR0 = 64
def ptr(i):
    return PTR0 + 2 * i

WS_B = 0
WS_HT = 68 * MB
WS_MISC = 80 * MB
WS_P = 128 * MB
KM_OFF, VM_OFF = 3072, 3584

XCH = WS_MISC
X_MEM = XCH
X_SX = XCH + 256 * 1024
X_OX = X_SX + 1024 * 1024
XCH_END = X_OX + 256 * 1024
XCH_BYTES = XCH_END - XCH
WS_SSM = 88 * MB
WS_CNT = 89 * MB
C_KV = WS_CNT
C_H = C_KV + 64 * 128
C_O = C_H + 64 * 128
C_RDY = C_O + 256 * 128
C_TKT = C_RDY + 40 * 128
C_SEQ = C_TKT + 8 * 128
CNT_BYTES = 65536
WS_SIZE = 268435456
WS_DBG = 100 * MB
WS_INB = 104 * MB
INB_OP = 1 * MB
SENT = 0xFF81FF81

DB_INIT = 0
DB_PROG = 4
DB_OVF = 8
DB_RANK = 24
TL_NAMES = [(23, 'init'), (16, 'weights'), (11, 'loopstart'), (9, 'chain_end'), (17, 'panel'), (29, 'kvq_panel'), (18, 'kv_end'), (28, 'q_run'), (19, 'q_end'), (20, 'g1_end'), (22, 'g2_run'), (15, 'g2_end'), (21, 'panel2'), (24, 'att3_go'), (25, 'att3_done'), (26, 'op_lastgo'), (27, 'op_lastrun'), (14, 'op_end'), (10, 'end')]
TL_PAIRS = [(17, 18), (17, 19), (17, 20), (17, 15), (21, 14), (11, 9)]
```

```python
from asmlib import *
from layout import *
import os

E = lambda k, d: int(os.environ.get(k, str(d)))

S_SRC = 8
S_WSR = 12
S_AUX = 16
S_OFF = 20
S_WD = 21
S_B = 22
S_END = 23
S_DB = 24
S_T = 25
S_AUX2 = 32
S_SPIN = 36
S_NOF = 53
S_XW, S_RK, S_WV = 40, 41, 49
S_EVEN, S_ODD = 54, 55
OOB = 0x7ff00000

V_DMA = 8
V_RD = 12
V_FR = 20
V_ACC = 52
V_E = 84
L_Q = 131072
SPIN_LIMIT = 1 << 22
RD_AHEAD = 6


def v4(r):
    return "v[%d:%d]" % (r, r + 3)


def v2(r):
    return "v[%d:%d]" % (r, r + 1)


def srd(r):
    return "s[%d:%d]" % (r, r + 3)


class Stream:
    def __init__(self, a, name, kind, wa, rowmap=None, step=1):
        self.a, self.name, self.kind, self.wa, self.rowmap, self.step = a, name, kind, wa, rowmap, step
        self.qadv = {'row': 512, 'chunk': 65536, 'lin': 16384}[kind]
        self.rpf = 1
        self.cold = []

    def setup(self, s_kt=None):
        I = self.a.I
        self.a.C("---- stream %s setup" % self.name)
        I("s_lshl_b32 s%d, s%d, 12" % (S_WD, S_WV))
        I("v_and_b32 v1, 63, v0")
        I("v_and_b32 v2, 15, v0")
        I("v_bfe_u32 v3, v0, 4, 2")
        I("v_lshrrev_b32 v4, 6, v0")
        if self.kind == 'row':
            for j in range(4):
                I("v_lshrrev_b32 v5, 5, v1")
                I("v_lshl_add_u32 v5, v4, 3, v5")
                I("v_add_u32 v5, %d, v5" % (2 * j))
                if self.rowmap == 'kv':
                    I("v_and_b32 v6, 7, v5")
                    I("v_lshrrev_b32 v7, 4, v5")
                    I("v_lshl_add_u32 v6, v7, 3, v6")
                else:
                    I("v_and_b32 v6, 3, v5")
                    I("v_lshrrev_b32 v7, 3, v5")
                    I("v_lshl_add_u32 v6, v7, 2, v6")
                I("v_and_b32 v7, 31, v1")
                I("v_xor_b32 v6, v6, v7")
                I("v_lshlrev_b32 v6, 4, v6")
                I("v_lshl_add_u32 v%d, v5, 11, v6" % (V_DMA + j))
            if self.rowmap == 'kv':
                I("v_and_b32 v5, 8, v2")
                I("v_add_u32 v5, v5, v2")
            else:
                I("v_and_b32 v5, 12, v2")
                I("v_add_u32 v5, v5, v2")
            for k in range(4):
                I("v_add_u32 v6, %d, v3" % (4 * k))
                I("v_xor_b32 v6, v6, v2")
                I("v_lshlrev_b32 v6, 4, v6")
                I("v_lshl_add_u32 v%d, v5, 9, v6" % (V_RD + k))
            nrd = 4
        else:
            ch = self.kind == 'chunk'
            I("v_lshlrev_b32 v5, 4, v1")
            I("v_lshl_add_u32 v5, v4, %d, v5" % (14 if ch else 12))
            for j in range(4):
                I("v_add_u32 v%d, %d, v5" % (V_DMA + j, (j >> 1) * 4096 + (j & 1) * 1024 if ch else j * 1024))
            I("v_lshlrev_b32 v5, 4, v2")
            I("v_lshl_add_u32 v5, v3, 9, v5")
            I("s_lshl_b32 s%d, s%d, 8" % (S_T, s_kt))
            I("v_add_u32 v%d, s%d, v5" % (V_RD, S_T))
            I("v_xor_b32 v%d, 0x100, v%d" % (V_RD + 1, V_RD))
            nrd = 2
        for k in range(nrd):
            I("v_add_u32 v%d, 0x10000, v%d" % (V_RD + 4 + k, V_RD + k))

    def read(self, P, f):
        q, s, t = f >> 4, (f >> 1) & 7, f & 1
        d = V_FR + 4 * (f % 8)
        b = V_RD + 4 * P
        if self.kind == 'row':
            toff = 4096 if self.rowmap == 'kv' else 2048
            return ["ds_read_b128 %s, v%d offset:%d" % (v4(d), b + (s & 3), q * 16384 + t * toff + (s >> 2) * 256)]
        return ["ds_read_b128 %s, v%d offset:%d" % (v4(d), b + t, q * 16384 + s * 2048)]

    def dma(self, slot, j):
        return ("s_add_u32 m0, s%d, %d" % (S_WD, slot * 16384 + j * 1024),
                "buffer_load_dwordx4 v%d, %s, s%d offen lds" % (V_DMA + j, srd(S_SRC), S_OFF))

    def acc(self, P, t, c):
        return V_ACC + 16 * P + 4 * (2 * t + c)

    def mfma(self, P, m):
        f, c = m >> 1, m & 1
        s, t = f >> 1, f & 1
        fr, w, d = v4(V_FR + 4 * (f % 8)), "a[%d:%d]" % ((2 * s + c) * 4, (2 * s + c) * 4 + 3), v4(self.acc(P, t, c))
        x, y = (w, fr) if self.wa else (fr, w)
        return "v_mfma_f32_16x16x32_bf16 %s, %s, %s, %s" % (d, x, y, "0" if s == 0 else d)

    def run(self, advance, side, flush, first=None):
        a, I = self.a, self.a.I
        a.C("---- stream %s: prologue" % self.name)
        I("s_barrier")
        for Q in range(7):
            if Q == 4:
                self.emit_plain(advance(False))
                I("s_mov_b32 s%d, s%d" % (S_OFF, S_NOF))
            for j in range(4 if Q < 6 else 1):
                m0, ld = self.dma(Q, j)
                I(m0)
                I("s_nop 0")
                I(ld)
            if Q not in (3, 6):
                I("s_add_u32 s%d, s%d, %d" % (S_OFF, S_OFF, self.qadv))
        if first:
            first()
        I("s_waitcnt vmcnt(21)")
        I("s_barrier")
        for f in range(RD_AHEAD):
            for l in self.read(0, f):
                I(l)
        I("s_waitcnt lgkmcnt(%d)" % ((RD_AHEAD - 2) * self.rpf))
        seq = []
        for P in range(2):
            seq.append(self.body(P, advance, side))
        allit = seq[0] + seq[1]
        n = len(allit)
        for i, it in enumerate(allit):
            if isinstance(it, tuple) and it[0] == 'wait':
                best = 63
                for tag in it[1]:
                    cnt, k, cntd = 0, i, 0
                    while True:
                        k = (k - 1) % n
                        o = allit[k]
                        assert k != i, tag
                        if isinstance(o, tuple) and o[0] == 'vm':
                            if o[2] == tag:
                                break
                            cnt += 1
                            cntd += o[2].startswith('dma')
                    best = min(best, cntd if tag.startswith('dma') else cnt)
                allit[i] = "s_waitcnt vmcnt(%d)" % best
        for i, it in enumerate(allit):
            if isinstance(it, tuple) and it[0] == 'lwait':
                cnt, k = 0, i
                while True:
                    k = (k - 1) % n
                    o = allit[k]
                    if isinstance(o, tuple) and o[0] == 'ds' and o[2] == it[1]:
                        break
                    cnt += (o[1] if isinstance(o, tuple) else o).startswith("ds_")
                allit[i] = "s_waitcnt lgkmcnt(%d)" % min(cnt, 15)
        loop, f0, end = a.uid("L_st"), a.uid("L_fl0"), a.uid("L_ste")
        if E("ALIGN", 0):
            a.raw(".p2align %d" % E("ALIGN", 0))
            for _ in range(E("ALOFF", 0)):
                I("s_nop 0")
        a.L(loop)
        k = 0
        for P in range(2):
            a.C("---- stream %s: block, set %d" % (self.name, P))
            for it in allit[k:k + len(seq[P])]:
                self.emit(it)
            k += len(seq[P])
            I("s_add_u32 s%d, s%d, %d" % (S_B, S_B, self.step))
            I("s_cmp_ge_u32 s%d, s%d" % (S_B, S_END))
            I("s_cbranch_scc1 %s" % f0 if P == 0 else "s_cbranch_scc0 %s" % loop)
        I("s_waitcnt lgkmcnt(0)")
        I("s_nop 7")
        flush(1)
        I("s_branch %s" % end)
        for l in self.cold:
            a.raw(l)
        self.cold = []
        a.L(f0)
        I("s_waitcnt lgkmcnt(0)")
        I("s_nop 7")
        flush(0)
        if self.cold:
            I("s_branch %s" % end)
            for l in self.cold:
                a.raw(l)
            self.cold = []
        a.L(end)

    def emit(self, it):
        if isinstance(it, tuple):
            assert it[0] in ('vm', 'ds'), it
            it = it[1]
        if it.endswith(":"):
            self.a.raw(it)
        else:
            self.a.I(it)

    def emit_plain(self, items):
        for it in items:
            if isinstance(it, list):
                self.emit_plain(it)
            elif isinstance(it, tuple) and it[0] == 'wait':
                self.a.I("s_waitcnt vmcnt(0)")
            elif isinstance(it, tuple) and it[0] == 'lwait':
                self.a.I("s_waitcnt lgkmcnt(0)")
            elif isinstance(it, tuple) and it[0] == 'sync':
                self.a.I("s_waitcnt vmcnt(0)")
                self.a.I("s_barrier")
            else:
                self.emit(it)

    def body(self, P, advance, side):
        gaps = [[] for _ in range(128)]
        load = [0] * 128
        syncs = {}
        sd = side(1 - P)
        if E("TRACE", 0):
            ti = {'k': 0, 'v': 0, 'q': 0, 'g1': 0, 'g2': 0, 'op': 1}[self.name]
            sd = list(sd) + [(0, 1, ["s_memrealtime s[4:5]"]),
                             (30, 127, ["v_mov_b32 v7, s4", "s_lshl_b32 s6, s2, 7", "s_add_u32 s6, s6, s%d" % S_B, "s_lshl_b32 s6, s6, 2",
                                       "s_add_u32 s6, s6, 0x%x" % (WS_DBG + 0xc0000 + ti * 256), "v_min_u32 v6, 1, v0", "v_lshlrev_b32 v6, 30, v6",
                                       ('vm', "buffer_store_dword v7, v6, %s, s6 offen" % srd(S_WSR), 'trc')])]
        for m0, m1, items in sd:
            for it in items:
                if isinstance(it, tuple) and it[0] == 'sync':
                    assert m0 % 32 > 20
                    syncs.setdefault(m0 // 32, []).append(it[1])

        def put(m, it, cost=1):
            if isinstance(it, list):
                for x in it:
                    put(m, x)
                return
            if isinstance(it, tuple) and it[0] == 'wait' and not isinstance(it[1], list):
                it = ('wait', [it[1]])
            gaps[m].append(it)
            load[m] += cost
        for f in range(64):
            q, fl = f >> 4, f & 15
            m = 2 * f
            if fl == 10:
                put(m, ('wait', ['dma%d' % ((4 * P + q + 1) % 8)] + syncs.get(q, [])))
                put(m, "s_barrier")
            fn = f + RD_AHEAD
            rd = self.read(P, fn) if fn < 64 else self.read(1 - P, fn - 64)
            for u, l in enumerate(rd):
                put(m + (u if f % 2 == 0 else 0), l)
            if fl % 4 == 0:
                j = {12: 0, 0: 1, 4: 2, 8: 3}[fl]
                slot = (4 * P + q + (7 if j < 1 else 6)) % 8
                m0, ld = self.dma(slot, j)
                put(m, m0)
                put(m + 1, ('vm', ld, 'dma%d' % slot), 2)
            if f % 2 == 1:
                put(m + 1, "s_waitcnt lgkmcnt(%d)" % ((RD_AHEAD - 2) * self.rpf))
        for q in range(4):
            put(32 * q + 21, "s_mov_b32 s%d, s%d" % (S_OFF, S_NOF) if q == 1 else "s_add_u32 s%d, s%d, %d" % (S_OFF, S_OFF, self.qadv))
        vmfree = set(range(5, 128, 8))
        isvm = lambda it: isinstance(it, tuple) and it[0] == 'vm'
        for m0, m1, items in [(32 + 6, 32 + 19, advance(True))] + list(sd):
            items = [it for it in items if not (isinstance(it, tuple) and it[0] == 'sync')]
            n = sum(len(it) if isinstance(it, list) else 1 for it in items)
            if not n:
                continue
            cap = 2
            room = lambda m: max(cap - load[m] - (1 if m in vmfree else 0), 0)
            while sum(room(m) for m in range(m0, m1 + 1)) < n:
                cap += 1
            free = []
            for m in range(m0, m1 + 1):
                free += [m] * room(m)
            i, lo = 0, m0
            nvm = sum(isvm(it) for it in items)
            for it in items:
                m = max(free[(i * len(free)) // n], lo)
                if isvm(it):
                    cand = sorted(x for x in vmfree if lo <= x <= m1)
                    assert len(cand) >= nvm, (self.name, m0, m1, it)
                    cand = cand[:len(cand) - nvm + 1]
                    m = min(cand, key=lambda x: abs(x - m))
                    vmfree.discard(m)
                    nvm -= 1
                    put(m, it, 2)
                else:
                    if nvm:
                        cand = sorted(x for x in vmfree if x <= m1)
                        m = max(min(m, cand[len(cand) - nvm]), lo)
                    put(m, it)
                lo = m
                i += len(it) if isinstance(it, list) else 1
        out = []
        for m in range(128):
            out.append(self.mfma(P, m))
            out.extend(gaps[m])
        return out


def load_panel_t(a, s_base, stride, order, s_kc=None, flags=""):
    I = a.I
    a.C("---- weight panel (transposing)")
    vg, vr = V_FR, V_FR + 1
    I("v_and_b32 v1, 15, v0")
    I("v_bfe_u32 v2, v0, 4, 2")
    I("v_lshrrev_b32 v3, 6, v0")
    I("v_lshlrev_b32 v4, 2, v2")
    I("v_xor_b32 v4, v4, v1")
    I("v_lshlrev_b32 v4, 4, v4")
    I("v_lshl_add_u32 v5, v3, 5, v2")
    I("s_mov_b32 s%d, %d" % (S_T, stride))
    I("v_mul_lo_u32 v5, v5, s%d" % S_T)
    I("v_add_u32 v%d, v5, v4" % vg)
    I("v_bfe_u32 v4, v0, 2, 2")
    I("v_lshl_add_u32 v5, v2, 3, v4")
    I("v_lshlrev_b32 v5, 8, v5")
    I("v_xor_b32 v4, v4, v3")
    I("v_lshl_add_u32 v5, v4, 6, v5")
    I("v_and_b32 v4, 3, v0")
    I("v_lshl_add_u32 v5, v4, 3, v5")
    if order == 'kv':
        I("v_and_b32 v4, 2, v4")
        I("v_lshl_add_u32 v%d, v4, 3, v5" % vr)
        I("v_add_u32 v%d, 16, v%d" % (vr + 1, vr))
    else:
        I("s_lshl_b32 s%d, s%d, 5" % (S_T, s_kc))
        I("v_add_u32 v%d, s%d, v5" % (vr, S_T))
        I("v_xor_b32 v%d, 32, v%d" % (vr + 1, vr))
    I("v_add_u32 v%d, 0x10000, v%d" % (vr + 2, vr))
    I("v_add_u32 v%d, 0x10000, v%d" % (vr + 3, vr + 1))
    I("s_lshl_b32 s%d, s%d, 13" % (S_T + 1, S_WV))
    I("s_mov_b32 s%d, s%d" % (S_T, s_base))

    def issue(p):
        for jj in range(8):
            I("s_add_u32 m0, s%d, %d" % (S_T + 1, (p % 4) * 32768 + jj * 1024))
            I("s_add_u32 s%d, s%d, %d" % (S_T + 2, S_T, (p * 128 + 4 * jj) * stride))
            I("buffer_load_dwordx4 v%d, %s, s%d offen lds%s" % (vg, srd(S_AUX), S_T + 2, flags))
    I("s_barrier")
    for p in range(4):
        issue(p)
    for p in range(8):
        I("s_waitcnt vmcnt(%d)" % (8 * min(3, 7 - p)))
        I("s_barrier")
        for k in range(4):
            for c in range(2):
                for u in range(2):
                    d = (2 * (4 * p + k) + c) * 4 + 2 * u
                    I("ds_read_b64_tr_b16 a[%d:%d], v%d offset:%d" % (d, d + 1, vr + c + 2 * ((p % 4) >> 1), (p & 1) * 32768 + k * 8192 + u * 1024))
            if k % 2 == 1:
                I("s_waitcnt lgkmcnt(0)")
        if p + 4 < 8:
            I("s_barrier")
            issue(p + 4)


def load_panel_n(a, vaddr, srds, soffs):
    I = a.I
    a.C("---- weight panel (direct)")
    n = 0
    for s in range(32):
        for c in range(2):
            d = (2 * s + c) * 4
            if n >= 56:
                I("s_waitcnt vmcnt(55)")
            I("buffer_load_dwordx4 a[%d:%d], v%d, %s, %s offen offset:%d" % (d, d + 3, vaddr, srd(srds[c]), soffs[c], s * 64))
            n += 1
    I("s_waitcnt vmcnt(0)")
```

```python
from asmlib import *
from layout import *
from stream import *
import stream, os

EMU = E("EMU", 1)
HSC = "" if E("HPLAIN", 0) else " sc1"
WS = srd(S_WSR)
S_VAL = 37
S_P0, S_P1, S_P2, S_P3 = 38, 39, 42, 43
S_K0, S_K1, S_K2, S_K3, S_K4, S_K5 = 44, 45, 46, 47, 48, 50
S_F1 = 51
S_PO = 7
S_CNT = 52
S_M = 56
V_ONE, V_SIG, V_ST, V_G = V_E, V_E + 1, V_E + 2, V_E + 3
V_X = V_E + 4
L_GATE = L_Q
ABORT = [None]
TLP = [None]


def cvt(d, x, y):
    return "v_cvt_pk_bf16_f32 v%d, v%d, v%d" % (d, x, y)


def common(a):
    I = a.I
    a.srd(S_WSR, ptr(D_WS), 0, WS_SIZE)
    I("s_mov_b32 s%d, 0" % S_SPIN)
    I("v_mov_b32 v%d, 1" % V_ONE)
    I("v_min_u32 v%d, 1, v0" % V_SIG)
    I("v_lshlrev_b32 v%d, 30, v%d" % (V_SIG, V_SIG))


def signal(s_off):
    return ('vm', "buffer_atomic_add v%d, v%d, %s, s%d offen sc1" % (V_ONE, V_SIG, WS, s_off), 'sig')


def spin_check(a):
    a.I("s_add_u32 s%d, s%d, 1" % (S_SPIN, S_SPIN))
    a.I("s_cmp_gt_u32 s%d, 0x%x" % (S_SPIN, SPIN_LIMIT))
    a.I("s_cbranch_scc1 %s" % ABORT[0])


def poll(a, srd_, s_off, target, mask=False, sleep=4):
    I = a.I
    rt, ok = a.uid("L_pl"), a.uid("L_plok")
    I("v_mov_b32 v2, 0")
    a.L(rt)
    I("buffer_load_dword v1, v2, %s, s%d offen sc1" % (srd(srd_), s_off))
    spin_check(a)
    I("s_waitcnt vmcnt(0)")
    I("v_readfirstlane_b32 s%d, v1" % (S_T + 1))
    if mask:
        I("s_and_b32 s%d, s%d, 0xffff" % (S_T + 2, S_T + 1))
    I("s_cmp_ge_u32 s%d, %d" % (S_T + 2 if mask else S_T + 1, target))
    I("s_cbranch_scc1 %s" % ok)
    I("s_sleep %d" % sleep)
    I("s_branch %s" % rt)
    a.L(ok)


def wait_init(a, bases):
    I = a.I
    a.srd(S_AUX2, ptr(D_DBG), 0, 256)
    I("s_mov_b32 s%d, %d" % (S_T, DB_INIT))
    poll(a, S_AUX2, S_T, 256, mask=True)
    bases(a, S_T + 1, S_EVEN, S_ODD, S_T)


def adv_plain(stream_):
    return ["s_add_u32 s%d, s%d, 1" % (S_DB, S_DB),
            "s_min_u32 s%d, s%d, 63" % (S_DB, S_DB),
            "s_lshl_b32 s%d, s%d, 16" % (S_NOF, S_DB)]


def start_plain(a):
    I = a.I
    for s in (S_B, S_DB, S_OFF, S_VAL):
        I("s_mov_b32 s%d, 0" % s)
    I("s_mov_b32 s%d, 64" % S_END)


def valid(*regs):
    return ["s_cmp_eq_u32 s%d, 0" % S_VAL] + ["s_cselect_b32 s%d, 0x%x, s%d" % (r, OOB, r) for r in regs]


def proj_panel(a):
    I = a.I
    I("s_mov_b32 s%d, s%d" % (S_T, S_XW))
    I("s_cmp_eq_u32 s%d, 1" % S_T)
    I("s_cselect_b32 s%d, s%d, s%d" % (S_AUX, ptr(B_WV), ptr(B_WK)))
    I("s_cselect_b32 s%d, s%d, s%d" % (S_AUX + 1, ptr(B_WV) + 1, ptr(B_WK) + 1))
    I("s_cmp_eq_u32 s%d, 2" % S_T)
    I("s_cselect_b32 s%d, s%d, s%d" % (S_AUX, ptr(B_WQ), S_AUX))
    I("s_cselect_b32 s%d, s%d, s%d" % (S_AUX + 1, ptr(B_WQ) + 1, S_AUX + 1))
    I("s_and_b32 s%d, s%d, 0xffff" % (S_AUX + 1, S_AUX + 1))
    I("s_mov_b32 s%d, 0x%x" % (S_AUX + 2, 8 * MB))
    I("s_mov_b32 s%d, 0x00020000" % (S_AUX + 3))
    I("s_mov_b32 s%d, s%d" % (S_K2, S_RK))
    I("s_lshl_b32 s%d, s%d, 8" % (S_K0, S_K2))
    load_panel_t(a, S_K0, 8192, 'kv')
    a.srd(S_SRC, ptr(B_X), 0, 4 * MB)
    Stream(a, "p", 'row', True, 'kv').setup()
    I("v_lshlrev_b32 v%d, 4, v5" % V_ST)
    I("v_lshl_add_u32 v%d, v3, 9, v%d" % (V_ST, V_ST))
    I("s_lshl_b32 s%d, s%d, 15" % (S_K0, S_K2))
    I("s_lshr_b32 s%d, s%d, 1" % (S_T, S_WV))
    I("s_lshl_b32 s%d, s%d, 14" % (S_T, S_T))
    I("s_add_u32 s%d, s%d, s%d" % (S_K0, S_K0, S_T))
    I("s_and_b32 s%d, s%d, 1" % (S_T, S_WV))
    I("s_lshl_b32 s%d, s%d, 12" % (S_T, S_T))
    I("s_add_u32 s%d, s%d, s%d" % (S_K0, S_K0, S_T))
    start_plain(a)


def pack(st, P, isv):
    out = []
    for h in range(2):
        for k in range(2):
            r = st.acc(P, k, h) if isv else st.acc(P, h, k)
            out += [cvt(V_X + 4 * h + 2 * k, r, r + 1), cvt(V_X + 4 * h + 2 * k + 1, r + 2, r + 3)]
    return out


def run_kv(a, isv):
    st = Stream(a, "v" if isv else "k", 'row', not isv, 'kv')

    def side(P):
        par = ["s_sub_u32 s%d, s%d, 1" % (S_P1, S_B),
               ["s_bitcmp1_b32 s%d, 1" % S_P1, "s_cselect_b32 s%d, s%d, s%d" % (S_P0, S_ODD, S_EVEN)],
               "s_add_u32 s%d, s%d, s%d" % (S_P0, S_P0, S_K0),
               "s_lshl_b32 s%d, s%d, 20" % (S_P2, S_P1),
               "s_add_u32 s%d, s%d, s%d" % (S_P0, S_P0, S_P2),
               "s_lshl_b32 s%d, s%d, 7" % (S_P1, S_P1),
               "s_add_u32 s%d, s%d, 0x%x" % (S_P1, S_P1, C_KV),
               valid(S_P0, S_P1)]
        pk = pack(st, P, isv)
        sto = lambda h: ('vm', "buffer_store_dwordx4 %s, v%d, %s, s%d offen offset:%d sc1" % (v4(V_X + 4 * h), V_ST, WS, S_P0, 2048 * isv + 128 * h), 'st')
        q = E("KVSIGQ", 2)
        return [(0, 22, par[:] + pk[:4] + [sto(0)] + pk[4:] + [sto(1)]),
                (32 * q + 21, 32 * q + 30, [('sync', 'st'), signal(S_P1), "s_mov_b32 s%d, 1" % S_VAL])]

    def flush(P):
        for _, _, items in side(P):
            st.emit_plain(items)
    st.run(adv_plain, side, flush)


A_AD = 96
A_KX, A_QF, A_VT, A_SX, A_VM, A_P, A_T, A_BI = 104, 136, 168, 200, 216, 224, 234, 240
A_SM = V_ACC + 16


def attn_setup(a):
    I = a.I
    a.C("---- attention setup")
    lin, km, vt, vm, ost = range(A_AD, A_AD + 5)
    I("v_and_b32 v1, 31, v0")
    I("v_bfe_u32 v2, v0, 5, 1")
    I("v_and_b32 v%d, 63, v0" % lin)
    I("v_lshlrev_b32 v%d, 4, v%d" % (lin, lin))
    I("v_and_b32 v4, 7, v1")
    I("v_lshlrev_b32 v4, 4, v4")
    I("v_lshl_add_u32 v%d, v2, 7, v4" % km)
    I("v_bfe_u32 v5, v1, 2, 1")
    I("v_lshlrev_b32 v5, 4, v5")
    I("v_lshrrev_b32 v6, 3, v1")
    I("v_lshl_add_u32 v5, v6, 2, v5")
    I("v_and_b32 v6, 3, v1")
    I("v_add_u32 v5, v5, v6")
    I("v_lshlrev_b32 v5, 4, v5")
    I("v_lshl_add_u32 v%d, v2, 9, v5" % vt)
    I("v_lshl_add_u32 v%d, v2, 3, v5" % vm)
    I("v_lshlrev_b32 v4, 4, v1")
    I("v_lshl_add_u32 v%d, v2, 10, v4" % ost)
    I("v_lshrrev_b32 v4, 6, v0")
    I("v_lshl_add_u32 v%d, v4, 13, v%d" % (A_AD + 5, lin))
    I("v_add_u32 v%d, 0x%x, v%d" % (A_AD + 5, L_Q, A_AD + 5))
    I("v_lshl_add_u32 v%d, v4, 11, v%d" % (V_ST, V_ST))
    I("v_add_u32 v%d, 0x%x, v%d" % (V_ST, L_Q, V_ST))
    I("v_and_b32 v%d, 63, v0" % V_SIG)
    I("v_min_u32 v%d, 1, v%d" % (V_SIG, V_SIG))
    I("v_lshlrev_b32 v%d, 30, v%d" % (V_SIG, V_SIG))
    I("v_lshlrev_b32 v4, 2, v2")
    I("v_sub_u32 v4, v1, v4")
    I("v_mov_b32 v5, 0xff800000")
    for i in range(16):
        I("v_cmp_gt_i32 vcc, %d, v4" % (8 * (i // 4) + (i % 4)))
        I("s_nop 1")
        I("v_cndmask_b32 v%d, 0, v5, vcc" % (A_BI + i))


def attn_group(a):
    I = a.I
    lin, km, vt, vm, ost, qrd = range(A_AD, A_AD + 6)
    sg, sk, so, st_, c1, c2 = S_P0, S_P1, S_P2, S_P3, S_T + 3, S_T + 4
    m32 = lambda d, x, y, c: "v_mfma_f32_32x32x16_bf16 v[%d:%d], %s, %s, %s" % (d, d + 15, v4(x), v4(y), "0" if c is None else "v[%d:%d]" % (c, c + 15))
    a.C("---- attention")
    I("s_waitcnt lgkmcnt(0)")
    I("s_barrier")
    for ks in range(8):
        I("ds_read_b128 %s, v%d offset:%d" % (v4(A_QF + 4 * ks), qrd, ks * 1024))
    I("s_add_u32 s%d, s%d, s%d" % (sg, S_B, S_WV))
    I("s_sub_u32 s%d, s%d, 4" % (sg, sg))
    I("s_lshl_b32 s%d, s%d, 7" % (S_T, sg))
    I("s_add_u32 s%d, s%d, 0x%x" % (S_T, S_T, C_KV))
    poll(a, S_WSR, S_T, 64)
    I("s_lshl_b32 s%d, s%d, 20" % (S_T, sg))
    I("s_lshl_b32 s%d, s%d, 15" % (S_T + 1, S_K2))
    I("s_add_u32 s%d, s%d, s%d" % (S_T, S_T, S_T + 1))
    I("s_bitcmp1_b32 s%d, 1" % sg)
    I("s_cselect_b32 s%d, s%d, s%d" % (sk, S_ODD, S_EVEN))
    I("s_cselect_b32 s%d, s%d, s%d" % (so, S_EVEN, S_ODD))
    I("s_add_u32 s%d, s%d, s%d" % (sk, sk, S_T))
    I("s_add_u32 s%d, s%d, s%d" % (so, so, S_T))
    boff = lambda c: (c >> 1) * 16384 + (c & 1) * 4096
    for ks in range(8):
        if ks % 2 == 0:
            I("s_add_u32 s%d, s%d, %d" % (st_, sk, boff(ks >> 1)))
        I("buffer_load_dwordx4 %s, v%d, %s, s%d offen offset:%d" % (v4(A_KX + 4 * ks), lin, WS, st_, 1024 * (ks & 1)))
    for t in range(4):
        I("s_add_u32 s%d, s%d, %d" % (st_, sk, boff(t)))
        for kp in range(2):
            I("buffer_load_dwordx4 %s, v%d, %s, s%d offen offset:%d" % (v4(A_VT + (t * 2 + kp) * 4), vt, WS, st_, 2048 + kp * 1024))
    I("s_waitcnt lgkmcnt(0)")
    for ks in range(8):
        I("s_waitcnt vmcnt(%d)" % (8 + 7 - ks))
        I(m32(A_SX, A_KX + 4 * ks, A_QF + 4 * ks, None if ks == 0 else A_SX))
    rt, ok = a.uid("L_cw"), a.uid("L_cwok")
    I("s_lshr_b32 s%d, s%d, 3" % (S_T, S_K2))
    I("s_lshl_b32 s%d, s%d, 2" % (S_T, S_T))
    I("s_add_u32 s%d, s%d, %d" % (S_T, S_T, DB_FIN))
    I("v_mov_b32 v2, s%d" % S_T)
    I("v_writelane_b32 v2, %d, 0" % DB_PROG)
    a.L(rt)
    I("buffer_load_dword v1, v2, %s, 0 offen sc1" % srd(S_AUX2))
    spin_check(a)
    I("s_waitcnt vmcnt(0)")
    I("v_readlane_b32 s%d, v1, 0" % S_T)
    I("v_readlane_b32 s%d, v1, 1" % (S_T + 1))
    I("s_cmp_gt_u32 s%d, s%d" % (S_T, sg))
    I("s_cbranch_scc1 %s" % ok)
    I("s_cmp_ge_u32 s%d, 32" % (S_T + 1))
    I("s_cbranch_scc1 %s" % ok)
    I("s_sleep 4")
    I("s_branch %s" % rt)
    a.L(ok)
    KM = A_KX
    for ks in range(8):
        if ks % 2 == 0:
            I("s_add_u32 s%d, s%d, 0x%x" % (st_, sk, WS_P - WS_B + boff(ks >> 1)))
        I("buffer_load_dwordx4 %s, v%d, %s, s%d offen offset:%d" % (v4(KM + 4 * ks), km, WS, st_, KM_OFF + 256 * (ks & 1)))
    for t in range(4):
        I("s_add_u32 s%d, s%d, 0x%x" % (st_, sk, WS_P - WS_B + boff(t)))
        I("buffer_load_dwordx2 %s, v%d, %s, s%d offen offset:%d" % (v2(A_VM + 2 * t), vm, WS, st_, VM_OFF))
    I("s_mov_b32 s%d, 0x%x" % (c1, 0x3fb8aa3b if EMU else 0x3e0293ee))
    I("s_mov_b32 s%d, 0x3db504f3" % c2)

    def emu(vals):
        if EMU:
            for v in vals:
                I("v_cvt_pk_bf16_f32 v%d, 0, v%d" % (v, v))
            for v in vals:
                I("v_mul_f32 v%d, s%d, v%d" % (v, c2, v))
            for v in vals:
                I("v_cvt_pk_bf16_f32 v%d, 0, v%d" % (v, v))
    emu(range(A_SX, A_SX + 16))
    for i in range(16):
        I("v_add_f32 v%d, v%d, v%d" % (A_SX + i, A_SX + i, A_BI + i))
    mx, t1 = A_T, A_T + 1
    I("v_max3_f32 v%d, v%d, v%d, v%d" % (mx, A_SX, A_SX + 1, A_SX + 2))
    I("v_max3_f32 v%d, v%d, v%d, v%d" % (t1, A_SX + 3, A_SX + 4, A_SX + 5))
    for i in range(6, 14, 4):
        I("v_max3_f32 v%d, v%d, v%d, v%d" % (mx, mx, A_SX + i, A_SX + i + 1))
        I("v_max3_f32 v%d, v%d, v%d, v%d" % (t1, t1, A_SX + i + 2, A_SX + i + 3))
    I("v_max3_f32 v%d, v%d, v%d, v%d" % (mx, mx, A_SX + 14, A_SX + 15))
    for ks in range(8):
        I("s_waitcnt vmcnt(%d)" % (4 + 7 - ks))
        I(m32(A_SM, KM + 4 * ks, A_QF + 4 * ks, None if ks == 0 else A_SM))
    I("s_nop 11")
    emu(range(A_SM, A_SM + 4))
    I("v_max3_f32 v%d, v%d, v%d, v%d" % (t1, t1, A_SM, A_SM + 1))
    I("v_max3_f32 v%d, v%d, v%d, v%d" % (mx, mx, A_SM + 2, A_SM + 3))
    I("v_max_f32 v%d, v%d, v%d" % (mx, mx, t1))
    I("v_mov_b32 v%d, v%d" % (t1, mx))
    I("s_nop 1")
    I("v_permlane32_swap_b32 v%d, v%d" % (mx, t1))
    I("s_nop 0")
    I("v_max_f32 v%d, v%d, v%d" % (mx, mx, t1))
    I("v_mul_f32 v%d, s%d, v%d" % (mx, c1, mx))
    vals = [A_SX + i for i in range(16)] + [A_SM + i for i in range(4)]
    for v in vals:
        I("v_fma_f32 v%d, v%d, s%d, -v%d" % (v, v, c1, mx))
    for v in vals:
        I("v_exp_f32 v%d, v%d" % (v, v))
    sm = A_T + 2
    I("v_pk_add_f32 %s, %s, %s" % (v2(sm), v2(A_SX), v2(A_SX + 2)))
    for v in list(range(A_SX + 4, A_SX + 16, 2)) + [A_SM, A_SM + 2]:
        I("v_pk_add_f32 %s, %s, %s" % (v2(sm), v2(sm), v2(v)))
    I("v_add_f32 v%d, v%d, v%d" % (sm, sm, sm + 1))
    I("v_mov_b32 v%d, v%d" % (t1, sm))
    I("s_nop 1")
    I("v_permlane32_swap_b32 v%d, v%d" % (sm, t1))
    I("s_nop 0")
    I("v_add_f32 v%d, v%d, v%d" % (sm, sm, t1))
    I("v_rcp_f32 v%d, v%d" % (sm, sm))
    I("s_nop 0")
    for v in list(range(A_SX, A_SX + 16, 2)) + [A_SM, A_SM + 2]:
        I("v_pk_mul_f32 %s, %s, %s op_sel_hi:[1,0]" % (v2(v), v2(v), v2(sm)))
    for i in range(8):
        I(cvt(A_P + i, A_SX + 2 * i, A_SX + 2 * i + 1))
    I(cvt(A_P + 8, A_SM, A_SM + 1))
    I(cvt(A_P + 9, A_SM + 2, A_SM + 3))
    I("s_waitcnt vmcnt(0)")
    I("s_nop 0")
    OA = A_KX
    for t in range(4):
        c = OA + 16 * t
        I("v_mfma_f32_32x32x8_bf16 v[%d:%d], %s, %s, 0" % (c, c + 15, v2(A_VM + 2 * t), v2(A_P + 8)))
    for kp in range(2):
        for t in range(4):
            c = OA + 16 * t
            I(m32(c, A_VT + (t * 2 + kp) * 4, A_P + 4 * kp, c))
    I("s_lshl_b32 s%d, s%d, 9" % (S_T, sg))
    I("s_lshr_b32 s%d, s%d, 3" % (S_T + 1, S_K2))
    I("s_lshl_b32 s%d, s%d, 7" % (S_T + 1, S_T + 1))
    I("s_add_u32 s%d, s%d, s%d" % (S_T, S_T, S_T + 1))
    I("s_add_u32 s%d, s%d, 0x%x" % (S_T, S_T, C_O))
    I("s_nop 4")
    for t in range(4):
        c = OA + 16 * t
        o = A_VT + 8 * t
        for i in range(8):
            I(cvt(o + i, c + 2 * i, c + 2 * i + 1))
        I("s_add_u32 s%d, s%d, %d" % (st_, so, boff(t)))
        I("buffer_store_dwordx4 %s, v%d, %s, s%d offen offset:2048 sc1" % (v4(o), ost, WS, st_))
        I("buffer_store_dwordx4 %s, v%d, %s, s%d offen offset:2560 sc1" % (v4(o + 4), ost, WS, st_))
    I("s_waitcnt vmcnt(0)")
    I(signal(S_T)[1])


def run_q(a):
    I = a.I
    st = Stream(a, "q", 'row', True, 'kv')
    if E("WARM", 1):
        a.C("---- pull both token matrices into the memory-side cache, in stream order (the streams then miss only the L2)")
        a.srd(S_AUX, ptr(A_X), 0, 4 * MB)
        I("v_lshlrev_b32 v1, 4, v0")
        I("s_lshl_b32 s%d, s%d, 12" % (S_T, S_K2))
        lw = a.uid("L_warm")
        a.L(lw)
        for k in range(8):
            I("buffer_load_dwordx4 %s, v1, %s, s%d offen" % (v4(A_KX + 8 * k), srd(S_SRC), S_T))
            I("buffer_load_dwordx4 %s, v1, %s, s%d offen" % (v4(A_KX + 8 * k + 4), srd(S_AUX), S_T))
            I("s_add_u32 s%d, s%d, 0x20000" % (S_T, S_T))
        I("s_waitcnt vmcnt(16)")
        I("s_cmp_lt_u32 s%d, 0x%x" % (S_T, 4 * MB))
        I("s_cbranch_scc1 %s" % lw)
        I("s_waitcnt vmcnt(0)")
    attn_setup(a)
    att, ret, fin = a.uid("L_att"), a.uid("L_attr"), a.uid("L_attf")

    def items(P):
        pk = pack(st, P, False)
        wr = lambda h: "ds_write_b128 v%d, %s offset:%d" % (V_G, v4(V_X + 4 * h), 128 * h)
        return ["s_sub_u32 s%d, s%d, 1" % (S_P1, S_B),
                "s_and_b32 s%d, s%d, 3" % (S_P1, S_P1),
                "s_lshl_b32 s%d, s%d, 13" % (S_P1, S_P1),
                "v_add_u32 v%d, s%d, v%d" % (V_G, S_P1, V_ST), "s_nop 0", "s_nop 0"] + pk[:4] + [wr(0)] + pk[4:] + [wr(1)]

    def side(P):
        it = items(P)
        if P == 1:
            it = it + [["s_and_b32 s%d, s%d, 3" % (S_P1, S_B),
                        "s_cselect_b32 s%d, 0, s%d" % (S_P1, S_B),
                        "s_cmp_lg_u32 s%d, 0" % S_P1,
                        "s_cbranch_scc1 %s" % att, ret + ":"]]
        return [(1, 17, it)]

    def flush(P):
        if P == 1:
            st.emit_plain(items(P))
            a.L(att)
            attn_group(a)
            I("s_cmp_lt_u32 s%d, 64" % S_B)
            I("s_cbranch_scc1 %s" % ret)
    st.run(adv_plain, side, flush)


def run_g1(a, bases):
    I = a.I
    LR, LI, CR, CI, PR, PI, HR, HI = range(V_X, V_X + 8)
    Ea, Eb, T1, T2 = V_X + 8, V_X + 10, V_X + 12, V_X + 13
    G = V_X + 14
    Cs = V_X + 22
    OB = 120
    O = 128
    OT = 144
    HW, HR2 = 116, 117
    a.C("======== SSM input projection and scan")
    I("s_lshl_b32 s%d, s%d, 6" % (S_K2, S_RK))
    I("s_lshl_b32 s%d, s%d, 4" % (S_T, S_WV))
    I("s_add_u32 s%d, s%d, s%d" % (S_K2, S_K2, S_T))
    I("v_and_b32 v1, 15, v0")
    I("v_add_u32 v1, s%d, v1" % S_K2)
    I("v_bfe_u32 v2, v0, 4, 2")
    I("v_lshlrev_b32 v3, 1, v1")
    for i, src in enumerate((A_LRE, A_LIM, A_LOGDT)):
        a.srd(S_AUX, ptr(src), 0, 2048)
        I("buffer_load_ushort v%d, v3, %s, 0 offen" % (O + i, srd(S_AUX)))
    I("v_lshlrev_b32 v4, 4, v2")
    I("v_lshl_add_u32 v4, v1, 11, v4")
    a.srd(S_AUX, ptr(A_BRE), 0, 2 * MB)
    a.srd(S_AUX2, ptr(A_BIM), 0, 2 * MB)
    I("s_lshl_b32 s%d, s%d, 11" % (S_T, S_WV))
    I("s_add_u32 s%d, s%d, 0x%x" % (S_T, S_T, L_Q))
    I("v_bfe_u32 v5, v0, 1, 2")
    I("v_xor_b32 v5, v5, v2")
    I("v_lshlrev_b32 v5, 4, v5")
    I("v_and_b32 v6, 15, v0")
    I("v_lshl_add_u32 v5, v6, 6, v5")
    I("v_add_u32 v%d, s%d, v5" % (HW, S_T))
    I("v_bfe_u32 v5, v0, 5, 1")
    I("v_bfe_u32 v6, v0, 2, 2")
    I("v_lshl_add_u32 v5, v5, 3, v6")
    I("v_lshlrev_b32 v5, 6, v5")
    I("v_bfe_u32 v7, v0, 4, 1")
    I("v_lshlrev_b32 v7, 1, v7")
    I("v_bfe_u32 v%d, v0, 1, 1" % HR2)
    I("v_add_u32 v7, v7, v%d" % HR2)
    I("v_lshrrev_b32 v6, 1, v6")
    I("v_xor_b32 v7, v7, v6")
    I("v_lshl_add_u32 v5, v7, 4, v5")
    I("v_and_b32 v6, 1, v0")
    I("v_lshl_add_u32 v5, v6, 3, v5")
    I("v_add_u32 v%d, s%d, v5" % (HR2, S_T))
    I("v_xor_b32 v%d, 32, v%d" % (HR2 + 1, HR2))
    I("s_lshl_b32 s%d, s%d, 6" % (S_T, S_K2))
    I("v_and_b32 v5, 63, v0")
    I("v_lshlrev_b32 v5, 4, v5")
    I("v_add_u32 v%d, s%d, v5" % (V_ST, S_T))
    load_panel_n(a, 4, (S_AUX, S_AUX2), ("0", "0"))
    lre, lim, ldt, x0, x1, x2, x3 = O, O + 1, O + 2, O + 3, O + 4, O + 5, O + 6
    for r in (lre, lim, ldt):
        I("v_lshlrev_b32 v%d, 16, v%d" % (r, r))
    I("v_mul_f32 v%d, 0x3fb8aa3b, v%d" % (x0, ldt))
    I("v_exp_f32 v%d, v%d" % (x0, x0))
    I("s_nop 0")
    I("v_cvt_pk_bf16_f32 v%d, 0, v%d" % (x0, x0))
    I("v_mul_f32 v%d, v%d, v%d" % (x1, x0, lre))
    I("v_mul_f32 v%d, v%d, v%d" % (x2, x0, lim))
    I("v_mul_f32 v%d, 0x3fb8aa3b, v%d" % (x1, x1))
    I("v_exp_f32 v%d, v%d" % (x1, x1))
    I("v_mul_f32 v%d, 0x3e22f983, v%d" % (x2, x2))
    I("v_fract_f32 v%d, v%d" % (x2, x2))
    I("v_cos_f32 v%d, v%d" % (x3, x2))
    I("v_sin_f32 v%d, v%d" % (x2, x2))
    I("s_nop 0")
    I("v_mul_f32 v%d, v%d, v%d" % (LR, x1, x3))
    I("v_mul_f32 v%d, v%d, v%d" % (LI, x1, x2))
    I("v_add_f32 v%d, -1.0, v%d" % (x0, LR))
    I("v_mul_f32 v%d, v%d, v%d" % (x1, x0, lre))
    I("v_fma_f32 v%d, v%d, v%d, v%d" % (x1, LI, lim, x1))
    I("v_mul_f32 v%d, v%d, v%d" % (x2, LI, lre))
    I("v_fma_f32 v%d, -v%d, v%d, v%d" % (x2, x0, lim, x2))
    I("v_mul_f32 v%d, v%d, v%d" % (x3, lre, lre))
    I("v_fma_f32 v%d, v%d, v%d, v%d" % (x3, lim, lim, x3))
    I("v_rcp_f32 v%d, v%d" % (x3, x3))
    I("s_nop 0")
    I("v_add_f32 v%d, v%d, v%d" % (x3, x3, x3))
    I("v_mul_f32 v%d, v%d, v%d" % (CR, x1, x3))
    I("v_mul_f32 v%d, v%d, v%d" % (CI, x2, x3))
    I("v_mov_b32 v%d, v%d" % (PR, LR))
    I("v_mov_b32 v%d, v%d" % (PI, LI))
    for _ in range(3):
        I("v_mul_f32 v%d, v%d, v%d" % (x0, PI, PI))
        I("v_mul_f32 v%d, v%d, v%d" % (PI, PR, PI))
        I("v_fma_f32 v%d, v%d, v%d, -v%d" % (PR, PR, PR, x0))
        I("v_add_f32 v%d, v%d, v%d" % (PI, PI, PI))
    I("v_mov_b32 v%d, 0" % HR)
    I("v_mov_b32 v%d, 0" % HI)
    for i in range(16):
        I("v_mov_b32 v%d, 0" % (V_ACC + 16 + i))
    a.srd(S_SRC, ptr(A_X), 0, 4 * MB)
    st = Stream(a, "g1", 'row', False, 't8')
    st.setup()
    wait_init(a, bases)
    TLP[0](17)
    for k, (lo, hi) in enumerate(((0xffff0000, 0xffffffff), (0, 0xffffffff), (0, 0xffff0000))):
        I("s_mov_b32 s%d, 0x%x" % (S_M + 2 * k, lo))
        I("s_mov_b32 s%d, 0x%x" % (S_M + 2 * k + 1, hi))
    start_plain(a)
    for r in (S_P0, S_P1, S_P3):
        I("s_mov_b32 s%d, 0x%x" % (r, OOB))

    def cfma(dr, di, lr, li, xr, xi, ur, ui):
        return ["v_fma_f32 v%d, v%d, v%d, v%d" % (T1, lr, xr, ur),
                "v_fma_f32 v%d, v%d, v%d, v%d" % (T2, lr, xi, ui),
                "v_fma_f32 v%d, -v%d, v%d, v%d" % (dr, li, xi, T1),
                "v_fma_f32 v%d, v%d, v%d, v%d" % (di, li, xr, T2)]

    def scan(P):
        ur = lambda k: st.acc(P, k >> 2, 0) + (k & 3)
        ui = lambda k: st.acc(P, k >> 2, 1) + (k & 3)
        it = []
        xr, xi = ur(0), ui(0)
        for k in range(1, 8):
            d = (G, G + 4) if k == 7 else ((Ea, Ea + 1) if k % 2 else (Eb, Eb + 1))
            it += cfma(d[0], d[1], LR, LI, xr, xi, ur(k), ui(k))
            xr, xi = d
        it += ["v_mov_b32 v%d, v%d" % (G + 1, G), "v_mov_b32 v%d, v%d" % (G + 5, G + 4), "s_nop 1",
               "v_permlane16_swap_b32 v%d, v%d" % (G, G + 1), "v_permlane16_swap_b32 v%d, v%d" % (G + 4, G + 5)]
        it += ["v_mov_b32 v%d, v%d" % (G + 2 + i + 2 * (i >> 1), G + i + 2 * (i >> 1)) for i in range(4)] + ["s_nop 0"]
        it += ["v_permlane32_swap_b32 v%d, v%d" % (G + i + 2 * (i >> 1), G + 2 + i + 2 * (i >> 1)) for i in range(4)]
        xr, xi = HR, HI
        for j in range(3):
            it += cfma(Cs + 2 * j, Cs + 2 * j + 1, PR, PI, xr, xi, G + j, G + 4 + j)
            xr, xi = Cs + 2 * j, Cs + 2 * j + 1
            src = (HR, HI) if j == 0 else (Eb, Eb + 1)
            it += ["v_cndmask_b32 v%d, v%d, v%d, s[%d:%d]" % (Eb + u, src[u], Cs + 2 * j + u, S_M + 2 * j, S_M + 2 * j + 1) for u in range(2)]
        it += cfma(HR, HI, PR, PI, xr, xi, G + 3, G + 7)
        xr, xi = Eb, Eb + 1
        for k in range(8):
            d = (Ea, Ea + 1) if k % 2 == 0 else (Eb, Eb + 1)
            it += cfma(d[0], d[1], LR, LI, xr, xi, ur(k), ui(k))
            xr, xi = d
            it += ["v_mul_f32 v%d, v%d, v%d" % (O + k, CR, xr),
                   "v_mul_f32 v%d, v%d, v%d" % (O + 8 + k, CR, xi),
                   "v_fma_f32 v%d, -v%d, v%d, v%d" % (O + k, CI, xi, O + k),
                   "v_fma_f32 v%d, -v%d, v%d, -v%d" % (O + 8 + k, CI, xr, O + 8 + k)]
            if k % 2:
                it += [cvt(OB + k // 2, O + k - 1, O + k), cvt(OB + 4 + k // 2, O + 7 + k, O + 8 + k)]
        it += ["ds_write_b128 v%d, %s offset:%d" % (HW, v4(OB + 4 * k), 1024 * k) for k in range(2)]
        it += [('ds', "ds_read_b64_tr_b16 %s, v%d offset:%d" % (v2(OT + 4 * k + 2 * u), HR2 + u, 1024 * k + 256 * u), 'tr') for k in range(2) for u in range(2)]
        it += ["s_sub_u32 s%d, s%d, 1" % (S_P1, S_B),
               "s_lshl_b32 s%d, s%d, 17" % (S_P0, S_P1),
               "s_add_u32 s%d, s%d, 0x%x" % (S_P0, S_P0, WS_HT),
               "s_add_u32 s%d, s%d, 0x10000" % (S_P3, S_P0),
               "s_lshl_b32 s%d, s%d, 7" % (S_P1, S_P1),
               "s_add_u32 s%d, s%d, 0x%x" % (S_P1, S_P1, C_H),
               valid(S_P0, S_P1, S_P3),
               "s_mov_b32 s%d, 1" % S_VAL]
        return it
    sto = [('lwait', 'tr'),
           ('vm', "buffer_store_dwordx4 %s, v%d, %s, s%d offen%s" % (v4(OT), V_ST, WS, S_P0, HSC), 'st0'),
           ('vm', "buffer_store_dwordx4 %s, v%d, %s, s%d offen%s" % (v4(OT + 4), V_ST, WS, S_P3, HSC), 'st')]
    sig = [('sync', 'st'), signal(S_P1)]

    def side(P):
        return [(4, 14, sto), (64 + 21, 64 + 30, sig), (3, 127, scan(P))]

    def flush(P):
        st.emit_plain(sto + sig + scan(P) + sto + sig)
    st.run(adv_plain, side, flush)


class Reduce:
    R = V_X
    SUM = V_X + 12
    SEN = V_X + 20
    LIN = V_X + 24
    TR, TW = V_X + 25, V_X + 26
    OWN = V_X + 28
    F = V_X + 36

    def __init__(self, a, st, sends, owns, target, cshift, src_addr, lead):
        self.a, self.st, self.sends, self.owns = a, st, sends, owns
        self.target, self.cshift, self.src_addr, self.lead = target, cshift, src_addr, lead

    def prepare(self, s_rdy):
        I = self.a.I
        for i in range(4):
            I("v_mov_b32 v%d, 0x%x" % (self.SEN + i, SENT))
        I("v_and_b32 v%d, 63, v0" % self.LIN)
        I("v_lshlrev_b32 v%d, 4, v%d" % (self.LIN, self.LIN))
        sh = len(self.owns) - 1
        I("v_lshrrev_b32 v1, 6, v0")
        I("v_lshlrev_b32 v1, 11, v1")
        I("v_add_u32 v1, 0x%x, v1" % (L_GATE + 4096))
        I("v_bfe_u32 v2, v0, 3, %d" % (2 + sh))
        I("v_lshlrev_b32 v2, 4, v2")
        I("v_xor_b32 v2, v2, v%d" % self.LIN)
        I("v_add_u32 v%d, v1, v2" % self.TR)
        I("v_and_b32 v2, 15, v0")
        I("v_lshl_add_u32 v1, v2, %d, v1" % (6 + sh))
        I("v_bfe_u32 v2, v0, 4, 2")
        I("v_lshlrev_b32 v2, %d, v2" % sh)
        I("v_bfe_u32 v3, v0, %d, %d" % (1 - sh, 2 + sh))
        I("v_xor_b32 v2, v2, v3")
        I("v_lshl_add_u32 v%d, v2, 4, v1" % self.TW)
        I("v_xor_b32 v%d, 16, v%d" % (self.TW + 1, self.TW))
        for sl in range(8):
            I("s_add_u32 s%d, s%d, %d" % (S_T, S_K0, sl * 4096))
            for j in range(len(self.sends)):
                I("buffer_store_dwordx4 %s, v%d, %s, s%d offen offset:%d sc1" % (v4(self.SEN), self.LIN, WS, S_T, (j + 1) * 1024))
        I("s_waitcnt vmcnt(0)")
        I("s_barrier")
        I(signal(s_rdy)[1])

    def advance(self, stream_):
        step = self.st.step
        if stream_:
            it = ["v_readfirstlane_b32 s%d, v1" % S_F1,
                  "s_add_u32 s%d, s%d, %d" % (S_T + 5, S_B, step),
                  ["s_cmp_eq_u32 s%d, s%d" % (S_T + 5, S_DB), "s_cselect_b32 s%d, s%d, 0" % (S_F1, S_F1)]]
        else:
            it = []
        it += [["s_cmp_ge_u32 s%d, %d" % (S_F1, self.target), "s_cselect_b32 s%d, %d, 0" % (S_T + 5, step)],
               "s_add_u32 s%d, s%d, s%d" % (S_DB, S_DB, S_T + 5),
               "s_add_u32 s%d, s%d, s%d" % (S_END, S_END, S_T + 5)]
        return it + self.src_addr()

    def caddr(self, d, s_blk, add):
        return ["s_add_u32 s%d, s%d, %d" % (d, s_blk, add),
                ["s_cmp_lt_u32 s%d, 64" % d, "s_cselect_b32 s%d, s%d, 0x%x" % (d, d, 0x40000000 >> self.cshift)],
                "s_lshl_b32 s%d, s%d, %d" % (d, d, self.cshift),
                "s_add_u32 s%d, s%d, s%d" % (d, d, S_K4)]

    def gate(self):
        return [(4, 5, [('wait', 'gate'), "ds_write_b32 v3, v%d" % V_G]),
                (22, 23, ["ds_read_b32 v1, v2"]),
                (52, 62, self.caddr(S_T + 5, S_DB, self.st.step) + [('vm', "buffer_load_dword v%d, v4, %s, s%d offen sc1" % (V_G, WS, S_T + 5), 'gate')])]

    def loads(self):
        return [('vm', "buffer_load_dwordx4 %s, v%d, %s, s%d offen offset:%d sc1" % (v4(self.R + 4 * j), self.LIN, WS, S_P1, (j + 1) * 1024), 'rcv')
                for j in range(len(self.sends))]

    def sums(self):
        R, S, o = self.R, self.SUM, self.OWN
        pa = lambda d, x, y: "v_add_f32 v%d, v%d, v%d" % (d, x, y)
        it = []
        if len(self.owns) == 1:
            for i in range(4):
                it += [pa(S + i, o + i, R + i), pa(S + 4 + i, R + 4 + i, R + 8 + i)]
            it += [pa(S + i, S + i, S + 4 + i) for i in range(4)]
            it += [pa(S + 4, S, S + 1), pa(S + 5, S + 2, S + 3), "v_cmp_u_f32 vcc, v%d, v%d" % (S + 4, S + 5)]
        else:
            it += [pa(S + i, o + i, R + i) for i in range(8)]
            T = R + 8
            it += [pa(T + i, S + i, S + 4 + i) for i in range(4)]
            it += [pa(T, T, T + 1), pa(T + 2, T + 2, T + 3), "v_cmp_u_f32 vcc, v%d, v%d" % (T, T + 2)]
        return it

    def send(self, P):
        st = self.st
        it = ["s_add_u32 s%d, s%d, 0x1000" % (S_P0, S_P0),
              "s_and_b32 s%d, s%d, 0x7000" % (S_P0, S_P0),
              ["s_cmp_eq_u32 s%d, 0" % S_VAL, "s_cselect_b32 s%d, 0x%x, s%d" % (S_T + 6, 0x40000000, S_P0)], "s_nop 0"]
        for tc, sk, off in self.sends:
            it += ["s_add_u32 s%d, s%d, s%d" % (S_T + 4, sk, S_T + 6),
                   ('vm', "buffer_store_dwordx4 %s, v%d, %s, s%d offen offset:%d sc1" % (v4(st.acc(P, *tc)), self.LIN, WS, S_T + 4, off), 'snd')]
        return it

    def finish(self, final):
        a, st = self.a, self.st
        n, no = len(self.sends), len(self.owns)
        bad, ok = a.uid("L_rbad"), a.uid("L_rok")
        C = st.cold
        C.append(bad + ":")
        if E("TL", 0):
            C.append("    s_add_u32 s%d, s%d, 1" % (S_CNT, S_CNT))
        C.extend("    " + l[1] for l in self.loads())
        C += ["    s_add_u32 s%d, s%d, 1" % (S_SPIN, S_SPIN), "    s_cmp_gt_u32 s%d, 0x%x" % (S_SPIN, SPIN_LIMIT),
              "    s_cbranch_scc1 %s" % ABORT[0], "    s_waitcnt vmcnt(0)"]
        regs = list(range(self.R, self.R + 4 * n))
        C.append("    v_max_u32 v%d, v%d, v%d" % (self.SUM, regs[0], regs[1]))
        for i in range(2, len(regs), 2):
            C.append("    v_max3_u32 v%d, v%d, v%d, v%d" % (self.SUM, self.SUM, regs[i], regs[i + 1]))
        C += ["    v_cmp_eq_u32 vcc, v%d, v%d" % (self.SEN, self.SUM), "    s_cbranch_vccnz %s" % bad]
        C.extend("    " + l for l in self.sums())
        C.append("    s_branch %s" % ok)
        poi = [('vm', "buffer_store_dwordx4 %s, v%d, %s, s%d offen offset:%d sc1" % (v4(self.SEN), self.LIN, WS, S_PO, (j + 1) * 1024), 'poi') for j in range(n)]
        one = [('wait', 'rcv')] + self.sums() + ["s_nop 0", "s_nop 0", ["s_cbranch_vccnz %s" % bad, ok + ":"]]
        one += ["ds_write_b128 v%d, %s" % (self.TW + k, v4(self.SUM + 4 * k)) for k in range(no)]
        one += [('ds', "ds_read_b128 %s, v%d offset:%d" % (v4(self.R + 4 * k), self.TR, 1024 * k), 'tr') for k in range(no)]
        return one, [('lwait', 'tr')] + final, poi

    def fetch(self, P, params, pre):
        it = []
        for k, tc in enumerate(self.owns):
            it += ["v_mov_b32 v%d, v%d" % (self.OWN + 4 * k + i, self.st.acc(P, *tc) + i) for i in range(4)]
        it += ["s_mov_b32 s%d, s%d" % (S_PO, S_P1), "s_add_u32 s%d, s%d, s%d" % (S_P1, S_K0, S_T + 6)] + params + self.loads() + ["s_mov_b32 s%d, 1" % S_VAL]
        return it

    def runs(self, params, pre, final):
        a, I, st = self.a, self.a.I, self.st
        step = st.step
        top, rt, go, done = (a.uid(x) for x in ("L_run", "L_rw", "L_rgo", "L_rdone"))
        I("s_mov_b32 s%d, 0" % S_P0)
        I("s_mov_b32 s%d, 0" % S_CNT)
        I("v_mov_b32 v2, 0x%x" % L_GATE)
        I("v_lshl_add_u32 v3, v0, 2, v2")
        I("v_mov_b32 v4, 0")
        a.L(top)
        I("s_cmp_ge_u32 s%d, 64" % S_B)
        I("s_cbranch_scc1 %s" % done)
        I("s_add_u32 s%d, s%d, %d" % (S_T + 3, S_B, self.lead * step))
        I("s_min_u32 s%d, s%d, 63" % (S_T + 3, S_T + 3))
        st.emit_plain(self.caddr(S_T, S_T + 3, 0) + self.caddr(S_T + 1, S_B, step) + self.caddr(S_T + 2, S_B, 2 * step))
        a.L(rt)
        for k in range(3):
            I("buffer_load_dword v%d, v4, %s, s%d offen sc1" % (self.R + k, WS, S_T + k))
        spin_check(a)
        I("s_waitcnt vmcnt(0)")
        I("s_barrier")
        I("v_lshl_add_u32 v1, v0, 4, v2")
        I("ds_write_b128 v1, %s" % v4(self.R))
        I("s_waitcnt lgkmcnt(0)")
        I("s_barrier")
        I("ds_read_b128 %s, v2" % v4(self.R))
        I("s_waitcnt lgkmcnt(0)")
        I("v_readfirstlane_b32 s%d, v%d" % (S_T + 3, self.R))
        I("s_cmp_ge_u32 s%d, %d" % (S_T + 3, self.target))
        I("s_cbranch_scc1 %s" % go)
        I("s_sleep 2")
        I("s_branch %s" % rt)
        a.L(go)
        if E("TL", 0):
            I("s_add_u32 s%d, s%d, 0x10000" % (S_CNT, S_CNT))
        I("v_readfirstlane_b32 s%d, v%d" % (S_F1, self.R + 1))
        I("v_mov_b32 v%d, v%d" % (V_G, self.R + 2))
        I("s_mov_b32 s%d, s%d" % (S_DB, S_B))
        I("s_add_u32 s%d, s%d, %d" % (S_END, S_B, step))
        I("s_mov_b32 s%d, 0" % S_VAL)
        I("s_sub_u32 s%d, s%d, 0x1000" % (S_P0, S_P0))
        st.emit_plain(self.src_addr())
        I("s_mov_b32 s%d, s%d" % (S_OFF, S_NOF))
        for r in (S_P1, S_P2, S_P3, S_PO):
            I("s_mov_b32 s%d, 0x%x" % (r, OOB))
        f0, f1, f2 = E("XF0", 62), E("XF1", 80), E("XF2", 104)
        if pre:
            final = [('wait', pre[-1][2])] + final

        def side(P):
            one, two, poi = self.finish(final)
            xa = os.environ.get("XA", "")
            isvm = lambda it, tags: isinstance(it, tuple) and it[0] == 'vm' and it[2] in tags
            if 'noout' in xa:
                two = [it for it in two if not isvm(it, ('out',))]
            if 'nofin' in xa:
                two = []
            if 'nopoi' in xa:
                poi = []
            if 'nochk' in xa:
                one = [it if not isinstance(it, list) else it[1] for it in one]
            if 'nowait' in xa:
                one = one[1:]
            snd, fe, ga = self.send(P), self.fetch(P, params, pre), self.gate()
            if 'nosnd' in xa:
                snd = [it for it in snd if not isvm(it, ('snd',))]
            if 'norcv' in xa:
                fe = [it for it in fe if not isvm(it, ('rcv',))]
            if 'nox' in xa:
                fe = [it for it in fe if not isvm(it, ('x',))]
            if 'noone' in xa:
                one = [it for it in one if isinstance(it, str) and it.endswith(":")]
            if 'nofe' in xa:
                fe = []
                snd = []
            if 'nogate' in xa:
                ga = [(22, 23, ["v_mov_b32 v1, 64"])]
                fe = fe + ["s_min_u32 s%d, s%d, 64" % (S_END, S_END)]
            return ga + [(0, 22, snd), (f0, f1 - 4, one), (f1, f2 - 1, two), (f2, 127, fe), (24, 54, pre + poi)]

        def flush(P):
            one, two, poi = self.finish(final)
            st.emit_plain(self.send(P) + pre + poi + one + two + self.fetch(P, params, pre) + pre + poi)
            one, two, poi = self.finish(final)
            st.emit_plain(one + two + ["s_mov_b32 s%d, s%d" % (S_PO, S_P1)] + poi)
        st.run(self.advance, side, flush)
        I("s_branch %s" % top)
        a.L(done)


def run_g2(a, bases):
    I = a.I
    a.C("======== SSM output projection")
    st = Stream(a, "g2", 'lin', True)
    kh = S_K3

    def src_addr():
        return ["s_lshl_b32 s%d, s%d, 17" % (S_NOF, S_DB), "s_add_u32 s%d, s%d, s%d" % (S_NOF, S_NOF, S_K5)]
    rd = Reduce(a, st, [((1, 0), S_K1, 1024), ((1, 1), S_K1, 2048)], [(0, 0), (0, 1)], 16, 7, src_addr, E("G2LEAD", 3))
    DV, XV, XA, OA_ = rd.F, rd.F + 4, rd.F + 8, rd.F + 10
    T = rd.F + 12
    I("s_and_b32 s%d, s%d, 15" % (S_K2, S_RK))
    I("s_and_b32 s%d, s%d, 1" % (kh, S_K2))
    I("s_cmp_eq_u32 s%d, 1" % kh)
    I("s_cselect_b32 s%d, s%d, s%d" % (S_AUX, ptr(A_CIM), ptr(A_CRE)))
    I("s_cselect_b32 s%d, s%d, s%d" % (S_AUX + 1, ptr(A_CIM) + 1, ptr(A_CRE) + 1))
    I("s_and_b32 s%d, s%d, 0xffff" % (S_AUX + 1, S_AUX + 1))
    I("s_mov_b32 s%d, 0x%x" % (S_AUX + 2, 2 * MB))
    I("s_mov_b32 s%d, 0x00020000" % (S_AUX + 3))
    I("s_lshr_b32 s%d, s%d, 1" % (S_T, S_K2))
    I("s_lshl_b32 s%d, s%d, 7" % (S_T, S_T))
    I("s_lshl_b32 s%d, s%d, 5" % (S_T + 1, S_WV))
    I("s_add_u32 s%d, s%d, s%d" % (S_T, S_T, S_T + 1))
    I("v_and_b32 v1, 15, v0")
    I("v_bfe_u32 v2, v0, 4, 2")
    I("v_and_b32 v3, 12, v1")
    I("v_add3_u32 v3, v3, v1, s%d" % S_T)
    I("v_lshlrev_b32 v4, 4, v2")
    I("v_lshl_add_u32 v4, v3, 11, v4")
    I("v_and_b32 v5, 7, v0")
    I("v_lshl_add_u32 v5, v5, 2, s%d" % S_T)
    I("s_lshl_b32 s%d, s%d, 4" % (S_T + 1, kh))
    I("v_bfe_u32 v6, v0, 3, 3")
    I("v_add_u32 v6, s%d, v6" % (S_T + 1))
    I("v_lshlrev_b32 v7, 1, v5")
    I("v_lshl_add_u32 v%d, v6, 11, v7" % XA)
    I("v_add_u32 v%d, 0x4000, v%d" % (XA + 1, XA))
    I("v_lshlrev_b32 v5, 2, v5")
    I("v_lshl_add_u32 v%d, v6, 13, v5" % OA_)
    I("v_add_u32 v%d, 0x10000, v%d" % (OA_ + 1, OA_))
    a.srd(S_AUX2, ptr(A_DSKIP), 0, 2048)
    I("buffer_load_dwordx2 %s, v7, %s, 0 offen" % (v2(XV), srd(S_AUX2)))
    I("s_mov_b32 s%d, 8192" % (S_T + 2))
    load_panel_n(a, 4, (S_AUX, S_AUX), ("0", "s%d" % (S_T + 2)))
    for i in range(2):
        I("v_lshlrev_b32 v%d, 16, v%d" % (DV + 2 * i, XV + i))
        I("v_and_b32 v%d, 0xffff0000, v%d" % (DV + 2 * i + 1, XV + i))
    wait_init(a, bases)
    I("s_lshl_b32 s%d, s%d, 17" % (S_K0, S_K2))
    I("s_lshl_b32 s%d, s%d, 15" % (S_T, S_WV))
    I("s_add_u32 s%d, s%d, s%d" % (S_K0, S_K0, S_T))
    I("s_xor_b32 s%d, s%d, 0x20000" % (S_K1, S_K0))
    I("s_add_u32 s%d, s%d, 0x%x" % (S_K0, S_K0, WS_INB))
    I("s_add_u32 s%d, s%d, 0x%x" % (S_K1, S_K1, WS_INB))
    I("s_lshr_b32 s%d, s%d, 1" % (S_K4, S_K2))
    I("s_lshl_b32 s%d, s%d, 7" % (S_K4, S_K4))
    I("s_add_u32 s%d, s%d, 0x%x" % (S_K4, S_K4, C_RDY + 32 * 128))
    rd.prepare(S_K4)
    poll(a, S_WSR, S_K4, 2)
    I("s_mov_b32 s%d, 0x%x" % (S_K4, C_H))
    I("s_lshl_b32 s%d, s%d, 16" % (S_K5, kh))
    I("s_add_u32 s%d, s%d, 0x%x" % (S_K5, S_K5, WS_HT))
    a.srd(S_SRC, ptr(D_WS), 0, WS_SIZE)
    a.srd(S_AUX, ptr(D_OUT), 0, 16 * MB)
    a.srd(S_AUX2, ptr(A_X), 0, 4 * MB)
    st.setup(kh)
    TLP[0](17)
    I("s_mov_b32 s%d, 0" % S_B)
    params = ["s_sub_u32 s%d, s%d, 1" % (S_P3, S_B),
              "s_lshl_b32 s%d, s%d, 16" % (S_P2, S_P3),
              "s_lshl_b32 s%d, s%d, 18" % (S_P3, S_P3),
              valid(S_P2, S_P3)]
    pre = [('vm', "buffer_load_dwordx2 %s, v%d, %s, s%d offen" % (v2(XV + 2 * k), XA + k, srd(S_AUX2), S_P2), 'x') for k in range(2)]
    final = []
    for i in range(4):
        final += ["v_lshlrev_b32 v%d, 16, v%d" % (T, XV + i),
                  "v_and_b32 v%d, 0xffff0000, v%d" % (T + 1, XV + i),
                  "v_mul_f32 v%d, v%d, v%d" % (T, T, DV + 2 * (i & 1)),
                  "v_mul_f32 v%d, v%d, v%d" % (T + 1, T + 1, DV + 2 * (i & 1) + 1),
                  "v_cvt_pk_bf16_f32 v%d, 0, v%d" % (T, T),
                  "v_cvt_pk_bf16_f32 v%d, 0, v%d" % (T + 1, T + 1),
                  "v_add_f32 v%d, v%d, v%d" % (rd.SUM + 2 * i, rd.R + 2 * i, T),
                  "v_add_f32 v%d, v%d, v%d" % (rd.SUM + 2 * i + 1, rd.R + 2 * i + 1, T + 1)]
        if i & 1:
            final.append(('vm', "buffer_store_dwordx4 %s, v%d, %s, s%d offen" % (v4(rd.SUM + 2 * i - 2), OA_ + i // 2, srd(S_AUX), S_P3), 'out'))
    rd.runs(params, pre, final)


def run_op(a):
    I = a.I
    a.C("======== attention output projection")
    st = Stream(a, "op", 'chunk', True, step=3)
    u, kq, nt, kt, kc = S_P0, S_P1, S_P2, S_P3, S_F1

    def src_addr():
        return [["s_bitcmp1_b32 s%d, 1" % S_DB, "s_cselect_b32 s%d, s%d, s%d" % (S_NOF, S_EVEN, S_ODD)],
                "s_lshl_b32 s%d, s%d, 20" % (S_T + 5, S_DB),
                "s_add_u32 s%d, s%d, s%d" % (S_NOF, S_NOF, S_T + 5),
                "s_add_u32 s%d, s%d, s%d" % (S_NOF, S_NOF, S_K5)]
    rd = Reduce(a, st, [((0, 1), S_K1, 1024), ((1, 0), S_K2, 2048), ((1, 1), S_K3, 3072)], [(0, 0)], 8, 9, src_addr, 0)
    OA_ = rd.F
    I("s_mov_b32 s%d, s%d" % (u, S_RK))
    I("s_and_b32 s%d, s%d, 3" % (kq, u))
    I("s_lshr_b32 s%d, s%d, 2" % (nt, u))
    I("s_lshr_b32 s%d, s%d, 1" % (kt, kq))
    I("s_and_b32 s%d, s%d, 1" % (kc, kq))
    I("s_min_u32 s%d, s%d, 2" % (S_B, S_XW))
    I("s_lshl_b32 s%d, s%d, 5" % (S_K0, S_XW))
    I("s_add_u32 s%d, s%d, s%d" % (S_K0, S_K0, u))
    I("s_lshl_b32 s%d, s%d, 17" % (S_K0, S_K0))
    I("s_lshl_b32 s%d, s%d, 15" % (S_T, S_WV))
    I("s_add_u32 s%d, s%d, s%d" % (S_K0, S_K0, S_T))
    for j, r in enumerate((S_K1, S_K2, S_K3)):
        I("s_xor_b32 s%d, s%d, 0x%x" % (r, S_K0, (j + 1) << 17))
        I("s_add_u32 s%d, s%d, 0x%x" % (r, r, WS_INB + INB_OP))
    I("s_add_u32 s%d, s%d, 0x%x" % (S_K0, S_K0, WS_INB + INB_OP))
    I("s_lshl_b32 s%d, s%d, 3" % (S_K4, S_XW))
    I("s_lshr_b32 s%d, s%d, 2" % (S_T, u))
    I("s_add_u32 s%d, s%d, s%d" % (S_K4, S_K4, S_T))
    I("s_lshl_b32 s%d, s%d, 7" % (S_K4, S_K4))
    I("s_add_u32 s%d, s%d, 0x%x" % (S_K4, S_K4, C_RDY))
    rd.prepare(S_K4)
    a.srd(S_AUX, ptr(B_WO), 0, 8 * MB)
    I("s_lshl_b32 s%d, s%d, 21" % (S_K5, kq))
    I("s_lshl_b32 s%d, s%d, 8" % (S_T, nt))
    I("s_add_u32 s%d, s%d, s%d" % (S_K5, S_K5, S_T))
    load_panel_t(a, S_K5, 2048, 'nat', kc)
    poll(a, S_WSR, S_K4, 4)
    I("s_lshl_b32 s%d, s%d, 9" % (S_T, nt))
    I("s_lshl_b32 s%d, s%d, 7" % (S_T + 1, S_WV))
    I("s_add_u32 s%d, s%d, s%d" % (S_T, S_T, S_T + 1))
    I("s_lshl_b32 s%d, s%d, 6" % (S_T + 1, kc))
    I("s_add_u32 s%d, s%d, s%d" % (S_T, S_T, S_T + 1))
    I("s_lshl_b32 s%d, s%d, 17" % (S_T + 1, kt))
    I("s_add_u32 s%d, s%d, s%d" % (S_T, S_T, S_T + 1))
    I("s_add_u32 s%d, s%d, 4096" % (S_T, S_T))
    I("v_bfe_u32 v1, v0, 2, 4")
    I("v_and_b32 v2, 3, v0")
    I("v_lshlrev_b32 v1, 13, v1")
    I("v_lshl_add_u32 v1, v2, 4, v1")
    I("v_add_u32 v%d, s%d, v1" % (OA_, S_T))
    I("s_lshl_b32 s%d, s%d, 7" % (S_K4, kq))
    I("s_add_u32 s%d, s%d, 0x%x" % (S_K4, S_K4, C_O))
    I("s_lshl_b32 s%d, s%d, 18" % (S_K5, kq))
    I("s_add_u32 s%d, s%d, 2048" % (S_K5, S_K5))
    a.srd(S_SRC, ptr(D_WS), 0, WS_SIZE)
    a.srd(S_AUX, ptr(D_OUT), 0, 16 * MB)
    st.setup(kt)
    TLP[0](21)
    params = ["s_sub_u32 s%d, s%d, 3" % (S_P3, S_B),
              "s_lshl_b32 s%d, s%d, 18" % (S_P3, S_P3),
              valid(S_P3)]
    final = ["v_cvt_pk_bf16_f32 v%d, 0, v%d" % (rd.SUM + i, rd.R + i) for i in range(4)]
    final += [('vm', "buffer_store_dwordx4 %s, v%d, %s, s%d offen" % (v4(rd.SUM), OA_, srd(S_AUX), S_P3), 'out')]
    rd.runs(params, [], final)


def worker(a, abort, bases, tlp):
    I = a.I
    ABORT[0], TLP[0] = abort, tlp
    lv, lq, l1, l2, lop = (a.uid(x) for x in ("L_v", "L_q", "L_g1", "L_g2", "L_op"))
    common(a)
    I("s_cmp_eq_u32 s%d, 3" % S_XW)
    I("s_cbranch_scc1 %s" % l1)
    proj_panel(a)
    wait_init(a, bases)
    tlp(17)
    I("s_cmp_eq_u32 s%d, 2" % S_XW)
    I("s_cbranch_scc1 %s" % lq)
    I("s_cmp_eq_u32 s%d, 1" % S_XW)
    I("s_cbranch_scc1 %s" % lv)
    run_kv(a, False)
    tlp(18)
    I("s_branch %s" % lop)
    a.L(lv)
    run_kv(a, True)
    tlp(18)
    I("s_branch %s" % lop)
    a.L(lq)
    run_q(a)
    tlp(19)
    I("s_branch %s" % abort)
    a.L(l1)
    I("s_cmp_ge_u32 s%d, 16" % S_RK)
    I("s_cbranch_scc1 %s" % l2)
    run_g1(a, bases)
    tlp(20)
    I("s_branch %s" % lop)
    a.L(l2)
    run_g2(a, bases)
    tlp(15)
    a.L(lop)
    run_op(a)
    tlp(14)
```

```python
import sys, os
sys.path.insert(0, os.path.dirname(os.path.abspath(__file__)))
from asmlib import *
from layout import *
import chain2 as chain
import work

NAME = "concat_heads__ssm_conv_s5__memory_aug_recurrent_mem_tr__prompt"
HEADER = open(os.path.join(os.path.dirname(os.path.abspath(__file__)), "header.txt")).read()
E = chain.E
TL = E("TL", 0)

S_XW, S_RK, S_WV = 40, 41, 49
S_EVEN, S_ODD = 54, 55


def load_ptrs(a):
    I = a.I
    I("s_load_dwordx16 s[%d:%d], s[0:1], 0" % (PTR0, PTR0 + 15))
    I("s_load_dwordx16 s[%d:%d], s[0:1], 64" % (PTR0 + 16, PTR0 + 31))
    I("s_load_dwordx4 s[%d:%d], s[0:1], 128" % (PTR0 + 32, PTR0 + 35))
    I("s_load_dwordx2 s[%d:%d], s[0:1], 144" % (PTR0 + 36, PTR0 + 37))
    I("s_waitcnt lgkmcnt(0)")


def tl_probe(a, idx, v=249):
    if not TL:
        return
    I = a.I
    I("s_memrealtime s[58:59]")
    I("s_memtime s[56:57]")
    a.srd(60, ptr(D_WS), WS_DBG + 0x80000, 65536)
    I("s_waitcnt lgkmcnt(0)")
    I("s_lshl_b32 s59, s2, 8")
    I("v_mov_b32 v%d, s58" % (v + 1))
    I("v_mov_b32 v%d, s56" % v)
    I("v_lshlrev_b32 v%d, 16, v0" % (v + 2))
    I("buffer_store_dword v%d, v%d, s[60:63], s59 offen offset:%d" % (v + 1, v + 2, idx * 4))
    I("buffer_store_dword v%d, v%d, s[60:63], s59 offen offset:%d" % (v, v + 2, 128 + idx * 4))
    if v == 5 and idx in (15, 14):
        I("v_mov_b32 v%d, s%d" % (v, work.S_CNT))
        I("buffer_store_dword v%d, v%d, s[60:63], s59 offen offset:%d" % (v, v + 2, (idx - 14) * 4))


def role_assign(a, name):
    I = a.I
    I("s_getreg_b32 s16, hwreg(HW_REG_XCC_ID)")
    I("s_and_b32 s16, s16, 7")
    I("v_lshrrev_b32 v1, 6, v0")
    I("s_nop 0")
    I("v_readfirstlane_b32 s18, v1")
    lab = a.uid("L_role")
    I("s_cmp_lg_u32 s18, 0")
    I("s_cbranch_scc1 %s" % lab)
    I("s_lshl_b32 s3, s16, 2")
    I("s_add_u32 s3, s3, %d" % DB_RANK)
    I("s_mov_b32 s17, 1")
    I("s_atomic_add s17, s[%d:%d], s3 glc" % (ptr(D_DBG), ptr(D_DBG) + 1))
    I("v_mov_b32 v2, %d" % chain.L_ROLE)
    I("s_waitcnt lgkmcnt(0)")
    I("v_mov_b32 v1, s17")
    I("ds_write_b32 v2, v1")
    I("s_waitcnt lgkmcnt(0)")
    a.L(lab)
    I("s_barrier")
    I("v_mov_b32 v2, %d" % chain.L_ROLE)
    I("ds_read_b32 v1, v2")
    I("s_waitcnt lgkmcnt(0)")
    I("v_readfirstlane_b32 s17, v1")
    I("s_nop 4")


def sig_add(a, s_off, s_val, s_wave):
    I = a.I
    lab = a.uid("L_nosig")
    I("s_cmp_lg_u32 s%d, 0" % s_wave)
    I("s_cbranch_scc1 %s" % lab)
    I("s_atomic_add s%d, s[%d:%d], s%d" % (s_val, ptr(D_DBG), ptr(D_DBG) + 1, s_off))
    a.L(lab)


def init(a):
    I = a.I
    a.srd(8, ptr(D_WS), XCH, XCH_BYTES)
    I("s_lshl_b32 s3, s2, 13")
    I("v_lshlrev_b32 v1, 4, v0")
    for i in range(4):
        I("v_mov_b32 v%d, 0x%x" % (4 + i, SENT))
    for i in range(2):
        I("buffer_store_dwordx4 v[4:7], v1, s[8:11], s3 offen sc1")
        I("s_add_u32 s3, s3, 4096")
    a.srd(8, ptr(D_WS), WS_P, 70 * MB)
    I("s_add_u32 s4, s8, 0x1fffff")
    I("s_and_b32 s4, s4, 0xffe00000")
    I("s_sub_u32 s4, s4, s8")
    I("s_lshl_b32 s3, s2, 14")
    I("s_add_u32 s3, s3, s4")
    I("s_mov_b32 s5, s3")
    for k in range(16 if 'prepois' in chain.ABL else 1):
        for i in range(4):
            I("buffer_store_dwordx4 v[4:7], v1, s[8:11], s3 offen sc1")
            I("s_add_u32 s3, s3, 4096")
        I("s_add_u32 s3, s3, 0x%x" % (4 * MB - 16384))
    if 'warmkv' in chain.ABL:
        a.srd(8, ptr(D_WS), 0, 66 * MB)
        I("s_mul_i32 s3, s2, 66 * 4096")
        for i in range(4):
            I("v_mov_b32 v%d, 0" % (4 + i))
        for i in range(66):
            I("buffer_store_dwordx4 v[4:7], v1, s[8:11], s3 offen sc1")
            I("s_add_u32 s3, s3, 4096")
    a.srd(8, ptr(D_WS), WS_CNT, CNT_BYTES)
    I("s_lshl_b32 s3, s2, 12")
    for i in range(4):
        I("v_mov_b32 v%d, 0" % (8 + i))
    I("buffer_store_dwordx4 v[8:11], v1, s[8:11], s3 offen sc1")
    role_assign(a, None)
    I("s_mov_b32 s28, 1")
    lab = a.uid("L_novote")
    I("s_cmp_ge_u32 s16, 4")
    I("s_cbranch_scc1 %s" % lab)
    I("s_cmp_lg_u32 s18, 0")
    I("s_cbranch_scc1 %s" % lab)
    I("s_and_b32 s5, s2, 127")
    I("s_lshl_b32 s5, s5, 14")
    I("s_add_u32 s5, s5, s4")
    I("s_add_u32 s5, s5, 0x%x" % (WS_P + 64 * MB + 2048))
    I("s_add_u32 s12, s%d, s5" % ptr(D_WS))
    I("s_addc_u32 s13, s%d, 0" % (ptr(D_WS) + 1))
    I("s_mov_b32 s20, -1")
    I("s_mov_b32 s21, -1")
    for k in range(2 * E("CALR", 2) + 1):
        pol = k & 1
        I("s_mov_b32 s7, 0")
        I("s_memtime s[22:23]")
        I("s_waitcnt lgkmcnt(0)")
        I("s_atomic_add s7, s[12:13], 0x%x glc" % (pol * 8192))
        I("s_waitcnt lgkmcnt(0)")
        I("s_memtime s[24:25]")
        I("s_waitcnt lgkmcnt(0)")
        if k:
            I("s_sub_u32 s24, s24, s22")
            I("s_min_u32 s%d, s%d, s24" % (20 + pol, 20 + pol))
    I("s_cmp_lt_u32 s21, s20")
    I("s_cselect_b32 s28, 0x10001, 1")
    a.L(lab)
    I("s_mov_b32 s26, %d" % DB_INIT)
    I("s_waitcnt vmcnt(0)")
    I("s_barrier")
    sig_add(a, 26, 28, 18)


def kernel_chain(a, name):
    I = a.I
    a.raw(".globl %s\n.p2align 8\n.type %s,@function" % (name, name))
    a.L(name)
    I("s_cmp_ge_u32 s2, 256")
    I("s_cbranch_scc1 %s_end" % name)
    load_ptrs(a)
    tl_probe(a, 8)
    init(a)
    I("s_cmp_ge_u32 s17, 32")
    I("s_cbranch_scc1 %s_end" % name)
    I("s_cmp_ge_u32 s16, 4")
    I("s_cbranch_scc1 %s_worker" % name)
    chain.HOOK['done'] = lambda: tl_probe(a, 9)
    chain.HOOK['loopstart'] = lambda: tl_probe(a, 11)
    chain.HOOK['weights'] = lambda: tl_probe(a, 16)
    chain.chain_main(a, name)
    a.L("%s_worker" % name)
    if 'nowork' not in chain.ABL:
        worker(a, name)
    a.L("%s_wend" % name)
    tl_probe(a, 10)
    a.L("%s_end" % name)
    I("s_endpgm")


def worker(a, name):
    I = a.I
    I("s_sub_u32 s%d, s16, 4" % S_XW)
    I("s_mov_b32 s%d, s17" % S_RK)
    I("s_mov_b32 s%d, s18" % S_WV)
    work.worker(a, name + "_wend", chain.block_bases, lambda i: tl_probe(a, i, 5))


def build():
    a = Asm()
    launches = [("chain_kernel", 256, 256, 163840)]
    out = HEADER
    for k, g, b, l in launches:
        out += "; @launch kernel=%s grid=(%d,1,1) block=(%d,1,1) lds=%d\n" % (k, g, b, l)
    if os.environ.get("CFG"):
        out += "; cfg:%s\n" % os.environ["CFG"]
    out += '.amdgcn_target "amdgcn-amd-amdhsa--gfx950"\n.text\n'
    kernel_chain(a, "chain_kernel")
    out += a.text()
    out += kernel_desc("chain_kernel")
    return out


if __name__ == "__main__":
    dst = sys.argv[1] if len(sys.argv) > 1 else "/code/%s.s" % NAME
    open(dst, "w").write(build())
    print("wrote", dst)
```

```python
from mblib import *
N = 400
W = "s[%d:%d]" % (S_BUF, S_BUF + 3)
LD = {1: "dword", 2: "dwordx2", 4: "dwordx4"}


def vt(r, n):
    return "v%d" % r if n == 1 else "v[%d:%d]" % (r, r + n - 1)


def poll(a, name, loads, width, R, gap=0, pre=0, base=64):
    I = a.I
    n = len(loads)
    def issue(r):
        for i, (va, so, imm) in enumerate(loads):
            d = base + (r * n + i) * 4
            I("buffer_load_%s %s, v%d, %s, s%d offen offset:%d sc1" % (LD[width], vt(d, width), va, W, so, imm))
    if pre:
        I("s_sleep %d" % pre) if pre < 100 else [I("s_nop 15") for _ in range(pre - 100)]
    for r in range(R):
        issue(r)
        if r < R - 1:
            for _ in range(gap):
                I("s_nop 15")
    lp, done = a.uid("L_p"), a.uid("L_d")
    a.L(lp)
    for r in range(R):
        fail = a.uid("L_f")
        for i in range(n):
            d = base + (r * n + i) * 4
            I("s_waitcnt vmcnt(%d)" % ((R - 1) * n + n - 1 - i))
            if width == 4:
                I("v_min3_u32 v60, v%d, v%d, v%d" % (d, d + 1, d + 2))
                I("v_min_u32 v60, v60, v%d" % (d + 3))
            elif width == 2:
                I("v_min_u32 v60, v%d, v%d" % (d, d + 1))
            else:
                I("v_mov_b32 v60, v%d" % d)
            I("v_cmp_gt_u32 vcc, s%d, v60" % S_IT)
            I("s_cbranch_vccnz %s" % fail)
        I("s_branch %s" % done)
        a.L(fail)
        issue(r)
        spin_guard(a, name)
    I("s_branch %s" % lp)
    a.L(done)


def setval(a):
    for i in range(4):
        a.I("v_mov_b32 v%d, s%d" % (40 + i, S_IT))


def pollr(a, name, rounds, width, gap=0, base=64):
    I = a.I
    R = len(rounds)
    n = len(rounds[0])
    def issue(r):
        for i, (va, so, imm) in enumerate(rounds[r]):
            d = base + (r * n + i) * 4
            I("buffer_load_%s %s, v%d, %s, s%d offen offset:%d sc1" % (LD[width], vt(d, width), va, W, so, imm))
    for r in range(R):
        issue(r)
        if r < R - 1:
            for _ in range(gap):
                I("s_nop 15")
    lp, done = a.uid("L_p"), a.uid("L_d")
    a.L(lp)
    for r in range(R):
        fail = a.uid("L_f")
        for i in range(n):
            d = base + (r * n + i) * 4
            I("s_waitcnt vmcnt(%d)" % ((R - 1) * n + n - 1 - i))
            if width == 4:
                I("v_min3_u32 v60, v%d, v%d, v%d" % (d, d + 1, d + 2))
                I("v_min_u32 v60, v60, v%d" % (d + 3))
            elif width == 2:
                I("v_min_u32 v60, v%d, v%d" % (d, d + 1))
            else:
                I("v_mov_b32 v60, v%d" % d)
            I("v_cmp_gt_u32 vcc, s%d, v60" % S_IT)
            I("s_cbranch_vccnz %s" % fail)
        I("s_branch %s" % done)
        a.L(fail)
        issue(r)
        spin_guard(a, name)
    I("s_branch %s" % lp)
    a.L(done)
```

```python
import sys, os
sys.path.insert(0, os.path.join(os.path.dirname(os.path.abspath(__file__)), "..", "gen"))
from asmlib import Asm
_U = [0]
def _uid(self, base):
    _U[0] += 1
    return '%s_%d' % (base, _U[0])
Asm.uid = _uid

def setexec(a, lanes):
    m = (1 << lanes) - 1 if lanes <= 64 else lanes
    a.I('s_mov_b32 exec_lo, 0x%x' % (m & 0xffffffff))
    a.I('s_mov_b32 exec_hi, 0x%x' % (m >> 32))

S_BUF = 8
S_OUT = 12
S_CTR = 16
S_X, S_J, S_W = 20, 21, 22
S_IT, S_SPIN = 23, 24
S_T0, S_T1, S_T2, S_T3 = 25, 26, 27, 28
S_TM = 30
BUF_BYTES = 64 << 20
SPIN = 1 << 16


def begin(a, name, nx, nj, npart):
    I = a.I
    a.raw(".globl %s\n.p2align 8\n.type %s,@function" % (name, name))
    a.L(name)
    I("s_cmp_ge_u32 s2, 256")
    I("s_cbranch_scc1 %s_end" % name)
    I("s_load_dwordx4 s[4:7], s[0:1], 0")
    I("s_load_dwordx2 s[38:39], s[0:1], 16")
    I("s_waitcnt lgkmcnt(0)")
    a.srd(S_BUF, 4, 0, BUF_BYTES)
    a.srd(S_OUT, 6, 0, 65536)
    a.srd(S_CTR, 38, 0, 4096)
    I("s_getreg_b32 s%d, hwreg(HW_REG_XCC_ID)" % S_X)
    I("s_and_b32 s%d, s%d, 7" % (S_X, S_X))
    I("v_lshrrev_b32 v1, 6, v0")
    I("s_nop 0")
    I("v_readfirstlane_b32 s%d, v1" % S_W)
    lab = a.uid("L_role")
    I("s_cmp_lg_u32 s%d, 0" % S_W)
    I("s_cbranch_scc1 %s" % lab)
    I("s_lshl_b32 s3, s%d, 8" % S_X)
    I("s_add_u32 s3, s3, 256")
    I("v_mov_b32 v1, 1")
    I("v_mov_b32 v2, s3")
    I("s_mov_b64 exec, 1")
    I("buffer_atomic_add v1, v2, s[%d:%d], 0 offen sc0 sc1" % (S_CTR, S_CTR + 3))
    I("v_mov_b32 v2, 0")
    I("s_waitcnt vmcnt(0)")
    I("ds_write_b32 v2, v1")
    I("s_mov_b64 exec, -1")
    I("s_waitcnt lgkmcnt(0)")
    a.L(lab)
    I("s_barrier")
    I("v_mov_b32 v2, 0")
    I("ds_read_b32 v1, v2")
    I("s_waitcnt lgkmcnt(0)")
    I("v_readfirstlane_b32 s%d, v1" % S_J)
    I("s_nop 4")
    I("s_cmp_ge_u32 s%d, %d" % (S_X, nx))
    I("s_cbranch_scc1 %s_end" % name)
    I("s_cmp_ge_u32 s%d, %d" % (S_J, nj))
    I("s_cbranch_scc1 %s_end" % name)
    I("s_mov_b32 s%d, 0" % S_SPIN)


def gsync(a, name, npart, idx=0):
    I = a.I
    I("s_waitcnt vmcnt(0)")
    I("s_barrier")
    lab = a.uid("L_gs")
    I("s_cmp_lg_u32 s%d, 0" % S_W)
    I("s_cbranch_scc1 %s" % lab)
    I("v_mov_b32 v1, 1")
    I("v_mov_b32 v2, %d" % (idx * 4))
    I("s_mov_b64 exec, 1")
    I("buffer_atomic_add v1, v2, s[%d:%d], 0 offen sc1" % (S_CTR, S_CTR + 3))
    I("s_mov_b64 exec, -1")
    a.L(lab)
    rt, ok = a.uid("L_gsr"), a.uid("L_gso")
    I("v_mov_b32 v2, %d" % (idx * 4))
    a.L(rt)
    I("buffer_load_dword v1, v2, s[%d:%d], 0 offen sc1" % (S_CTR, S_CTR + 3))
    I("s_add_u32 s%d, s%d, 1" % (S_SPIN, S_SPIN))
    I("s_cmp_gt_u32 s%d, 0x%x" % (S_SPIN, SPIN))
    I("s_cbranch_scc1 %s_fin" % name)
    I("s_waitcnt vmcnt(0)")
    I("v_readfirstlane_b32 s%d, v1" % S_T0)
    I("s_cmp_ge_u32 s%d, %d" % (S_T0, npart))
    I("s_cbranch_scc1 %s" % ok)
    I("s_sleep 2")
    I("s_branch %s" % rt)
    a.L(ok)
    I("s_barrier")


def tstart(a):
    a.I("s_mov_b32 s%d, 0" % S_SPIN)
    a.I("s_memtime s[30:31]")
    a.I("s_memrealtime s[32:33]")
    a.I("s_waitcnt lgkmcnt(0)")


def spin_guard(a, name, lines=None):
    out = ["s_add_u32 s%d, s%d, 1" % (S_SPIN, S_SPIN),
           "s_cmp_gt_u32 s%d, 0x%x" % (S_SPIN, SPIN),
           "s_cbranch_scc1 %s_fin" % name]
    if lines is None:
        for l in out:
            a.I(l)
    else:
        lines.extend("    " + l for l in out)


def end(a, name):
    I = a.I
    a.L(name + "_fin")
    I("s_mov_b64 exec, -1")
    I("s_memtime s[34:35]")
    I("s_memrealtime s[36:37]")
    I("s_waitcnt lgkmcnt(0) vmcnt(0)")
    I("s_sub_u32 s34, s34, s30")
    I("s_sub_u32 s36, s36, s32")
    I("v_mov_b32 v4, s34")
    I("v_mov_b32 v5, s36")
    I("v_mov_b32 v6, s%d" % S_SPIN)
    I("v_mov_b32 v7, s%d" % S_IT)
    I("s_lshl_b32 s3, s%d, 5" % S_X)
    I("s_add_u32 s3, s3, s%d" % S_J)
    I("s_lshl_b32 s3, s3, 2")
    I("s_add_u32 s3, s3, s%d" % S_W)
    I("s_lshl_b32 s3, s3, 4")
    I("v_mov_b32 v2, s3")
    I("s_mov_b64 exec, 1")
    I("buffer_store_dwordx4 v[4:7], v2, s[%d:%d], 0 offen" % (S_OUT, S_OUT + 3))
    I("s_waitcnt vmcnt(0)")
    a.L(name + "_end")
    I("s_endpgm")


def desc(name, vgpr=512, accum=256):
    return """.section .rodata,"a"
.p2align 6
.amdhsa_kernel %s
  .amdhsa_next_free_vgpr %d
  .amdhsa_next_free_sgpr 102
  .amdhsa_accum_offset %d
  .amdhsa_group_segment_fixed_size 0
  .amdhsa_kernarg_size 24
  .amdhsa_user_sgpr_count 2
  .amdhsa_user_sgpr_kernarg_segment_ptr 1
  .amdhsa_system_sgpr_workgroup_id_x 1
  .amdhsa_float_denorm_mode_32 3
  .amdhsa_float_denorm_mode_16_64 3
.end_amdhsa_kernel
""" % (name, vgpr, accum)


def write(path, kernels, block=256):
    out = ""
    for n, _ in kernels:
        out += "; @launch kernel=%s grid=(256,1,1) block=(%d,1,1) lds=163840\n" % (n, block)
    out += '.amdgcn_target "amdgcn-amd-amdhsa--gfx950"\n.text\n'
    for n, t in kernels:
        out += t
    for n, _ in kernels:
        out += desc(n)
    open(path, "w").write(out)
```

```python
from mblib import *
from hop1lib import *
import sys
NIT = 600
def k(name, shape, rd, nj=32, nx=4, dma=0, mask=None):
    a = Asm(); I = a.I
    begin(a, name, nx, nj, nx * nj)
    I("v_lshlrev_b32 v10, 4, v0")
    I("s_mov_b32 s48, 0")
    for i in range(64):
        I("buffer_load_dwordx4 a[%d:%d], v10, %s, s48 offen" % (4 * i, 4 * i + 3, W))
        I("s_add_u32 s48, s48, 4096")
        if i % 16 == 15:
            I("s_waitcnt vmcnt(0)")
    for i in range(16):
        I("buffer_load_dwordx4 v[%d:%d], v10, %s, s48 offen" % (64 + 4 * i, 67 + 4 * i, W))
        I("s_add_u32 s48, s48, 4096")
    I("s_waitcnt vmcnt(0)")
    for i in range(16):
        I("ds_write_b128 v10, v[%d:%d] offset:%d" % (64 + 4 * i, 67 + 4 * i, i * 4096))
    I("v_and_b32 v11, 63, v0")
    I("v_lshlrev_b32 v11, 4, v11")
    I("s_waitcnt lgkmcnt(0)")
    I("s_lshl_b32 s50, s%d, 14" % S_W)
    I("s_add_u32 s50, s50, 65536")
    gsync(a, name, nx * nj)
    I("s_mov_b32 s%d, 0" % S_IT)
    tstart(a)
    if mask is not None:
        lh = a.uid("L_heavy")
        I("s_mov_b32 s52, 0x%x" % mask)
        I("s_bitcmp1_b32 s52, s%d" % S_X)
        I("s_cbranch_scc1 %s" % lh)
        ll = a.uid("L_light")
        a.L(ll)
        I("s_add_u32 s%d, s%d, 1" % (S_IT, S_IT))
        for _ in range(32):
            I("s_nop 15")
        I("s_cmp_lt_u32 s%d, %d" % (S_IT, NIT))
        I("s_cbranch_scc1 %s" % ll)
        I("s_branch %s_fin" % name)
        a.L(lh)
    lp = a.uid("L_loop")
    a.L(lp)
    I("s_add_u32 s%d, s%d, 1" % (S_IT, S_IT))
    I("s_and_b32 s48, s%d, 63" % S_IT)
    I("s_lshl_b32 s48, s48, 16")
    for s in range(64):
        f = 64 + 4 * (s % 8)
        fn = 64 + 4 * ((s + 6) % 8)
        c = "0" if s == 0 else None
        if rd and (rd == 1 or s % 2 == 0):
            I("s_waitcnt lgkmcnt(%d)" % (5 if rd == 1 else 2))
        if shape == 32:
            I("v_mfma_f32_32x32x16_bf16 v[16:31], a[%d:%d], v[%d:%d], %s" % (4 * s, 4 * s + 3, f, f + 3, c or "v[16:31]"))
        else:
            s2 = s ^ 1
            d0 = 16 + 8 * (s & 1)
            I("v_mfma_f32_16x16x32_bf16 v[%d:%d], a[%d:%d], v[%d:%d], %s" % (d0, d0 + 3, 4 * s, 4 * s + 3, f, f + 3, "0" if s < 2 else "v[%d:%d]" % (d0, d0 + 3)))
        if rd and (rd == 1 or s % 2 == 0):
            I("ds_read_b128 v[%d:%d], v11 offset:%d" % (fn, fn + 3, ((s + 6) % 64) * 1024))
        if dma and s % 4 == 1:
            I("s_add_u32 m0, s50, %d" % ((s // 4) * 1024))
            I("s_add_u32 s48, s48, 4096")
            I("buffer_load_dwordx4 v10, %s, s48 offen lds" % W)
        if shape == 16:
            I("v_mfma_f32_16x16x32_bf16 v[%d:%d], a[%d:%d], v[%d:%d], %s" % (d0 + 4, d0 + 7, 4 * s2, 4 * s2 + 3, f, f + 3, "0" if s < 2 else "v[%d:%d]" % (d0 + 4, d0 + 7)))
    if dma:
        I("s_waitcnt vmcnt(16)")
    I("s_cmp_lt_u32 s%d, %d" % (S_IT, NIT))
    I("s_cbranch_scc1 %s" % lp)
    end(a, name)
    return name, a.text()
ks = []
NIT = 100
for mask in (0x0f, 0xf0, 0x33, 0xcc, 0x55, 0x03, 0x05, 0x09, 0x11, 0x01, 0xff):
    ks.append(k("m16_mask%02x_kernel" % mask, 16, 1, nx=8, dma=1, mask=mask))
write("pw2.s", ks)
```

```python
from asmlib import *
from layout import *
import os

E = lambda k, d: int(os.environ.get(k, str(d)))
EMU = E("EMU", 1)
NREP = E("NREPL", 2)
KRE = E("KRE", 2)
NSC = E("NSC", 2)
D_A, D_E = E("D_A", 24), E("D_E", 24)
PACE = E("PACE", 12)
D_C, G_C = E("D_C", 12), E("G_C", 24)
D_G, G_G = E("D_G", 66), E("G_G", 60)
STAMP = E("STAMP", 0)
DUP = E("DUP", 0)
H_A = E("H_A", -1)
B3P = E("B3P", 0)
H_E = E("H_E", 20)
PXB = E("PXB", 1)
VROT, OROT = E("VROT", 2), E("OROT", 8)
KVW = E("KVW", 0)
PUBW = E("PUBW", 1)
PRIO = E("PRIO", 3)

S_WS = 8
S_TMPSRD = 12
S_X, S_J, S_W, S_STEP = 16, 17, 18, 19
S_T0, S_T1, S_T2, S_T3 = 20, 21, 22, 23
S_M8 = 24
S_M8H = 26
S_MM = 28
S_ROT = 30
S_KV = 31
S_SPIN = 33
S_SENT = 34
S_PXB = 35
S_BMEM = 36
S_BSX = 37
S_MEMC, S_MEMN, S_SX, S_OX, S_PX = 38, 39, 40, 41, 42
S_LKV = 43
S_C = 44
S_SCL = 46
S_L32 = 48
S_L16 = 50
S_PXB2 = 52
S_ONE = 53
S_CKV = 54
S_ST = 64
S_ACC = 84

V_LIN = 1
V_XLD = 2
V_IDX = 6
V_CHK = 7
V_MEMST, V_SXST, V_SXM, V_OXST, V_PXST = 8, 9, 10, 11, 12
V_SXLD = 13
V_SXLM = 16
V_PXLD = 17
V_TW = 20
V_RVW, V_RVR = 21, 22
V_KFR, V_VTR = 25, 26
V_KLD, V_VTLD = 27, 29
V_KMST, V_VMST, V_VMW = 30, 31, 32
V_OXPO = 28
V_M0LD = 33
V_SMP = 34
V_SENT = 36
V_SEL = 40
V_ONE = 44
V_M = 48
V_ACC = 64
V_OA = 88
V_TA = 96
V_TD = 104
V_QK = 112
V_KX = 116
V_S0, V_S1, V_SM = 124, 128, 132
V_VT = 136
V_VM = 144
V_T = 148
V_TM = 152
V_X = 153
V_PB = 160
V_PM = 164
V_O = 168
V_SUM = 176
V_OB = 180
V_R = 168
V_L = 200
V_PT = 248
V_SEL2 = 252

L_T = 0
L_RV = 8192
L_RO = 16384
L_KV = 24576
L_KM = 32768
L_VM = 33792
L_ROLE = 0
L_STAGE = 32768

SPIN_LIMIT = 1 << 20
ABL = os.environ.get('ABL', '')
ABORT = [None]
COLD = []
COLD2 = []
HOOK = {}
W = "s[%d:%d]" % (S_WS, S_WS + 3)


def a_qkv(M, t, b):
    return ((M * 2 + t) * 4 + b) * 8


def a_wo(ct, b):
    return 192 + (ct * 4 + b) * 8


def acc(M, t):
    return V_ACC + (16 + 4 * t if M == 2 else 8 * t + 4 * M)


def vr4(r):
    return "v[%d:%d]" % (r, r + 3)


def vr2(r):
    return "v[%d:%d]" % (r, r + 1)


def nops(a, n):
    while n > 0:
        k = min(n, 16)
        a.I("s_nop %d" % (k - 1))
        n -= k


def exec_(a, m):
    a.I("s_mov_b64 exec, -1" if m is None else "s_mov_b64 exec, s[%d:%d]" % (m, m + 1))


def pk(a, d, x, y, op="add"):
    a.I("v_pk_%s_f32 %s, %s, %s" % (op, vr2(d), vr2(x), vr2(y)))


def spin(out, back=None):
    out.append("    s_add_u32 s%d, s%d, 1" % (S_SPIN, S_SPIN))
    out.append("    s_cmp_gt_u32 s%d, 0x%x" % (S_SPIN, SPIN_LIMIT))
    if back:
        out.append("    s_cbranch_scc0 %s" % back)
        out.append("    s_branch %s" % ABORT[0])
    else:
        out.append("    s_cbranch_scc1 %s" % ABORT[0])


def stamp(a, i):
    if STAMP == 1:
        a.I("s_memtime s[%d:%d]" % (S_ST + 2 * i, S_ST + 2 * i + 1))


def gather(a, soff, consume, tag, fill=()):
    I = a.I
    fill = list(fill)
    ld = lambda i: "buffer_load_dwordx4 %s, v%d, %s, s%d offen sc1" % (vr4(V_M + 4 * i), V_XLD + i, W, soff)
    first = [0, 1, 2, 3] + [0] * DUP
    for k, i in enumerate(first):
        I(ld(i))
        if k < len(first) - 1:
            n = PACE
            while fill and n > 0:
                I(fill.pop(0))
                n -= 1
            nops(a, n)
    for l in fill:
        I(l)
    chk = lambda i: ["v_max3_u32 v%d, v%d, v%d, v%d" % (V_CHK, V_M + 4 * i, V_M + 4 * i + 1, V_M + 4 * i + 2),
                     "v_max_u32 v%d, v%d, v%d" % (V_CHK, V_CHK, V_M + 4 * i + 3),
                     "v_cmp_eq_u32 vcc, s%d, v%d" % (S_SENT, V_CHK)]
    done = a.uid("L_gd_" + tag)
    labels, todo, emitted = {}, [], set()

    def lab(key):
        if key not in labels:
            labels[key] = a.uid("L_q_" + tag)
            todo.append(key)
        return labels[key]

    def failed(c, fl, rem, seen):
        again = c in seen
        t = lab(('p', tuple(sorted(rem)))) if again else lab(('x', c, fl, rem, seen | {c}))
        if STAMP == 3 and not again:
            u = a.uid("L_cnt")
            r = S_ACC + (1 if tag == 'a' else 2)
            COLD2.extend([u + ":", "    s_add_u32 s%d, s%d, 0x%x" % (r, r, 1 << (8 * c)), "    s_branch %s" % t])
            return u
        return t

    def valid(out, c, fl, rem, seen, hot):
        while True:
            key = ('v', c, fl, rem, seen & rem)
            if key in emitted:
                out.append("    s_branch %s" % labels[key])
                return
            emitted.add(key)
            labels[key] = a.uid("L_v_" + tag)
            out.append(labels[key] + ":")
            m = consume(c)
            if not rem:
                out.extend("    " + l for l in m)
                if not hot:
                    out.append("    s_branch %s" % done)
                return
            k = next(x for x in range(len(fl)) if fl[x] in rem)
            n, q = fl[k], chk(fl[k])
            w = "s_waitcnt vmcnt(%d)" % (len(fl) - 1 - k)
            seq = [m[0], w, q[0], q[1], m[1], q[2]] + m[2:] if len(m) > 2 else [m[0], w] + q + [m[1]]
            out.extend("    " + l for l in seq)
            out.append("    s_cbranch_vccnz %s" % failed(n, fl[k + 1:], rem, seen))
            c, fl, rem, seen = n, fl[k + 1:], rem - {n}, seen | {n}
    fl, rem = tuple(first[1:]), frozenset(range(4))
    I("s_waitcnt vmcnt(%d)" % len(fl))
    for l in chk(0):
        I(l)
    I("s_cbranch_vccnz %s" % failed(0, fl, rem, frozenset()))
    valid(a.lines, 0, fl, rem - {0}, frozenset({0}), True)
    a.L(done)
    C = lambda l: COLD.append("    " + l)
    while todo:
        key = todo.pop()
        COLD.append("%s:" % labels[key])
        if key[0] == 'x':
            _, c, fl, rem, seen = key
            if c not in fl:
                C(ld(c))
                fl += (c,)
            k = next(x for x in range(len(fl)) if fl[x] in rem)
            n = fl[k]
            if DUP and n not in seen and n not in fl[k + 1:] and n < 2:
                C(ld(n))
                fl += (n,)
            C("s_waitcnt vmcnt(%d)" % (len(fl) - 1 - k))
            for l in chk(n):
                C(l)
            C("s_cbranch_vccnz %s" % failed(n, fl[k + 1:], rem, seen))
            valid(COLD, n, fl[k + 1:], rem - {n}, seen | {n}, False)
        else:
            P = key[1]
            oks = []
            for k, ci in enumerate(P):
                C(ld(ci))
                C("s_waitcnt vmcnt(%d)" % KRE)
                nx = P[(k + 1) % len(P)]
                for l in chk(nx):
                    C(l)
                ok = a.uid("L_ok_" + tag)
                oks.append((ok, nx))
                C("s_cbranch_vccz %s" % ok)
            spin(COLD, labels[key])
            for ok, ci in oks:
                COLD.append(ok + ":")
                for l in consume(ci):
                    C(l)
                rest = tuple(x for x in P if x != ci)
                C("s_branch %s" % (lab(('p', rest)) if rest else done))


def rot_poll(a, nset, loads, summ, regs, ok, first_reissue, extra=0):
    C = lambda l: COLD.append("    " + l)
    nl = len(loads(0))
    if not first_reissue:
        for r in range(1, nset):
            c = []
            summ(c, r, nl * (nset - 1 - r) + extra)
            for l in c:
                C(l)
            C("s_cbranch_vccz %s" % ok)
        if STAMP == 3:
            C("s_add_u32 s%d, s%d, 0x100" % (S_ACC + 4, S_ACC + 4))
        for r in range(1, nset):
            for l in loads(r):
                C(l)
            C("s_nop 11")
    rt = a.uid("L_rt")
    COLD.append(rt + ":")
    for k in range(nset):
        r = (k + 1) % nset
        for l in loads(k):
            C(l)
        c = []
        summ(c, r, nl * (nset - 1))
        for l in c:
            C(l)
        C("s_cbranch_vccz %s" % ok)
        if STAMP == 3:
            C("s_add_u32 s%d, s%d, 0x%x" % ((S_ACC + 3, S_ACC + 3, 0x100) if first_reissue else (S_ACC + 4, S_ACC + 4, 0x10000)))
    spin(COLD)
    C("s_and_b32 s%d, s%d, 63" % (S_T0, S_SPIN))
    C("s_cbranch_scc1 %s" % rt)
    regs = list(regs)
    C("v_cmp_eq_u32 vcc, s%d, v%d" % (S_SENT, regs[0]))
    for r in regs[1:]:
        C("v_cmp_eq_u32 s[%d:%d], s%d, v%d" % (S_T0, S_T1, S_SENT, r))
        C("s_or_b64 vcc, vcc, s[%d:%d]" % (S_T0, S_T1))
    C("s_cbranch_vccnz %s" % rt)
    C("s_branch %s" % ok)


def block_bases(a, s_init, s_even, s_odd, tmp):
    I = a.I
    I("s_lshr_b32 s%d, s%d, 16" % (tmp, s_init))
    I("s_cmp_gt_u32 s%d, 16" % tmp)
    I("s_cselect_b32 s%d, 0x%x, 0x%x" % ((tmp, 0, 0x2000) if 'polx' in ABL else (tmp, 0x2000, 0)))
    I("s_add_u32 s%d, s%d, 0x1fffff" % (s_even, ptr(D_WS)))
    I("s_and_b32 s%d, s%d, 0xffe00000" % (s_even, s_even))
    I("s_sub_u32 s%d, s%d, s%d" % (s_odd, s_even, ptr(D_WS)))
    I("s_add_u32 s%d, s%d, s%d" % (s_even, s_odd, tmp))
    I("s_xor_b32 s%d, s%d, 0x2000" % (tmp, tmp))
    I("s_add_u32 s%d, s%d, s%d" % (s_odd, s_odd, tmp))


def prologue_addrs(a):
    I = a.I
    a.C("---- chain address registers")
    for s, lo, hi in ((S_M8, 0x00ff00ff, 0x00ff00ff), (S_M8H, 0xff00ff00, 0xff00ff00), (S_MM, 0, 0x00ff00ff),
                      (S_L32, 0xffffffff, 0), (S_L16, 0xffff, 0)):
        I("s_mov_b32 s%d, 0x%x" % (s, lo))
        I("s_mov_b32 s%d, 0x%x" % (s + 1, hi))
    c = 0x3fb8aa3b if EMU else 0x3e0293ee
    I("s_mov_b32 s%d, 0x%x" % (S_C, c))
    I("s_mov_b32 s%d, 0x%x" % (S_C + 1, c))
    I("s_mov_b32 s%d, 0x3db504f3" % S_SCL)
    I("s_mov_b32 s%d, 0x3db504f3" % (S_SCL + 1))
    I("s_mov_b32 s%d, 0x%x" % (S_SENT, SENT))
    I("s_lshl_b32 s%d, s%d, 14" % (S_BMEM, S_X))
    I("s_add_u32 s%d, s%d, 0x%x" % (S_BMEM, S_BMEM, X_MEM))
    I("s_lshl_b32 s%d, s%d, 16" % (S_BSX, S_X))
    I("s_add_u32 s%d, s%d, 0x%x" % (S_BSX, S_BSX, X_SX))
    for i in range(4):
        I("v_mov_b32 v%d, s%d" % (V_SENT + i, S_SENT))
        I("v_mov_b32 v%d, 0x3f803f80" % (V_ONE + i))
    n, g, l, w, t0, t1, t2 = range(V_PT, V_PT + 7)
    I("v_and_b32 v%d, 63, v0" % l)
    I("v_and_b32 v%d, 15, v0" % n)
    I("v_bfe_u32 v%d, v0, 4, 2" % g)
    I("v_lshrrev_b32 v%d, 6, v0" % w)
    I("v_lshlrev_b32 v%d, 4, v%d" % (V_LIN, l))
    I("s_lshl_b32 s%d, s%d, 10" % (S_T0, S_X))
    I("s_lshl_b32 s%d, s%d, 5" % (S_T1, S_J))
    I("s_add_u32 s%d, s%d, s%d" % (S_T0, S_T0, S_T1))
    I("s_and_b32 s%d, s%d, 3" % (S_ROT, S_J))
    I("v_lshl_add_u32 v%d, v%d, 12, v%d" % (t0, w, V_LIN))
    for i in range(4):
        I("s_add_u32 s%d, s%d, %d" % (S_T1, S_ROT, i))
        I("s_and_b32 s%d, s%d, 3" % (S_T1, S_T1))
        I("s_lshl_b32 s%d, s%d, 10" % (S_T1, S_T1))
        I("v_add_u32 v%d, s%d, v%d" % (V_XLD + i, S_T1, t0))
    I("v_mov_b32 v%d, 0x44444444" % V_IDX)
    I("v_mov_b32 v%d, 0xeeeeeeee" % t0)
    I("v_cndmask_b32 v%d, v%d, v%d, s[%d:%d]" % (V_IDX, V_IDX, t0, S_M8H, S_M8H + 1))
    I("v_bfe_u32 v%d, v%d, 1, 3" % (t0, l))
    I("v_and_b32 v%d, 1, v%d" % (t1, l))
    I("v_lshlrev_b32 v%d, 11, v%d" % (V_M0LD, t0))
    I("v_lshl_add_u32 v%d, v%d, 3, v%d" % (V_M0LD, t1, V_M0LD))
    I("v_lshl_add_u32 v%d, v%d, 4, v%d" % (V_M0LD, g, V_M0LD))
    I("s_xor_b32 s%d, s%d, %d" % (S_T2, S_J, OROT))
    I("s_lshl_b32 s%d, s%d, 6" % (S_T1, S_T2))
    I("v_add_u32 v%d, s%d, v%d" % (V_M0LD, S_T1, V_M0LD))
    I("v_lshlrev_b32 v%d, 3, v%d" % (V_MEMST, l))
    I("s_xor_b32 s%d, s%d, %d" % (S_T1, S_J, VROT))
    I("s_lshl_b32 s%d, s%d, 9" % (S_T1, S_T1))
    I("v_add_u32 v%d, s%d, v%d" % (V_OXPO, S_T1, V_MEMST))
    I("s_lshl_b32 s%d, s%d, 9" % (S_T2, S_T2))
    I("v_add_u32 v%d, s%d, v%d" % (V_MEMST, S_T2, V_MEMST))
    I("v_lshlrev_b32 v%d, 4, v%d" % (V_OXST, n))
    I("v_lshl_add_u32 v%d, v%d, 7, v%d" % (V_OXST, g, V_OXST))
    I("v_add_u32 v%d, s%d, v%d" % (V_OXST, S_T1, V_OXST))
    I("s_lshr_b32 s%d, s%d, 2" % (S_T2, S_J))
    I("s_lshl_b32 s%d, s%d, 13" % (S_T2, S_T2))
    for k in range(4):
        I("s_add_u32 s%d, s%d, %d" % (S_T1, S_J, k))
        I("s_and_b32 s%d, s%d, 3" % (S_T1, S_T1))
        I("s_lshl_b32 s%d, s%d, 10" % (S_T1, S_T1))
        I("s_add_u32 s%d, s%d, s%d" % (S_T1, S_T1, S_T2))
        I("v_add_u32 v%d, s%d, v%d" % (V_SXST if k == 0 else V_SXLD + k - 1, S_T1, V_LIN))
    I("s_add_u32 s%d, s%d, 4096" % (S_T2, S_T2))
    I("v_add_u32 v%d, s%d, v%d" % (V_SXLM, S_T2, V_LIN))
    I("s_and_b32 s%d, s%d, 3" % (S_T1, S_J))
    I("s_lshl_b32 s%d, s%d, 8" % (S_T1, S_T1))
    I("s_add_u32 s%d, s%d, s%d" % (S_T1, S_T1, S_T2))
    I("v_and_b32 v%d, 1, v%d" % (t1, g))
    I("v_lshlrev_b32 v%d, 4, v%d" % (V_SXM, n))
    I("v_lshl_add_u32 v%d, v%d, 7, v%d" % (V_SXM, t1, V_SXM))
    I("v_add_u32 v%d, s%d, v%d" % (V_SXM, S_T1, V_SXM))
    I("v_lshl_add_u32 v%d, v%d, 11, v%d" % (V_TW, w, V_LIN))
    I("v_lshrrev_b32 v%d, 1, v%d" % (t0, g))
    I("v_lshl_add_u32 v%d, v%d, 1, v%d" % (t0, w, t0))
    I("v_lshlrev_b32 v%d, 10, v%d" % (V_RVW, t0))
    I("v_lshl_add_u32 v%d, v%d, 5, v%d" % (V_RVW, n, V_RVW))
    I("v_lshl_add_u32 v%d, v%d, 4, v%d" % (V_RVW, t1, V_RVW))
    I("v_add_u32 v%d, %d, v%d" % (V_RVW, L_RV, V_RVW))
    I("v_lshlrev_b32 v%d, 5, v%d" % (V_RVR, n))
    I("v_lshl_add_u32 v%d, v%d, 3, v%d" % (V_RVR, g, V_RVR))
    I("v_add_u32 v%d, %d, v%d" % (V_RVR, L_RV, V_RVR))
    I("v_lshrrev_b32 v%d, 2, v%d" % (t1, n))
    I("v_and_b32 v%d, 3, v%d" % (t0, n))
    I("v_lshl_add_u32 v%d, v%d, 3, v%d" % (t1, t1, t0))
    I("v_add_u32 v%d, %d, v%d" % (V_KFR, L_KV, V_LIN))
    I("v_add_u32 v%d, %d, v%d" % (V_VTR, L_KV + 2048, V_LIN))
    I("v_lshlrev_b32 v%d, 4, v%d" % (V_VMW, t1))
    I("v_lshl_add_u32 v%d, v%d, 9, v%d" % (V_VTLD, g, V_VMW))
    I("v_lshl_add_u32 v%d, v%d, 2, v%d" % (V_VMW, g, V_VMW))
    I("v_add_u32 v%d, %d, v%d" % (V_VMW, L_VM, V_VMW))
    for xo in range(4):
        I("s_add_u32 s%d, s%d, %d" % (S_T1, S_X, xo))
        I("s_and_b32 s%d, s%d, 3" % (S_T1, S_T1))
        I("s_lshl_b32 s%d, s%d, 18" % (S_T1, S_T1))
        I("s_lshr_b32 s%d, s%d, 1" % (S_T2, S_J))
        I("s_lshl_b32 s%d, s%d, 14" % (S_T2, S_T2))
        I("s_add_u32 s%d, s%d, s%d" % (S_T1, S_T1, S_T2))
        I("s_and_b32 s%d, s%d, 1" % (S_T2, S_J))
        I("s_lshl_b32 s%d, s%d, 12" % (S_T2, S_T2))
        I("s_add_u32 s%d, s%d, s%d" % (S_T3 if xo == 0 else S_T1, S_T1, S_T2))
        I("v_lshl_add_u32 v%d, v%d, %d, s%d" % (V_PXST if xo == 0 else V_PXLD + xo - 1, l, 3 if PXB else 4, S_T3 if xo == 0 else S_T1))
    I("s_xor_b32 s%d, s%d, 0x%x" % (S_T1, S_T3, VROT << 13))
    I("v_add_u32 v%d, s%d, v%d" % (V_VTLD, S_T1, V_VTLD))
    I("v_add_u32 v%d, s%d, v%d" % (V_VMST, S_T1, V_LIN))
    I("v_and_b32 v%d, 8, v%d" % (t1, n))
    I("v_add_u32 v%d, v%d, v%d" % (t1, t1, n))
    I("v_lshlrev_b32 v%d, 4, v%d" % (V_KLD, t1))
    I("v_lshl_add_u32 v%d, v%d, 9, v%d" % (V_KLD, g, V_KLD))
    I("v_add_u32 v%d, s%d, v%d" % (V_KLD, S_T3, V_KLD))
    I("v_bfe_u32 v%d, v%d, 2, 1" % (t1, n))
    I("v_lshl_add_u32 v%d, v%d, 1, v%d" % (t0, t0, t1))
    I("v_cndmask_b32 v%d, v%d, v%d, s[%d:%d]" % (t0, n, t0, S_M8H, S_M8H + 1))
    I("v_lshlrev_b32 v%d, 4, v%d" % (V_KMST, t0))
    I("v_lshl_add_u32 v%d, v%d, 7, v%d" % (V_KMST, g, V_KMST))
    I("v_add_u32 v%d, s%d, v%d" % (V_KMST, S_T3, V_KMST))
    I("v_and_b32 v%d, 1, v%d" % (t1, t0))
    I("v_lshlrev_b32 v%d, 4, v%d" % (t1, t1))
    I("v_mov_b32 v%d, 0x3f80" % t2)
    I("v_lshlrev_b32 v%d, v%d, v%d" % (t2, t1, t2))
    I("v_lshrrev_b32 v%d, 2, v%d" % (t1, t0))
    I("v_xor_b32 v%d, v%d, v%d" % (t1, t1, g))
    I("v_and_b32 v%d, 1, v%d" % (t1, t1))
    I("v_bfe_u32 v%d, v%d, 1, 1" % (t0, t0))
    I("v_lshl_add_u32 v%d, v%d, 2, v%d" % (t0, t1, t0))
    I("v_lshrrev_b32 v%d, 3, v%d" % (t1, n))
    I("v_lshl_add_u32 v%d, v%d, 1, v%d" % (t0, t1, t0))
    for r in range(4):
        I("v_cmp_eq_u32 vcc, %d, v%d" % (r, t0))
        I("s_nop 1")
        I("v_cndmask_b32 v%d, 0, v%d, vcc" % (V_SEL + r, t2))


def load_weights(a):
    I = a.I
    a.C("---- load weights")
    t0, t1, va, vg, vg2 = V_PT, V_PT + 1, V_PT + 2, V_PT + 3, V_PT + 4
    vq, vo, vw = 240, 242, 244
    I("v_bfe_u32 v%d, v0, 4, 2" % t0)
    I("v_lshlrev_b32 v%d, 1, v%d" % (va, t0))
    I("v_bfe_u32 v%d, v0, 2, 1" % t0)
    I("v_add_u32 v%d, v%d, v%d" % (va, va, t0))
    I("v_bfe_u32 v%d, v0, 3, 1" % t0)
    I("v_lshl_add_u32 v%d, v%d, 3, v%d" % (va, t0, va))
    I("v_lshrrev_b32 v%d, 6, v0" % t0)
    I("v_lshl_add_u32 v%d, v%d, 8, v%d" % (va, t0, va))
    I("v_and_b32 v%d, 3, v0" % t1)
    I("v_lshlrev_b32 v%d, 13, v%d" % (vg, va))
    I("v_lshl_add_u32 v%d, v%d, 4, v%d" % (vg, t1, vg))
    I("s_lshl_b32 s%d, s%d, 1" % (S_T1, S_T0))
    I("v_add_u32 v%d, s%d, v%d" % (vg, S_T1, vg))
    I("s_lshl_b32 s%d, s%d, 10" % (S_T1, S_X))
    I("v_add_u32 v%d, s%d, v%d" % (vg2, S_T1, va))
    I("v_lshlrev_b32 v%d, 11, v%d" % (vg2, vg2))
    I("v_lshl_add_u32 v%d, v%d, 4, v%d" % (vg2, t1, vg2))
    I("s_xor_b32 s%d, s%d, %d" % (S_T1, S_J, OROT))
    I("s_lshl_b32 s%d, s%d, 6" % (S_T1, S_T1))
    I("v_add_u32 v%d, s%d, v%d" % (vg2, S_T1, vg2))
    I("v_bfe_u32 v%d, v0, 4, 2" % t0)
    I("v_lshlrev_b32 v%d, 3, v%d" % (t0, t0))
    I("v_bfe_u32 v%d, v0, 2, 2" % vo)
    I("v_add_u32 v%d, v%d, v%d" % (t0, t0, vo))
    I("v_lshlrev_b32 v%d, 6, v%d" % (vo, t0))
    I("v_lshrrev_b32 v%d, 6, v0" % t0)
    I("v_lshl_add_u32 v%d, v%d, 14, v%d" % (vo, t0, vo))
    I("v_lshl_add_u32 v%d, v%d, 3, v%d" % (vq, t1, vo))
    I("v_and_b32 v%d, 2, v%d" % (vq + 1, t1))
    I("v_lshl_add_u32 v%d, v%d, 3, v%d" % (vq, vq + 1, vq))
    I("v_lshl_add_u32 v%d, v%d, 4, v%d" % (vo, t1, vo))
    I("v_add_u32 v%d, 0x10000, v%d" % (vq + 1, vq))
    I("v_add_u32 v%d, 0x10000, v%d" % (vo + 1, vo))
    I("v_lshl_add_u32 v%d, v%d, 14, v%d" % (vw, t0, V_LIN))
    I("v_add_u32 v%d, 0x10000, v%d" % (vw + 1, vw))
    I("s_lshl_b32 s%d, s%d, 14" % (S_T2, S_W))
    I("s_add_u32 s%d, s%d, %d" % (S_T2, S_T2, L_STAGE))

    nt = lambda src: " nt" if E("NTC", 0) >> (src - B_WQ) & 1 else ""

    TH = E("THR", 0)
    I("s_and_b32 s%d, s%d, 14" % (S_T3, S_J))
    I("s_cmp_eq_u32 s%d, 6" % S_T3)
    I("s_cselect_b64 vcc, 0, -1")

    def throttle():
        if TH:
            lab = a.uid("L_th")
            I("s_cbranch_vccz %s" % lab)
            I("s_waitcnt vmcnt(%d)" % TH)
            a.L(lab)

    def soff(i, stride):
        throttle()
        I("s_add_u32 s%d, s%d, %d" % (S_T3, S_ROT, i >> 2))
        I("s_and_b32 s%d, s%d, 3" % (S_T3, S_T3))
        I("s_lshl_b32 s%d, s%d, 2" % (S_T3, S_T3))
        I("s_add_u32 s%d, s%d, %d" % (S_T3, S_T3, i & 3))
        I("s_mul_i32 s%d, s%d, %d" % (S_T3, S_T3, 16 * stride))

    def issue(src, half, vaddr, stride):
        a.srd(S_TMPSRD, ptr(src), 0, 8 * MB)
        for i in range(16):
            I("s_add_u32 m0, s%d, %d" % (S_T2, half * 65536 + i * 1024))
            soff(i, stride)
            I("buffer_load_dwordx4 v%d, s[%d:%d], s%d offen%s lds" % (vaddr, S_TMPSRD, S_TMPSRD + 3, S_T3, nt(src)))

    def issue_reg(src, vbase, vaddr, stride):
        a.srd(S_TMPSRD, ptr(src), 0, 8 * MB)
        for i in range(16):
            soff(i, stride)
            I("buffer_load_dwordx4 %s, v%d, s[%d:%d], s%d offen%s" % (vr4(vbase + 4 * i), vaddr, S_TMPSRD, S_TMPSRD + 3, S_T3, nt(src)))

    def reg_to_lds(vbase, half):
        for i in range(16):
            I("ds_write_b128 v%d, %s offset:%d" % (vw + half, vr4(vbase + 4 * i), L_STAGE + i * 1024))
        I("s_waitcnt lgkmcnt(0)")

    def reads(areg, half, va_, tstep):
        for b in range(4):
            for t in range(2):
                d = areg(t, b)
                for u, o in enumerate((0, 256, 2048, 2304)):
                    off = L_STAGE + b * 4096 + o + t * tstep
                    I("ds_read_b64_tr_b16 a[%d:%d], v%d offset:%d" % (d + 2 * u, d + 2 * u + 1, va_ + half, off))
            I("s_waitcnt lgkmcnt(0)")
    RV_, RO_ = 112, 48
    vgv = V_PT + 5
    I("v_xor_b32 v%d, %d, v%d" % (vgv, 64 * VROT, vg))
    M = {'q': (B_WQ, vg, 8192, lambda t, b: a_qkv(0, t, b), vq, 16), 'k': (B_WK, vg, 8192, lambda t, b: a_qkv(1, t, b), vq, 16),
         'v': (B_WV, vgv, 8192, lambda t, b: a_qkv(2, t, b), vo, 8), 'o': (B_WO, vg2, 2048, a_wo, vo, 8)}
    m = [M[c] for c in os.environ.get("WORD", "kvqo")]
    issue(m[0][0], 0, m[0][1], m[0][2])
    issue(m[1][0], 1, m[1][1], m[1][2])
    issue_reg(m[2][0], RV_, m[2][1], m[2][2])
    I("s_waitcnt vmcnt(32)")
    issue_reg(m[3][0], RO_, m[3][1], m[3][2])
    reads(m[0][3], 0, *m[0][4:])
    I("s_waitcnt vmcnt(32)")
    reads(m[1][3], 1, *m[1][4:])
    I("s_waitcnt vmcnt(16)")
    reg_to_lds(RV_, 0)
    reads(m[2][3], 0, *m[2][4:])
    I("s_waitcnt vmcnt(0)")
    reg_to_lds(RO_, 1)
    reads(m[3][3], 1, *m[3][4:])
    t2 = V_PT + 2
    I("v_bfe_u32 v%d, v0, 1, 1" % t1)
    I("v_lshlrev_b32 v%d, 4, v%d" % (t1, t1))
    I("v_mov_b32 v%d, 0x3f80" % t2)
    I("v_lshlrev_b32 v%d, v%d, v%d" % (t2, t1, t2))
    I("v_bfe_u32 v%d, v0, 3, 1" % t0)
    I("v_bfe_u32 v%d, v0, 4, 1" % t1)
    I("v_xor_b32 v%d, v%d, v%d" % (t1, t1, t0))
    I("v_bfe_u32 v%d, v0, 2, 1" % t0)
    I("v_lshl_add_u32 v%d, v%d, 2, v%d" % (t0, t1, t0))
    I("v_and_b32 v%d, 1, v0" % t1)
    I("v_lshl_add_u32 v%d, v%d, 1, v%d" % (t0, t1, t0))
    for r in range(4):
        I("v_cmp_eq_u32 vcc, %d, v%d" % (r, t0))
        I("s_nop 1")
        I("v_cndmask_b32 v%d, 0, v%d, vcc" % (V_SEL2 + r, t2))
    for i in range(24):
        I("v_mov_b32 v%d, 0" % (V_ACC + i))
    for r in (V_VM + 1, V_VM + 3, V_PM + 1):
        I("v_mov_b32 v%d, 0" % r)


def kv_prefetch(a, parts=(0, 1, 2, 3)):
    I = a.I
    for i, (va, off) in enumerate(((V_KLD, 0), (V_KLD, 128), (V_VTLD, 2048), (V_VTLD, 2048 + 64))):
        if i not in parts:
            continue
        I("s_add_u32 m0, s%d, %d" % (S_LKV, i * 1024 - off))
        I("s_nop 0")
        I("buffer_load_dwordx4 v%d, %s, s%d offen offset:%d lds" % (va, W, S_KV, off))
    I("s_xor_b32 s%d, s%d, 4096" % (S_LKV, S_LKV))


def cnt_wait(a, kind, s_seg=None):
    I = a.I
    if 'nowork' in ABL and kind != 'init':
        return
    rt, ok = a.uid("L_dw"), a.uid("L_dwok")
    if kind != 'init':
        I("s_lshl_b32 s%d, s%d, 7" % (S_T1, s_seg))
    if kind == 'kv':
        I("s_add_u32 s%d, s%d, 0x%x" % (S_T1, S_T1, C_KV))
    I("v_mov_b32 v%d, 0" % V_SMP)
    a.L(rt)
    if kind == 'init':
        I("buffer_load_dword v%d, v%d, s[%d:%d], 0 offen sc1" % (V_SMP + 1, V_SMP, S_TMPSRD, S_TMPSRD + 3))
    elif kind == 'kv':
        I("buffer_load_dword v%d, v%d, %s, s%d offen sc1" % (V_SMP + 1, V_SMP, W, S_T1))
    else:
        I("s_load_dword s%d, s[%d:%d], s%d glc" % (S_T0, S_CKV, S_CKV + 1, S_T1))
    I("s_add_u32 s%d, s%d, 1" % (S_SPIN, S_SPIN))
    I("s_cmp_gt_u32 s%d, 0x%x" % (S_SPIN, SPIN_LIMIT))
    I("s_waitcnt lgkmcnt(0)" if kind == 'kvs' else "s_waitcnt vmcnt(0)")
    I("s_cbranch_scc1 %s" % ABORT[0])
    if kind != 'kvs':
        I("v_readfirstlane_b32 s%d, v%d" % (S_T0, V_SMP + 1))
    if kind == 'init':
        I("s_and_b32 s%d, s%d, 0xffff" % (S_T2, S_T0))
        I("s_cmp_ge_u32 s%d, 256" % S_T2)
    else:
        I("s_cmp_ge_u32 s%d, 64" % S_T0)
    I("s_cbranch_scc1 %s" % ok)
    I("s_sleep 2")
    I("s_branch %s" % rt)
    a.L(ok)


def publish_kv(a, soff, qk):
    I = a.I
    if qk is None:
        qk = V_R
        I("ds_read_b128 %s, v%d offset:%d" % (vr4(V_R), V_LIN, L_KM))
    I("ds_read_b128 %s, v%d offset:%d" % (vr4(V_R + 4), V_LIN, L_VM))
    exec_(a, S_M8H)
    I("s_waitcnt lgkmcnt(1)")
    I("buffer_store_dwordx4 %s, v%d, %s, s%d offen offset:%d sc1" % (vr4(qk), V_KMST, W, soff, KM_OFF))
    exec_(a, S_L32)
    I("s_waitcnt lgkmcnt(0)")
    I("buffer_store_dwordx4 %s, v%d, %s, s%d offen offset:%d sc1" % (vr4(V_R + 4), V_VMST, W, soff, VM_OFF))
    exec_(a, None)


def slots(step=S_STEP):
    return ["s_and_b32 s%d, s%d, 3" % (S_T0, step),
            "s_lshl_b32 s%d, s%d, 16" % (S_T1, S_T0),
            "s_add_u32 s%d, s%d, s%d" % (S_MEMC, S_BMEM, S_T1),
            "s_add_u32 s%d, s%d, 0x%x" % (S_OX, S_MEMC, X_OX - X_MEM),
            "s_lshl_b32 s%d, s%d, 18" % (S_T1, S_T0),
            "s_add_u32 s%d, s%d, s%d" % (S_SX, S_BSX, S_T1),
            "s_add_u32 s%d, s%d, 0x%x" % (S_PX, S_KV, WS_P - WS_B),
            "s_add_u32 s%d, s%d, 1" % (S_T1, step),
            "s_bitcmp1_b32 s%d, 1" % S_T1,
            "s_cselect_b32 s%d, s%d, s%d" % (S_KV, S_PXB2, S_PXB),
            "s_lshl_b32 s%d, s%d, 20" % (S_T1, S_T1),
            "s_add_u32 s%d, s%d, s%d" % (S_KV, S_KV, S_T1),
            "s_add_u32 s%d, s%d, 1" % (S_T0, S_T0),
            "s_and_b32 s%d, s%d, 3" % (S_T0, S_T0),
            "s_lshl_b32 s%d, s%d, 16" % (S_T0, S_T0),
            "s_add_u32 s%d, s%d, s%d" % (S_MEMN, S_BMEM, S_T0)]


def smf(c, w, b):
    return "v_smfmac_f32_16x16x64_bf16 %s, %s, a[%d:%d], v%d" % (vr4(c), vr4(V_M + 4 * b), w, w + 7, V_IDX)


def mfma32(d, x, y, c=None):
    return "v_mfma_f32_16x16x32_bf16 %s, %s, %s, %s" % (vr4(d), vr4(x), vr4(y), "0" if c is None else vr4(c))


def mfma16(d, x, y):
    return "v_mfma_f32_16x16x16_bf16 %s, %s, %s, 0" % (vr4(d), vr2(x), vr2(y))


def cvt(d, x, y):
    return "v_cvt_pk_bf16_f32 v%d, v%d, v%d" % (d, x, y)


def step_loop(a, name, lsc):
    I = a.I
    loop, done = a.uid("L_step"), name + "_done"
    Lh1, Lb3, Lh2, Lb4, Lfin = (a.uid(x) for x in ("L_help1", "L_bar3", "L_help2", "L_bar4", "L_fin"))
    a.L(loop)
    a.C("==== A: gather the memory, q / k projection partials")
    nops(a, D_A)
    zo = ["v_mov_b32 v%d, 0" % (V_OA + i) for i in range(8)]
    kx = ["ds_read_b128 %s, v%d" % (vr4(V_KX), V_KFR), "ds_read_b128 %s, v%d offset:1024" % (vr4(V_KX + 4), V_KFR),
          "v_xor_b32 v%d, 0x1000, v%d" % (V_KFR, V_KFR)]
    gather(a, S_MEMC, lambda b: [smf(acc(M, t), a_qkv(M, t, b), b) for t in range(2) for M in range(2)], "a", zo + kx)
    stamp(a, 1)
    a.C("---- B: round the partials, transpose them with a selection MFMA (also adds the two K halves)")
    q0, k0, q1, k1 = acc(0, 0), acc(1, 0), acc(0, 1), acc(1, 1)
    I(cvt(V_TA, q0, q0 + 1))
    I(cvt(V_TA + 1, q0 + 2, q0 + 3))
    I(cvt(V_TA + 2, k0, k0 + 1))
    I(cvt(V_TA + 3, k0 + 2, k0 + 3))
    I("s_cmp_lg_u32 s%d, 0" % S_W)
    I(cvt(V_TA + 4, q1, q1 + 1))
    I(mfma32(V_TD, V_TA, V_SEL))
    I(cvt(V_TA + 5, q1 + 2, q1 + 3))
    I(cvt(V_TA + 6, k1, k1 + 1))
    I(cvt(V_TA + 7, k1 + 2, k1 + 3))
    I("s_nop 1")
    I(mfma32(V_TD + 4, V_TA + 4, V_SEL))
    I("s_cbranch_scc0 %s" % (Lh1 + "_w0"))
    I("s_nop 0")
    I("ds_write_b128 v%d, %s" % (V_TW, vr4(V_TD)))
    I("s_nop 4")
    I("ds_write_b128 v%d, %s offset:1024" % (V_TW, vr4(V_TD + 4)))
    I("s_waitcnt lgkmcnt(0)")
    I("s_barrier")
    def local_poison():
        a.C("---- wave 2: poison the exchange slots everybody is done with")
        lpe = a.uid("L_poe")
        I("s_cmp_lg_u32 s%d, 2" % S_W)
        I("s_cbranch_scc1 %s" % lpe)
        I("s_sub_u32 s%d, s%d, 1" % (S_T0, S_STEP))
        I("s_and_b32 s%d, s%d, 3" % (S_T0, S_T0))
        I("s_lshl_b32 s%d, s%d, 16" % (S_T1, S_T0))
        I("s_add_u32 s%d, s%d, s%d" % (S_T1, S_T1, S_BMEM))
        I("s_add_u32 s%d, s%d, 0x%x" % (S_T2, S_T1, X_OX - X_MEM))
        I("s_lshl_b32 s%d, s%d, 18" % (S_T3, S_T0))
        I("s_add_u32 s%d, s%d, s%d" % (S_T3, S_T3, S_BSX))
        I("buffer_store_dwordx2 %s, v%d, %s, s%d offen%s" % (vr2(V_SENT), V_MEMST, W, S_T1, lsc))
        I("buffer_store_dwordx2 %s, v%d, %s, s%d offen%s" % (vr2(V_SENT), V_OXPO, W, S_T2, lsc))
        I("buffer_store_dwordx4 %s, v%d, %s, s%d offen%s" % (vr4(V_SENT), V_SXST, W, S_T3, lsc))
        exec_(a, S_MM)
        I("buffer_store_dwordx4 %s, v%d, %s, s%d offen%s" % (vr4(V_SENT), V_SXM, W, S_T3, lsc))
        exec_(a, None)
        a.L(lpe)
    if E("LPOI", 1) == 0:
        local_poison()
    vp = [smf(acc(2, t), a_qkv(2, t, b), b) for b in range(4) for t in range(2)]
    for l in vp:
        I(l)
    I("s_nop 4")
    I("ds_write_b128 v%d, %s" % (V_RVW, vr4(acc(2, 0))))
    I("s_nop 1")
    I("ds_write_b128 v%d, %s offset:512" % (V_RVW, vr4(acc(2, 1))))
    I("s_waitcnt lgkmcnt(0)")
    lv, L2b = a.uid("L_vred"), a.uid("L_bar2b")
    a.L(L2b + "_2")
    I("s_barrier")
    I("s_cmp_eq_u32 s%d, 1" % S_W)
    I("s_cbranch_scc1 %s" % lv)
    a.L(L2b)
    I("s_waitcnt lgkmcnt(0)")
    I("s_barrier")
    if E("LPOI", 1) == 1:
        local_poison()
    if PUBW == 2 and 'nopub' not in ABL:
        lq = a.uid("L_np")
        I("s_cmp_lg_u32 s%d, 2" % S_W)
        I("s_cbranch_scc1 %s" % lq)
        publish_kv(a, S_PX, None)
        a.L(lq)
    I("s_cmp_lg_u32 s%d, 3" % S_W)
    I("s_cbranch_scc1 %s" % Lb3)
    a.C("---- wave 3: k_x / v_x^T of the next step -> LDS")
    lg0 = a.uid("L_gated")
    I("s_cmp_ge_u32 s%d, 2" % S_STEP)
    I("s_cbranch_scc1 %s" % lg0)
    I("s_add_u32 s%d, s%d, 1" % (S_T3, S_STEP))
    cnt_wait(a, 'kv', S_T3)
    a.L(lg0)
    if 'nokv' not in ABL:
        kv_prefetch(a, (0, 1, 2, 3) if KVW == 0 else (0, 1))
    I("s_branch %s" % Lb3)
    a.L(lv)
    a.C("---- wave 1: v_m = sum of the 8 partial planes")
    for p in range(8):
        for t in range(2):
            I("ds_read_b64 %s, v%d offset:%d" % (vr2(V_R + 4 * p + 2 * t), V_RVR, p * 1024 + t * 512))
            if p == 7 and t == 0:
                I("s_waitcnt lgkmcnt(11)")
    I("s_waitcnt lgkmcnt(8)")
    for (d, s_) in ((0, 1), (2, 3), (0, 2)):
        for t in range(2):
            pk(a, V_R + 4 * d + 2 * t, V_R + 4 * d + 2 * t, V_R + 4 * s_ + 2 * t)
    I("s_waitcnt lgkmcnt(0)")
    for (d, s_) in ((4, 5), (6, 7), (0, 4), (0, 6)):
        for t in range(2):
            pk(a, V_R + 4 * d + 2 * t, V_R + 4 * d + 2 * t, V_R + 4 * s_ + 2 * t)
    I(cvt(V_VM, V_R, V_R + 1))
    I(cvt(V_VM + 2, V_R + 2, V_R + 3))
    I("ds_write2_b32 v%d, v%d, v%d offset0:0 offset1:16" % (V_VMW, V_VM, V_VM + 2))
    I("s_branch %s" % L2b)
    a.L(Lh1 + "_w0")
    for l in vp:
        I(l)
    I("s_nop 4")
    I("ds_write_b128 v%d, %s" % (V_RVW, vr4(acc(2, 0))))
    I("s_nop 1")
    I("ds_write_b128 v%d, %s offset:512" % (V_RVW, vr4(acc(2, 1))))
    I("s_barrier")
    stamp(a, 2)
    for w in range(1, 4):
        for t in range(2):
            I("ds_read_b128 %s, v%d offset:%d" % (vr4(V_R + 8 * (w - 1) + 4 * t), V_LIN, L_T + w * 2048 + t * 1024))
    for w in range(3):
        I("s_waitcnt lgkmcnt(%d)" % (4 - 2 * w))
        for i in range(0, 8, 2):
            pk(a, V_TD + i, V_TD + i, V_R + 8 * w + i)
    for i in range(4):
        I(cvt(V_QK + i, V_TD + 2 * i, V_TD + 2 * i + 1))
    exec_(a, S_MM)
    I("s_nop 0")
    I(mfma32(V_SM, V_QK, V_QK))
    I(mfma32(V_S0, V_KX, V_QK))
    I(mfma32(V_S1, V_KX + 4, V_QK))
    I("s_nop 3")
    I("buffer_store_dwordx4 %s, v%d, %s, s%d offen%s" % (vr4(V_SM), V_SXM, W, S_SX, lsc))
    exec_(a, S_M8)
    I("buffer_store_dwordx4 %s, v%d, %s, s%d offen%s" % (vr4(V_S0), V_SXST, W, S_SX, lsc))
    I("s_nop 0")
    I("buffer_store_dwordx4 %s, v%d, %s, s%d offen offset:128%s" % (vr4(V_S1), V_SXST, W, S_SX, lsc))
    exec_(a, None)
    stamp(a, 3)
    B2L = E("B2L", 1)
    if not B2L:
        I("s_barrier")
    a.C("---- C: partial scores of the other three workgroups of the head")
    I("ds_write_b128 v%d, %s offset:%d" % (V_LIN, vr4(V_QK), L_KM))
    for t in range(2):
        I("ds_read_b128 %s, v%d offset:%d" % (vr4(V_VT + 4 * t), V_VTR, t * 1024))
    for i in range(4):
        I("v_mov_b32_dpp v%d, v%d row_shr:8 row_mask:0xf bank_mask:0xc" % (V_S0 + i, V_S1 + i))
    I("v_xor_b32 v%d, 0x1000, v%d" % (V_VTR, V_VTR))
    I("s_cmp_eq_u32 s%d, 63" % S_STEP)
    I("s_cbranch_scc1 %s" % (L2b + "_2" if B2L else L2b))
    nops(a, D_C)

    def sx_loads(r):
        b = V_L + 16 * r
        return ["buffer_load_dwordx4 %s, v%d, %s, s%d offen sc1" % (vr4(b), V_SXLM, W, S_SX)] + \
               ["buffer_load_dwordx4 %s, v%d, %s, s%d offen sc1" % (vr4(b + 4 + 4 * k), V_SXLD + k, W, S_SX) for k in range(3)]
    for r in range(NSC):
        for l in sx_loads(r):
            I(l)
        if r == 0 and B2L:
            I("s_barrier")
        if r < NSC - 1:
            nops(a, G_C)
    cok = a.uid("L_cok")

    def sx_sum(out, r, nlater):
        b = V_L + 16 * r
        P = lambda d, x, y: "v_pk_add_f32 %s, %s, %s" % (vr2(d), vr2(x), vr2(y))
        out += ["s_waitcnt vmcnt(%d)" % (3 + nlater),
                "v_permlane32_swap_b32 v%d, v%d" % (b, b + 2),
                "v_permlane32_swap_b32 v%d, v%d" % (b + 1, b + 3),
                "s_waitcnt vmcnt(%d)" % (2 + nlater),
                P(V_X + 1, b, b + 2),
                P(V_T, V_S0, b + 4),
                P(V_T + 2, V_S0 + 2, b + 6),
                "v_permlane16_swap_b32 v%d, v%d" % (V_X + 1, V_X + 2),
                "s_waitcnt vmcnt(%d)" % (1 + nlater),
                P(V_T, V_T, b + 8),
                P(V_T + 2, V_T + 2, b + 10),
                "v_add_f32 v%d, v%d, v%d" % (V_TM, V_X + 1, V_X + 2),
                "s_waitcnt vmcnt(%d)" % nlater,
                P(V_T, V_T, b + 12),
                P(V_T + 2, V_T + 2, b + 14),
                P(V_X + 1, V_T, V_T + 2),
                "v_add_f32 v%d, v%d, v%d" % (V_X + 1, V_X + 1, V_TM),
                "v_cmp_u_f32 vcc, v%d, v%d" % (V_X + 1, V_X + 2)]
    hot = []
    sx_sum(hot, 0, 4 * (NSC - 1))
    for l in hot:
        I(l)
    cf = a.uid("L_cf")
    COLD.append(cf + ":")
    if STAMP == 3:
        COLD.append("    s_add_u32 s%d, s%d, 1" % (S_ACC + 3, S_ACC + 3))
    rot_poll(a, NSC, sx_loads, sx_sum, range(V_L, V_L + 16), cok, E('CRE', 1))
    vals = [V_T, V_T + 1, V_T + 2, V_T + 3, V_TM]
    mx, t1 = V_X + 1, V_X + 3
    if EMU:
        head = ["v_cvt_pk_bf16_f32 v%d, 0, v%d" % (V_PB + i if i < 4 else V_SUM, v) for i, v in enumerate(vals)]
    else:
        head = ["v_max3_f32 v%d, v%d, v%d, v%d" % (mx, V_T, V_T + 1, V_T + 2),
                "v_max3_f32 v%d, v%d, v%d, v%d" % (mx, mx, V_T + 3, V_TM),
                "s_nop 1",
                "v_max_f32_dpp v%d, v%d, v%d row_ror:8 row_mask:0xf bank_mask:0xf" % (mx, mx, mx)]
    for l in head:
        I(l)
    I("s_cbranch_vccnz %s" % cf)
    lskip = a.uid("L_chead")
    COLD.append(cok + ":")
    COLD.extend("    " + l for l in head)
    COLD.append("    s_branch %s" % lskip)
    a.L(lskip)
    stamp(a, 4)
    I("s_waitcnt lgkmcnt(0)")
    I("s_barrier")
    I("ds_read_b32 v%d, v%d" % (V_VM, V_VMW))
    I("ds_read_b32 v%d, v%d offset:64" % (V_VM + 2, V_VMW))
    a.C("---- D: softmax and P V")
    if EMU:
        I("v_pk_mul_f32 %s, %s, s[%d:%d]" % (vr2(V_T), vr2(V_PB), S_SCL, S_SCL + 1))
        I("v_pk_mul_f32 %s, %s, s[%d:%d]" % (vr2(V_T + 2), vr2(V_PB + 2), S_SCL, S_SCL + 1))
        I("v_mul_f32 v%d, s%d, v%d" % (V_TM, S_SCL, V_SUM))
        for v in vals:
            I("v_cvt_pk_bf16_f32 v%d, 0, v%d" % (v, v))
        I("v_max3_f32 v%d, v%d, v%d, v%d" % (mx, V_T, V_T + 1, V_T + 2))
        I("v_max3_f32 v%d, v%d, v%d, v%d" % (mx, mx, V_T + 3, V_TM))
        I("s_nop 1")
        I("v_max_f32_dpp v%d, v%d, v%d row_ror:8 row_mask:0xf bank_mask:0xf" % (mx, mx, mx))
    for sw in ("v_permlane16_swap_b32", "v_permlane32_swap_b32"):
        I("v_mov_b32 v%d, v%d" % (t1, mx))
        I("s_nop 1")
        I("%s v%d, v%d" % (sw, mx, t1))
        I("v_max_f32 v%d, v%d, v%d" % (mx, mx, t1))
    if B3P == 2:
        I("s_barrier")
    I("v_mul_f32 v%d, s%d, v%d" % (mx, S_C, mx))
    I("v_fma_f32 v%d, v%d, s%d, -v%d" % (V_TM, V_TM, S_C, mx))
    pf = "v_pk_fma_f32 %s, %s, s[%d:%d], %s op_sel_hi:[1,1,0] neg_lo:[0,0,1] neg_hi:[0,0,1]"
    I("v_exp_f32 v%d, v%d" % (V_TM, V_TM))
    I(pf % (vr2(V_T), vr2(V_T), S_C, S_C + 1, vr2(mx)))
    I(pf % (vr2(V_T + 2), vr2(V_T + 2), S_C, S_C + 1, vr2(mx)))
    I("v_mov_b32_dpp v%d, v%d row_ror:8 row_mask:0xf bank_mask:0xf" % (t1, V_TM))
    I("v_exp_f32 v%d, v%d" % (V_T, V_T))
    I(cvt(V_PM, V_TM, t1))
    I("v_exp_f32 v%d, v%d" % (V_T + 1, V_T + 1))
    I("v_exp_f32 v%d, v%d" % (V_T + 2, V_T + 2))
    I(mfma16(V_SUM, V_ONE, V_PM))
    I("v_exp_f32 v%d, v%d" % (V_T + 3, V_T + 3))
    I("s_waitcnt lgkmcnt(0)")
    I(cvt(V_PB, V_T, V_T + 1))
    I(mfma16(V_O, V_VM, V_PM))
    I(cvt(V_PB + 1, V_T + 2, V_T + 3))
    I("v_mov_b32_dpp v%d, v%d row_ror:8 row_mask:0xf bank_mask:0xf" % (V_PB + 2, V_PB))
    I(mfma16(V_O + 4, V_VM + 2, V_PM))
    I("v_mov_b32_dpp v%d, v%d row_ror:8 row_mask:0xf bank_mask:0xf" % (V_PB + 3, V_PB + 1))
    I("s_nop 0")
    exec_(a, S_M8)
    I(mfma32(V_SUM, V_ONE, V_PB, V_SUM))
    I(mfma32(V_O, V_VT, V_PB, V_O))
    I(mfma32(V_O + 4, V_VT + 4, V_PB, V_O + 4))
    if B3P == 1:
        I("s_barrier")
        I("s_nop 2")
    else:
        I("s_nop 3")
    I("v_rcp_f32 v%d, v%d" % (V_SUM, V_SUM))
    I("s_nop 0")
    pm = "v_pk_mul_f32 %s, %s, %s op_sel_hi:[1,0]"
    I(pm % (vr2(V_O), vr2(V_O), vr2(V_SUM)))
    I(pm % (vr2(V_O + 2), vr2(V_O + 2), vr2(V_SUM)))
    I(pm % (vr2(V_O + 4), vr2(V_O + 4), vr2(V_SUM)))
    I(pm % (vr2(V_O + 6), vr2(V_O + 6), vr2(V_SUM)))
    for i in range(4):
        I(cvt(V_OB + i, V_O + 2 * i, V_O + 2 * i + 1))
    I("buffer_store_dwordx4 %s, v%d, %s, s%d offen%s" % (vr4(V_OB), V_OXST, W, S_OX, lsc))
    exec_(a, None)
    stamp(a, 5)
    if B3P == 0:
        I("s_barrier")
    nops(a, max(D_E - 4, 0))
    I("s_branch %s" % (Lb3 + "_e"))
    a.L(Lb3)
    I("s_waitcnt lgkmcnt(0)")
    I("s_barrier")
    I("s_cmp_eq_u32 s%d, 63" % S_STEP)
    I("s_cbranch_scc1 %s" % Lfin)
    nops(a, H_E)
    a.L(Lb3 + "_e")
    a.C("==== E: gather the attention output of the XCD's heads, output projection partials")
    za = ["v_mov_b32 v%d, 0" % (V_ACC + i) for i in range(24)]
    gather(a, S_OX, lambda b: [smf(V_OA + 4 * ct, a_wo(ct, b), b) for ct in range(2)], "e", za)
    stamp(a, 6)
    I("s_add_u32 s%d, s%d, 1" % (S_STEP, S_STEP))
    I("s_cmp_lg_u32 s%d, 0" % S_W)
    I("s_nop 2")
    I(cvt(V_TA, V_OA, V_OA + 1))
    I(cvt(V_TA + 1, V_OA + 2, V_OA + 3))
    I("s_nop 0")
    I(cvt(V_TA + 2, V_OA + 4, V_OA + 5))
    I(cvt(V_TA + 3, V_OA + 6, V_OA + 7))
    I("s_nop 1")
    I(mfma32(V_TD, V_TA, V_SEL2))
    I("s_cbranch_scc1 %s" % Lh2)
    I("s_barrier")
    stamp(a, 7)
    a.C("---- F / G (wave 0): XCD partial -> PX, sum of the four partials -> MEMX")
    for w in range(1, 4):
        I("ds_read_b128 %s, v%d offset:%d" % (vr4(V_R + 4 * w), V_LIN, L_RO + w * 2048))
    for w in range(1, 4):
        I("s_waitcnt lgkmcnt(%d)" % (3 - w))
        src = V_TD if w == 1 else V_R
        pk(a, V_R, src, V_R + 4 * w)
        pk(a, V_R + 2, src + 2, V_R + 4 * w + 2)
    if PXB:
        I(cvt(V_TA, V_R, V_R + 1))
        I(cvt(V_TA + 1, V_R + 2, V_R + 3))
    for r in range(NREP):
        if PXB:
            I("buffer_store_dwordx2 %s, v%d, %s, s%d offen offset:%d sc1" % (vr2(V_TA), V_PXST, W, S_PX, r * 512))
        else:
            I("buffer_store_dwordx4 %s, v%d, %s, s%d offen offset:%d sc1" % (vr4(V_R), V_PXST, W, S_PX, r * 1024))
    stamp(a, 8)
    I("s_mov_b32 s%d, s%d" % (S_T2, S_PX))
    I("s_mov_b32 s%d, s%d" % (S_T3, S_MEMN))
    sl = slots()
    for l in sl:
        I(l)
    nops(a, max(D_G - len(sl) - 2, 0))

    def px_loads(r):
        if PXB:
            return ["buffer_load_dwordx2 %s, v%d, %s, s%d offen offset:%d sc1" % (vr2(V_L + 12 * r + 2 * k), V_PXLD + k, W, S_T2, r * 512) for k in range(3)]
        return ["buffer_load_dwordx4 %s, v%d, %s, s%d offen offset:%d sc1" % (vr4(V_L + 12 * r + 4 * k), V_PXLD + k, W, S_T2, r * 1024) for k in range(3)]
    for r in range(NREP):
        for l in px_loads(r):
            I(l)
        if r < NREP - 1:
            nops(a, G_G)

    NSH = 0
    if PUBW == 1 and 'nopub' not in ABL:
        publish_kv(a, S_T2, V_QK)
        NSH += 2
    if KVW == 2 and 'nokv' not in ABL:
        I("s_sub_u32 s%d, s%d, 0x%x" % (S_T0, S_PX, WS_P - WS_B))
        n0 = len(a.lines)
        kv_prefetch(a, (2, 3))
        a.lines[n0:] = [l.replace("s%d offen" % S_KV, "s%d offen" % S_T0) for l in a.lines[n0:]]
        NSH += 2

    def px_sum(out, r, nlater):
        b = V_L + 12 * r
        P = lambda d, x, y: "v_pk_add_f32 %s, %s, %s" % (vr2(d), vr2(x), vr2(y))
        for k in range(3 if PXB else 0):
            u = V_TA + 4
            out += ["s_waitcnt vmcnt(%d)" % (2 - k + nlater),
                    "v_lshlrev_b32 v%d, 16, v%d" % (u, b + 2 * k), "v_and_b32 v%d, 0xffff0000, v%d" % (u + 1, b + 2 * k),
                    "v_lshlrev_b32 v%d, 16, v%d" % (u + 2, b + 2 * k + 1), "v_and_b32 v%d, 0xffff0000, v%d" % (u + 3, b + 2 * k + 1),
                    P(V_T, V_R if k == 0 else V_T, u), P(V_T + 2, V_R + 2 if k == 0 else V_T + 2, u + 2)]
        if PXB:
            out += ["v_cmp_u_f32 vcc, v%d, v%d" % (V_T, V_T + 2), cvt(V_OB, V_T, V_T + 1), cvt(V_OB + 1, V_T + 2, V_T + 3)]
            return
        for k in range(3):
            out += ["s_waitcnt vmcnt(%d)" % (2 - k + nlater),
                    P(V_T, V_R if k == 0 else V_T, b + 4 * k),
                    P(V_T + 2, V_R + 2 if k == 0 else V_T + 2, b + 4 * k + 2)]
        out += [P(V_X + 1, V_T, V_T + 2),
                "v_cmp_u_f32 vcc, v%d, v%d" % (V_X + 1, V_X + 2),
                cvt(V_OB, V_T, V_T + 1), cvt(V_OB + 1, V_T + 2, V_T + 3)]
    if H_A >= 0:
        I("s_barrier")
    hot = []
    px_sum(hot, 0, 3 * (NREP - 1) + NSH)
    for l in hot:
        I(l)
    gf, gok, grt = a.uid("L_gf"), a.uid("L_gok"), a.uid("L_grt")
    I("s_cbranch_vccnz %s" % gf)
    a.L(gok)
    COLD.append(gf + ":")
    if STAMP == 3:
        COLD.append("    s_add_u32 s%d, s%d, 1" % (S_ACC + 4, S_ACC + 4))
    rot_poll(a, NREP, px_loads, px_sum, range(V_L, V_L + (6 if PXB else 12)), gok, False, NSH)
    I("buffer_store_dwordx2 %s, v%d, %s, s%d offen%s" % (vr2(V_OB), V_MEMST, W, S_T3, lsc))
    stamp(a, 9)
    if H_A < 0:
        I("s_barrier")
    if STAMP >= 2:
        I("s_cmp_lg_u32 s%d, 5" % S_STEP)
        I("s_cbranch_scc1 %s" % loop)
        I("s_memrealtime s[%d:%d]" % (S_ST, S_ST + 1))
        I("s_mov_b32 s%d, 0" % S_SPIN)
        I("s_branch %s" % loop)
    elif STAMP:
        I("s_waitcnt lgkmcnt(0)")
        for i in range(9):
            I("s_sub_u32 s%d, s%d, s%d" % (S_T0, S_ST + 2 * i + 2, S_ST + 2 * i))
            I("s_add_u32 s%d, s%d, s%d" % (S_ACC + i, S_ACC + i, S_T0))
        I("s_mov_b32 s%d, s%d" % (S_ST, S_ST + 18))
        I("s_cmp_lg_u32 s%d, 5" % S_STEP)
        I("s_cbranch_scc1 %s" % (loop + "_nd"))
        for i in range(9):
            I("s_mov_b32 s%d, 0" % (S_ACC + i))
        I("s_mov_b32 s%d, 0" % S_SPIN)
        I("s_branch %s" % (loop + "_nd"))
    else:
        I("s_branch %s" % loop)
    a.L(Lh2)
    I("s_nop 2")
    I("ds_write_b128 v%d, %s offset:%d" % (V_TW, vr4(V_TD), L_RO))
    I("s_waitcnt lgkmcnt(0)")
    I("s_barrier")
    for l in sl:
        I(l)
    l3 = a.uid("L_w3")
    I("s_cmp_eq_u32 s%d, 3" % S_W)
    I("s_cbranch_scc1 %s" % l3)
    a.C("---- wave 2 of one workgroup: one more segment's k_m / v_m are complete everywhere")
    I("s_xor_b32 s%d, s%d, 2" % (S_T0, S_W))
    I("s_or_b32 s%d, s%d, s%d" % (S_T0, S_T0, S_X))
    I("s_or_b32 s%d, s%d, s%d" % (S_T0, S_T0, S_J))
    I("s_cbranch_scc1 %s" % Lb4)
    I("s_cmp_lt_u32 s%d, %d" % (S_STEP, 3 if PUBW == 1 else 2))
    I("s_cbranch_scc1 %s" % Lb4)
    I("s_atomic_add s%d, s[%d:%d], 0x%x" % (S_ONE, ptr(D_DBG), ptr(D_DBG) + 1, DB_PROG))
    I("s_branch %s" % Lb4)
    a.L(l3)
    a.C("---- wave 3 of one workgroup: hold the chain until the segment fetched in the step after next exists")
    I("s_or_b32 s%d, s%d, s%d" % (S_T0, S_X, S_J))
    I("s_cbranch_scc1 %s" % Lb4)
    I("s_add_u32 s%d, s%d, 2" % (S_T3, S_STEP))
    I("s_min_u32 s%d, s%d, 63" % (S_T3, S_T3))
    cnt_wait(a, 'kvs', S_T3)
    a.L(Lb4)
    if STAMP:
        I("s_cmp_eq_u32 s%d, 5" % S_STEP)
        I("s_cselect_b32 s%d, 0, s%d" % (S_SPIN, S_SPIN))
    I("s_barrier")
    if H_A >= 0:
        nops(a, H_A)
        I("s_branch %s" % (loop + "_nd"))
    else:
        I("s_branch %s" % loop)
    a.L(Lfin)
    I("s_cmp_lg_u32 s%d, 2" % S_W)
    I("s_cbranch_scc1 %s" % done)
    if PUBW == 1:
        publish_kv(a, S_PX, None)
    I("s_branch %s" % done)
    return loop


def chain_main(a, name):
    I = a.I
    a.srd(S_WS, ptr(D_WS), 0, WS_SIZE)
    ABORT[0] = name + "_abort"
    I("s_mov_b32 s%d, 0" % S_SPIN)
    prologue_addrs(a)
    load_weights(a)
    HOOK.get('weights', lambda: None)()
    if E("CWARM", 1):
        a.C("---- half of the workgroups pull the token matrices into the memory-side cache for the worker streams")
        lw, le = a.uid("L_cwarm"), a.uid("L_cwarme")
        I("s_bitcmp1_b32 s%d, 2" % S_J)
        I("s_cbranch_scc1 %s" % le)
        I("s_lshr_b32 s%d, s%d, 3" % (S_T0, S_J))
        I("s_lshl_b32 s%d, s%d, 2" % (S_T0, S_T0))
        I("s_and_b32 s%d, s%d, 3" % (S_T1, S_J))
        I("s_add_u32 s%d, s%d, s%d" % (S_T0, S_T0, S_T1))
        I("s_lshl_b32 s%d, s%d, 4" % (S_T1, S_X))
        I("s_add_u32 s%d, s%d, s%d" % (S_T0, S_T0, S_T1))
        I("s_lshl_b32 s%d, s%d, 12" % (S_T0, S_T0))
        I("v_lshlrev_b32 v%d, 4, v0" % V_SMP)
        a.srd(S_TMPSRD, ptr(B_X), 0, 4 * MB)
        a.srd(56, ptr(A_X), 0, 4 * MB)
        for k in range(16):
            I("buffer_load_dwordx4 %s, v%d, s[%d:%d], s%d offen" % (vr4(V_R), V_SMP, S_TMPSRD, S_TMPSRD + 3, S_T0))
            if not E("G2WARM", 1):
                I("buffer_load_dwordx4 %s, v%d, s[56:59], s%d offen" % (vr4(V_R), V_SMP, S_T0))
            I("s_add_u32 s%d, s%d, 0x40000" % (S_T0, S_T0))
        a.L(le)
    a.C("---- initial memory -> MEMX slot 0, first prefetches")
    a.srd(S_TMPSRD, ptr(B_MEM0), 0, 16384)
    I("buffer_load_dwordx2 %s, v%d, s[%d:%d], 0 offen" % (vr2(V_R), V_M0LD, S_TMPSRD, S_TMPSRD + 3))
    I("s_waitcnt vmcnt(0)")
    a.srd(S_TMPSRD, ptr(D_DBG), 0, 256)
    I("s_mov_b32 s%d, 0" % S_STEP)
    I("s_mov_b32 s%d, 1" % S_ONE)
    I("s_mov_b32 s%d, %d" % (S_LKV, L_KV))
    I("s_add_u32 s%d, s%d, 0x%x" % (S_CKV, ptr(D_WS), C_KV))
    I("s_addc_u32 s%d, s%d, 0" % (S_CKV + 1, ptr(D_WS) + 1))
    cnt_wait(a, 'init')
    block_bases(a, S_T0, S_PXB, S_PXB2, S_T1)
    I("s_mov_b32 s%d, s%d" % (S_KV, S_PXB))
    l3 = a.uid("L_init3")
    I("s_cmp_lg_u32 s%d, 3" % S_W)
    I("s_cbranch_scc1 %s" % l3)
    cnt_wait(a, 'kv', S_STEP)
    kv_prefetch(a)
    if 'nokv' in ABL:
        kv_prefetch(a)
    I("s_waitcnt vmcnt(0)")
    a.L(l3)
    for l in slots():
        I(l)
    lab = a.uid("L_init")
    I("s_cmp_lg_u32 s%d, 0" % S_W)
    I("s_cbranch_scc1 %s" % lab)
    for i in range(2):
        I("v_cmp_eq_u32 vcc, s%d, v%d" % (S_SENT, V_R + i))
        I("s_nop 1")
        I("v_cndmask_b32 v%d, v%d, -1, vcc" % (V_R + i, V_R + i))
    I("buffer_store_dwordx2 %s, v%d, %s, s%d offen" % (vr2(V_R), V_MEMST, W, S_MEMC))
    kv_prefetch(a, ())
    I("s_setprio %d" % PRIO)
    a.L(lab)
    I("s_barrier")
    HOOK.get('loopstart', lambda: None)()
    if STAMP:
        for i in range(10):
            I("s_mov_b32 s%d, 0" % (S_ACC + i))
        I("s_memtime s[%d:%d]" % (S_ST, S_ST + 1))
    n0 = len(a.lines)
    loop = step_loop(a, name, "")
    if True:
        k = next(i for i in range(n0, len(a.lines)) if "buffer_load" in a.lines[i])
        a.lines.insert(k, loop + "_nd:")
    for line in COLD + COLD2:
        a.raw(line)
    del COLD[:]
    a.L(ABORT[0])
    I("s_mov_b64 exec, 1")
    I("v_mov_b32 v1, s%d" % S_STEP)
    I("v_or_b32 v1, 0xdead0000, v1")
    I("v_mov_b32 v2, 124")
    I("buffer_store_dword v1, v2, s[%d:%d], 0 offen" % (S_TMPSRD, S_TMPSRD + 3))
    a.L(name + "_done")
    if STAMP >= 2:
        I("s_memrealtime s[%d:%d]" % (S_ST + 2, S_ST + 3))
        I("s_waitcnt lgkmcnt(0)")
        I("s_sub_u32 s%d, s%d, s%d" % (S_ACC, S_ST + 2, S_ST))
        I("s_mul_i32 s%d, s%d, 10" % (S_ACC, S_ACC))
    if STAMP:
        I("s_mov_b64 exec, -1")
        I("v_mov_b32 v%d, 0" % V_R)
        for i in range(9):
            I("v_writelane_b32 v%d, s%d, %d" % (V_R, S_ACC + i, i))
        I("v_writelane_b32 v%d, s%d, 15" % (V_R, S_SPIN))
        I("s_lshl_b32 s56, s%d, 5" % S_X)
        I("s_add_u32 s56, s56, s%d" % S_J)
        I("s_lshl_b32 s56, s56, 2")
        I("s_add_u32 s56, s56, s%d" % S_W)
        I("s_lshl_b32 s56, s56, 8")
        I("s_add_u32 s56, s56, 0x%x" % (WS_DBG + 4096))
        I("v_lshrrev_b32 v%d, 2, v%d" % (V_R + 1, V_LIN))
        I("buffer_store_dword v%d, v%d, %s, s56 offen" % (V_R, V_R + 1, W))
    HOOK.get('done', lambda: None)()
    I("s_endpgm")
```

```python
from asmlib import *
from layout import *
import os

E = lambda k, d: int(os.environ.get(k, str(d)))

S_SRC = 8
S_WSR = 12
S_AUX = 16
S_OFF = 20
S_WD = 21
S_B = 22
S_END = 23
S_DB = 24
S_T = 25
S_AUX2 = 32
S_SPIN = 36
S_NOF = 53
S_XW, S_RK, S_WV = 40, 41, 49
S_EVEN, S_ODD = 54, 55
OOB = 0x7ff00000

V_DMA = 8
V_RD = 12
V_FR = 20
V_ACC = 52
V_E = 84
L_Q = 131072
SPIN_LIMIT = 1 << E("SPINL", 20)
RD_AHEAD = 6


def v4(r):
    return "v[%d:%d]" % (r, r + 3)


def v2(r):
    return "v[%d:%d]" % (r, r + 1)


def srd(r):
    return "s[%d:%d]" % (r, r + 3)


class Stream:
    def __init__(self, a, name, kind, wa, rowmap=None, step=1):
        self.a, self.name, self.kind, self.wa, self.rowmap, self.step = a, name, kind, wa, rowmap, step
        self.qadv = {'row': 512, 'chunk': 65536, 'lin': 16384}[kind]
        self.rpf = 1
        self.cold = []
        self.vmslots = (5,)
        self.la = 7
        self.full = False
        self.skew = name in os.environ.get("SKEW", "").split(",")

    def setup(self, s_kt=None):
        I = self.a.I
        self.a.C("---- stream %s setup" % self.name)
        I("s_lshl_b32 s%d, s%d, 12" % (S_WD, S_WV))
        I("v_and_b32 v1, 63, v0")
        I("v_and_b32 v2, 15, v0")
        I("v_bfe_u32 v3, v0, 4, 2")
        I("v_lshrrev_b32 v4, 6, v0")
        if self.kind == 'row':
            for j in range(4):
                I("v_lshrrev_b32 v5, 5, v1")
                I("v_lshl_add_u32 v5, v4, 3, v5")
                I("v_add_u32 v5, %d, v5" % (2 * j))
                if self.rowmap == 'kv':
                    I("v_and_b32 v6, 7, v5")
                    I("v_lshrrev_b32 v7, 4, v5")
                    I("v_lshl_add_u32 v6, v7, 3, v6")
                else:
                    I("v_and_b32 v6, 3, v5")
                    I("v_lshrrev_b32 v7, 3, v5")
                    I("v_lshl_add_u32 v6, v7, 2, v6")
                I("v_and_b32 v7, 31, v1")
                I("v_xor_b32 v6, v6, v7")
                I("v_lshlrev_b32 v6, 4, v6")
                I("v_lshl_add_u32 v%d, v5, 11, v6" % (V_DMA + j))
            if self.rowmap == 'kv':
                I("v_and_b32 v5, 8, v2")
                I("v_add_u32 v5, v5, v2")
            else:
                I("v_and_b32 v5, 12, v2")
                I("v_add_u32 v5, v5, v2")
            for k in range(4):
                I("v_add_u32 v6, %d, v3" % (4 * k))
                I("v_xor_b32 v6, v6, v2")
                I("v_lshlrev_b32 v6, 4, v6")
                I("v_lshl_add_u32 v%d, v5, 9, v6" % (V_RD + k))
            nrd = 4
        else:
            ch = self.kind == 'chunk'
            I("v_lshlrev_b32 v5, 4, v1")
            I("v_lshl_add_u32 v5, v4, %d, v5" % (14 if ch else 12))
            for j in range(4):
                I("v_add_u32 v%d, %d, v5" % (V_DMA + j, (j >> 1) * 4096 + (j & 1) * 1024 if ch else j * 1024))
            I("v_lshlrev_b32 v5, 4, v2")
            I("v_lshl_add_u32 v5, v3, 9, v5")
            I("v_xor_b32 v%d, s%d, v5" % (V_RD, s_kt))
            I("v_xor_b32 v%d, 0x100, v%d" % (V_RD + 1, V_RD))
            nrd = 2
        for k in range(nrd):
            I("v_add_u32 v%d, 0x10000, v%d" % (V_RD + 4 + k, V_RD + k))

    def read(self, P, f):
        q, s, t = f >> 4, (f >> 1) & 7, f & 1
        d = V_FR + 4 * (f % 8)
        b = V_RD + 4 * P
        if self.kind == 'row':
            toff = 4096 if self.rowmap == 'kv' else 2048
            return ["ds_read_b128 %s, v%d offset:%d" % (v4(d), b + (s & 3), q * 16384 + t * toff + (s >> 2) * 256)]
        return ["ds_read_b128 %s, v%d offset:%d" % (v4(d), b + t, q * 16384 + s * 2048)]

    def dma(self, slot, j):
        return ("s_add_u32 m0, s%d, %d" % (S_WD, slot * 16384 + j * 1024),
                "buffer_load_dwordx4 v%d, %s, s%d offen lds" % (V_DMA + j, srd(S_SRC), S_OFF))

    def acc(self, P, t, c):
        return V_ACC + 16 * P + 4 * (2 * t + c)

    def mfma(self, P, m):
        f, c = m >> 1, m & 1
        s, t = f >> 1, f & 1
        fr, w, d = v4(V_FR + 4 * (f % 8)), "a[%d:%d]" % ((2 * s + c) * 4, (2 * s + c) * 4 + 3), v4(self.acc(P, t, c))
        x, y = (w, fr) if self.wa else (fr, w)
        return "v_mfma_f32_16x16x32_bf16 %s, %s, %s, %s" % (d, x, y, "0" if s == 0 else d)

    def run(self, advance, side, flush, first=None):
        a, I = self.a, self.a.I
        a.C("---- stream %s: prologue" % self.name)
        I("s_barrier")
        LA = self.la
        for Q in range(LA):
            if Q == 4:
                self.emit_plain(advance(False))
                I("s_mov_b32 s%d, s%d" % (S_OFF, S_NOF))
            for j in range(4 if Q < LA - 1 else 1):
                m0, ld = self.dma(Q, j)
                I(m0)
                I("s_nop 0")
                I(ld)
            if Q not in (3, LA - 1):
                I("s_add_u32 s%d, s%d, %d" % (S_OFF, S_OFF, self.qadv))
        if first:
            first()
        I("s_waitcnt vmcnt(%d)" % (0 if self.full else 4 * LA - 7))
        I("s_barrier")
        for f in range(RD_AHEAD):
            for l in self.read(0, f):
                I(l)
        I("s_waitcnt lgkmcnt(%d)" % ((RD_AHEAD - 2) * self.rpf))
        f0, f1, end = a.uid("L_fl0"), a.uid("L_fl1"), a.uid("L_ste")
        nv = 4 if self.skew else 1
        loops = [a.uid("L_st") for _ in range(nv)]
        for w in range(1, nv):
            I("s_cmp_eq_u32 s%d, %d" % (S_WV, w))
            I("s_cbranch_scc1 %s" % loops[w])
        for w in range(nv):
            self.loop(loops[w], f0, advance, side, w)
            if w < nv - 1:
                I("s_branch %s" % f1)
        a.L(f1)
        I("s_waitcnt lgkmcnt(0)")
        I("s_nop 7")
        flush(1)
        I("s_branch %s" % end)
        for l in self.cold:
            a.raw(l)
        self.cold = []
        a.L(f0)
        I("s_waitcnt lgkmcnt(0)")
        I("s_nop 7")
        flush(0)
        if self.cold:
            I("s_branch %s" % end)
            for l in self.cold:
                a.raw(l)
            self.cold = []
        a.L(end)

    def loop(self, loop, f0, advance, side, wv):
        a, I = self.a, self.a.I
        seq = [self.body(P, advance, side, wv) for P in range(2)]
        allit = seq[0] + seq[1]
        n = len(allit)
        for i, it in enumerate(allit):
            if isinstance(it, tuple) and it[0] == 'wait':
                best = 63
                for tag in it[1]:
                    cnt, k, cntd = 0, i, 0
                    while True:
                        k = (k - 1) % n
                        o = allit[k]
                        assert k != i, tag
                        if isinstance(o, tuple) and o[0] == 'vm':
                            if o[2] == tag:
                                break
                            cnt += 1
                            cntd += o[2].startswith('dma')
                    best = min(best, cntd if tag.startswith('dma') and not self.full else cnt)
                allit[i] = "s_waitcnt vmcnt(%d)" % best
        for i, it in enumerate(allit):
            if isinstance(it, tuple) and it[0] == 'lwait':
                cnt, k = 0, i
                while True:
                    k = (k - 1) % n
                    o = allit[k]
                    if isinstance(o, tuple) and o[0] == 'ds' and o[2] == it[1]:
                        break
                    cnt += (o[1] if isinstance(o, tuple) else o).startswith("ds_")
                allit[i] = "s_waitcnt lgkmcnt(%d)" % min(cnt, 15)
        a.L(loop)
        k = 0
        for P in range(2):
            a.C("---- stream %s: block, set %d" % (self.name, P))
            for it in allit[k:k + len(seq[P])]:
                self.emit(it)
            k += len(seq[P])
            I("s_add_u32 s%d, s%d, %s" % (S_B, S_B, self.step))
            I("s_cmp_ge_u32 s%d, s%d" % (S_B, S_END))
            I("s_cbranch_scc1 %s" % f0 if P == 0 else "s_cbranch_scc0 %s" % loop)

    def emit(self, it):
        if isinstance(it, tuple):
            assert it[0] in ('vm', 'ds'), it
            it = it[1]
        if it.endswith(":"):
            self.a.raw(it)
        else:
            self.a.I(it)

    def emit_plain(self, items):
        for it in items:
            if isinstance(it, list):
                self.emit_plain(it)
            elif isinstance(it, tuple) and it[0] == 'wait':
                self.a.I("s_waitcnt vmcnt(0)")
            elif isinstance(it, tuple) and it[0] == 'lwait':
                self.a.I("s_waitcnt lgkmcnt(0)")
            elif isinstance(it, tuple) and it[0] == 'sync':
                self.a.I("s_waitcnt vmcnt(0)")
                self.a.I("s_barrier")
            else:
                self.emit(it)

    def body(self, P, advance, side, wv):
        gaps = [[] for _ in range(128)]
        load = [0] * 128
        syncs = {}
        sd = side(1 - P)
        if E("TRACE", 0):
            ti = {'k': 0, 'v': 0, 'q': 0, 'g1': 0, 'g2': 0, 'op': 1}[self.name]
            sd = list(sd) + [(0, 1, ["s_memrealtime s[4:5]"]),
                             (40, 127, ["v_mov_b32 v7, s4", "s_lshl_b32 s6, s2, 7", "s_add_u32 s6, s6, s%d" % S_B, "s_lshl_b32 s6, s6, 2",
                                       "s_add_u32 s6, s6, 0x%x" % (WS_DBG + 0xc0000 + ti * 256), "v_min_u32 v6, 1, v0", "v_lshlrev_b32 v6, 30, v6",
                                       ('vm', "buffer_store_dword v7, v6, %s, s6 offen" % srd(S_WSR), 'trc')])]
        for m0, m1, items in sd:
            for it in items:
                if isinstance(it, tuple) and it[0] == 'sync':
                    assert m0 % 32 > 20
                    syncs.setdefault(m0 // 32, []).append(it[1])

        def put(m, it, cost=1):
            if isinstance(it, list):
                for x in it:
                    put(m, x)
                return
            if isinstance(it, tuple) and it[0] == 'wait' and not isinstance(it[1], list):
                it = ('wait', [it[1]])
            gaps[m].append(it)
            load[m] += cost
        for q in range(4):
            put(32 * q + 20 - wv, ('wait', ['dma%d' % ((4 * P + q + 1) % 8)] + syncs.get(q, [])))
            put(32 * q + 20 - wv, "s_barrier")
        for f in range(64):
            fn = f + RD_AHEAD
            put(2 * f, (self.read(P, fn) if fn < 64 else self.read(1 - P, fn - 64))[0])
            if f % 2 == 1:
                put(2 * f + 1, "s_waitcnt lgkmcnt(%d)" % (RD_AHEAD - 2))
        qs = -self.la % 4
        for q in range(4):
            for j, o in enumerate((25, 1, 9, 17)):
                slot = (4 * P + q + self.la - (j > 0)) % 8
                m0, ld = self.dma(slot, j)
                put(32 * q + o - 1, m0)
                put(32 * q + o, ('vm', ld, 'dma%d' % slot), 2)
            put(32 * q + 21, "s_mov_b32 s%d, s%d" % (S_OFF, S_NOF) if q == qs else "s_add_u32 s%d, s%d, %d" % (S_OFF, S_OFF, self.qadv))
        vmfree = set(m for m in range(128) if m % 8 in self.vmslots)
        isvm = lambda it: any(map(isvm, it)) if isinstance(it, list) else isinstance(it, tuple) and it[0] == 'vm'
        size = lambda it: len(it) if isinstance(it, list) else 1
        later = []
        for m0, m1, items in [(32 * qs + 6, 32 * qs + 20, advance(True))] + list(sd):
            items = [it for it in items if not (isinstance(it, tuple) and it[0] == 'sync')]
            n = sum(map(size, items))
            nvm = sum(map(isvm, items))
            lo, seg, done, segs = m0, [], 0, []
            for it in items:
                if isvm(it):
                    cand = sorted(x for x in vmfree if lo <= x <= m1)
                    assert len(cand) >= nvm, (self.name, m0, m1, it)
                    x = min(cand[:len(cand) - nvm + 1], key=lambda x: abs(x - (m0 + (done * (m1 - m0)) // n)))
                    vmfree.discard(x)
                    nvm -= 1
                    segs.append((lo, x, seg, it))
                    load[x] += 1 + size(it)
                    lo, seg = x, []
                else:
                    seg.append(it)
                done += size(it)
            segs.append((lo, m1, seg, None))
            later.append(segs)
        for segs in later:
            for m0, m1, items, anchor in segs:
                n = sum(map(size, items))
                cap = 2
                while n and sum(max(cap - load[m], 0) for m in range(m0, m1 + 1)) < n:
                    cap += 1
                free = []
                for m in range(m0, m1 + 1):
                    free += [m] * max(cap - load[m], 0)
                i = 0
                for it in items:
                    put(free[(i * len(free)) // n], it)
                    i += size(it)
                if anchor is not None:
                    load[m1] -= size(anchor)
                    put(m1, anchor)
        out = []
        for m in range(128):
            out.append(self.mfma(P, m))
            out.extend(gaps[m])
        return out


def load_panel_t(a, s_base, stride, order, flags="", mid=None):
    I = a.I
    a.C("---- weight panel (transposing)")
    vg, vr = V_FR, V_FR + 1
    I("v_and_b32 v1, 15, v0")
    I("v_bfe_u32 v2, v0, 4, 2")
    I("v_lshrrev_b32 v3, 6, v0")
    I("v_lshlrev_b32 v4, 2, v2")
    I("v_xor_b32 v4, v4, v1")
    I("v_lshlrev_b32 v4, 4, v4")
    I("v_lshl_add_u32 v5, v3, 5, v2")
    I("s_mov_b32 s%d, %d" % (S_T, stride))
    I("v_mul_lo_u32 v5, v5, s%d" % S_T)
    I("v_add_u32 v%d, v5, v4" % vg)
    I("v_bfe_u32 v4, v0, 2, 2")
    I("v_lshl_add_u32 v5, v2, 3, v4")
    I("v_lshlrev_b32 v5, 8, v5")
    I("v_xor_b32 v4, v4, v3")
    I("v_lshl_add_u32 v5, v4, 6, v5")
    I("v_and_b32 v4, 3, v0")
    I("v_lshl_add_u32 v5, v4, 3, v5")
    if order == 'kv':
        I("v_and_b32 v4, 2, v4")
        I("v_lshl_add_u32 v%d, v4, 3, v5" % vr)
        I("v_add_u32 v%d, 16, v%d" % (vr + 1, vr))
    else:
        I("v_mov_b32 v%d, v5" % vr)
        I("v_add_u32 v%d, 32, v%d" % (vr + 1, vr))
    I("v_add_u32 v%d, 0x10000, v%d" % (vr + 2, vr))
    I("v_add_u32 v%d, 0x10000, v%d" % (vr + 3, vr + 1))
    I("s_lshl_b32 s%d, s%d, 13" % (S_T + 1, S_WV))
    I("s_mov_b32 s%d, s%d" % (S_T, s_base))

    def issue(p):
        for jj in range(8):
            I("s_add_u32 m0, s%d, %d" % (S_T + 1, (p % 4) * 32768 + jj * 1024))
            I("s_add_u32 s%d, s%d, %d" % (S_T + 2, S_T, (p * 128 + 4 * jj) * stride))
            I("buffer_load_dwordx4 v%d, %s, s%d offen%s lds" % (vg, srd(S_AUX), S_T + 2, flags))
    I("s_barrier")
    for p in range(4):
        issue(p)
    for p in range(8):
        I("s_waitcnt vmcnt(%d)" % (8 * min(3, 7 - p)))
        I("s_barrier")
        if p == 0 and mid:
            mid()
        for k in range(4):
            for c in range(2):
                for u in range(2):
                    d = (2 * (4 * p + k) + c) * 4 + 2 * u
                    I("ds_read_b64_tr_b16 a[%d:%d], v%d offset:%d" % (d, d + 1, vr + c + 2 * ((p % 4) >> 1), (p & 1) * 32768 + k * 8192 + u * 1024))
            if k % 2 == 1:
                I("s_waitcnt lgkmcnt(0)")
        if p + 4 < 8:
            I("s_barrier")
            issue(p + 4)


def load_panel_n(a, s_row, rowmap, srds, flags=""):
    I = a.I
    a.C("---- weight panel (rows)")
    vg, vr = V_FR, V_FR + 8
    I("v_and_b32 v1, 31, v0")
    I("v_bfe_u32 v2, v0, 5, 1")
    for i in range(8):
        I("v_add_u32 v3, %d, v2" % (2 * i))
        I("v_xor_b32 v4, v3, v1")
        I("v_lshlrev_b32 v4, 4, v4")
        if rowmap == 't8':
            I("v_and_b32 v5, 12, v3")
            I("v_add_u32 v3, v3, v5")
        I("v_add_u32 v3, s%d, v3" % s_row)
        I("v_lshl_add_u32 v%d, v3, 11, v4" % (vg + i))
    I("v_and_b32 v1, 15, v0")
    I("v_bfe_u32 v2, v0, 4, 2")
    I("v_lshrrev_b32 v3, 6, v0")
    I("v_lshlrev_b32 v3, 15, v3")
    I("v_lshl_add_u32 v3, v1, 9, v3")
    for k in range(4):
        I("v_add_u32 v4, %d, v2" % (4 * k))
        I("v_xor_b32 v4, v4, v1")
        I("v_lshl_add_u32 v%d, v4, 4, v3" % (vr + k))
    I("s_lshl_b32 s%d, s%d, 15" % (S_T + 1, S_WV))

    def issue(q):
        for c in range(2):
            I("s_mov_b32 s%d, %d" % (S_T + 2, q * 512 + (8192 * c if rowmap == 't8' else 0)))
            for i in range(8):
                I("s_add_u32 m0, s%d, %d" % (S_T + 1, (q & 1) * 16384 + c * 8192 + i * 1024))
                I("s_nop 0")
                I("buffer_load_dwordx4 v%d, %s, s%d offen%s lds" % (vg + i, srd(srds[c]), S_T + 2, flags))
    I("s_barrier")
    issue(0)
    issue(1)
    for q in range(4):
        I("s_waitcnt vmcnt(%d)" % (16 if q < 3 else 0))
        for k in range(8):
            for c in range(2):
                d = (2 * (8 * q + k) + c) * 4
                I("ds_read_b128 a[%d:%d], v%d offset:%d" % (d, d + 3, vr + (k & 3), (q & 1) * 16384 + c * 8192 + (k >> 2) * 256))
            if k % 4 == 3:
                I("s_waitcnt lgkmcnt(0)")
        if q + 2 < 4:
            issue(q + 2)
```

```python
from asmlib import *
from layout import *
from stream import *
import stream, os

EMU = E("EMUA", E("EMU", 1))
SEN0 = E("SEN0", 52)
OSC = ["", " sc1", " nt", " sc1 nt"][E("OSC", 0)]
PROG_LAG = 1 if E("PUBW", 1) == 1 else 0
HSC = "" if E("HPLAIN", 0) else " sc1"
WS = srd(S_WSR)
S_VAL = 37
S_P0, S_P1, S_P2, S_P3 = 38, 39, 42, 43
S_K0, S_K1, S_K2, S_K3, S_K4, S_K5 = 44, 45, 46, 47, 48, 50
S_F1 = 51
S_SA, S_SB = 94, 95
S_LST = 61
S_PO = 7
S_CNT = 52
S_M = 56
V_ONE, V_SIG, V_ST, V_G = V_E, V_E + 1, V_E + 2, V_E + 3
V_X = V_E + 4
L_GATE = L_Q
ABORT = [None]
TLP = [None]
INI = [None]
NT = lambda k, d: " nt" if E(k, d) else ""


def cvt(d, x, y):
    return "v_cvt_pk_bf16_f32 v%d, v%d, v%d" % (d, x, y)


def common(a):
    I = a.I
    a.srd(S_WSR, ptr(D_WS), 0, WS_SIZE)
    I("s_mov_b32 s%d, 0" % S_SPIN)
    I("v_mov_b32 v%d, 1" % V_ONE)
    I("v_min_u32 v%d, 1, v0" % V_SIG)
    I("v_lshlrev_b32 v%d, 30, v%d" % (V_SIG, V_SIG))


def signal(s_off):
    return ('vm', "buffer_atomic_add v%d, v%d, %s, s%d offen sc1" % (V_ONE, V_SIG, WS, s_off), 'sig')


def spin_check(a):
    a.I("s_add_u32 s%d, s%d, 1" % (S_SPIN, S_SPIN))
    a.I("s_cmp_gt_u32 s%d, 0x%x" % (S_SPIN, SPIN_LIMIT))
    a.I("s_cbranch_scc1 %s" % ABORT[0])


def poll(a, srd_, s_off, target, mask=False, sleep=4):
    I = a.I
    rt, ok = a.uid("L_pl"), a.uid("L_plok")
    I("v_mov_b32 v2, 0")
    a.L(rt)
    I("buffer_load_dword v1, v2, %s, s%d offen sc1" % (srd(srd_), s_off))
    spin_check(a)
    I("s_waitcnt vmcnt(0)")
    I("v_readfirstlane_b32 s%d, v1" % (S_T + 1))
    if mask:
        I("s_and_b32 s%d, s%d, 0xffff" % (S_T + 2, S_T + 1))
    I("s_cmp_ge_u32 s%d, %d" % (S_T + 2 if mask else S_T + 1, target))
    I("s_cbranch_scc1 %s" % ok)
    I("s_sleep %d" % sleep)
    I("s_branch %s" % rt)
    a.L(ok)


def wait_init(a, bases):
    I = a.I
    a.srd(S_AUX2, ptr(D_DBG), 0, 256)
    I("s_mov_b32 s%d, %d" % (S_T, DB_INIT))
    poll(a, S_AUX2, S_T, 256, mask=True)
    bases(a, S_T + 1, S_EVEN, S_ODD, S_T)


def adv_plain(stream_):
    return ["s_add_u32 s%d, s%d, 1" % (S_DB, S_DB),
            "s_min_u32 s%d, s%d, 63" % (S_DB, S_DB),
            "s_lshl_b32 s%d, s%d, 16" % (S_NOF, S_DB)]


def start_plain(a):
    I = a.I
    for s in (S_B, S_DB, S_OFF, S_VAL):
        I("s_mov_b32 s%d, 0" % s)
    I("s_mov_b32 s%d, 64" % S_END)


def valid(*regs):
    return ["s_cmp_eq_u32 s%d, 0" % S_VAL] + ["s_cselect_b32 s%d, 0x%x, s%d" % (r, OOB, r) for r in regs]


def warm(a, srd_, nbytes, s_idx, nwg):
    I = a.I
    I("v_lshlrev_b32 v1, 4, v0")
    I("s_lshl_b32 s%d, s%d, 12" % (S_T, s_idx))
    lw = a.uid("L_warm")
    a.L(lw)
    for k in range(16):
        I("buffer_load_dwordx4 %s, v1, %s, s%d offen" % (v4(V_FR + 4 * k), srd(srd_), S_T))
        I("s_add_u32 s%d, s%d, 0x%x" % (S_T, S_T, nwg * 4096))
    I("s_waitcnt vmcnt(16)")
    I("s_cmp_lt_u32 s%d, 0x%x" % (S_T, nbytes))
    I("s_cbranch_scc1 %s" % lw)
    I("s_waitcnt vmcnt(0)")


def first_blocks(a, nwg):
    I = a.I
    I("v_lshlrev_b32 v1, 4, v0")
    I("s_lshl_b32 s%d, s%d, 12" % (S_T, S_RK))
    for k in range(E("NFB", 4) * 16 // nwg):
        I("buffer_load_dwordx4 %s, v1, %s, s%d offen" % (v4(V_ACC), srd(S_SRC), S_T))
        I("s_add_u32 s%d, s%d, %d" % (S_T, S_T, nwg * 4096))


def proj_panel(a):
    I = a.I
    I("s_mov_b32 s%d, s%d" % (S_T, S_XW))
    I("s_cmp_eq_u32 s%d, 1" % S_T)
    I("s_cselect_b32 s%d, s%d, s%d" % (S_AUX, ptr(B_WV), ptr(B_WK)))
    I("s_cselect_b32 s%d, s%d, s%d" % (S_AUX + 1, ptr(B_WV) + 1, ptr(B_WK) + 1))
    I("s_cmp_eq_u32 s%d, 2" % S_T)
    I("s_cselect_b32 s%d, s%d, s%d" % (S_AUX, ptr(B_WQ), S_AUX))
    I("s_cselect_b32 s%d, s%d, s%d" % (S_AUX + 1, ptr(B_WQ) + 1, S_AUX + 1))
    I("s_and_b32 s%d, s%d, 0xffff" % (S_AUX + 1, S_AUX + 1))
    I("s_mov_b32 s%d, 0x%x" % (S_AUX + 2, 8 * MB))
    I("s_mov_b32 s%d, 0x00020000" % (S_AUX + 3))
    I("s_mov_b32 s%d, s%d" % (S_K2, S_RK))
    if E("QSLEEP", 0):
        lab = a.uid("L_nosl")
        I("s_cmp_lg_u32 s%d, 2" % S_XW)
        I("s_cbranch_scc1 %s" % lab)
        for _ in range(E("QSLEEP", 0)):
            I("s_sleep 127")
        a.L(lab)
    I("s_lshl_b32 s%d, s%d, 8" % (S_K0, S_K2))
    a.srd(S_SRC, ptr(B_X), 0, 4 * MB)
    first_blocks(a, 32)
    load_panel_t(a, S_K0, 8192, 'kv', flags=NT('NTP', 0))
    Stream(a, "p", 'row', True, 'kv').setup()
    I("v_lshlrev_b32 v%d, 4, v5" % V_ST)
    I("v_lshl_add_u32 v%d, v3, 9, v%d" % (V_ST, V_ST))
    I("s_lshl_b32 s%d, s%d, 15" % (S_K0, S_K2))
    I("s_lshr_b32 s%d, s%d, 1" % (S_T, S_WV))
    I("s_lshl_b32 s%d, s%d, 14" % (S_T, S_T))
    I("s_add_u32 s%d, s%d, s%d" % (S_K0, S_K0, S_T))
    I("s_and_b32 s%d, s%d, 1" % (S_T, S_WV))
    I("s_lshl_b32 s%d, s%d, 12" % (S_T, S_T))
    I("s_add_u32 s%d, s%d, s%d" % (S_K0, S_K0, S_T))
    start_plain(a)


def pack(st, P, isv):
    out = []
    for h in range(2):
        for k in range(2):
            r = st.acc(P, k, h) if isv else st.acc(P, h, k)
            out += [cvt(V_X + 4 * h + 2 * k, r, r + 1), cvt(V_X + 4 * h + 2 * k + 1, r + 2, r + 3)]
    return out


def run_kv(a, isv):
    st = Stream(a, "v" if isv else "k", 'row', not isv, 'kv')
    SEN, LIN = V_X + 8, V_X + 12
    for i in range(4):
        a.I("v_mov_b32 v%d, 0x%x" % (SEN + i, SENT))
    a.I("v_and_b32 v%d, 63, v0" % LIN)
    a.I("v_lshlrev_b32 v%d, 3, v%d" % (LIN + 1, LIN))
    a.I("v_lshlrev_b32 v%d, 4, v%d" % (LIN, LIN))

    def side(P):
        par = ["s_sub_u32 s%d, s%d, 1" % (S_P1, S_B),
               ["s_bitcmp1_b32 s%d, 1" % S_P1, "s_cselect_b32 s%d, s%d, s%d" % (S_P0, S_ODD, S_EVEN)],
               "s_add_u32 s%d, s%d, s%d" % (S_P0, S_P0, S_K0),
               "s_lshl_b32 s%d, s%d, 20" % (S_P2, S_P1),
               "s_add_u32 s%d, s%d, s%d" % (S_P0, S_P0, S_P2),
               "s_lshl_b32 s%d, s%d, 7" % (S_P1, S_P1),
               "s_add_u32 s%d, s%d, 0x%x" % (S_P1, S_P1, C_KV),
               valid(S_P0, S_P1)]
        pk = pack(st, P, isv)
        sto = lambda h: ('vm', "buffer_store_dwordx4 %s, v%d, %s, s%d offen offset:%d sc1" % (v4(V_X + 4 * h), V_ST, WS, S_P0, 2048 * isv + 128 * h), 'st')
        q = E("KVSIGQ", 2)
        poi = lambda s_, off: ('vm', "buffer_store_dwordx4 %s, v%d, %s, s%d offen offset:%d sc1" % (v4(SEN), LIN, WS, s_, off), 'st')
        ext = ["s_add_u32 s%d, s%d, 0x%x" % (S_P2, S_P0, WS_P - WS_B),
               ('vm', "buffer_store_dwordx2 %s, v%d, %s, s%d offen offset:%d sc1" % (v2(SEN), LIN + 1, WS, S_P2, 512 * isv), 'st')]
        assert E("PXB", 1) and E("NREPL", 2) <= 2
        if not isv:
            lab = a.uid("L_nokm")
            ext = [ext[0], ["s_cmp_le_u32 s%d, %d" % (S_B, SEN0), "s_cbranch_scc1 %s" % lab, poi(S_P2, KM_OFF)[1], lab + ":"], ext[1]]
        return [(0, E("KVST", 30), par[:] + pk[:4] + [sto(0)] + pk[4:] + [sto(1)] + ext),
                (32 * q + 21, 32 * q + 30, [('sync', 'st'), signal(S_P1), "s_mov_b32 s%d, 1" % S_VAL])]

    def flush(P):
        for _, _, items in side(P):
            st.emit_plain(items)
    st.run(adv_plain, side, flush)


A_AD = 96
A_KX, A_QF, A_VT, A_SX, A_VM, A_P, A_T, A_BI = 104, 136, 168, 200, 216, 224, 234, 240
A_SM = V_ACC + 16
S_AK, S_AO, S_PEND, S_SG, S_LM = S_K4, S_K5, S_K1, S_F1, S_PO
S_AP = S_SA
boff = lambda c: (c >> 1) * 16384 + (c & 1) * 4096


def attn_setup(a):
    I = a.I
    a.C("---- attention setup")
    lin, km, vt, vm, ost = range(A_AD, A_AD + 5)
    I("v_and_b32 v1, 31, v0")
    I("v_bfe_u32 v2, v0, 5, 1")
    I("v_and_b32 v%d, 63, v0" % lin)
    I("v_lshlrev_b32 v%d, 4, v%d" % (lin, lin))
    I("v_and_b32 v4, 7, v1")
    I("v_lshlrev_b32 v4, 4, v4")
    I("s_lshl_b32 s%d, s%d, 12" % (S_LM, S_WV))
    I("s_add_u32 s%d, s%d, 0x%x" % (S_LM, S_LM, L_Q + 4096))
    I("v_lshl_add_u32 v%d, v2, 7, v4" % km)
    I("v_add_u32 v%d, s%d, v%d" % (km, S_LM, km))
    I("v_bfe_u32 v5, v1, 2, 1")
    I("v_lshlrev_b32 v5, 4, v5")
    I("v_lshrrev_b32 v6, 3, v1")
    I("v_lshl_add_u32 v5, v6, 2, v5")
    I("v_and_b32 v6, 3, v1")
    I("v_add_u32 v5, v5, v6")
    I("v_lshlrev_b32 v5, 4, v5")
    I("v_lshl_add_u32 v%d, v2, 9, v5" % vt)
    I("v_lshl_add_u32 v%d, v2, 3, v5" % vm)
    I("v_add_u32 v%d, s%d, v%d" % (vm, S_LM, vm))
    I("v_lshlrev_b32 v4, 4, v1")
    I("v_lshl_add_u32 v%d, v2, 10, v4" % ost)
    I("v_and_b32 v%d, 63, v0" % V_SIG)
    I("v_min_u32 v%d, 1, v%d" % (V_SIG, V_SIG))
    I("v_lshlrev_b32 v%d, 30, v%d" % (V_SIG, V_SIG))
    I("v_lshlrev_b32 v4, 2, v2")
    I("v_sub_u32 v4, v1, v4")
    I("v_mov_b32 v5, 0xff800000")
    for i in range(16):
        I("v_cmp_gt_i32 vcc, %d, v4" % (8 * (i // 4) + (i % 4)))
        I("s_nop 1")
        I("v_cndmask_b32 v%d, 0, v5, vcc" % (A_BI + i))


def attn_bases(a):
    I = a.I
    I("s_add_u32 s%d, s%d, s%d" % (S_T + 2, S_K3, S_WV))
    I("s_lshl_b32 s%d, s%d, 20" % (S_T, S_T + 2))
    I("s_lshl_b32 s%d, s%d, 15" % (S_T + 1, S_K2))
    I("s_add_u32 s%d, s%d, s%d" % (S_T, S_T, S_T + 1))
    I("s_bitcmp1_b32 s%d, 1" % (S_T + 2))
    I("s_cselect_b32 s%d, s%d, s%d" % (S_AK, S_ODD, S_EVEN))
    I("s_cselect_b32 s%d, s%d, s%d" % (S_AO, S_EVEN, S_ODD))
    I("s_add_u32 s%d, s%d, s%d" % (S_AK, S_AK, S_T))
    I("s_add_u32 s%d, s%d, s%d" % (S_AO, S_AO, S_T))


def attn_xloads(ahead=False):
    lin, km, vt, vm, ost = range(A_AD, A_AD + 5)
    dst = (lambda r: "a[%d:%d]" % (r - A_KX, r - A_KX + 3)) if ahead else v4
    out = []
    for c, (base, reg, va, off) in [(c, x) for c in range(4) for x in ((S_AO, A_QF, lin, 0), (S_AK, A_KX, lin, 0))] + \
            [(c, (S_AK, A_VT, vt, 2048)) for c in range(4)]:
        if True:
            for u in range(2):
                out.append(["s_add_u32 s%d, s%d, %d" % (S_P3, base, boff(c) + 4 * MB * ahead),
                            ('vm', "buffer_load_dwordx4 %s, v%d, %s, s%d offen offset:%d" % (dst(reg + 8 * c + 4 * u), va, WS, S_P3, off + 1024 * u), 'pf')])
    return out


def attn_mloads():
    return [["s_add_u32 m0, s%d, %d" % (S_LM, c * 1024),
             "s_add_u32 s%d, s%d, 0x%x" % (S_P3, S_AK, WS_P - WS_B + boff(c) + KM_OFF),
             ('vm', "buffer_load_dwordx4 v%d, %s, s%d offen sc1 lds" % (A_AD, WS, S_P3), 'pf')] for c in range(4)]


def attn_compute(a, st):
    I = a.I
    lin, km, vt, vm, ost = range(A_AD, A_AD + 5)
    sg, so, st_, c1, c2 = S_P0, S_AO, S_P3, S_T + 3, S_T + 4
    m32 = lambda d, x, y, c: "v_mfma_f32_32x32x16_bf16 v[%d:%d], %s, %s, %s" % (d, d + 15, v4(x), v4(y), "0" if c is None else "v[%d:%d]" % (c, c + 15))
    a.C("---- attention")
    I("s_add_u32 s%d, s%d, s%d" % (sg, S_K3, S_WV))
    I("s_mov_b32 s%d, 0x%x" % (c1, 0x3fb8aa3b if EMU else 0x3e0293ee))
    I("s_mov_b32 s%d, 0x3db504f3" % c2)
    KM = A_KX
    mx, t1 = A_T, A_T + 1

    def emu(vals):
        if not EMU:
            return []
        return ["v_cvt_pk_bf16_f32 v%d, 0, v%d" % (v, v) for v in vals] + ["v_mul_f32 v%d, s%d, v%d" % (v, c2, v) for v in vals] + \
               ["v_cvt_pk_bf16_f32 v%d, 0, v%d" % (v, v) for v in vals]
    xs = lambda ks: m32(A_SX, A_KX + 4 * ks, A_QF + 4 * ks, A_BI if ks == 0 else A_SX)
    ms = lambda ks: m32(A_SM, KM + 4 * ks, A_QF + 4 * ks, None if ks == 0 else A_SM)
    rk = lambda ks: "ds_read_b128 %s, v%d offset:%d" % (v4(KM + 4 * ks), km, (ks >> 1) * 1024 + 256 * (ks & 1))
    rv = lambda c: "ds_read_b64 %s, v%d offset:%d" % (v2(A_VM + 2 * c), vm, c * 1024 + 512)
    m3 = lambda d, x, y, z: "v_max3_f32 v%d, v%d, v%d, v%d" % (d, x, y, z)
    xv = emu(range(A_SX, A_SX + 16)) + [m3(mx, A_SX, A_SX + 1, A_SX + 2), m3(t1, A_SX + 3, A_SX + 4, A_SX + 5)]
    for i in range(6, 14, 4):
        xv += [m3(mx, mx, A_SX + i, A_SX + i + 1), m3(t1, t1, A_SX + i + 2, A_SX + i + 3)]
    xv.append(m3(mx, mx, A_SX + 14, A_SX + 15))
    srv, tail = a.uid("L_asrv"), a.uid("L_atail")
    I("s_cmp_ge_u32 s%d, 64" % S_B)
    I("s_cbranch_scc1 %s" % srv)
    for c in range(4):
        I(rv(c))
    for ks in range(8):
        I(xs(ks))
        if ks:
            I(rk(ks - 1))
    I(rk(7))
    q = list(xv)
    for ks in range(8):
        I("s_waitcnt lgkmcnt(%d)" % min(7 - ks, 2) if ks in (0, 6, 7) else "s_nop 0")
        I(ms(ks))
        if ks >= 1:
            for _ in range(-(-len(xv) // 7)):
                if q:
                    I(q.pop(0))
    I("s_nop 7" if EMU else "s_nop 10")
    I("s_branch %s" % tail)
    a.L(srv)
    for ks in range(8):
        I(xs(ks))
    I("s_nop 11")
    for l in xv:
        I(l)
    rt, ok = a.uid("L_cw"), a.uid("L_cwok")
    I("s_add_u32 s%d, s%d, 1" % (S_T + 2, sg))
    I("s_sub_u32 s%d, s%d, %d" % (S_T + 1, sg, PROG_LAG))
    I("s_min_u32 s%d, s%d, %d" % (S_T + 1, S_T + 1, 62 - PROG_LAG))
    I("s_cmp_ge_u32 s%d, %d" % (sg, SEN0))
    I("s_cselect_b32 s%d, s%d, s%d" % (S_T + 2, S_T + 1, S_T + 2))
    I("v_mov_b32 v2, %d" % DB_PROG)
    a.L(rt)
    I("buffer_load_dword v1, v2, %s, 0 offen sc1" % srd(S_AUX2))
    spin_check(a)
    I("s_waitcnt vmcnt(0)")
    I("v_readfirstlane_b32 s%d, v1" % S_T)
    I("s_cmp_ge_u32 s%d, s%d" % (S_T, S_T + 2))
    I("s_cbranch_scc1 %s" % ok)
    I("s_sleep 4")
    I("s_branch %s" % rt)
    a.L(ok)
    st.emit_plain(attn_mloads())
    spin_check(a)
    I("s_waitcnt vmcnt(0)")
    for ks in range(8):
        I("ds_read_b128 %s, v%d offset:%d" % (v4(KM + 4 * ks), km, (ks >> 1) * 1024 + 256 * (ks & 1)))
        if ks % 2 == 1:
            I("ds_read_b64 %s, v%d offset:%d" % (v2(A_VM + ks - 1), vm, (ks >> 1) * 1024 + 512))
    I("v_mov_b32 v1, 0")
    for ks in range(8):
        I("s_waitcnt lgkmcnt(%d)" % (11 - ks - (ks + 1) // 2))
        I(m32(A_SM, KM + 4 * ks, A_QF + 4 * ks, None if ks == 0 else A_SM))
        I("v_max3_u32 v1, v1, v%d, v%d" % (KM + 4 * ks, KM + 4 * ks + 1))
        I("v_max3_u32 v1, v1, v%d, v%d" % (KM + 4 * ks + 2, KM + 4 * ks + 3))
        if ks % 2 == 1:
            I("v_max3_u32 v1, v1, v%d, v%d" % (A_VM + ks - 1, A_VM + ks))
    I("v_cmp_eq_u32 vcc, 0x%x, v1" % SENT)
    I("s_cbranch_vccnz %s" % ok)
    TLP[0](24, 192)
    I("s_nop 4")
    I("s_cmp_ge_u32 s%d, 60" % S_K3)
    I("s_cbranch_scc1 %s" % tail)
    st.emit_plain(attn_xloads(True))
    a.L(tail)
    for l in emu(range(A_SM, A_SM + 4)):
        I(l)
    I("v_max3_f32 v%d, v%d, v%d, v%d" % (t1, t1, A_SM, A_SM + 1))
    I("v_max3_f32 v%d, v%d, v%d, v%d" % (mx, mx, A_SM + 2, A_SM + 3))
    I("v_max_f32 v%d, v%d, v%d" % (mx, mx, t1))
    I("v_mov_b32 v%d, v%d" % (t1, mx))
    I("s_nop 1")
    I("v_permlane32_swap_b32 v%d, v%d" % (mx, t1))
    I("s_nop 0")
    I("v_max_f32 v%d, v%d, v%d" % (mx, mx, t1))
    I("v_mul_f32 v%d, s%d, v%d" % (mx, c1, mx))
    vals = [A_SX + i for i in range(16)] + [A_SM + i for i in range(4)]
    for v in vals:
        I("v_fma_f32 v%d, v%d, s%d, -v%d" % (v, v, c1, mx))
    for v in vals:
        I("v_exp_f32 v%d, v%d" % (v, v))
    sm = A_T + 2
    I("v_pk_add_f32 %s, %s, %s" % (v2(sm), v2(A_SX), v2(A_SX + 2)))
    for v in list(range(A_SX + 4, A_SX + 16, 2)) + [A_SM, A_SM + 2]:
        I("v_pk_add_f32 %s, %s, %s" % (v2(sm), v2(sm), v2(v)))
    I("v_add_f32 v%d, v%d, v%d" % (sm, sm, sm + 1))
    I("v_mov_b32 v%d, v%d" % (t1, sm))
    I("s_nop 1")
    I("v_permlane32_swap_b32 v%d, v%d" % (sm, t1))
    I("s_nop 0")
    I("v_add_f32 v%d, v%d, v%d" % (sm, sm, t1))
    I("v_rcp_f32 v%d, v%d" % (sm, sm))
    I("s_nop 0")
    for v in list(range(A_SX, A_SX + 16, 2)) + [A_SM, A_SM + 2]:
        I("v_pk_mul_f32 %s, %s, %s op_sel_hi:[1,0]" % (v2(v), v2(v), v2(sm)))
    for i in range(8):
        I(cvt(A_P + i, A_SX + 2 * i, A_SX + 2 * i + 1))
    I(cvt(A_P + 8, A_SM, A_SM + 1))
    I(cvt(A_P + 9, A_SM + 2, A_SM + 3))
    I("s_nop 1")
    OA = A_KX
    pack_ = lambda t: [cvt(A_VT + 8 * t + i, OA + 16 * t + 2 * i, OA + 16 * t + 2 * i + 1) for i in range(8)]
    misc = ["s_lshl_b32 s%d, s%d, 9" % (S_T, sg), "s_lshr_b32 s%d, s%d, 3" % (S_T + 1, S_K2),
            "s_lshl_b32 s%d, s%d, 7" % (S_T + 1, S_T + 1), "s_add_u32 s%d, s%d, s%d" % (S_T, S_T, S_T + 1),
            "s_add_u32 s%d, s%d, 0x%x" % (S_SG, S_T, C_O), "s_mov_b32 s%d, s%d" % (S_AP, so), "s_add_u32 s%d, s%d, 4" % (S_K3, S_K3)]
    for t in range(4):
        c = OA + 16 * t
        I(m32(c, A_VT + t * 8, A_P, None))
        I(m32(c, A_VT + t * 8 + 4, A_P + 4, c))
        p = pack_(t - 1) if t else misc
        for l in p[:4]:
            I(l)
        I("v_mfma_f32_32x32x8_bf16 v[%d:%d], %s, %s, v[%d:%d]" % (c, c + 15, v2(A_VM + 2 * t), v2(A_P + 8), c, c + 15))
        for l in p[4:]:
            I(l)
    I("s_nop 7")
    for l in pack_(3):
        I(l)


def attn_stores():
    out = []
    for t in range(4):
        for u in range(2):
            out.append(["s_add_u32 s%d, s%d, %d" % (S_P3, S_AP, boff(t)),
                        ('vm', "buffer_store_dwordx4 %s, v%d, %s, s%d offen offset:%d sc1" % (v4(A_VT + 8 * t + 4 * u), A_AD + 4, WS, S_P3, 2048 + 512 * u), 'ost')])
    return out + ["s_mov_b32 s%d, 0x40000000" % S_AP]


def run_q(a):
    I = a.I
    st = Stream(a, "q", 'row', True, 'kv')
    if not E("CWARM", 1):
        warm(a, S_SRC, 4 * MB, S_K2, 32)
    if E("WARMO", 0):
        a.srd(S_AUX, ptr(B_WO), 0, 8 * MB)
        warm(a, S_AUX, 8 * MB, S_K2, 32)
    attn_setup(a)
    att, ret = a.uid("L_att"), a.uid("L_attr")
    GW, GR, GZ = 101, 102, 103
    I("s_mov_b32 s%d, 0" % S_K3)
    I("v_mov_b32 v%d, 0x%x" % (GR, L_GATE))
    I("v_lshl_add_u32 v%d, v0, 2, v%d" % (GW, GR))
    I("v_mov_b32 v%d, %d" % (GZ, DB_PROG))
    I("v_mov_b32 v%d, 0" % V_G)

    def items(P):
        par = ["s_sub_u32 s%d, s%d, 1" % (S_P1, S_B),
               ["s_bitcmp1_b32 s%d, 1" % S_P1, "s_cselect_b32 s%d, s%d, s%d" % (S_P0, S_EVEN, S_ODD)],
               "s_add_u32 s%d, s%d, s%d" % (S_P0, S_P0, S_K0),
               "s_lshl_b32 s%d, s%d, 20" % (S_P2, S_P1),
               "s_add_u32 s%d, s%d, s%d" % (S_P0, S_P0, S_P2),
               valid(S_P0), "s_mov_b32 s%d, 1" % S_VAL]
        pk = pack(st, P, False)
        sto = lambda h: ('vm', "buffer_store_dwordx4 %s, v%d, %s, s%d offen offset:%d" % (v4(V_X + 4 * h), V_ST, WS, S_P0, 128 * h), 'st')
        return par + pk[:4] + [sto(0)] + pk[4:] + [sto(1)]

    for r in (S_AK, S_AO, S_SG, S_AP):
        I("s_mov_b32 s%d, 0x%x" % (r, 0x40000000))
    I("s_mov_b32 s%d, 0" % S_PEND)
    st.vmslots = (3, 6)
    st.full = bool(E("QFULL", 1))
    pf = attn_xloads() + attn_mloads()
    NP0 = 12
    ost = attn_stores()
    if E("QEXEC", 1):
        XM, SM_ = S_M, S_M + 2
        for r in (XM, SM_):
            I("s_mov_b64 s[%d:%d], 0" % (r, r + 1))
        wrap = lambda g, m: g[:-1] + ["s_mov_b64 exec, s[%d:%d]" % (m, m + 1), g[-1], "s_mov_b64 exec, -1"]
        pf = [wrap(g, XM) for g in pf]
        ost = [wrap(g, SM_) for g in ost[:-1]]

    def side(P):
        out = [(0, 22, items(P))]
        if P == 0:
            out += [(50, 62, [('wait', 'ost'), signal(S_SG), "s_mov_b32 s%d, 0x%x" % (S_SG, 0x40000000)]),
                    (0, 90, pf[NP0:]),
                    (91, 100, [('vm', "buffer_load_dword v%d, v%d, %s, 0 offen sc1" % (V_G, GZ, srd(S_AUX2)), 'gate')])]
        else:
            out += [(4, 5, [('wait', 'gate'), "ds_write_b32 v%d, v%d" % (GW, V_G)]),
                    (22, 23, [('ds', "ds_read_b32 v%d, v%d" % (V_G, GR), 'gr')]),
                    (34, 34, [[('wait', 'pf'), "s_branch %s" % att, ret + ":"]]),
                    (35, 127, ost), (35, 127, pf[:NP0])]
        return out

    def flush(P):
        if P == 0:
            return
        nxt, srv, fin = a.uid("L_anext"), a.uid("L_aserve"), a.uid("L_afin")
        st.emit_plain(items(P) + [('sync', 'st')])
        TLP[0](28)
        I("s_mov_b32 s%d, 0x%x" % (S_T, C_KV + 63 * 128))
        poll(a, S_WSR, S_T, 64)
        a.L(att)
        I("s_waitcnt lgkmcnt(0)")
        I("s_cmp_eq_u32 s%d, 0" % S_PEND)
        if E("QEXEC", 1):
            I("s_cselect_b64 s[%d:%d], 0, -1" % (S_M + 2, S_M + 3))
        I("s_cbranch_scc1 %s" % nxt)
        attn_compute(a, st)
        a.L(nxt)
        attn_bases(a)
        I("s_cmp_ge_u32 s%d, 64" % S_B)
        I("s_cbranch_scc1 %s" % srv)
        I("v_readfirstlane_b32 s%d, v%d" % (S_T, V_G))
        if E("QSTAG", 2):
            I("s_and_b32 s%d, s%d, 1" % (S_T + 1, S_K2))
            I("s_mul_i32 s%d, s%d, %d" % (S_T + 1, S_T + 1, E("QSTAG", 2)))
            I("s_sub_u32 s%d, s%d, s%d" % (S_T, S_T, S_T + 1))
        I("s_sub_u32 s%d, s%d, 3" % (S_T + 1, S_B))
        I("s_min_i32 s%d, s%d, s%d" % (S_T, S_T, S_T + 1))
        I("s_add_u32 s%d, s%d, 4" % (S_T + 1, S_K3))
        I("s_cmp_ge_i32 s%d, s%d" % (S_T, S_T + 1))
        I("s_cselect_b32 s%d, 1, 0" % S_PEND)
        if E("QEXEC", 1):
            I("s_cselect_b64 s[%d:%d], -1, 0" % (S_M, S_M + 1))
        I("s_cselect_b32 s%d, s%d, 0x40000000" % (S_AK, S_AK))
        I("s_cselect_b32 s%d, s%d, 0x40000000" % (S_AO, S_AO))
        I("s_branch %s" % ret)
        a.L(srv)
        first = a.uid("L_afirst")
        I("s_cmp_eq_u32 s%d, 0" % S_PEND)
        I("s_cbranch_scc1 %s" % first)
        st.emit_plain(attn_stores())
        I("s_waitcnt vmcnt(0)")
        I(signal(S_SG)[1])
        I("s_cmp_ge_u32 s%d, 64" % S_K3)
        I("s_cbranch_scc1 %s" % fin)
        for r in range(96):
            I("v_accvgpr_read_b32 v%d, a%d" % (A_KX + r, r))
        I("s_branch %s" % att)
        a.L(first)
        st.emit_plain(attn_xloads())
        I("s_mov_b32 s%d, 1" % S_PEND)
        I("s_waitcnt vmcnt(0)")
        I("s_branch %s" % att)
        a.L(fin)
        TLP[0](25, 192)
    st.run(adv_plain, side, flush)


def run_g1(a, bases):
    I = a.I
    LR, LI, CR, CI, PR, PI, HR, HI = range(V_X, V_X + 8)
    NLI, NPI, NCR, NCI = 152, 153, 154, 155
    TB = 156
    XR, XI, NXR, NXI = range(V_X + 8, V_X + 12)
    G = V_X + 14
    OB = 120
    O = 128
    OT = 144
    HW, HR2 = 116, 117
    a.C("======== SSM input projection and scan")
    for _ in range(E("G1SLEEP", 0)):
        I("s_sleep 127")
    a.srd(S_SRC, ptr(A_X), 0, 4 * MB)
    first_blocks(a, 16)
    I("s_lshl_b32 s%d, s%d, 6" % (S_K2, S_RK))
    I("s_lshl_b32 s%d, s%d, 4" % (S_T, S_WV))
    I("s_add_u32 s%d, s%d, s%d" % (S_K2, S_K2, S_T))
    I("v_and_b32 v1, 15, v0")
    I("v_add_u32 v1, s%d, v1" % S_K2)
    I("v_bfe_u32 v2, v0, 4, 2")
    I("v_lshlrev_b32 v3, 1, v1")
    for i, src in enumerate((A_LRE, A_LIM, A_LOGDT)):
        a.srd(S_AUX, ptr(src), 0, 2048)
        I("buffer_load_ushort v%d, v3, %s, 0 offen" % (O + i, srd(S_AUX)))
    a.srd(S_AUX, ptr(A_BRE), 0, 2 * MB)
    a.srd(S_AUX2, ptr(A_BIM), 0, 2 * MB)
    I("s_lshl_b32 s%d, s%d, 11" % (S_T, S_WV))
    I("s_add_u32 s%d, s%d, 0x%x" % (S_T, S_T, L_Q))
    I("v_bfe_u32 v5, v0, 1, 2")
    I("v_xor_b32 v5, v5, v2")
    I("v_lshlrev_b32 v5, 4, v5")
    I("v_and_b32 v6, 15, v0")
    I("v_lshl_add_u32 v5, v6, 6, v5")
    I("v_add_u32 v%d, s%d, v5" % (HW, S_T))
    I("v_bfe_u32 v5, v0, 5, 1")
    I("v_bfe_u32 v6, v0, 2, 2")
    I("v_lshl_add_u32 v5, v5, 3, v6")
    I("v_lshlrev_b32 v5, 6, v5")
    I("v_bfe_u32 v7, v0, 4, 1")
    I("v_lshlrev_b32 v7, 1, v7")
    I("v_bfe_u32 v%d, v0, 1, 1" % HR2)
    I("v_add_u32 v7, v7, v%d" % HR2)
    I("v_lshrrev_b32 v6, 1, v6")
    I("v_xor_b32 v7, v7, v6")
    I("v_lshl_add_u32 v5, v7, 4, v5")
    I("v_and_b32 v6, 1, v0")
    I("v_lshl_add_u32 v5, v6, 3, v5")
    I("v_add_u32 v%d, s%d, v5" % (HR2, S_T))
    I("v_xor_b32 v%d, 32, v%d" % (HR2 + 1, HR2))
    I("s_lshl_b32 s%d, s%d, 6" % (S_T, S_K2))
    I("v_and_b32 v5, 63, v0")
    I("v_lshlrev_b32 v5, 4, v5")
    I("v_add_u32 v%d, s%d, v5" % (V_ST, S_T))
    load_panel_n(a, S_K2, 'two', (S_AUX, S_AUX2), NT("NTS", 1))
    lre, lim, ldt, x0, x1, x2, x3 = O, O + 1, O + 2, O + 3, O + 4, O + 5, O + 6
    for r in (lre, lim, ldt):
        I("v_lshlrev_b32 v%d, 16, v%d" % (r, r))
    I("v_mul_f32 v%d, 0x3fb8aa3b, v%d" % (x0, ldt))
    I("v_exp_f32 v%d, v%d" % (x0, x0))
    I("s_nop 0")
    I("v_cvt_pk_bf16_f32 v%d, 0, v%d" % (x0, x0))
    I("v_mul_f32 v%d, v%d, v%d" % (x1, x0, lre))
    I("v_mul_f32 v%d, v%d, v%d" % (x2, x0, lim))
    I("v_mul_f32 v%d, 0x3fb8aa3b, v%d" % (x1, x1))
    I("v_exp_f32 v%d, v%d" % (x1, x1))
    I("v_mul_f32 v%d, 0x3e22f983, v%d" % (x2, x2))
    I("v_fract_f32 v%d, v%d" % (x2, x2))
    I("v_cos_f32 v%d, v%d" % (x3, x2))
    I("v_sin_f32 v%d, v%d" % (x2, x2))
    I("s_nop 0")
    I("v_mul_f32 v%d, v%d, v%d" % (LR, x1, x3))
    I("v_mul_f32 v%d, v%d, v%d" % (LI, x1, x2))
    I("v_add_f32 v%d, -1.0, v%d" % (x0, LR))
    I("v_mul_f32 v%d, v%d, v%d" % (x1, x0, lre))
    I("v_fma_f32 v%d, v%d, v%d, v%d" % (x1, LI, lim, x1))
    I("v_mul_f32 v%d, v%d, v%d" % (x2, LI, lre))
    I("v_fma_f32 v%d, -v%d, v%d, v%d" % (x2, x0, lim, x2))
    I("v_mul_f32 v%d, v%d, v%d" % (x3, lre, lre))
    I("v_fma_f32 v%d, v%d, v%d, v%d" % (x3, lim, lim, x3))
    I("v_rcp_f32 v%d, v%d" % (x3, x3))
    I("s_nop 0")
    I("v_add_f32 v%d, v%d, v%d" % (x3, x3, x3))
    I("v_mul_f32 v%d, v%d, v%d" % (CR, x1, x3))
    I("v_mul_f32 v%d, v%d, v%d" % (CI, x2, x3))
    I("v_mov_b32 v%d, v%d" % (PR, LR))
    I("v_mov_b32 v%d, v%d" % (PI, LI))
    for k in range(3):
        I("v_mul_f32 v%d, v%d, v%d" % (x0, PI, PI))
        I("v_mul_f32 v%d, v%d, v%d" % (PI, PR, PI))
        I("v_fma_f32 v%d, v%d, v%d, -v%d" % (PR, PR, PR, x0))
        I("v_add_f32 v%d, v%d, v%d" % (PI, PI, PI))
    for n_, p_ in ((NLI, LI), (NPI, PI), (NCR, CR), (NCI, CI)):
        I("v_xor_b32 v%d, 0x80000000, v%d" % (n_, p_))
    for k in range(8):
        pr, pi = (CR, CI) if k == 0 else (TB + 2 * k - 2, TB + 2 * k - 1)
        I("v_mul_f32 v%d, v%d, v%d" % (TB + 2 * k, LR, pr))
        I("v_mul_f32 v%d, v%d, v%d" % (TB + 2 * k + 1, LR, pi))
        I("v_fmac_f32 v%d, v%d, v%d" % (TB + 2 * k, NLI, pi))
        I("v_fmac_f32 v%d, v%d, v%d" % (TB + 2 * k + 1, LI, pr))
    I("v_mov_b32 v%d, 0" % HR)
    I("v_mov_b32 v%d, 0" % HI)
    for i in range(16):
        I("v_mov_b32 v%d, 0" % (V_ACC + 16 + i))
    st = Stream(a, "g1", 'row', False, 't8')
    st.setup()
    wait_init(a, bases)
    TLP[0](17)
    for k, (lo, hi) in enumerate(((0xffff0000, 0xffffffff), (0, 0xffffffff), (0, 0xffff0000))):
        I("s_mov_b32 s%d, 0x%x" % (S_M + 2 * k, lo))
        I("s_mov_b32 s%d, 0x%x" % (S_M + 2 * k + 1, hi))
    start_plain(a)
    for r in (S_P0, S_P1, S_P3):
        I("s_mov_b32 s%d, 0x%x" % (r, OOB))

    fm = lambda d, x, y: "v_fmac_f32 v%d, v%d, v%d" % (d, x, y)
    mu = lambda d, x, y: "v_mul_f32 v%d, v%d, v%d" % (d, x, y)

    def cmac(dr, di, lr, li, nli, xr, xi):
        return [fm(dr, lr, xr), fm(di, lr, xi), fm(dr, nli, xi), fm(di, li, xr)]

    def scan(P):
        ur = lambda k: st.acc(P, k >> 2, 0) + (k & 3)
        ui = lambda k: st.acc(P, k >> 2, 1) + (k & 3)
        scl = lambda k: [mu(O + k, CR, ur(k)), mu(O + 8 + k, NCR, ui(k)), fm(O + k, NCI, ui(k)), fm(O + 8 + k, NCI, ur(k))]
        it = []
        for k in range(1, 8):
            c, d = cmac(ur(k), ui(k), LR, LI, NLI, ur(k - 1), ui(k - 1)), scl(k - 1)
            it += [c[0], c[1], d[0], d[1], c[2], c[3], d[2], d[3]]
        d = scl(7)
        it += ["v_mov_b32 v%d, v%d" % (G, ur(7)), "v_mov_b32 v%d, v%d" % (G + 1, ur(7)),
               "v_mov_b32 v%d, v%d" % (G + 4, ui(7)), "v_mov_b32 v%d, v%d" % (G + 5, ui(7)), d[0], d[1],
               "v_permlane16_swap_b32 v%d, v%d" % (G, G + 1), "v_permlane16_swap_b32 v%d, v%d" % (G + 4, G + 5)]
        it += ["v_mov_b32 v%d, v%d" % (G + 2 + i + 2 * (i >> 1), G + i + 2 * (i >> 1)) for i in range(4)] + [d[2], d[3]]
        it += ["v_permlane32_swap_b32 v%d, v%d" % (G + i + 2 * (i >> 1), G + 2 + i + 2 * (i >> 1)) for i in range(4)]
        xr, xi = HR, HI
        for j in range(4):
            it += cmac(G + j, G + 4 + j, PR, PI, NPI, xr, xi)
            xr, xi = G + j, G + 4 + j
            if j < 3:
                src = (HR, HI) if j == 0 else (XR, XI)
                it += ["v_cndmask_b32 v%d, v%d, v%d, s[%d:%d]" % (XR + u, src[u], G + 4 * u + j, S_M + 2 * j, S_M + 2 * j + 1) for u in range(2)]
        it += ["v_xor_b32 v%d, 0x80000000, v%d" % (NXR, XR), "v_xor_b32 v%d, 0x80000000, v%d" % (NXI, XI),
               "v_mov_b32 v%d, v%d" % (HR, G + 3), "v_mov_b32 v%d, v%d" % (HI, G + 7)]
        for k in range(8):
            it += [fm(O + k, TB + 2 * k, XR), fm(O + 8 + k, TB + 2 * k, NXI), fm(O + k, TB + 2 * k + 1, NXI), fm(O + 8 + k, TB + 2 * k + 1, NXR)]
            if k % 2:
                it += [cvt(OB + k // 2, O + k - 1, O + k), cvt(OB + 4 + k // 2, O + 7 + k, O + 8 + k)]
        it += ["ds_write_b128 v%d, %s offset:%d" % (HW, v4(OB + 4 * k), 1024 * k) for k in range(2)]
        it += [('ds', "ds_read_b64_tr_b16 %s, v%d offset:%d" % (v2(OT + 4 * k + 2 * u), HR2 + u, 1024 * k + 256 * u), 'tr') for k in range(2) for u in range(2)]
        it += ["s_sub_u32 s%d, s%d, 1" % (S_P1, S_B),
               "s_lshl_b32 s%d, s%d, 17" % (S_P0, S_P1),
               "s_add_u32 s%d, s%d, 0x%x" % (S_P0, S_P0, WS_HT),
               "s_add_u32 s%d, s%d, 0x10000" % (S_P3, S_P0),
               "s_lshl_b32 s%d, s%d, 7" % (S_P1, S_P1),
               "s_add_u32 s%d, s%d, 0x%x" % (S_P1, S_P1, C_H),
               valid(S_P0, S_P1, S_P3),
               "s_mov_b32 s%d, 1" % S_VAL]
        return it
    sto = [('lwait', 'tr'),
           ('vm', "buffer_store_dwordx4 %s, v%d, %s, s%d offen%s" % (v4(OT), V_ST, WS, S_P0, HSC), 'st0'),
           ('vm', "buffer_store_dwordx4 %s, v%d, %s, s%d offen%s" % (v4(OT + 4), V_ST, WS, S_P3, HSC), 'st')]
    sig = [('sync', 'st'), signal(S_P1)]

    def side(P):
        sc = scan(P)
        if E("G1NODS", 0):
            sc = [it for it in sc if not (isinstance(it, str) and it.startswith("ds_write"))]
        if E("G1NOPL", 0):
            sc = [it for it in sc if not (isinstance(it, str) and "permlane" in it)]
        q = E("G1SIGQ", 2)
        return [(4, 14, sto), (32 * q + 21, 32 * q + 30, sig), (3, 127, sc)]

    def flush(P):
        st.emit_plain(sto + sig + scan(P) + sto + sig)
    st.run(adv_plain, side, flush)


class Reduce:
    R = V_X
    SUM = V_X + 8
    PK = V_X + 16
    LIN = V_X + 24
    TR, TW = V_X + 25, V_X + 26
    OWN = V_X + 28
    T = V_X + 36
    F = V_X + 40
    S_TAG = S_PO

    def __init__(self, a, st, sends, own, trans, target, cshift, src_addr, lead, seg=None):
        self.seg = seg or (lambda d: [])
        self.a, self.st, self.sends, self.own, self.trans = a, st, sends, own, trans
        self.target, self.cshift, self.src_addr, self.lead = target, cshift, src_addr, lead
        self.nw = len(own(0)) // 2
        self.op = "dwordx%d" % self.nw

    def announce(self, s_rdy):
        I = self.a.I
        I("s_waitcnt vmcnt(0)")
        I("s_barrier")
        I(signal(s_rdy)[1])

    def prepare(self):
        I = self.a.I
        for i in range(4):
            I("v_mov_b32 v%d, 0" % (self.PK + i))
        I("v_and_b32 v2, 63, v0")
        I("v_lshlrev_b32 v3, 4, v2")
        I("v_lshlrev_b32 v%d, %d, v2" % (self.LIN, 1 + self.nw.bit_length()))
        for k in range(8):
            I("s_add_u32 s%d, s%d, %d" % (S_T + 3, S_K0, k * 1024))
            I("buffer_store_dwordx4 %s, v3, %s, s%d offen sc1" % (v4(self.PK), WS, S_T + 3))
        I("v_lshrrev_b32 v1, 6, v0")
        I("v_lshlrev_b32 v1, 11, v1")
        I("v_add_u32 v1, 0x%x, v1" % (L_GATE + 4096))

    def gload(self):
        return "buffer_load_dword v%d, v4, %s, s%d offen sc1" % (V_G, WS, S_F1)

    def gtest(self):
        return ["v_readfirstlane_b32 s%d, v%d" % (S_T + 5, V_G), "s_cmp_lt_u32 s%d, %d" % (S_T + 5, self.target)]

    def gwait(self, out, back):
        rt = self.a.uid("L_gw")
        out.append(rt + ":")
        if E("TL", 0):
            out.append("    s_add_u32 s%d, s%d, 0x10000" % (S_CNT, S_CNT))
        out += ["    " + self.gload(), "    s_add_u32 s%d, s%d, 1" % (S_SPIN, S_SPIN),
                "    s_cmp_gt_u32 s%d, 0x%x" % (S_SPIN, SPIN_LIMIT), "    s_cbranch_scc1 %s" % ABORT[0], "    s_waitcnt vmcnt(0)"]
        out += ["    " + l for l in self.gtest()]
        out += ["    s_cbranch_scc0 %s" % back, "    s_sleep 1", "    s_branch %s" % rt]
        return rt

    def advance(self, stream_):
        assert stream_
        back = self.a.uid("L_gok")
        rt = self.gwait(self.st.cold, back)
        t = self.gtest()
        return ["s_add_u32 s%d, s%d, 1" % (S_DB, S_DB), "s_min_u32 s%d, s%d, s%d" % (S_DB, S_DB, S_LST)] + self.src_addr() + \
               [('wait', 'gate'), t[0], "s_nop 0", "s_nop 0", [t[1], "s_cbranch_scc1 %s" % rt, back + ":"]]

    def caddr(self, add):
        d = S_F1
        return ["s_add_u32 s%d, s%d, %d" % (d, S_DB, add), "s_min_u32 s%d, s%d, s%d" % (d, d, S_LST)] + self.seg(d) + [
                "s_lshl_b32 s%d, s%d, %d" % (d, d, self.cshift),
                "s_add_u32 s%d, s%d, s%d" % (d, d, S_K4)]

    def gate(self):
        return [(E("GATE", 70), E("GATE", 70) + 16, self.caddr(1) + [('vm', self.gload(), 'gate')])]

    def vr(self, r):
        return "v[%d:%d]" % (r, r + self.nw - 1)

    def loads(self):
        return [('vm', "buffer_load_%s %s, v%d, %s, s%d offen offset:%d sc1" % (self.op, self.vr(self.R + self.nw * j), self.LIN, WS, S_P1, j * 512), 'rcv')
                for j in range(len(self.sends))]

    def check(self):
        n = self.nw * len(self.sends)
        it = ["v_xor_b32 v%d, s%d, v%d" % (self.T, self.S_TAG, self.R)]
        it += ["v_bitop3_b32 v%d, v%d, v%d, s%d bitop3:0xf6" % (self.T, self.T, self.R + i, self.S_TAG) for i in range(1, n)]
        return it + ["v_and_b32 v%d, 1, v%d" % (self.T, self.T), "v_cmp_ne_u32 vcc, 0, v%d" % self.T]

    def send(self, P):
        it = ["s_sub_u32 s%d, s%d, 1" % (S_P0, S_B),
              "s_and_b32 s%d, s%d, 3" % (S_T + 6, S_P0),
              "s_lshl_b32 s%d, s%d, 11" % (S_T + 6, S_T + 6),
              "s_bfe_u32 s%d, s%d, 0x10002" % (S_P0, S_P0),
              "s_xor_b32 s%d, s%d, 1" % (S_P0, S_P0),
              ["s_cmp_eq_u32 s%d, 0" % S_VAL, "s_cselect_b32 s%d, 0x%x, s%d" % (S_T + 6, 0x40000000, S_T + 6),
               "s_cselect_b32 s%d, 0, s%d" % (S_P0, S_P0)]]
        for j, (regs, sk) in enumerate(self.sends):
            r, d = regs(P), self.PK + self.nw * j
            it += [cvt(d + k, r[2 * k], r[2 * k + 1]) for k in range(self.nw)]
            it += ["v_and_or_b32 v%d, v%d, -2, s%d" % (d + k, d + k, S_P0) for k in range(self.nw)]
            it += ["s_add_u32 s%d, s%d, s%d" % (S_T + 4, sk, S_T + 6),
                   ('vm', "buffer_store_%s %s, v%d, %s, s%d offen offset:%d%s" % (self.op, self.vr(d), self.LIN, WS, S_T + 4, j * 512, HSC), 'snd')]
        return it

    def finish(self, final):
        a, st = self.a, self.st
        bad, ok = a.uid("L_rbad"), a.uid("L_rok")
        C = st.cold
        C.append(bad + ":")
        if E("TL", 0):
            C.append("    s_add_u32 s%d, s%d, 1" % (S_CNT, S_CNT))
        C.extend("    " + l[1] for l in self.loads())
        C += ["    s_add_u32 s%d, s%d, 1" % (S_SPIN, S_SPIN), "    s_cmp_gt_u32 s%d, 0x%x" % (S_SPIN, SPIN_LIMIT),
              "    s_cbranch_scc1 %s" % ABORT[0], "    s_waitcnt vmcnt(0)"]
        C.extend("    " + l for l in self.check())
        C += ["    s_cbranch_vccnz %s" % bad, "    s_branch %s" % ok]
        one = [('wait', 'rcv')] + self.check() + ["s_nop 0", "s_nop 0", "s_nop 0", ["s_cbranch_vccnz %s" % bad, ok + ":"]]
        for j in range(len(self.sends)):
            for k in range(self.nw):
                r, src = self.R + self.nw * j + k, (self.OWN if j == 0 else self.SUM) + 2 * k
                one += ["v_lshlrev_b32 v%d, 16, v%d" % (self.T, r), "v_and_b32 v%d, 0xffff0000, v%d" % (self.T + 1, r),
                        "v_add_f32 v%d, v%d, v%d" % (self.SUM + 2 * k, src, self.T),
                        "v_add_f32 v%d, v%d, v%d" % (self.SUM + 2 * k + 1, src + 1, self.T + 1)]
        one += self.trans
        one += [('ds', "ds_read_b128 %s, v%d offset:%d" % (v4(self.R + 4 * k), self.TR, 1024 * k), 'tr') for k in range(self.nw // 2)]
        return one, [('lwait', 'tr')] + final

    def fetch(self, P, params):
        it = ["v_mov_b32 v%d, v%d" % (self.OWN + i, r) for i, r in enumerate(self.own(P))]
        it += ["s_mov_b32 s%d, s%d" % (self.S_TAG, S_P0), "s_add_u32 s%d, s%d, s%d" % (S_P1, S_K0, S_T + 6)]
        return it + params + self.loads() + ["s_mov_b32 s%d, 1" % S_VAL]

    def runs(self, params, pre, final):
        a, I, st = self.a, self.a.I, self.st
        st.la, st.full = 4, True
        I("s_mov_b32 s%d, 0" % S_CNT)
        I("v_mov_b32 v4, 0")
        I("s_sub_u32 s%d, s%d, 1" % (S_LST, S_END))
        I("s_mov_b32 s%d, 0" % S_B)
        I("s_mov_b32 s%d, 0" % S_DB)
        st.emit_plain(self.caddr(self.lead))
        go = a.uid("L_rgo")
        self.gwait(a.lines, go)
        a.L(go)
        st.emit_plain(self.caddr(1) + [self.gload()])
        I("s_mov_b32 s%d, 0" % S_VAL)
        I("s_mov_b32 s%d, 0" % self.S_TAG)
        for k in range(8):
            I("v_mov_b32 v%d, 0" % (self.R + k))
        st.emit_plain(self.src_addr())
        I("s_mov_b32 s%d, s%d" % (S_OFF, S_NOF))
        for r in (S_P1, S_P2, S_P3):
            I("s_mov_b32 s%d, 0x%x" % (r, OOB))
        f0, f1, f2 = self.plan
        if pre:
            final = [('wait', pre[-1][2])] + final

        def side(P):
            one, two = self.finish(final)
            return self.gate() + [(0, 38, self.send(P)), (f0, f1 - 4, one), (f1, f2 - 1, two), (f2, 127, self.fetch(P, params)), (0, 30, pre)]

        def flush(P):
            TLP[0](22 if st.name == 'g2' else 27)
            one, two = self.finish(final)
            st.emit_plain(self.send(P) + pre + one + two + self.fetch(P, params) + pre)
            one, two = self.finish(final)
            st.emit_plain(one + two)
        st.run(self.advance, side, flush)


def run_g2(a, bases):
    I = a.I
    a.C("======== SSM output projection")
    st = Stream(a, "g2", 'lin', True)
    kh = S_K3

    def src_addr():
        return ["s_lshl_b32 s%d, s%d, 17" % (S_NOF, S_DB), "s_add_u32 s%d, s%d, s%d" % (S_NOF, S_NOF, S_K5)]
    tile = lambda t: lambda P: list(range(st.acc(P, t, 0), st.acc(P, t, 0) + 8))
    trans = ["ds_write_b128 v%d, %s" % (Reduce.TW + k, v4(Reduce.SUM + 4 * k)) for k in range(2)]
    rd = Reduce(a, st, [(tile(1), S_K1)], tile(0), trans, 16, 7, src_addr, E("G2LEAD", 1))
    rd.plan = (54, 82, 112)
    DV, XV, XA, OA_ = rd.F, rd.F + 4, rd.F + 8, rd.F + 10
    T = rd.F + 12
    I("s_and_b32 s%d, s%d, 15" % (S_K2, S_RK))
    if E("G2WARM", 1):
        a.srd(S_AUX2, ptr(A_X), 0, 4 * MB)
        warm(a, S_AUX2, 4 * MB, S_K2, 16)
    wait_init(a, bases)
    I("s_lshl_b32 s%d, s%d, 15" % (S_K0, S_K2))
    I("s_lshl_b32 s%d, s%d, 13" % (S_T, S_WV))
    I("s_add_u32 s%d, s%d, s%d" % (S_K0, S_K0, S_T))
    I("s_xor_b32 s%d, s%d, 0x8000" % (S_K1, S_K0))
    I("s_add_u32 s%d, s%d, 0x%x" % (S_K0, S_K0, WS_INB))
    I("s_add_u32 s%d, s%d, 0x%x" % (S_K1, S_K1, WS_INB))
    I("s_lshr_b32 s%d, s%d, 1" % (S_K4, S_K2))
    I("s_lshl_b32 s%d, s%d, 7" % (S_K4, S_K4))
    I("s_add_u32 s%d, s%d, 0x%x" % (S_K4, S_K4, C_RDY + 32 * 128))
    rd.prepare()
    I("v_bfe_u32 v2, v0, 3, 3")
    I("v_lshlrev_b32 v2, 4, v2")
    I("v_xor_b32 v2, v2, v3")
    I("v_add_u32 v%d, v1, v2" % rd.TR)
    I("v_and_b32 v2, 15, v0")
    I("v_lshl_add_u32 v1, v2, 7, v1")
    I("v_bfe_u32 v2, v0, 4, 2")
    I("v_lshlrev_b32 v2, 1, v2")
    I("v_and_b32 v3, 7, v0")
    I("v_xor_b32 v2, v2, v3")
    I("v_lshl_add_u32 v%d, v2, 4, v1" % rd.TW)
    I("v_xor_b32 v%d, 16, v%d" % (rd.TW + 1, rd.TW))
    rd.announce(S_K4)
    poll(a, S_WSR, S_K4, 2)
    if E("G2WAIT", 0):
        I("s_mov_b32 s%d, 0x%x" % (S_T, C_KV))
        poll(a, S_WSR, S_T, E("G2WAIT", 0), sleep=16)
    I("s_and_b32 s%d, s%d, 1" % (kh, S_K2))
    I("s_cmp_eq_u32 s%d, 1" % kh)
    I("s_cselect_b32 s%d, s%d, s%d" % (S_AUX, ptr(A_CIM), ptr(A_CRE)))
    I("s_cselect_b32 s%d, s%d, s%d" % (S_AUX + 1, ptr(A_CIM) + 1, ptr(A_CRE) + 1))
    I("s_and_b32 s%d, s%d, 0xffff" % (S_AUX + 1, S_AUX + 1))
    I("s_mov_b32 s%d, 0x%x" % (S_AUX + 2, 2 * MB))
    I("s_mov_b32 s%d, 0x00020000" % (S_AUX + 3))
    I("s_lshr_b32 s%d, s%d, 1" % (S_T, S_K2))
    I("s_lshl_b32 s%d, s%d, 7" % (S_T, S_T))
    I("s_lshl_b32 s%d, s%d, 5" % (S_T + 1, S_WV))
    I("s_add_u32 s%d, s%d, s%d" % (S_T, S_T, S_T + 1))
    I("v_and_b32 v5, 7, v0")
    I("v_lshl_add_u32 v5, v5, 2, s%d" % S_T)
    I("s_lshl_b32 s%d, s%d, 4" % (S_T + 1, kh))
    I("v_bfe_u32 v6, v0, 3, 3")
    I("v_add_u32 v6, s%d, v6" % (S_T + 1))
    I("v_lshlrev_b32 v7, 1, v5")
    I("v_lshl_add_u32 v%d, v6, 11, v7" % XA)
    I("v_add_u32 v%d, 0x4000, v%d" % (XA + 1, XA))
    I("v_lshlrev_b32 v5, 2, v5")
    I("v_lshl_add_u32 v%d, v6, 13, v5" % OA_)
    I("v_add_u32 v%d, 0x10000, v%d" % (OA_ + 1, OA_))
    a.srd(S_AUX2, ptr(A_DSKIP), 0, 2048)
    I("buffer_load_dwordx2 %s, v7, %s, 0 offen" % (v2(XV), srd(S_AUX2)))
    load_panel_n(a, S_T, 't8', (S_AUX, S_AUX), NT("NTS", 1))
    for i in range(2):
        I("v_lshlrev_b32 v%d, 16, v%d" % (DV + 2 * i, XV + i))
        I("v_and_b32 v%d, 0xffff0000, v%d" % (DV + 2 * i + 1, XV + i))
    I("s_mov_b32 s%d, 0x%x" % (S_K4, C_H))
    I("s_lshl_b32 s%d, s%d, 16" % (S_K5, kh))
    I("s_add_u32 s%d, s%d, 0x%x" % (S_K5, S_K5, WS_HT))
    a.srd(S_SRC, ptr(D_WS), 0, WS_SIZE)
    a.srd(S_AUX, ptr(D_OUT), 0, 16 * MB)
    a.srd(S_AUX2, ptr(A_X), 0, 4 * MB)
    if not E("CWARM", 1):
        warm(a, S_AUX2, 4 * MB, S_K2, 16)
    I("s_lshl_b32 s%d, s%d, 8" % (kh, kh))
    st.setup(kh)
    TLP[0](17)
    I("s_mov_b32 s%d, 64" % S_END)
    params = ["s_sub_u32 s%d, s%d, 1" % (S_P3, S_B),
              "s_lshl_b32 s%d, s%d, 16" % (S_P2, S_P3),
              "s_lshl_b32 s%d, s%d, 18" % (S_P3, S_P3),
              valid(S_P2, S_P3)]
    pre = [('vm', "buffer_load_dwordx2 %s, v%d, %s, s%d offen" % (v2(XV + 2 * k), XA + k, srd(S_AUX2), S_P2), 'x') for k in range(2)]
    final = []
    for i in range(4):
        final += ["v_lshlrev_b32 v%d, 16, v%d" % (T, XV + i),
                  "v_and_b32 v%d, 0xffff0000, v%d" % (T + 1, XV + i),
                  "v_mul_f32 v%d, v%d, v%d" % (T, T, DV + 2 * (i & 1)),
                  "v_mul_f32 v%d, v%d, v%d" % (T + 1, T + 1, DV + 2 * (i & 1) + 1),
                  "v_cvt_pk_bf16_f32 v%d, 0, v%d" % (T, T),
                  "v_cvt_pk_bf16_f32 v%d, 0, v%d" % (T + 1, T + 1),
                  "v_add_f32 v%d, v%d, v%d" % (rd.SUM + 2 * i, rd.R + 2 * i, T),
                  "v_add_f32 v%d, v%d, v%d" % (rd.SUM + 2 * i + 1, rd.R + 2 * i + 1, T + 1)]
        if i & 1:
            final.append(('vm', "buffer_store_dwordx4 %s, v%d, %s, s%d offen%s" % (v4(rd.SUM + 2 * i - 2), OA_ + i // 2, srd(S_AUX), S_P3, OSC), 'out'))
    rd.runs(params, pre, final)


def run_op(a):
    I = a.I
    a.C("======== attention output projection")
    st = Stream(a, "op", 'chunk', False)
    u, kq, nt = S_P0, S_P1, S_P2

    def seg(d):
        return ["s_mul_i32 s3, s%d, 3" % d, "s_add_u32 s3, s3, s%d" % S_SB,
                "s_lshl1_add_u32 s%d, s%d, s%d" % (d, d, S_SA), "s_max_i32 s%d, s%d, s3" % (d, d)]

    def src_addr():
        return ["s_mov_b32 s%d, s%d" % (S_T + 5, S_DB)] + seg(S_T + 5) + [
                ["s_bitcmp1_b32 s%d, 1" % (S_T + 5), "s_cselect_b32 s%d, s%d, s%d" % (S_NOF, S_EVEN, S_ODD)],
                "s_lshl_b32 s%d, s%d, 20" % (S_T + 5, S_T + 5),
                "s_add_u32 s%d, s%d, s%d" % (S_NOF, S_NOF, S_T + 5),
                "s_add_u32 s%d, s%d, s%d" % (S_NOF, S_NOF, S_K5)]
    part = lambda r: lambda P: [st.acc(P, t, c) + r for t in range(2) for c in range(2)]
    trans = ["ds_write2_b32 v%d, v%d, v%d offset0:%d offset1:%d" % (Reduce.TW, Reduce.SUM + 2 * t, Reduce.SUM + 2 * t + 1, 128 * t, 128 * t + 16) for t in range(2)]
    rd = Reduce(a, st, [(part(1), S_K1), (part(2), S_K2), (part(3), S_K3)], part(0), trans, 8, 9, src_addr, 0, seg)
    rd.plan = (56, 94, 104)
    OA_ = rd.F
    I("s_mov_b32 s%d, s%d" % (u, S_RK))
    I("s_and_b32 s%d, s%d, 3" % (kq, u))
    I("s_lshr_b32 s%d, s%d, 2" % (nt, u))
    I("s_lshl_b32 s%d, s%d, 5" % (S_K0, S_XW))
    I("s_add_u32 s%d, s%d, s%d" % (S_K0, S_K0, u))
    I("s_lshl_b32 s%d, s%d, 15" % (S_K0, S_K0))
    I("s_lshl_b32 s%d, s%d, 13" % (S_T, S_WV))
    I("s_add_u32 s%d, s%d, s%d" % (S_K0, S_K0, S_T))
    for j, r in enumerate((S_K1, S_K2, S_K3)):
        I("s_xor_b32 s%d, s%d, 0x%x" % (r, S_K0, (j + 1) << 15))
        I("s_add_u32 s%d, s%d, 0x%x" % (r, r, WS_INB + INB_OP))
    I("s_add_u32 s%d, s%d, 0x%x" % (S_K0, S_K0, WS_INB + INB_OP))
    I("s_lshl_b32 s%d, s%d, 3" % (S_K4, S_XW))
    I("s_lshr_b32 s%d, s%d, 2" % (S_T, u))
    I("s_add_u32 s%d, s%d, s%d" % (S_K4, S_K4, S_T))
    I("s_lshl_b32 s%d, s%d, 7" % (S_K4, S_K4))
    I("s_add_u32 s%d, s%d, 0x%x" % (S_K4, S_K4, C_RDY))
    a.srd(S_AUX, ptr(B_WO), 0, 8 * MB)
    I("s_lshl_b32 s%d, s%d, 21" % (S_K5, kq))
    I("s_lshl_b32 s%d, s%d, 8" % (S_T, nt))
    I("s_add_u32 s%d, s%d, s%d" % (S_K5, S_K5, S_T))
    rd.prepare()
    I("v_add_u32 v%d, v1, v3" % rd.TR)
    I("v_and_b32 v2, 15, v0")
    I("v_lshl_add_u32 v1, v2, 2, v1")
    I("v_bfe_u32 v2, v0, 4, 2")
    I("v_lshl_add_u32 v%d, v2, 7, v1" % rd.TW)
    load_panel_t(a, S_K5, 2048, 'nat', mid=lambda: I(signal(S_K4)[1]))
    poll(a, S_WSR, S_K4, 4)
    I("s_lshl_b32 s%d, s%d, 9" % (S_T, nt))
    I("s_lshl_b32 s%d, s%d, 7" % (S_T + 1, S_WV))
    I("s_add_u32 s%d, s%d, s%d" % (S_T, S_T, S_T + 1))
    I("s_lshl_b32 s%d, s%d, 13" % (S_T + 1, kq))
    I("s_add_u32 s%d, s%d, s%d" % (S_T, S_T, S_T + 1))
    I("s_add_u32 s%d, s%d, 4096" % (S_T, S_T))
    I("v_bfe_u32 v1, v0, 3, 3")
    I("v_and_b32 v2, 7, v0")
    I("v_lshlrev_b32 v1, 15, v1")
    I("v_lshl_add_u32 v1, v2, 4, v1")
    I("v_add_u32 v%d, s%d, v1" % (OA_, S_T))
    I("s_lshl_b32 s%d, s%d, 7" % (S_K4, kq))
    I("s_add_u32 s%d, s%d, 0x%x" % (S_K4, S_K4, C_O))
    I("s_lshl_b32 s%d, s%d, 18" % (S_K5, kq))
    I("s_add_u32 s%d, s%d, 2048" % (S_K5, S_K5))
    a.srd(S_SRC, ptr(D_WS), 0, WS_SIZE)
    a.srd(S_AUX, ptr(D_OUT), 0, 16 * MB)
    I("s_lshl_b32 s%d, s%d, 4" % (kq, kq))
    st.setup(kq)
    TLP[0](21)
    I("s_cmp_lt_u32 s%d, 16" % S_RK)
    I("s_cselect_b32 s%d, %d, %d" % (S_T, E("OPS0", 18), E("OPS1", 30)))
    I("s_lshr_b32 s%d, s%d, 1" % (S_T + 1, S_T))
    I("s_sub_u32 s%d, s%d, s%d" % (S_SB, S_XW, S_T + 1))
    I("s_add_u32 s%d, s%d, 2" % (S_T, S_T))
    I("s_cmp_eq_u32 s%d, 3" % S_XW)
    I("s_cselect_b32 s%d, s%d, s%d" % (S_SB, S_T, S_SB))
    I("s_cselect_b32 s%d, 0, s%d" % (S_SA, S_XW))
    I("s_sub_u32 s%d, 66, s%d" % (S_END, S_SB))
    I("s_mul_i32 s%d, s%d, 43691" % (S_END, S_END))
    I("s_lshr_b32 s%d, s%d, 17" % (S_END, S_END))
    params = ["s_sub_u32 s%d, s%d, 1" % (S_P3, S_B)] + seg(S_P3) + [
              "s_lshl_b32 s%d, s%d, 18" % (S_P3, S_P3),
              valid(S_P3)]
    final = ["v_cvt_pk_bf16_f32 v%d, 0, v%d" % (rd.SUM + i, rd.R + i) for i in range(4)]
    final += [('vm', "buffer_store_dwordx4 %s, v%d, %s, s%d offen%s" % (v4(rd.SUM), OA_, srd(S_AUX), S_P3, OSC), 'out')]
    rd.runs(params, [], final)


def worker(a, abort, bases, tlp, ini):
    I = a.I
    ABORT[0], TLP[0], INI[0] = abort, tlp, ini
    lv, lq, l1, l2, lop = (a.uid(x) for x in ("L_v", "L_q", "L_g1", "L_g2", "L_op"))
    common(a)
    I("s_cmp_eq_u32 s%d, 3" % S_XW)
    I("s_cbranch_scc1 %s" % l1)
    proj_panel(a)
    wait_init(a, bases)
    tlp(17)
    tlp(29)
    I("s_cmp_eq_u32 s%d, 2" % S_XW)
    I("s_cbranch_scc1 %s" % lq)
    I("s_cmp_eq_u32 s%d, 1" % S_XW)
    I("s_cbranch_scc1 %s" % lv)
    run_kv(a, False)
    tlp(18)
    I("s_branch %s" % lop)
    a.L(lv)
    run_kv(a, True)
    tlp(18)
    I("s_branch %s" % lop)
    a.L(lq)
    run_q(a)
    tlp(19)
    I("s_branch %s" % abort)
    a.L(l1)
    I("s_cmp_ge_u32 s%d, 16" % S_RK)
    I("s_cbranch_scc1 %s" % l2)
    run_g1(a, bases)
    tlp(20)
    I("s_branch %s" % lop)
    a.L(l2)
    run_g2(a, bases)
    tlp(15)
    a.L(lop)
    run_op(a)
    tlp(14)
```

```python
import sys, os
sys.path.insert(0, os.path.dirname(os.path.abspath(__file__)))
from asmlib import *
from layout import *
import chain2 as chain
import work

NAME = "concat_heads__ssm_conv_s5__memory_aug_recurrent_mem_tr__prompt"
HEADER = open(os.path.join(os.path.dirname(os.path.abspath(__file__)), "header.txt")).read()
E = chain.E
TL = E("TL", 0)

S_XW, S_RK, S_WV = 40, 41, 49
S_EVEN, S_ODD = 54, 55


def load_ptrs(a):
    I = a.I
    I("s_load_dwordx16 s[%d:%d], s[0:1], 0" % (PTR0, PTR0 + 15))
    I("s_load_dwordx16 s[%d:%d], s[0:1], 64" % (PTR0 + 16, PTR0 + 31))
    I("s_load_dwordx4 s[%d:%d], s[0:1], 128" % (PTR0 + 32, PTR0 + 35))
    I("s_load_dwordx2 s[%d:%d], s[0:1], 144" % (PTR0 + 36, PTR0 + 37))
    I("s_waitcnt lgkmcnt(0)")


def tl_probe(a, idx, v=249, tid=0):
    if not TL:
        return
    I = a.I
    I("s_memrealtime s[58:59]")
    I("s_memtime s[56:57]")
    q = 60 if v != 5 else 68
    a.srd(q, ptr(D_WS), WS_DBG + 0x80000, 65536)
    I("s_waitcnt lgkmcnt(0)")
    I("s_lshl_b32 s59, s2, 8")
    I("v_mov_b32 v%d, s58" % (v + 1))
    I("v_mov_b32 v%d, s56" % v)
    I("v_xor_b32 v%d, %d, v0" % (v + 2, tid))
    I("v_lshlrev_b32 v%d, 16, v%d" % (v + 2, v + 2))
    I("buffer_store_dword v%d, v%d, s[%d:%d], s59 offen offset:%d" % (v + 1, v + 2, q, q + 3, idx * 4))
    I("buffer_store_dword v%d, v%d, s[%d:%d], s59 offen offset:%d" % (v, v + 2, q, q + 3, 128 + idx * 4))
    if v == 5 and idx in (15, 14):
        I("v_mov_b32 v%d, s%d" % (v, work.S_CNT))
        I("buffer_store_dword v%d, v%d, s[%d:%d], s59 offen offset:%d" % (v, v + 2, q, q + 3, (idx - 14) * 4))


def role_ticket(a):
    I = a.I
    I("s_getreg_b32 s16, hwreg(HW_REG_XCC_ID)")
    I("s_and_b32 s16, s16, 7")
    I("v_lshrrev_b32 v3, 6, v0")
    a.srd(12, ptr(D_DBG), 0, 256)
    I("v_readfirstlane_b32 s18, v3")
    I("s_lshl_b32 s3, s16, 5")
    I("v_mov_b32 v12, 1")
    I("v_lshlrev_b32 v13, 8, v0")
    I("buffer_atomic_add v12, v13, s[12:15], s3 offen offset:%d sc0 sc1" % DB_RANK)


def role_assign(a):
    I = a.I
    lab = a.uid("L_role")
    I("s_cmp_lg_u32 s18, 1")
    I("s_cbranch_scc1 %s" % lab)
    I("s_mov_b32 s7, 1")
    lw = a.uid("L_rolew")
    I("s_cmp_lg_u32 s16, 7")
    I("s_cbranch_scc1 %s" % lw)
    I("s_lshr_b32 s6, s2, 7")
    I("s_lshl_b32 s6, s6, 8")
    I("s_add_u32 s4, s4, s6")
    I("s_and_b32 s5, s2, 127")
    I("s_lshl_b32 s5, s5, 14")
    I("s_add_u32 s5, s5, s4")
    I("s_add_u32 s5, s5, 0x%x" % (WS_P + 64 * MB + 2048))
    I("s_add_u32 s12, s%d, s5" % ptr(D_WS))
    I("s_addc_u32 s13, s%d, 0" % (ptr(D_WS) + 1))
    I("s_mov_b32 s5, 0")
    I("s_mov_b32 s6, 0")
    I("s_atomic_add s5, s[12:13], 0x0 glc")
    I("s_atomic_add s6, s[12:13], 0x2000 glc")
    I("s_mov_b32 s24, -1")
    I("s_mov_b32 s25, -1")
    I("s_waitcnt lgkmcnt(0)")
    for pol in (0, 1, 1, 0)[:E("CALR", 2)]:
        I("s_mov_b32 s5, 0")
        I("s_memtime s[20:21]")
        I("s_waitcnt lgkmcnt(0)")
        I("s_atomic_add s5, s[12:13], 0x%x glc" % (pol * 8192))
        I("s_waitcnt lgkmcnt(0)")
        I("s_memtime s[22:23]")
        I("s_waitcnt lgkmcnt(0)")
        I("s_sub_u32 s22, s22, s20")
        I("s_min_u32 s%d, s%d, s22" % (24 + pol, 24 + pol))
    I("s_cmp_gt_u32 s25, s24")
    I("s_cselect_b32 s7, 0x10001, 1")
    a.L(lw)
    a.L(lab)
    I("v_lshlrev_b32 v2, 2, v0")
    I("s_waitcnt vmcnt(0)")
    I("ds_write_b32 v2, v12 offset:%d" % chain.L_ROLE)
    I("s_waitcnt lgkmcnt(0)")
    I("s_barrier")
    I("v_mov_b32 v2, 0")
    I("ds_read_b32 v4, v2 offset:%d" % chain.L_ROLE)
    lab = a.uid("L_nosig")
    I("s_waitcnt lgkmcnt(0)")
    I("v_readfirstlane_b32 s17, v4")
    I("s_cmp_lg_u32 s18, 1")
    I("s_cbranch_scc1 %s" % lab)
    I("s_atomic_add s7, s[%d:%d], 0x%x" % (ptr(D_DBG), ptr(D_DBG) + 1, DB_INIT))
    a.L(lab)


def init(a):
    I = a.I
    role_ticket(a)
    a.srd(8, ptr(D_WS), XCH, XCH_BYTES)
    I("s_lshl_b32 s3, s2, 13")
    I("v_lshlrev_b32 v1, 4, v0")
    for i in range(4):
        I("v_mov_b32 v%d, 0x%x" % (4 + i, SENT))
    for i in range(2):
        I("buffer_store_dwordx4 v[4:7], v1, s[8:11], s3 offen sc1")
        I("s_add_u32 s3, s3, 4096")
    a.srd(8, ptr(D_WS), WS_P, 70 * MB)
    I("s_add_u32 s4, s8, 0x1fffff")
    I("s_and_b32 s4, s4, 0xffe00000")
    I("s_sub_u32 s4, s4, s8")
    if 'nowork' in chain.ABL:
        I("s_lshl_b32 s3, s2, 14")
        I("s_add_u32 s3, s3, s4")
        for k in range(16):
            for i in range(4):
                I("buffer_store_dwordx4 v[4:7], v1, s[8:11], s3 offen sc1")
                I("s_add_u32 s3, s3, 4096")
            I("s_add_u32 s3, s3, 0x%x" % (4 * MB - 16384))
    if 'warmkv' in chain.ABL:
        a.srd(8, ptr(D_WS), 0, 66 * MB)
        I("s_mul_i32 s3, s2, 66 * 4096")
        for i in range(4):
            I("v_mov_b32 v%d, 0" % (4 + i))
        for i in range(66):
            I("buffer_store_dwordx4 v[4:7], v1, s[8:11], s3 offen sc1")
            I("s_add_u32 s3, s3, 4096")
    a.srd(8, ptr(D_WS), WS_CNT, CNT_BYTES)
    I("s_lshl_b32 s3, s2, 12")
    for i in range(4):
        I("v_mov_b32 v%d, 0" % (8 + i))
    I("buffer_store_dwordx4 v[8:11], v1, s[8:11], s3 offen sc1")
    role_assign(a)


def kernel_chain(a, name):
    I = a.I
    a.raw(".globl %s\n.p2align 8\n.type %s,@function" % (name, name))
    a.L(name)
    I("s_cmp_ge_u32 s2, 256")
    I("s_cbranch_scc1 %s_end" % name)
    load_ptrs(a)
    tl_probe(a, 8)
    init(a)
    tl_probe(a, 23)
    I("s_cmp_ge_u32 s17, 32")
    I("s_cbranch_scc1 %s_end" % name)
    I("s_cmp_ge_u32 s16, 4")
    I("s_cbranch_scc1 %s_worker" % name)
    chain.HOOK['done'] = lambda: tl_probe(a, 9)
    chain.HOOK['loopstart'] = lambda: tl_probe(a, 11)
    chain.HOOK['weights'] = lambda: tl_probe(a, 16)
    chain.chain_main(a, name)
    a.L("%s_worker" % name)
    if 'nowork' not in chain.ABL:
        worker(a, name)

    a.L("%s_wend" % name)
    tl_probe(a, 10)
    a.L("%s_end" % name)
    I("s_endpgm")


def worker(a, name):
    I = a.I
    rm = os.environ.get("ROLEMAP", "0123")
    I("s_sub_u32 s%d, s16, 4" % S_XW)
    I("s_lshl_b32 s%d, s%d, 2" % (S_XW, S_XW))
    I("s_lshr_b32 s%d, 0x%s, s%d" % (S_XW, rm[::-1], S_XW))
    I("s_and_b32 s%d, s%d, 3" % (S_XW, S_XW))
    I("s_mov_b32 s%d, s17" % S_RK)
    I("s_mov_b32 s%d, s18" % S_WV)
    work.worker(a, name + "_wend", chain.block_bases, lambda i, tid=0: tl_probe(a, i, 5, tid), None)


def build():
    a = Asm()
    launches = [("chain_kernel", 256, 256, 163840)]
    out = HEADER
    for k, g, b, l in launches:
        out += "; @launch kernel=%s grid=(%d,1,1) block=(%d,1,1) lds=%d\n" % (k, g, b, l)
    if os.environ.get("CFG"):
        out += "; cfg:%s\n" % os.environ["CFG"]
    out += '.amdgcn_target "amdgcn-amd-amdhsa--gfx950"\n.text\n'
    kernel_chain(a, "chain_kernel")
    out += a.text()
    out += kernel_desc("chain_kernel")
    return out


if __name__ == "__main__":
    dst = sys.argv[1] if len(sys.argv) > 1 else "/code/%s.s" % NAME
    open(dst, "w").write(build())
    print("wrote", dst)
```

```python
from asmlib import *
from layout import *
import os

E = lambda k, d: int(os.environ.get(k, str(d)))
EMU = E("EMU", 0)
NREP = E("NREPL", 2)
KRE = E("KRE", 2)
NSC = E("NSC", 2)
D_A, D_E = E("D_A", 24), E("D_E", 24)
PACE = E("PACE", 12)
D_C, G_C = E("D_C", 12), E("G_C", 30)
D_G, G_G = E("D_G", 66), E("G_G", 60)
STAMP = E("STAMP", 0)
DUP = E("DUP", 0)
H_A = E("H_A", -1)
B3P = E("B3P", 0)
H_E = E("H_E", 20)
PXB = E("PXB", 1)
VROT, OROT = E("VROT", 2), E("OROT", 8)
KVW = E("KVW", 0)
PUBW = E("PUBW", 1)
PRIO = E("PRIO", 3)

S_WS = 8
S_TMPSRD = 12
S_X, S_J, S_W, S_STEP = 16, 17, 18, 19
S_T0, S_T1, S_T2, S_T3 = 20, 21, 22, 23
S_M8 = 24
S_M8H = 26
S_MM = 28
S_ROT = 30
S_KV = 31
S_SPIN = 33
S_SENT = 34
S_PXB = 35
S_BMEM = 36
S_BSX = 37
S_MEMC, S_MEMN, S_SX, S_OX, S_PX = 38, 39, 40, 41, 42
S_LKV = 43
S_C = 44
S_SCL = 46
S_L32 = 48
S_L16 = 50
S_PXB2 = 52
S_ONE = 53
S_SLOW = 32
S_CKV = 54
S_ST = 64
S_ACC = 84

V_LIN = 1
V_XLD = 2
V_IDX = 6
V_CHK = 7
V_MEMST, V_SXST, V_SXM, V_OXST, V_PXST = 8, 9, 10, 11, 12
V_SXLD = 13
V_SXLM = 16
V_PXLD = 17
V_TW = 20
V_RVW, V_RVR = 21, 22
V_KFR, V_VTR = 25, 26
V_KLD, V_VTLD = 27, 29
V_KMST, V_VMST, V_VMW = 30, 31, 32
V_OXPO = 28
V_M0LD = 33
V_SMP = 34
V_SENT = 36
V_SEL = 40
V_ONE = 44
V_M = 48
V_ACC = 64
V_OA = 88
V_TA = 96
V_TD = 104
V_QK = 112
V_KX = 116
V_S0, V_S1, V_SM = 124, 128, 132
V_VT = 136
V_VM = 144
V_T = 148
V_TM = 152
V_X = 153
V_PB = 160
V_PM = 164
V_O = 168
V_SUM = 176
V_OB = 180
V_R = 168
V_L = 200
V_PT = 248
V_SEL2 = 252

L_T = 0
L_RV = 8192
L_RO = 16384
L_KV = 24576
L_KM = 32768
L_VM = 33792
L_ROLE = 0
L_STAGE = 32768

SPIN_LIMIT = 1 << 20
ABL = os.environ.get('ABL', '')
ABORT = [None]
COLD = []
COLD2 = []
HOOK = {}
W = "s[%d:%d]" % (S_WS, S_WS + 3)


def a_qkv(M, t, b):
    return ((M * 2 + t) * 4 + b) * 8


def a_wo(ct, b):
    return 192 + (ct * 4 + b) * 8


def acc(M, t):
    return V_ACC + (16 + 4 * t if M == 2 else 8 * t + 4 * M)


def vr4(r):
    return "v[%d:%d]" % (r, r + 3)


def vr2(r):
    return "v[%d:%d]" % (r, r + 1)


def nops(a, n):
    while n > 0:
        k = min(n, 16)
        a.I("s_nop %d" % (k - 1))
        n -= k


def exec_(a, m):
    a.I("s_mov_b64 exec, -1" if m is None else "s_mov_b64 exec, s[%d:%d]" % (m, m + 1))


def pk(a, d, x, y, op="add"):
    a.I("v_pk_%s_f32 %s, %s, %s" % (op, vr2(d), vr2(x), vr2(y)))


def spin(out, back=None):
    out.append("    s_add_u32 s%d, s%d, 1" % (S_SPIN, S_SPIN))
    out.append("    s_cmp_gt_u32 s%d, 0x%x" % (S_SPIN, SPIN_LIMIT))
    if back:
        out.append("    s_cbranch_scc0 %s" % back)
        out.append("    s_branch %s" % ABORT[0])
    else:
        out.append("    s_cbranch_scc1 %s" % ABORT[0])


def stamp(a, i):
    if STAMP == 1:
        a.I("s_memtime s[%d:%d]" % (S_ST + 2 * i, S_ST + 2 * i + 1))


def gather(a, soff, consume, tag, fill=()):
    I = a.I
    fill = list(fill)
    ld = lambda i: "buffer_load_dwordx4 %s, v%d, %s, s%d offen sc1" % (vr4(V_M + 4 * i), V_XLD + i, W, soff)
    first = [0, 1, 2, 3] + [0] * DUP
    for k, i in enumerate(first):
        I(ld(i))
        if k < len(first) - 1:
            n = PACE
            while fill and n > 0:
                I(fill.pop(0))
                n -= 1
            nops(a, n)
    for l in fill:
        I(l)
    chk = lambda i: ["v_max3_u32 v%d, v%d, v%d, v%d" % (V_CHK, V_M + 4 * i, V_M + 4 * i + 1, V_M + 4 * i + 2),
                     "v_max_u32 v%d, v%d, v%d" % (V_CHK, V_CHK, V_M + 4 * i + 3),
                     "v_cmp_eq_u32 vcc, s%d, v%d" % (S_SENT, V_CHK)]
    done = a.uid("L_gd_" + tag)
    labels, todo, emitted = {}, [], set()

    def lab(key):
        if key not in labels:
            labels[key] = a.uid("L_q_" + tag)
            todo.append(key)
        return labels[key]

    def failed(c, fl, rem, seen):
        again = c in seen
        t = lab(('p', tuple(sorted(rem)))) if again else lab(('x', c, fl, rem, seen | {c}))
        if STAMP == 3 and not again:
            u = a.uid("L_cnt")
            r = S_ACC + (1 if tag == 'a' else 2)
            COLD2.extend([u + ":", "    s_add_u32 s%d, s%d, 0x%x" % (r, r, 1 << (8 * c)), "    s_branch %s" % t])
            return u
        return t

    def valid(out, c, fl, rem, seen, hot):
        while True:
            key = ('v', c, fl, rem, seen & rem)
            if key in emitted:
                out.append("    s_branch %s" % labels[key])
                return
            emitted.add(key)
            labels[key] = a.uid("L_v_" + tag)
            out.append(labels[key] + ":")
            m = consume(c)
            if not rem:
                out.extend("    " + l for l in m)
                if not hot:
                    out.append("    s_branch %s" % done)
                return
            k = next(x for x in range(len(fl)) if fl[x] in rem)
            n, q = fl[k], chk(fl[k])
            w = "s_waitcnt vmcnt(%d)" % (len(fl) - 1 - k)
            seq = [m[0], w, q[0], q[1], m[1], q[2]] + m[2:] if len(m) > 2 else [m[0], w] + q + [m[1]]
            out.extend("    " + l for l in seq)
            out.append("    s_cbranch_vccnz %s" % failed(n, fl[k + 1:], rem, seen))
            c, fl, rem, seen = n, fl[k + 1:], rem - {n}, seen | {n}
    fl, rem = tuple(first[1:]), frozenset(range(4))
    I("s_waitcnt vmcnt(%d)" % len(fl))
    for l in chk(0):
        I(l)
    I("s_cbranch_vccnz %s" % failed(0, fl, rem, frozenset()))
    valid(a.lines, 0, fl, rem - {0}, frozenset({0}), True)
    a.L(done)
    C = lambda l: COLD.append("    " + l)
    while todo:
        key = todo.pop()
        COLD.append("%s:" % labels[key])
        if key[0] == 'x':
            _, c, fl, rem, seen = key
            if c not in fl:
                C(ld(c))
                fl += (c,)
            k = next(x for x in range(len(fl)) if fl[x] in rem)
            n = fl[k]
            if DUP and n not in seen and n not in fl[k + 1:] and n < 2:
                C(ld(n))
                fl += (n,)
            C("s_waitcnt vmcnt(%d)" % (len(fl) - 1 - k))
            for l in chk(n):
                C(l)
            C("s_cbranch_vccnz %s" % failed(n, fl[k + 1:], rem, seen))
            valid(COLD, n, fl[k + 1:], rem - {n}, seen | {n}, False)
        else:
            P = key[1]
            oks = []
            for k, ci in enumerate(P):
                C(ld(ci))
                C("s_waitcnt vmcnt(%d)" % KRE)
                nx = P[(k + 1) % len(P)]
                for l in chk(nx):
                    C(l)
                ok = a.uid("L_ok_" + tag)
                oks.append((ok, nx))
                C("s_cbranch_vccz %s" % ok)
            spin(COLD, labels[key])
            for ok, ci in oks:
                COLD.append(ok + ":")
                for l in consume(ci):
                    C(l)
                rest = tuple(x for x in P if x != ci)
                C("s_branch %s" % (lab(('p', rest)) if rest else done))


def rot_poll(a, nset, loads, summ, regs, ok, first_reissue, extra=0):
    C = lambda l: COLD.append("    " + l)
    nl = len(loads(0))
    if not first_reissue:
        for r in range(1, nset):
            c = []
            summ(c, r, nl * (nset - 1 - r) + extra)
            for l in c:
                C(l)
            C("s_cbranch_vccz %s" % ok)
        if STAMP == 3:
            C("s_add_u32 s%d, s%d, 0x100" % (S_ACC + 4, S_ACC + 4))
        for r in range(1, nset):
            for l in loads(r):
                C(l)
            C("s_nop 11")
    rt = a.uid("L_rt")
    COLD.append(rt + ":")
    for k in range(nset):
        r = (k + 1) % nset
        for l in loads(k):
            C(l)
        c = []
        summ(c, r, nl * (nset - 1))
        for l in c:
            C(l)
        C("s_cbranch_vccz %s" % ok)
        if STAMP == 3:
            C("s_add_u32 s%d, s%d, 0x%x" % ((S_ACC + 3, S_ACC + 3, 0x100) if first_reissue else (S_ACC + 4, S_ACC + 4, 0x10000)))
    spin(COLD)
    C("s_and_b32 s%d, s%d, 63" % (S_T0, S_SPIN))
    C("s_cbranch_scc1 %s" % rt)
    regs = list(regs)
    C("v_cmp_eq_u32 vcc, s%d, v%d" % (S_SENT, regs[0]))
    for r in regs[1:]:
        C("v_cmp_eq_u32 s[%d:%d], s%d, v%d" % (S_T0, S_T1, S_SENT, r))
        C("s_or_b64 vcc, vcc, s[%d:%d]" % (S_T0, S_T1))
    C("s_cbranch_vccnz %s" % rt)
    C("s_branch %s" % ok)


def block_bases(a, s_init, s_even, s_odd, tmp):
    I = a.I
    I("s_lshr_b32 s%d, s%d, 16" % (tmp, s_init))
    I("s_cmp_gt_u32 s%d, 16" % tmp)
    I("s_cselect_b32 s%d, 0x%x, 0x%x" % ((tmp, 0, 0x2000) if 'polx' in ABL else (tmp, 0x2000, 0)))
    I("s_add_u32 s%d, s%d, 0x1fffff" % (s_even, ptr(D_WS)))
    I("s_and_b32 s%d, s%d, 0xffe00000" % (s_even, s_even))
    I("s_sub_u32 s%d, s%d, s%d" % (s_odd, s_even, ptr(D_WS)))
    I("s_add_u32 s%d, s%d, s%d" % (s_even, s_odd, tmp))
    I("s_xor_b32 s%d, s%d, 0x2000" % (tmp, tmp))
    I("s_add_u32 s%d, s%d, s%d" % (s_odd, s_odd, tmp))


def prologue_addrs(a):
    I = a.I
    a.C("---- chain address registers")
    for s, lo, hi in ((S_M8, 0x00ff00ff, 0x00ff00ff), (S_M8H, 0xff00ff00, 0xff00ff00), (S_MM, 0, 0x00ff00ff),
                      (S_L32, 0xffffffff, 0), (S_L16, 0xffff, 0)):
        I("s_mov_b32 s%d, 0x%x" % (s, lo))
        I("s_mov_b32 s%d, 0x%x" % (s + 1, hi))
    c = 0x3fb8aa3b if EMU else 0x3e0293ee
    I("s_mov_b32 s%d, 0x%x" % (S_C, c))
    I("s_mov_b32 s%d, 0x%x" % (S_C + 1, c))
    I("s_mov_b32 s%d, 0x3db504f3" % S_SCL)
    I("s_mov_b32 s%d, 0x3db504f3" % (S_SCL + 1))
    I("s_mov_b32 s%d, 0x%x" % (S_SENT, SENT))
    I("s_lshl_b32 s%d, s%d, 14" % (S_BMEM, S_X))
    I("s_add_u32 s%d, s%d, 0x%x" % (S_BMEM, S_BMEM, X_MEM))
    I("s_lshl_b32 s%d, s%d, 16" % (S_BSX, S_X))
    I("s_add_u32 s%d, s%d, 0x%x" % (S_BSX, S_BSX, X_SX))
    for i in range(4):
        I("v_mov_b32 v%d, s%d" % (V_SENT + i, S_SENT))
        I("v_mov_b32 v%d, 0x3f803f80" % (V_ONE + i))
    n, g, l, w, t0, t1, t2 = range(V_PT, V_PT + 7)
    I("v_and_b32 v%d, 63, v0" % l)
    I("v_and_b32 v%d, 15, v0" % n)
    I("v_bfe_u32 v%d, v0, 4, 2" % g)
    I("v_lshrrev_b32 v%d, 6, v0" % w)
    I("v_lshlrev_b32 v%d, 4, v%d" % (V_LIN, l))
    I("s_lshl_b32 s%d, s%d, 10" % (S_T0, S_X))
    I("s_lshl_b32 s%d, s%d, 5" % (S_T1, S_J))
    I("s_add_u32 s%d, s%d, s%d" % (S_T0, S_T0, S_T1))
    I("s_and_b32 s%d, s%d, 3" % (S_ROT, S_J))
    I("v_lshl_add_u32 v%d, v%d, 12, v%d" % (t0, w, V_LIN))
    for i in range(4):
        I("s_add_u32 s%d, s%d, %d" % (S_T1, S_ROT, i))
        I("s_and_b32 s%d, s%d, 3" % (S_T1, S_T1))
        I("s_lshl_b32 s%d, s%d, 10" % (S_T1, S_T1))
        I("v_add_u32 v%d, s%d, v%d" % (V_XLD + i, S_T1, t0))
    I("v_mov_b32 v%d, 0x44444444" % V_IDX)
    I("v_mov_b32 v%d, 0xeeeeeeee" % t0)
    I("v_cndmask_b32 v%d, v%d, v%d, s[%d:%d]" % (V_IDX, V_IDX, t0, S_M8H, S_M8H + 1))
    I("v_bfe_u32 v%d, v%d, 1, 3" % (t0, l))
    I("v_and_b32 v%d, 1, v%d" % (t1, l))
    I("v_lshlrev_b32 v%d, 11, v%d" % (V_M0LD, t0))
    I("v_lshl_add_u32 v%d, v%d, 3, v%d" % (V_M0LD, t1, V_M0LD))
    I("v_lshl_add_u32 v%d, v%d, 4, v%d" % (V_M0LD, g, V_M0LD))
    I("s_xor_b32 s%d, s%d, %d" % (S_T2, S_J, OROT))
    I("s_lshl_b32 s%d, s%d, 6" % (S_T1, S_T2))
    I("v_add_u32 v%d, s%d, v%d" % (V_M0LD, S_T1, V_M0LD))
    I("v_lshlrev_b32 v%d, 3, v%d" % (V_MEMST, l))
    I("s_xor_b32 s%d, s%d, %d" % (S_T1, S_J, VROT))
    I("s_lshl_b32 s%d, s%d, 9" % (S_T1, S_T1))
    I("v_add_u32 v%d, s%d, v%d" % (V_OXPO, S_T1, V_MEMST))
    I("s_lshl_b32 s%d, s%d, 9" % (S_T2, S_T2))
    I("v_add_u32 v%d, s%d, v%d" % (V_MEMST, S_T2, V_MEMST))
    I("v_lshlrev_b32 v%d, 4, v%d" % (V_OXST, n))
    I("v_lshl_add_u32 v%d, v%d, 7, v%d" % (V_OXST, g, V_OXST))
    I("v_add_u32 v%d, s%d, v%d" % (V_OXST, S_T1, V_OXST))
    I("s_lshr_b32 s%d, s%d, 2" % (S_T2, S_J))
    I("s_lshl_b32 s%d, s%d, 13" % (S_T2, S_T2))
    for k in range(4):
        I("s_add_u32 s%d, s%d, %d" % (S_T1, S_J, k))
        I("s_and_b32 s%d, s%d, 3" % (S_T1, S_T1))
        I("s_lshl_b32 s%d, s%d, 10" % (S_T1, S_T1))
        I("s_add_u32 s%d, s%d, s%d" % (S_T1, S_T1, S_T2))
        I("v_add_u32 v%d, s%d, v%d" % (V_SXST if k == 0 else V_SXLD + k - 1, S_T1, V_LIN))
    I("s_add_u32 s%d, s%d, 4096" % (S_T2, S_T2))
    I("v_add_u32 v%d, s%d, v%d" % (V_SXLM, S_T2, V_LIN))
    I("s_and_b32 s%d, s%d, 3" % (S_T1, S_J))
    I("s_lshl_b32 s%d, s%d, 8" % (S_T1, S_T1))
    I("s_add_u32 s%d, s%d, s%d" % (S_T1, S_T1, S_T2))
    I("v_and_b32 v%d, 1, v%d" % (t1, g))
    I("v_lshlrev_b32 v%d, 4, v%d" % (V_SXM, n))
    I("v_lshl_add_u32 v%d, v%d, 7, v%d" % (V_SXM, t1, V_SXM))
    I("v_add_u32 v%d, s%d, v%d" % (V_SXM, S_T1, V_SXM))
    I("v_lshl_add_u32 v%d, v%d, 11, v%d" % (V_TW, w, V_LIN))
    I("v_lshrrev_b32 v%d, 1, v%d" % (t0, g))
    I("v_lshl_add_u32 v%d, v%d, 1, v%d" % (t0, w, t0))
    I("v_lshlrev_b32 v%d, 10, v%d" % (V_RVW, t0))
    I("v_lshl_add_u32 v%d, v%d, 5, v%d" % (V_RVW, n, V_RVW))
    I("v_lshl_add_u32 v%d, v%d, 4, v%d" % (V_RVW, t1, V_RVW))
    I("v_add_u32 v%d, %d, v%d" % (V_RVW, L_RV, V_RVW))
    I("v_lshlrev_b32 v%d, 5, v%d" % (V_RVR, n))
    I("v_lshl_add_u32 v%d, v%d, 3, v%d" % (V_RVR, g, V_RVR))
    I("v_add_u32 v%d, %d, v%d" % (V_RVR, L_RV, V_RVR))
    I("v_lshrrev_b32 v%d, 2, v%d" % (t1, n))
    I("v_and_b32 v%d, 3, v%d" % (t0, n))
    I("v_lshl_add_u32 v%d, v%d, 3, v%d" % (t1, t1, t0))
    I("v_add_u32 v%d, %d, v%d" % (V_KFR, L_KV, V_LIN))
    I("v_add_u32 v%d, %d, v%d" % (V_VTR, L_KV + 2048, V_LIN))
    I("v_lshlrev_b32 v%d, 4, v%d" % (V_VMW, t1))
    I("v_lshl_add_u32 v%d, v%d, 9, v%d" % (V_VTLD, g, V_VMW))
    I("v_lshl_add_u32 v%d, v%d, 2, v%d" % (V_VMW, g, V_VMW))
    I("v_add_u32 v%d, %d, v%d" % (V_VMW, L_VM, V_VMW))
    for xo in range(4):
        I("s_add_u32 s%d, s%d, %d" % (S_T1, S_X, xo))
        I("s_and_b32 s%d, s%d, 3" % (S_T1, S_T1))
        I("s_lshl_b32 s%d, s%d, 18" % (S_T1, S_T1))
        I("s_lshr_b32 s%d, s%d, 1" % (S_T2, S_J))
        I("s_lshl_b32 s%d, s%d, 14" % (S_T2, S_T2))
        I("s_add_u32 s%d, s%d, s%d" % (S_T1, S_T1, S_T2))
        I("s_and_b32 s%d, s%d, 1" % (S_T2, S_J))
        I("s_lshl_b32 s%d, s%d, 12" % (S_T2, S_T2))
        I("s_add_u32 s%d, s%d, s%d" % (S_T3 if xo == 0 else S_T1, S_T1, S_T2))
        I("v_lshl_add_u32 v%d, v%d, %d, s%d" % (V_PXST if xo == 0 else V_PXLD + xo - 1, l, 3 if PXB else 4, S_T3 if xo == 0 else S_T1))
    I("s_xor_b32 s%d, s%d, 0x%x" % (S_T1, S_T3, VROT << 13))
    I("v_add_u32 v%d, s%d, v%d" % (V_VTLD, S_T1, V_VTLD))
    I("v_add_u32 v%d, s%d, v%d" % (V_VMST, S_T1, V_LIN))
    I("v_and_b32 v%d, 8, v%d" % (t1, n))
    I("v_add_u32 v%d, v%d, v%d" % (t1, t1, n))
    I("v_lshlrev_b32 v%d, 4, v%d" % (V_KLD, t1))
    I("v_lshl_add_u32 v%d, v%d, 9, v%d" % (V_KLD, g, V_KLD))
    I("v_add_u32 v%d, s%d, v%d" % (V_KLD, S_T3, V_KLD))
    I("v_bfe_u32 v%d, v%d, 2, 1" % (t1, n))
    I("v_lshl_add_u32 v%d, v%d, 1, v%d" % (t0, t0, t1))
    I("v_cndmask_b32 v%d, v%d, v%d, s[%d:%d]" % (t0, n, t0, S_M8H, S_M8H + 1))
    I("v_lshlrev_b32 v%d, 4, v%d" % (V_KMST, t0))
    I("v_lshl_add_u32 v%d, v%d, 7, v%d" % (V_KMST, g, V_KMST))
    I("v_add_u32 v%d, s%d, v%d" % (V_KMST, S_T3, V_KMST))
    I("v_and_b32 v%d, 1, v%d" % (t1, t0))
    I("v_lshlrev_b32 v%d, 4, v%d" % (t1, t1))
    I("v_mov_b32 v%d, 0x3f80" % t2)
    I("v_lshlrev_b32 v%d, v%d, v%d" % (t2, t1, t2))
    I("v_lshrrev_b32 v%d, 2, v%d" % (t1, t0))
    I("v_xor_b32 v%d, v%d, v%d" % (t1, t1, g))
    I("v_and_b32 v%d, 1, v%d" % (t1, t1))
    I("v_bfe_u32 v%d, v%d, 1, 1" % (t0, t0))
    I("v_lshl_add_u32 v%d, v%d, 2, v%d" % (t0, t1, t0))
    I("v_lshrrev_b32 v%d, 3, v%d" % (t1, n))
    I("v_lshl_add_u32 v%d, v%d, 1, v%d" % (t0, t1, t0))
    for r in range(4):
        I("v_cmp_eq_u32 vcc, %d, v%d" % (r, t0))
        I("s_nop 1")
        I("v_cndmask_b32 v%d, 0, v%d, vcc" % (V_SEL + r, t2))


def load_weights(a):
    I = a.I
    a.C("---- load weights")
    t0, t1, va, vg, vg2 = V_PT, V_PT + 1, V_PT + 2, V_PT + 3, V_PT + 4
    vq, vo, vw = 240, 242, 244
    I("v_bfe_u32 v%d, v0, 4, 2" % t0)
    I("v_lshlrev_b32 v%d, 1, v%d" % (va, t0))
    I("v_bfe_u32 v%d, v0, 2, 1" % t0)
    I("v_add_u32 v%d, v%d, v%d" % (va, va, t0))
    I("v_bfe_u32 v%d, v0, 3, 1" % t0)
    I("v_lshl_add_u32 v%d, v%d, 3, v%d" % (va, t0, va))
    I("v_lshrrev_b32 v%d, 6, v0" % t0)
    I("v_lshl_add_u32 v%d, v%d, 8, v%d" % (va, t0, va))
    I("v_and_b32 v%d, 3, v0" % t1)
    I("v_lshlrev_b32 v%d, 13, v%d" % (vg, va))
    I("v_lshl_add_u32 v%d, v%d, 4, v%d" % (vg, t1, vg))
    I("s_lshl_b32 s%d, s%d, 1" % (S_T1, S_T0))
    I("v_add_u32 v%d, s%d, v%d" % (vg, S_T1, vg))
    I("s_lshl_b32 s%d, s%d, 10" % (S_T1, S_X))
    I("v_add_u32 v%d, s%d, v%d" % (vg2, S_T1, va))
    I("v_lshlrev_b32 v%d, 11, v%d" % (vg2, vg2))
    I("v_lshl_add_u32 v%d, v%d, 4, v%d" % (vg2, t1, vg2))
    I("s_xor_b32 s%d, s%d, %d" % (S_T1, S_J, OROT))
    I("s_lshl_b32 s%d, s%d, 6" % (S_T1, S_T1))
    I("v_add_u32 v%d, s%d, v%d" % (vg2, S_T1, vg2))
    I("v_bfe_u32 v%d, v0, 4, 2" % t0)
    I("v_lshlrev_b32 v%d, 3, v%d" % (t0, t0))
    I("v_bfe_u32 v%d, v0, 2, 2" % vo)
    I("v_add_u32 v%d, v%d, v%d" % (t0, t0, vo))
    I("v_lshlrev_b32 v%d, 6, v%d" % (vo, t0))
    I("v_lshrrev_b32 v%d, 6, v0" % t0)
    I("v_lshl_add_u32 v%d, v%d, 14, v%d" % (vo, t0, vo))
    I("v_lshl_add_u32 v%d, v%d, 3, v%d" % (vq, t1, vo))
    I("v_and_b32 v%d, 2, v%d" % (vq + 1, t1))
    I("v_lshl_add_u32 v%d, v%d, 3, v%d" % (vq, vq + 1, vq))
    I("v_lshl_add_u32 v%d, v%d, 4, v%d" % (vo, t1, vo))
    I("v_add_u32 v%d, 0x10000, v%d" % (vq + 1, vq))
    I("v_add_u32 v%d, 0x10000, v%d" % (vo + 1, vo))
    I("v_lshl_add_u32 v%d, v%d, 14, v%d" % (vw, t0, V_LIN))
    I("v_add_u32 v%d, 0x10000, v%d" % (vw + 1, vw))
    I("s_lshl_b32 s%d, s%d, 14" % (S_T2, S_W))
    I("s_add_u32 s%d, s%d, %d" % (S_T2, S_T2, L_STAGE))

    nt = lambda src: " nt" if E("NTC", 0) >> (src - B_WQ) & 1 else ""

    TH = E("THR", 0)
    I("s_and_b32 s%d, s%d, 14" % (S_T3, S_J))
    I("s_cmp_eq_u32 s%d, 6" % S_T3)
    I("s_cselect_b64 vcc, 0, -1")

    def throttle():
        if TH:
            lab = a.uid("L_th")
            I("s_cbranch_vccz %s" % lab)
            I("s_waitcnt vmcnt(%d)" % TH)
            a.L(lab)

    def soff(i, stride):
        throttle()
        I("s_add_u32 s%d, s%d, %d" % (S_T3, S_ROT, i >> 2))
        I("s_and_b32 s%d, s%d, 3" % (S_T3, S_T3))
        I("s_lshl_b32 s%d, s%d, 2" % (S_T3, S_T3))
        I("s_add_u32 s%d, s%d, %d" % (S_T3, S_T3, i & 3))
        I("s_mul_i32 s%d, s%d, %d" % (S_T3, S_T3, 16 * stride))

    def issue(src, half, vaddr, stride):
        a.srd(S_TMPSRD, ptr(src), 0, 8 * MB)
        for i in range(16):
            I("s_add_u32 m0, s%d, %d" % (S_T2, half * 65536 + i * 1024))
            soff(i, stride)
            I("buffer_load_dwordx4 v%d, s[%d:%d], s%d offen%s lds" % (vaddr, S_TMPSRD, S_TMPSRD + 3, S_T3, nt(src)))

    def issue_reg(src, vbase, vaddr, stride):
        a.srd(S_TMPSRD, ptr(src), 0, 8 * MB)
        for i in range(16):
            soff(i, stride)
            I("buffer_load_dwordx4 %s, v%d, s[%d:%d], s%d offen%s" % (vr4(vbase + 4 * i), vaddr, S_TMPSRD, S_TMPSRD + 3, S_T3, nt(src)))

    def reg_to_lds(vbase, half):
        for i in range(16):
            I("ds_write_b128 v%d, %s offset:%d" % (vw + half, vr4(vbase + 4 * i), L_STAGE + i * 1024))
        I("s_waitcnt lgkmcnt(0)")

    def reads(areg, half, va_, tstep):
        for b in range(4):
            for t in range(2):
                d = areg(t, b)
                for u, o in enumerate((0, 256, 2048, 2304)):
                    off = L_STAGE + b * 4096 + o + t * tstep
                    I("ds_read_b64_tr_b16 a[%d:%d], v%d offset:%d" % (d + 2 * u, d + 2 * u + 1, va_ + half, off))
            I("s_waitcnt lgkmcnt(0)")
    RV_, RO_ = 112, 48
    vgv = V_PT + 5
    I("v_xor_b32 v%d, %d, v%d" % (vgv, 64 * VROT, vg))
    M = {'q': (B_WQ, vg, 8192, lambda t, b: a_qkv(0, t, b), vq, 16), 'k': (B_WK, vg, 8192, lambda t, b: a_qkv(1, t, b), vq, 16),
         'v': (B_WV, vgv, 8192, lambda t, b: a_qkv(2, t, b), vo, 8), 'o': (B_WO, vg2, 2048, a_wo, vo, 8)}
    def order(word):
        m = [M[c] for c in word]
        issue(m[0][0], 0, m[0][1], m[0][2])
        issue(m[1][0], 1, m[1][1], m[1][2])
        issue_reg(m[2][0], RV_, m[2][1], m[2][2])
        I("s_waitcnt vmcnt(32)")
        issue_reg(m[3][0], RO_, m[3][1], m[3][2])
        reads(m[0][3], 0, *m[0][4:])
        I("s_waitcnt vmcnt(32)")
        reads(m[1][3], 1, *m[1][4:])
        I("s_waitcnt vmcnt(16)")
        reg_to_lds(RV_, 0)
        reads(m[2][3], 0, *m[2][4:])
        I("s_waitcnt vmcnt(0)")
        reg_to_lds(RO_, 1)
        reads(m[3][3], 1, *m[3][4:])
    w1, w2 = os.environ.get("WORD", "kvqo"), os.environ.get("WORD2", "kvqo")
    if w1 == w2:
        order(w1)
    else:
        l2, le = a.uid("L_wo2"), a.uid("L_woe")
        I("s_cbranch_vccz %s" % l2)
        order(w1)
        I("s_branch %s" % le)
        a.L(l2)
        order(w2)
        a.L(le)
    t2 = V_PT + 2
    I("v_bfe_u32 v%d, v0, 1, 1" % t1)
    I("v_lshlrev_b32 v%d, 4, v%d" % (t1, t1))
    I("v_mov_b32 v%d, 0x3f80" % t2)
    I("v_lshlrev_b32 v%d, v%d, v%d" % (t2, t1, t2))
    I("v_bfe_u32 v%d, v0, 3, 1" % t0)
    I("v_bfe_u32 v%d, v0, 4, 1" % t1)
    I("v_xor_b32 v%d, v%d, v%d" % (t1, t1, t0))
    I("v_bfe_u32 v%d, v0, 2, 1" % t0)
    I("v_lshl_add_u32 v%d, v%d, 2, v%d" % (t0, t1, t0))
    I("v_and_b32 v%d, 1, v0" % t1)
    I("v_lshl_add_u32 v%d, v%d, 1, v%d" % (t0, t1, t0))
    for r in range(4):
        I("v_cmp_eq_u32 vcc, %d, v%d" % (r, t0))
        I("s_nop 1")
        I("v_cndmask_b32 v%d, 0, v%d, vcc" % (V_SEL2 + r, t2))
    for i in range(24):
        I("v_mov_b32 v%d, 0" % (V_ACC + i))
    for r in (V_VM + 1, V_VM + 3, V_PM + 1):
        I("v_mov_b32 v%d, 0" % r)


def kv_prefetch(a, parts=(0, 1, 2, 3)):
    I = a.I
    for i, (va, off) in enumerate(((V_KLD, 0), (V_KLD, 128), (V_VTLD, 2048), (V_VTLD, 2048 + 64))):
        if i not in parts:
            continue
        I("s_add_u32 m0, s%d, %d" % (S_LKV, i * 1024 - off))
        I("s_nop 0")
        I("buffer_load_dwordx4 v%d, %s, s%d offen offset:%d lds" % (va, W, S_KV, off))
    I("s_xor_b32 s%d, s%d, 4096" % (S_LKV, S_LKV))


def cnt_wait(a, kind, s_seg=None):
    I = a.I
    if 'nowork' in ABL and kind != 'init':
        return
    rt, ok = a.uid("L_dw"), a.uid("L_dwok")
    if kind != 'init':
        I("s_lshl_b32 s%d, s%d, 7" % (S_T1, s_seg))
    if kind == 'kv':
        I("s_add_u32 s%d, s%d, 0x%x" % (S_T1, S_T1, C_KV))
    I("v_mov_b32 v%d, 0" % V_SMP)
    a.L(rt)
    if kind == 'init':
        I("buffer_load_dword v%d, v%d, s[%d:%d], 0 offen sc1" % (V_SMP + 1, V_SMP, S_TMPSRD, S_TMPSRD + 3))
    elif kind == 'kv':
        I("buffer_load_dword v%d, v%d, %s, s%d offen sc1" % (V_SMP + 1, V_SMP, W, S_T1))
    else:
        I("s_load_dword s%d, s[%d:%d], s%d glc" % (S_T0, S_CKV, S_CKV + 1, S_T1))
    I("s_add_u32 s%d, s%d, 1" % (S_SPIN, S_SPIN))
    I("s_cmp_gt_u32 s%d, 0x%x" % (S_SPIN, SPIN_LIMIT))
    I("s_waitcnt lgkmcnt(0)" if kind == 'kvs' else "s_waitcnt vmcnt(0)")
    I("s_cbranch_scc1 %s" % ABORT[0])
    if kind != 'kvs':
        I("v_readfirstlane_b32 s%d, v%d" % (S_T0, V_SMP + 1))
    if kind == 'init':
        I("s_and_b32 s%d, s%d, 0xffff" % (S_T2, S_T0))
        I("s_cmp_ge_u32 s%d, 256" % S_T2)
    else:
        I("s_cmp_ge_u32 s%d, 64" % S_T0)
    I("s_cbranch_scc1 %s" % ok)
    I("s_sleep 2")
    I("s_branch %s" % rt)
    a.L(ok)


def publish_kv(a, soff, qk):
    I = a.I
    if qk is None:
        qk = V_R
        I("ds_read_b128 %s, v%d offset:%d" % (vr4(V_R), V_LIN, L_KM))
    I("ds_read_b128 %s, v%d offset:%d" % (vr4(V_R + 4), V_LIN, L_VM))
    exec_(a, S_M8H)
    I("s_waitcnt lgkmcnt(1)")
    I("buffer_store_dwordx4 %s, v%d, %s, s%d offen offset:%d sc1" % (vr4(qk), V_KMST, W, soff, KM_OFF))
    exec_(a, S_L32)
    I("s_waitcnt lgkmcnt(0)")
    I("buffer_store_dwordx4 %s, v%d, %s, s%d offen offset:%d sc1" % (vr4(V_R + 4), V_VMST, W, soff, VM_OFF))
    exec_(a, None)


def slots(step=S_STEP):
    return ["s_and_b32 s%d, s%d, 3" % (S_T0, step),
            "s_lshl_b32 s%d, s%d, 16" % (S_T1, S_T0),
            "s_add_u32 s%d, s%d, s%d" % (S_MEMC, S_BMEM, S_T1),
            "s_add_u32 s%d, s%d, 0x%x" % (S_OX, S_MEMC, X_OX - X_MEM),
            "s_lshl_b32 s%d, s%d, 18" % (S_T1, S_T0),
            "s_add_u32 s%d, s%d, s%d" % (S_SX, S_BSX, S_T1),
            "s_add_u32 s%d, s%d, 0x%x" % (S_PX, S_KV, WS_P - WS_B),
            "s_add_u32 s%d, s%d, 1" % (S_T1, step),
            "s_bitcmp1_b32 s%d, 1" % S_T1,
            "s_cselect_b32 s%d, s%d, s%d" % (S_KV, S_PXB2, S_PXB),
            "s_lshl_b32 s%d, s%d, 20" % (S_T1, S_T1),
            "s_add_u32 s%d, s%d, s%d" % (S_KV, S_KV, S_T1),
            "s_add_u32 s%d, s%d, 1" % (S_T0, S_T0),
            "s_and_b32 s%d, s%d, 3" % (S_T0, S_T0),
            "s_lshl_b32 s%d, s%d, 16" % (S_T0, S_T0),
            "s_add_u32 s%d, s%d, s%d" % (S_MEMN, S_BMEM, S_T0)]


def smf(c, w, b):
    return "v_smfmac_f32_16x16x64_bf16 %s, %s, a[%d:%d], v%d" % (vr4(c), vr4(V_M + 4 * b), w, w + 7, V_IDX)


def mfma32(d, x, y, c=None):
    return "v_mfma_f32_16x16x32_bf16 %s, %s, %s, %s" % (vr4(d), vr4(x), vr4(y), "0" if c is None else vr4(c))


def mfma16(d, x, y):
    return "v_mfma_f32_16x16x16_bf16 %s, %s, %s, 0" % (vr4(d), vr2(x), vr2(y))


def cvt(d, x, y):
    return "v_cvt_pk_bf16_f32 v%d, v%d, v%d" % (d, x, y)


def step_loop(a, name, lsc):
    I = a.I
    loop, done = a.uid("L_step"), name + "_done"
    Lh1, Lb3, Lh2, Lb4, Lfin = (a.uid(x) for x in ("L_help1", "L_bar3", "L_help2", "L_bar4", "L_fin"))
    a.L(loop)
    a.C("==== A: gather the memory, q / k projection partials")
    nops(a, D_A)
    zo = ["v_mov_b32 v%d, 0" % (V_OA + i) for i in range(8)]
    kx = ["ds_read_b128 %s, v%d" % (vr4(V_KX), V_KFR), "ds_read_b128 %s, v%d offset:1024" % (vr4(V_KX + 4), V_KFR),
          "v_xor_b32 v%d, 0x1000, v%d" % (V_KFR, V_KFR)]
    gather(a, S_MEMC, lambda b: [smf(acc(M, t), a_qkv(M, t, b), b) for t in range(2) for M in range(2)], "a", zo + kx)
    stamp(a, 1)
    a.C("---- B: round the partials, transpose them with a selection MFMA (also adds the two K halves)")
    q0, k0, q1, k1 = acc(0, 0), acc(1, 0), acc(0, 1), acc(1, 1)
    I(cvt(V_TA, q0, q0 + 1))
    I(cvt(V_TA + 1, q0 + 2, q0 + 3))
    I(cvt(V_TA + 2, k0, k0 + 1))
    I(cvt(V_TA + 3, k0 + 2, k0 + 3))
    I("s_cmp_lg_u32 s%d, 0" % S_W)
    I(cvt(V_TA + 4, q1, q1 + 1))
    I(mfma32(V_TD, V_TA, V_SEL))
    I(cvt(V_TA + 5, q1 + 2, q1 + 3))
    I(cvt(V_TA + 6, k1, k1 + 1))
    I(cvt(V_TA + 7, k1 + 2, k1 + 3))
    I("s_nop 1")
    I(mfma32(V_TD + 4, V_TA + 4, V_SEL))
    I("s_cbranch_scc0 %s" % (Lh1 + "_w0"))
    I("s_nop 0")
    I("ds_write_b128 v%d, %s" % (V_TW, vr4(V_TD)))
    I("s_nop 4")
    I("ds_write_b128 v%d, %s offset:1024" % (V_TW, vr4(V_TD + 4)))
    I("s_waitcnt lgkmcnt(0)")
    I("s_barrier")
    def local_poison():
        a.C("---- wave 2: poison the exchange slots everybody is done with")
        lpe = a.uid("L_poe")
        I("s_cmp_lg_u32 s%d, 2" % S_W)
        I("s_cbranch_scc1 %s" % lpe)
        I("s_sub_u32 s%d, s%d, 1" % (S_T0, S_STEP))
        I("s_and_b32 s%d, s%d, 3" % (S_T0, S_T0))
        I("s_lshl_b32 s%d, s%d, 16" % (S_T1, S_T0))
        I("s_add_u32 s%d, s%d, s%d" % (S_T1, S_T1, S_BMEM))
        I("s_add_u32 s%d, s%d, 0x%x" % (S_T2, S_T1, X_OX - X_MEM))
        I("s_lshl_b32 s%d, s%d, 18" % (S_T3, S_T0))
        I("s_add_u32 s%d, s%d, s%d" % (S_T3, S_T3, S_BSX))
        I("buffer_store_dwordx2 %s, v%d, %s, s%d offen%s" % (vr2(V_SENT), V_MEMST, W, S_T1, lsc))
        I("buffer_store_dwordx2 %s, v%d, %s, s%d offen%s" % (vr2(V_SENT), V_OXPO, W, S_T2, lsc))
        I("buffer_store_dwordx4 %s, v%d, %s, s%d offen%s" % (vr4(V_SENT), V_SXST, W, S_T3, lsc))
        exec_(a, S_MM)
        I("buffer_store_dwordx4 %s, v%d, %s, s%d offen%s" % (vr4(V_SENT), V_SXM, W, S_T3, lsc))
        exec_(a, None)
        a.L(lpe)
    if E("LPOI", 1) == 0:
        local_poison()
    vp = [smf(acc(2, t), a_qkv(2, t, b), b) for b in range(4) for t in range(2)]
    for l in vp:
        I(l)
    I("s_nop 4")
    I("ds_write_b128 v%d, %s" % (V_RVW, vr4(acc(2, 0))))
    I("s_nop 1")
    I("ds_write_b128 v%d, %s offset:512" % (V_RVW, vr4(acc(2, 1))))
    I("s_waitcnt lgkmcnt(0)")
    lv, L2b = a.uid("L_vred"), a.uid("L_bar2b")
    a.L(L2b + "_2")
    I("s_barrier")
    I("s_cmp_eq_u32 s%d, 1" % S_W)
    I("s_cbranch_scc1 %s" % lv)
    a.L(L2b)
    I("s_waitcnt lgkmcnt(0)")
    I("s_barrier")
    I("s_cmp_eq_u32 s%d, 63" % S_STEP)
    I("s_cbranch_scc1 %s" % Lfin)
    if E("LPOI", 1) == 1:
        local_poison()
    if PUBW == 2 and 'nopub' not in ABL:
        lq = a.uid("L_np")
        I("s_cmp_lg_u32 s%d, 2" % S_W)
        I("s_cbranch_scc1 %s" % lq)
        publish_kv(a, S_PX, None)
        a.L(lq)
    I("s_cmp_lg_u32 s%d, 3" % S_W)
    I("s_cbranch_scc1 %s" % Lb3)
    a.C("---- wave 3: k_x / v_x^T of the next step -> LDS")
    lg0 = a.uid("L_gated")
    I("s_cmp_ge_u32 s%d, 2" % S_STEP)
    I("s_cbranch_scc1 %s" % lg0)
    I("s_add_u32 s%d, s%d, 1" % (S_T3, S_STEP))
    cnt_wait(a, 'kv', S_T3)
    a.L(lg0)
    if 'nokv' not in ABL:
        kv_prefetch(a, (0, 1, 2, 3) if KVW == 0 else (0, 1))
    I("s_branch %s" % Lb3)
    a.L(lv)
    a.C("---- wave 1: v_m = sum of the 8 partial planes")
    for p in range(8):
        for t in range(2):
            I("ds_read_b64 %s, v%d offset:%d" % (vr2(V_R + 4 * p + 2 * t), V_RVR, p * 1024 + t * 512))
            if p == 7 and t == 0:
                I("s_waitcnt lgkmcnt(11)")
    I("s_waitcnt lgkmcnt(8)")
    for (d, s_) in ((0, 1), (2, 3), (0, 2)):
        for t in range(2):
            pk(a, V_R + 4 * d + 2 * t, V_R + 4 * d + 2 * t, V_R + 4 * s_ + 2 * t)
    I("s_waitcnt lgkmcnt(0)")
    for (d, s_) in ((4, 5), (6, 7), (0, 4), (0, 6)):
        for t in range(2):
            pk(a, V_R + 4 * d + 2 * t, V_R + 4 * d + 2 * t, V_R + 4 * s_ + 2 * t)
    I(cvt(V_VM, V_R, V_R + 1))
    I(cvt(V_VM + 2, V_R + 2, V_R + 3))
    I("ds_write2_b32 v%d, v%d, v%d offset0:0 offset1:16" % (V_VMW, V_VM, V_VM + 2))
    I("s_branch %s" % L2b)
    a.L(Lh1 + "_w0")
    for l in vp:
        I(l)
    I("s_nop 4")
    I("ds_write_b128 v%d, %s" % (V_RVW, vr4(acc(2, 0))))
    I("s_nop 1")
    I("ds_write_b128 v%d, %s offset:512" % (V_RVW, vr4(acc(2, 1))))
    I("s_barrier")
    stamp(a, 2)
    for w in range(1, 4):
        for t in range(2):
            I("ds_read_b128 %s, v%d offset:%d" % (vr4(V_R + 8 * (w - 1) + 4 * t), V_LIN, L_T + w * 2048 + t * 1024))
    for w in range(3):
        I("s_waitcnt lgkmcnt(%d)" % (4 - 2 * w))
        for i in range(0, 8, 2):
            pk(a, V_TD + i, V_TD + i, V_R + 8 * w + i)
    for i in range(4):
        I(cvt(V_QK + i, V_TD + 2 * i, V_TD + 2 * i + 1))
    exec_(a, S_MM)
    I("s_nop 0")
    I(mfma32(V_SM, V_QK, V_QK))
    I(mfma32(V_S0, V_KX, V_QK))
    I(mfma32(V_S1, V_KX + 4, V_QK))
    I("s_nop 3")
    I("buffer_store_dwordx4 %s, v%d, %s, s%d offen%s" % (vr4(V_SM), V_SXM, W, S_SX, lsc))
    exec_(a, S_M8)
    I("buffer_store_dwordx4 %s, v%d, %s, s%d offen%s" % (vr4(V_S0), V_SXST, W, S_SX, lsc))
    I("s_nop 0")
    I("buffer_store_dwordx4 %s, v%d, %s, s%d offen offset:128%s" % (vr4(V_S1), V_SXST, W, S_SX, lsc))
    exec_(a, None)
    stamp(a, 3)
    B2L = E("B2L", 1)
    if not B2L:
        I("s_barrier")
    a.C("---- C: partial scores of the other three workgroups of the head")
    I("ds_write_b128 v%d, %s offset:%d" % (V_LIN, vr4(V_QK), L_KM))
    for t in range(2):
        I("ds_read_b128 %s, v%d offset:%d" % (vr4(V_VT + 4 * t), V_VTR, t * 1024))
    for i in range(4):
        I("v_mov_b32_dpp v%d, v%d row_shr:8 row_mask:0xf bank_mask:0xc" % (V_S0 + i, V_S1 + i))
    I("v_xor_b32 v%d, 0x1000, v%d" % (V_VTR, V_VTR))
    I("s_cmp_eq_u32 s%d, 63" % S_STEP)
    I("s_cbranch_scc1 %s" % (L2b + "_2" if B2L else L2b))
    nops(a, D_C)

    def sx_loads(r):
        b = V_L + 16 * r
        return ["buffer_load_dwordx4 %s, v%d, %s, s%d offen sc1" % (vr4(b), V_SXLM, W, S_SX)] + \
               ["buffer_load_dwordx4 %s, v%d, %s, s%d offen sc1" % (vr4(b + 4 + 4 * k), V_SXLD + k, W, S_SX) for k in range(3)]
    for r in range(NSC):
        for l in sx_loads(r):
            I(l)
        if r == 0 and B2L:
            I("s_barrier")
        if r < NSC - 1:
            nops(a, G_C)
    cok = a.uid("L_cok")

    def sx_sum(out, r, nlater):
        b = V_L + 16 * r
        P = lambda d, x, y: "v_pk_add_f32 %s, %s, %s" % (vr2(d), vr2(x), vr2(y))
        out += ["s_waitcnt vmcnt(%d)" % (3 + nlater),
                "v_permlane32_swap_b32 v%d, v%d" % (b, b + 2),
                "v_permlane32_swap_b32 v%d, v%d" % (b + 1, b + 3),
                "s_waitcnt vmcnt(%d)" % (2 + nlater),
                P(V_X + 1, b, b + 2),
                P(V_T, V_S0, b + 4),
                P(V_T + 2, V_S0 + 2, b + 6),
                "v_permlane16_swap_b32 v%d, v%d" % (V_X + 1, V_X + 2),
                "s_waitcnt vmcnt(%d)" % (1 + nlater),
                P(V_T, V_T, b + 8),
                P(V_T + 2, V_T + 2, b + 10),
                "v_add_f32 v%d, v%d, v%d" % (V_TM, V_X + 1, V_X + 2),
                "s_waitcnt vmcnt(%d)" % nlater,
                P(V_T, V_T, b + 12),
                P(V_T + 2, V_T + 2, b + 14),
                P(V_X + 1, V_T, V_T + 2),
                "v_add_f32 v%d, v%d, v%d" % (V_X + 1, V_X + 1, V_TM),
                "v_cmp_u_f32 vcc, v%d, v%d" % (V_X + 1, V_X + 2)]
    hot = []
    sx_sum(hot, 0, 4 * (NSC - 1))
    for l in hot:
        I(l)
    cf = a.uid("L_cf")
    COLD.append(cf + ":")
    if STAMP == 3:
        COLD.append("    s_add_u32 s%d, s%d, 1" % (S_ACC + 3, S_ACC + 3))
    rot_poll(a, NSC, sx_loads, sx_sum, range(V_L, V_L + 16), cok, E('CRE', 1))
    vals = [V_T, V_T + 1, V_T + 2, V_T + 3, V_TM]
    mx, t1 = V_X + 1, V_X + 3
    if EMU:
        head = ["v_cvt_pk_bf16_f32 v%d, 0, v%d" % (V_PB + i if i < 4 else V_SUM, v) for i, v in enumerate(vals)]
    else:
        head = ["v_max3_f32 v%d, v%d, v%d, v%d" % (mx, V_T, V_T + 1, V_T + 2),
                "v_max3_f32 v%d, v%d, v%d, v%d" % (mx, mx, V_T + 3, V_TM),
                "s_nop 1",
                "v_max_f32_dpp v%d, v%d, v%d row_ror:8 row_mask:0xf bank_mask:0xf" % (mx, mx, mx)]
    for l in head:
        I(l)
    I("s_cbranch_vccnz %s" % cf)
    lskip = a.uid("L_chead")
    COLD.append(cok + ":")
    COLD.extend("    " + l for l in head)
    COLD.append("    s_branch %s" % lskip)
    a.L(lskip)
    stamp(a, 4)
    a.C("---- D: softmax and P V")
    if EMU:
        I("v_pk_mul_f32 %s, %s, s[%d:%d]" % (vr2(V_T), vr2(V_PB), S_SCL, S_SCL + 1))
        I("v_pk_mul_f32 %s, %s, s[%d:%d]" % (vr2(V_T + 2), vr2(V_PB + 2), S_SCL, S_SCL + 1))
        I("v_mul_f32 v%d, s%d, v%d" % (V_TM, S_SCL, V_SUM))
        for v in vals:
            I("v_cvt_pk_bf16_f32 v%d, 0, v%d" % (v, v))
        I("v_max3_f32 v%d, v%d, v%d, v%d" % (mx, V_T, V_T + 1, V_T + 2))
        I("v_max3_f32 v%d, v%d, v%d, v%d" % (mx, mx, V_T + 3, V_TM))
        I("s_nop 1")
        I("v_max_f32_dpp v%d, v%d, v%d row_ror:8 row_mask:0xf bank_mask:0xf" % (mx, mx, mx))
    for sw in ("v_permlane16_swap_b32", "v_permlane32_swap_b32"):
        I("v_mov_b32 v%d, v%d" % (t1, mx))
        if "16" in sw:
            I("s_waitcnt lgkmcnt(0)")
            I("s_barrier")
        else:
            I("ds_read_b32 v%d, v%d" % (V_VM, V_VMW))
            I("ds_read_b32 v%d, v%d offset:64" % (V_VM + 2, V_VMW))
        I("%s v%d, v%d" % (sw, mx, t1))
        I("v_max_f32 v%d, v%d, v%d" % (mx, mx, t1))
    if B3P == 2:
        I("s_barrier")
    I("v_mul_f32 v%d, s%d, v%d" % (mx, S_C, mx))
    I("v_fma_f32 v%d, v%d, s%d, -v%d" % (V_TM, V_TM, S_C, mx))
    pf = "v_pk_fma_f32 %s, %s, s[%d:%d], %s op_sel_hi:[1,1,0] neg_lo:[0,0,1] neg_hi:[0,0,1]"
    I("v_exp_f32 v%d, v%d" % (V_TM, V_TM))
    I(pf % (vr2(V_T), vr2(V_T), S_C, S_C + 1, vr2(mx)))
    I(pf % (vr2(V_T + 2), vr2(V_T + 2), S_C, S_C + 1, vr2(mx)))
    I("v_mov_b32_dpp v%d, v%d row_ror:8 row_mask:0xf bank_mask:0xf" % (t1, V_TM))
    I("v_exp_f32 v%d, v%d" % (V_T, V_T))
    I(cvt(V_PM, V_TM, t1))
    I("v_exp_f32 v%d, v%d" % (V_T + 1, V_T + 1))
    I("v_exp_f32 v%d, v%d" % (V_T + 2, V_T + 2))
    I(mfma16(V_SUM, V_ONE, V_PM))
    I("v_exp_f32 v%d, v%d" % (V_T + 3, V_T + 3))
    I("s_waitcnt lgkmcnt(0)")
    I(cvt(V_PB, V_T, V_T + 1))
    I(mfma16(V_O, V_VM, V_PM))
    I(cvt(V_PB + 1, V_T + 2, V_T + 3))
    I("v_mov_b32_dpp v%d, v%d row_ror:8 row_mask:0xf bank_mask:0xf" % (V_PB + 2, V_PB))
    I(mfma16(V_O + 4, V_VM + 2, V_PM))
    I("v_mov_b32_dpp v%d, v%d row_ror:8 row_mask:0xf bank_mask:0xf" % (V_PB + 3, V_PB + 1))
    I("s_nop 0")
    exec_(a, S_M8)
    I(mfma32(V_SUM, V_ONE, V_PB, V_SUM))
    I(mfma32(V_O, V_VT, V_PB, V_O))
    I(mfma32(V_O + 4, V_VT + 4, V_PB, V_O + 4))
    if B3P == 1:
        I("s_barrier")
        I("s_nop 2")
    else:
        I("s_nop 3")
    I("v_rcp_f32 v%d, v%d" % (V_SUM, V_SUM))
    I("s_nop 0")
    pm = "v_pk_mul_f32 %s, %s, %s op_sel_hi:[1,0]"
    I(pm % (vr2(V_O), vr2(V_O), vr2(V_SUM)))
    I(pm % (vr2(V_O + 2), vr2(V_O + 2), vr2(V_SUM)))
    I(pm % (vr2(V_O + 4), vr2(V_O + 4), vr2(V_SUM)))
    I(pm % (vr2(V_O + 6), vr2(V_O + 6), vr2(V_SUM)))
    for i in range(4):
        I(cvt(V_OB + i, V_O + 2 * i, V_O + 2 * i + 1))
    I("buffer_store_dwordx4 %s, v%d, %s, s%d offen%s" % (vr4(V_OB), V_OXST, W, S_OX, lsc))
    exec_(a, None)
    stamp(a, 5)
    if B3P == 0:
        I("s_barrier")
    nops(a, max(D_E - 4, 0))
    I("s_branch %s" % (Lb3 + "_e"))
    a.L(Lb3)
    I("s_waitcnt lgkmcnt(0)")
    I("s_barrier")
    nops(a, H_E + 4)
    a.L(Lb3 + "_e")
    a.C("==== E: gather the attention output of the XCD's heads, output projection partials")
    za = ["v_mov_b32 v%d, 0" % (V_ACC + i) for i in range(24)]
    gather(a, S_OX, lambda b: [smf(V_OA + 4 * ct, a_wo(ct, b), b) for ct in range(2)], "e", za)
    stamp(a, 6)
    I("s_add_u32 s%d, s%d, 1" % (S_STEP, S_STEP))
    I("s_cmp_lg_u32 s%d, 0" % S_W)
    I("s_nop 2")
    I(cvt(V_TA, V_OA, V_OA + 1))
    I(cvt(V_TA + 1, V_OA + 2, V_OA + 3))
    I("s_nop 0")
    I(cvt(V_TA + 2, V_OA + 4, V_OA + 5))
    I(cvt(V_TA + 3, V_OA + 6, V_OA + 7))
    I("s_nop 1")
    I(mfma32(V_TD, V_TA, V_SEL2))
    I("s_cbranch_scc1 %s" % Lh2)
    I("s_barrier")
    stamp(a, 7)
    a.C("---- F / G (wave 0): XCD partial -> PX, sum of the four partials -> MEMX")
    for w in range(1, 4):
        I("ds_read_b128 %s, v%d offset:%d" % (vr4(V_R + 4 * w), V_LIN, L_RO + w * 2048))
    for w in range(1, 4):
        I("s_waitcnt lgkmcnt(%d)" % (3 - w))
        src = V_TD if w == 1 else V_R
        pk(a, V_R, src, V_R + 4 * w)
        pk(a, V_R + 2, src + 2, V_R + 4 * w + 2)
    if PXB:
        I(cvt(V_TA, V_R, V_R + 1))
        I(cvt(V_TA + 1, V_R + 2, V_R + 3))
    for r in range(NREP):
        if PXB:
            I("buffer_store_dwordx2 %s, v%d, %s, s%d offen offset:%d sc1" % (vr2(V_TA), V_PXST, W, S_PX, r * 512))
        else:
            I("buffer_store_dwordx4 %s, v%d, %s, s%d offen offset:%d sc1" % (vr4(V_R), V_PXST, W, S_PX, r * 1024))
    stamp(a, 8)
    I("s_mov_b32 s%d, s%d" % (S_T2, S_PX))
    I("s_mov_b32 s%d, s%d" % (S_T3, S_MEMN))
    sl = slots()
    for l in sl:
        I(l)
    nops(a, max(D_G - len(sl) - 2, 0))

    def px_loads(r):
        if PXB:
            return ["buffer_load_dwordx2 %s, v%d, %s, s%d offen offset:%d sc1" % (vr2(V_L + 12 * r + 2 * k), V_PXLD + k, W, S_T2, r * 512) for k in range(3)]
        return ["buffer_load_dwordx4 %s, v%d, %s, s%d offen offset:%d sc1" % (vr4(V_L + 12 * r + 4 * k), V_PXLD + k, W, S_T2, r * 1024) for k in range(3)]
    for r in range(NREP):
        for l in px_loads(r):
            I(l)
        if r < NREP - 1:
            nops(a, G_G)

    NSH = 0
    if PUBW == 1 and 'nopub' not in ABL:
        publish_kv(a, S_T2, V_QK)
        NSH += 2
    if KVW == 2 and 'nokv' not in ABL:
        I("s_sub_u32 s%d, s%d, 0x%x" % (S_T0, S_PX, WS_P - WS_B))
        n0 = len(a.lines)
        kv_prefetch(a, (2, 3))
        a.lines[n0:] = [l.replace("s%d offen" % S_KV, "s%d offen" % S_T0) for l in a.lines[n0:]]
        NSH += 2

    def px_sum(out, r, nlater):
        b = V_L + 12 * r
        P = lambda d, x, y: "v_pk_add_f32 %s, %s, %s" % (vr2(d), vr2(x), vr2(y))
        for k in range(3 if PXB else 0):
            u = V_TA + 4
            out += ["s_waitcnt vmcnt(%d)" % (2 - k + nlater),
                    "v_lshlrev_b32 v%d, 16, v%d" % (u, b + 2 * k), "v_and_b32 v%d, 0xffff0000, v%d" % (u + 1, b + 2 * k),
                    "v_lshlrev_b32 v%d, 16, v%d" % (u + 2, b + 2 * k + 1), "v_and_b32 v%d, 0xffff0000, v%d" % (u + 3, b + 2 * k + 1),
                    P(V_T, V_R if k == 0 else V_T, u), P(V_T + 2, V_R + 2 if k == 0 else V_T + 2, u + 2)]
        if PXB:
            out += ["v_cmp_u_f32 vcc, v%d, v%d" % (V_T, V_T + 2), cvt(V_OB, V_T, V_T + 1), cvt(V_OB + 1, V_T + 2, V_T + 3)]
            return
        for k in range(3):
            out += ["s_waitcnt vmcnt(%d)" % (2 - k + nlater),
                    P(V_T, V_R if k == 0 else V_T, b + 4 * k),
                    P(V_T + 2, V_R + 2 if k == 0 else V_T + 2, b + 4 * k + 2)]
        out += [P(V_X + 1, V_T, V_T + 2),
                "v_cmp_u_f32 vcc, v%d, v%d" % (V_X + 1, V_X + 2),
                cvt(V_OB, V_T, V_T + 1), cvt(V_OB + 1, V_T + 2, V_T + 3)]
    if H_A >= 0:
        I("s_barrier")
    hot = []
    px_sum(hot, 0, 3 * (NREP - 1) + NSH)
    for l in hot:
        I(l)
    gf, gok, grt = a.uid("L_gf"), a.uid("L_gok"), a.uid("L_grt")
    I("s_cbranch_vccnz %s" % gf)
    a.L(gok)
    COLD.append(gf + ":")
    if STAMP == 3:
        COLD.append("    s_add_u32 s%d, s%d, 1" % (S_ACC + 4, S_ACC + 4))
    rot_poll(a, NREP, px_loads, px_sum, range(V_L, V_L + (6 if PXB else 12)), gok, False, NSH)
    I("buffer_store_dwordx2 %s, v%d, %s, s%d offen%s" % (vr2(V_OB), V_MEMST, W, S_T3, lsc))
    stamp(a, 9)
    if H_A < 0:
        I("s_barrier")
    if STAMP >= 2:
        I("s_cmp_lg_u32 s%d, 5" % S_STEP)
        I("s_cbranch_scc1 %s" % loop)
        I("s_memrealtime s[%d:%d]" % (S_ST, S_ST + 1))
        I("s_mov_b32 s%d, 0" % S_SPIN)
        I("s_branch %s" % loop)
    elif STAMP:
        I("s_waitcnt lgkmcnt(0)")
        for i in range(9):
            I("s_sub_u32 s%d, s%d, s%d" % (S_T0, S_ST + 2 * i + 2, S_ST + 2 * i))
            I("s_add_u32 s%d, s%d, s%d" % (S_ACC + i, S_ACC + i, S_T0))
        I("s_mov_b32 s%d, s%d" % (S_ST, S_ST + 18))
        I("s_cmp_lg_u32 s%d, 5" % S_STEP)
        I("s_cbranch_scc1 %s" % (loop + "_nd"))
        for i in range(9):
            I("s_mov_b32 s%d, 0" % (S_ACC + i))
        I("s_mov_b32 s%d, 0" % S_SPIN)
        I("s_branch %s" % (loop + "_nd"))
    else:
        I("s_branch %s" % loop)
    a.L(Lh2)
    I("s_nop 2")
    I("ds_write_b128 v%d, %s offset:%d" % (V_TW, vr4(V_TD), L_RO))
    I("s_waitcnt lgkmcnt(0)")
    I("s_barrier")
    for l in sl:
        I(l)
    l3 = a.uid("L_w3")
    I("s_cmp_eq_u32 s%d, 3" % S_W)
    I("s_cbranch_scc1 %s" % l3)
    a.C("---- wave 2 of one workgroup: one more segment's k_m / v_m are complete everywhere")
    I("s_xor_b32 s%d, s%d, 2" % (S_T0, S_W))
    I("s_or_b32 s%d, s%d, s%d" % (S_T0, S_T0, S_X))
    I("s_or_b32 s%d, s%d, s%d" % (S_T0, S_T0, S_J))
    I("s_cbranch_scc1 %s" % Lb4)
    I("s_cmp_lt_u32 s%d, %d" % (S_STEP, 3 if PUBW == 1 else 2))
    I("s_cbranch_scc1 %s" % Lb4)
    I("s_atomic_add s%d, s[%d:%d], 0x%x" % (S_ONE, ptr(D_DBG), ptr(D_DBG) + 1, DB_PROG))
    I("s_branch %s" % Lb4)
    a.L(l3)
    a.C("---- wave 3 of one workgroup: hold the chain until the segment fetched in the step after next exists")
    I("s_or_b32 s%d, s%d, s%d" % (S_T0, S_X, S_J))
    I("s_cbranch_scc1 %s" % Lb4)
    I("s_add_u32 s%d, s%d, 2" % (S_T3, S_STEP))
    I("s_min_u32 s%d, s%d, 63" % (S_T3, S_T3))
    cnt_wait(a, 'kvs', S_T3)
    a.L(Lb4)
    if STAMP:
        I("s_cmp_eq_u32 s%d, 5" % S_STEP)
        I("s_cselect_b32 s%d, 0, s%d" % (S_SPIN, S_SPIN))
    I("s_barrier")
    if H_A >= 0:
        nops(a, H_A)
        I("s_branch %s" % (loop + "_nd"))
    else:
        I("s_branch %s" % loop)
    a.L(Lfin)
    I("s_cmp_lg_u32 s%d, 2" % S_W)
    I("s_cbranch_scc1 %s" % done)
    publish_kv(a, S_PX, None)
    I("s_branch %s" % done)
    return loop


def chain_main(a, name):
    I = a.I
    a.srd(S_WS, ptr(D_WS), 0, WS_SIZE)
    ABORT[0] = name + "_abort"
    I("s_mov_b32 s%d, 0" % S_SPIN)
    prologue_addrs(a)
    load_weights(a)
    HOOK.get('weights', lambda: None)()
    if E("CWARM", 1):
        a.C("---- half of the workgroups pull the token matrices into the memory-side cache for the worker streams")
        lw, le = a.uid("L_cwarm"), a.uid("L_cwarme")
        I("s_bitcmp1_b32 s%d, 2" % S_J)
        I("s_cbranch_scc1 %s" % le)
        I("s_lshr_b32 s%d, s%d, 3" % (S_T0, S_J))
        I("s_lshl_b32 s%d, s%d, 2" % (S_T0, S_T0))
        I("s_and_b32 s%d, s%d, 3" % (S_T1, S_J))
        I("s_add_u32 s%d, s%d, s%d" % (S_T0, S_T0, S_T1))
        I("s_lshl_b32 s%d, s%d, 4" % (S_T1, S_X))
        I("s_add_u32 s%d, s%d, s%d" % (S_T0, S_T0, S_T1))
        I("s_lshl_b32 s%d, s%d, 12" % (S_T0, S_T0))
        I("v_lshlrev_b32 v%d, 4, v0" % V_SMP)
        a.srd(S_TMPSRD, ptr(B_X), 0, 4 * MB)
        a.srd(56, ptr(A_X), 0, 4 * MB)
        for k in range(16):
            I("buffer_load_dwordx4 %s, v%d, s[%d:%d], s%d offen" % (vr4(V_R), V_SMP, S_TMPSRD, S_TMPSRD + 3, S_T0))
            if not E("G2WARM", 1):
                I("buffer_load_dwordx4 %s, v%d, s[56:59], s%d offen" % (vr4(V_R), V_SMP, S_T0))
            I("s_add_u32 s%d, s%d, 0x40000" % (S_T0, S_T0))
        a.L(le)
    a.C("---- initial memory -> MEMX slot 0, first prefetches")
    a.srd(S_TMPSRD, ptr(B_MEM0), 0, 16384)
    I("buffer_load_dwordx2 %s, v%d, s[%d:%d], 0 offen" % (vr2(V_R), V_M0LD, S_TMPSRD, S_TMPSRD + 3))
    I("s_waitcnt vmcnt(0)")
    a.srd(S_TMPSRD, ptr(D_DBG), 0, 256)
    I("s_mov_b32 s%d, 0" % S_STEP)
    I("s_mov_b32 s%d, 1" % S_ONE)
    I("s_mov_b32 s%d, %d" % (S_LKV, L_KV))
    I("s_add_u32 s%d, s%d, 0x%x" % (S_CKV, ptr(D_WS), C_KV))
    I("s_addc_u32 s%d, s%d, 0" % (S_CKV + 1, ptr(D_WS) + 1))
    cnt_wait(a, 'init')
    block_bases(a, S_T0, S_PXB, S_PXB2, S_T1)
    I("buffer_load_dword v%d, v%d, s[%d:%d], 0 offen offset:%d sc1" % (V_SMP + 1, V_SMP, S_TMPSRD, S_TMPSRD + 3, DB_OVF))
    I("s_waitcnt vmcnt(0)")
    I("v_readfirstlane_b32 s%d, v%d" % (S_SLOW, V_SMP + 1))
    I("s_mov_b32 s%d, s%d" % (S_KV, S_PXB))
    l3 = a.uid("L_init3")
    I("s_cmp_lg_u32 s%d, 3" % S_W)
    I("s_cbranch_scc1 %s" % l3)
    cnt_wait(a, 'kv', S_STEP)
    kv_prefetch(a)
    if 'nokv' in ABL:
        kv_prefetch(a)
    I("s_waitcnt vmcnt(0)")
    a.L(l3)
    for l in slots():
        I(l)
    lab = a.uid("L_init")
    I("s_cmp_lg_u32 s%d, 0" % S_W)
    I("s_cbranch_scc1 %s" % lab)
    for i in range(2):
        I("v_cmp_eq_u32 vcc, s%d, v%d" % (S_SENT, V_R + i))
        I("s_nop 1")
        I("v_cndmask_b32 v%d, v%d, -1, vcc" % (V_R + i, V_R + i))
    I("buffer_store_dwordx2 %s, v%d, %s, s%d offen sc1" % (vr2(V_R), V_MEMST, W, S_MEMC))
    kv_prefetch(a, ())
    I("s_setprio %d" % PRIO)
    a.L(lab)
    I("s_barrier")
    HOOK.get('loopstart', lambda: None)()
    if STAMP:
        for i in range(10):
            I("s_mov_b32 s%d, 0" % (S_ACC + i))
        I("s_memtime s[%d:%d]" % (S_ST, S_ST + 1))
    slow = a.uid("L_slow")
    I("s_cmp_lg_u32 s%d, 0" % S_SLOW)
    I("s_cbranch_scc1 %s" % slow)
    for lsc in ("", " sc1"):
        if lsc:
            a.L(slow)
        n0 = len(a.lines)
        loop = step_loop(a, name, lsc)
        k = next(i for i in range(n0, len(a.lines)) if "buffer_load" in a.lines[i])
        a.lines.insert(k, loop + "_nd:")
        for line in COLD + COLD2:
            a.raw(line)
        del COLD[:], COLD2[:]
    a.L(ABORT[0])
    I("s_mov_b64 exec, 1")
    I("v_mov_b32 v1, s%d" % S_STEP)
    I("v_or_b32 v1, 0xdead0000, v1")
    I("v_mov_b32 v2, 124")
    I("buffer_store_dword v1, v2, s[%d:%d], 0 offen" % (S_TMPSRD, S_TMPSRD + 3))
    a.L(name + "_done")
    if STAMP >= 2:
        I("s_memrealtime s[%d:%d]" % (S_ST + 2, S_ST + 3))
        I("s_waitcnt lgkmcnt(0)")
        I("s_sub_u32 s%d, s%d, s%d" % (S_ACC, S_ST + 2, S_ST))
        I("s_mul_i32 s%d, s%d, 10" % (S_ACC, S_ACC))
    if STAMP:
        I("s_mov_b64 exec, -1")
        I("v_mov_b32 v%d, 0" % V_R)
        for i in range(9):
            I("v_writelane_b32 v%d, s%d, %d" % (V_R, S_ACC + i, i))
        I("v_writelane_b32 v%d, s%d, 15" % (V_R, S_SPIN))
        I("s_lshl_b32 s56, s%d, 5" % S_X)
        I("s_add_u32 s56, s56, s%d" % S_J)
        I("s_lshl_b32 s56, s56, 2")
        I("s_add_u32 s56, s56, s%d" % S_W)
        I("s_lshl_b32 s56, s56, 8")
        I("s_add_u32 s56, s56, 0x%x" % (WS_DBG + 4096))
        I("v_lshrrev_b32 v%d, 2, v%d" % (V_R + 1, V_LIN))
        I("buffer_store_dword v%d, v%d, %s, s56 offen" % (V_R, V_R + 1, W))
    HOOK.get('done', lambda: None)()
    I("s_endpgm")
```

```python
from asmlib import *
from layout import *
import os

E = lambda k, d: int(os.environ.get(k, str(d)))

S_SRC = 8
S_WSR = 12
S_AUX = 16
S_OFF = 20
S_WD = 21
S_B = 22
S_END = 23
S_DB = 24
S_T = 25
S_AUX2 = 32
S_SPIN = 36
S_NOF = 53
S_XW, S_RK, S_WV = 40, 41, 49
S_EVEN, S_ODD = 54, 55
OOB = 0x7ff00000

V_DMA = 8
V_RD = 12
V_FR = 20
V_ACC = 52
V_E = 84
L_Q = 131072
SPIN_LIMIT = 1 << E("SPINL", 20)
RD_AHEAD = 6


def v4(r):
    return "v[%d:%d]" % (r, r + 3)


def v2(r):
    return "v[%d:%d]" % (r, r + 1)


def srd(r):
    return "s[%d:%d]" % (r, r + 3)


class Stream:
    def __init__(self, a, name, kind, wa, rowmap=None, step=1):
        self.a, self.name, self.kind, self.wa, self.rowmap, self.step = a, name, kind, wa, rowmap, step
        self.qadv = {'row': 512, 'chunk': 65536, 'lin': 16384}[kind]
        self.rpf = 1
        self.cold = []
        self.vmslots = (5,)
        self.la = 7
        self.full = False

    def setup(self, s_kt=None):
        I = self.a.I
        self.a.C("---- stream %s setup" % self.name)
        I("s_lshl_b32 s%d, s%d, 12" % (S_WD, S_WV))
        I("v_and_b32 v1, 63, v0")
        I("v_and_b32 v2, 15, v0")
        I("v_bfe_u32 v3, v0, 4, 2")
        I("v_lshrrev_b32 v4, 6, v0")
        if self.kind == 'row':
            for j in range(4):
                I("v_lshrrev_b32 v5, 5, v1")
                I("v_lshl_add_u32 v5, v4, 3, v5")
                I("v_add_u32 v5, %d, v5" % (2 * j))
                if self.rowmap == 'kv':
                    I("v_and_b32 v6, 7, v5")
                    I("v_lshrrev_b32 v7, 4, v5")
                    I("v_lshl_add_u32 v6, v7, 3, v6")
                else:
                    I("v_and_b32 v6, 3, v5")
                    I("v_lshrrev_b32 v7, 3, v5")
                    I("v_lshl_add_u32 v6, v7, 2, v6")
                I("v_and_b32 v7, 31, v1")
                I("v_xor_b32 v6, v6, v7")
                I("v_lshlrev_b32 v6, 4, v6")
                I("v_lshl_add_u32 v%d, v5, 11, v6" % (V_DMA + j))
            if self.rowmap == 'kv':
                I("v_and_b32 v5, 8, v2")
                I("v_add_u32 v5, v5, v2")
            else:
                I("v_and_b32 v5, 12, v2")
                I("v_add_u32 v5, v5, v2")
            for k in range(4):
                I("v_add_u32 v6, %d, v3" % (4 * k))
                I("v_xor_b32 v6, v6, v2")
                I("v_lshlrev_b32 v6, 4, v6")
                I("v_lshl_add_u32 v%d, v5, 9, v6" % (V_RD + k))
            nrd = 4
        else:
            ch = self.kind == 'chunk'
            I("v_lshlrev_b32 v5, 4, v1")
            I("v_lshl_add_u32 v5, v4, %d, v5" % (14 if ch else 12))
            for j in range(4):
                I("v_add_u32 v%d, %d, v5" % (V_DMA + j, (j >> 1) * 4096 + (j & 1) * 1024 if ch else j * 1024))
            I("v_lshlrev_b32 v5, 4, v2")
            I("v_lshl_add_u32 v5, v3, 9, v5")
            I("v_xor_b32 v%d, s%d, v5" % (V_RD, s_kt))
            I("v_xor_b32 v%d, 0x100, v%d" % (V_RD + 1, V_RD))
            nrd = 2
        for k in range(nrd):
            I("v_add_u32 v%d, 0x10000, v%d" % (V_RD + 4 + k, V_RD + k))

    def read(self, P, f):
        q, s, t = f >> 4, (f >> 1) & 7, f & 1
        d = V_FR + 4 * (f % 8)
        b = V_RD + 4 * P
        if self.kind == 'row':
            toff = 4096 if self.rowmap == 'kv' else 2048
            return ["ds_read_b128 %s, v%d offset:%d" % (v4(d), b + (s & 3), q * 16384 + t * toff + (s >> 2) * 256)]
        return ["ds_read_b128 %s, v%d offset:%d" % (v4(d), b + t, q * 16384 + s * 2048)]

    def dma(self, slot, j):
        return ("s_add_u32 m0, s%d, %d" % (S_WD, slot * 16384 + j * 1024),
                "buffer_load_dwordx4 v%d, %s, s%d offen lds" % (V_DMA + j, srd(S_SRC), S_OFF))

    def acc(self, P, t, c):
        return V_ACC + 16 * P + 4 * (2 * t + c)

    def mfma(self, P, m):
        f, c = m >> 1, m & 1
        s, t = f >> 1, f & 1
        fr, w, d = v4(V_FR + 4 * (f % 8)), "a[%d:%d]" % ((2 * s + c) * 4, (2 * s + c) * 4 + 3), v4(self.acc(P, t, c))
        x, y = (w, fr) if self.wa else (fr, w)
        return "v_mfma_f32_16x16x32_bf16 %s, %s, %s, %s" % (d, x, y, "0" if s == 0 else d)

    def run(self, advance, side, flush, first=None):
        a, I = self.a, self.a.I
        a.C("---- stream %s: prologue" % self.name)
        I("s_barrier")
        LA = self.la
        for Q in range(LA):
            if Q == 4:
                self.emit_plain(advance(False))
                I("s_mov_b32 s%d, s%d" % (S_OFF, S_NOF))
            for j in range(4 if Q < LA - 1 else 1):
                m0, ld = self.dma(Q, j)
                I(m0)
                I("s_nop 0")
                I(ld)
            if Q not in (3, LA - 1):
                I("s_add_u32 s%d, s%d, %d" % (S_OFF, S_OFF, self.qadv))
        if first:
            first()
        I("s_waitcnt vmcnt(%d)" % (0 if self.full else 4 * LA - 7))
        I("s_barrier")
        for f in range(RD_AHEAD):
            for l in self.read(0, f):
                I(l)
        I("s_waitcnt lgkmcnt(%d)" % ((RD_AHEAD - 2) * self.rpf))
        f0, f1, end = a.uid("L_fl0"), a.uid("L_fl1"), a.uid("L_ste")
        sides = side if isinstance(side, list) else [side]
        for k, sd in enumerate(sides):
            self.loop(a.uid("L_st"), f0, advance, sd, 0)
            if k < len(sides) - 1:
                I("s_branch %s" % f1)
        a.L(f1)
        I("s_waitcnt lgkmcnt(0)")
        I("s_nop 7")
        flush(1)
        I("s_branch %s" % end)
        for l in self.cold:
            a.raw(l)
        self.cold = []
        a.L(f0)
        I("s_waitcnt lgkmcnt(0)")
        I("s_nop 7")
        flush(0)
        if self.cold:
            I("s_branch %s" % end)
            for l in self.cold:
                a.raw(l)
            self.cold = []
        a.L(end)

    def loop(self, loop, f0, advance, side, wv):
        a, I = self.a, self.a.I
        seq = [self.body(P, advance, side, wv) for P in range(2)]
        allit = seq[0] + seq[1]
        n = len(allit)
        for i, it in enumerate(allit):
            if isinstance(it, tuple) and it[0] == 'wait':
                best = 63
                for tag in it[1]:
                    cnt, k, cntd, skip = 0, i, 0, ()
                    while True:
                        k = (k - 1) % n
                        o = allit[k]
                        assert k != i, tag
                        if isinstance(o, tuple) and o[0] == 'cut':
                            skip = o[1]
                            assert tag not in skip
                        if isinstance(o, tuple) and o[0] == 'vm':
                            if o[2] == tag:
                                break
                            cnt += o[2] not in skip
                            cntd += o[2].startswith('dma')
                    best = min(best, cntd if tag.startswith('dma') and not self.full else cnt)
                allit[i] = "s_waitcnt vmcnt(%d)" % best
        for i, it in enumerate(allit):
            if isinstance(it, tuple) and it[0] == 'cut':
                allit[i] = "; ----"
        for i, it in enumerate(allit):
            if isinstance(it, tuple) and it[0] == 'lwait':
                cnt, k = 0, i
                while True:
                    k = (k - 1) % n
                    o = allit[k]
                    if isinstance(o, tuple) and o[0] == 'ds' and o[2] == it[1]:
                        break
                    cnt += (o[1] if isinstance(o, tuple) else o).startswith("ds_")
                allit[i] = "s_waitcnt lgkmcnt(%d)" % min(cnt, 15)
        a.L(loop)
        k = 0
        for P in range(2):
            a.C("---- stream %s: block, set %d" % (self.name, P))
            for it in allit[k:k + len(seq[P])]:
                self.emit(it)
            k += len(seq[P])
            I("s_add_u32 s%d, s%d, %s" % (S_B, S_B, self.step))
            I("s_cmp_ge_u32 s%d, s%d" % (S_B, S_END))
            I("s_cbranch_scc1 %s" % f0 if P == 0 else "s_cbranch_scc0 %s" % loop)

    def emit(self, it):
        if isinstance(it, tuple):
            assert it[0] in ('vm', 'ds'), it
            it = it[1]
        if it.endswith(":"):
            self.a.raw(it)
        else:
            self.a.I(it)

    def emit_plain(self, items):
        for it in items:
            if isinstance(it, list):
                self.emit_plain(it)
            elif isinstance(it, tuple) and it[0] == 'wait':
                self.a.I("s_waitcnt vmcnt(0)")
            elif isinstance(it, tuple) and it[0] == 'lwait':
                self.a.I("s_waitcnt lgkmcnt(0)")
            elif isinstance(it, tuple) and it[0] == 'sync':
                self.a.I("s_waitcnt vmcnt(0)")
                self.a.I("s_barrier")
            else:
                self.emit(it)

    def body(self, P, advance, side, wv):
        gaps = [[] for _ in range(128)]
        load = [0] * 128
        syncs = {}
        sd = side(1 - P)
        if E("TRACE", 0):
            ti = {'k': 0, 'v': 0, 'q': 0, 'g1': 0, 'g2': 0, 'op': 1}[self.name]
            sd = list(sd) + [(0, 1, ["s_memrealtime s[4:5]"]),
                             (40, 127, ["v_mov_b32 v7, s4", "s_lshl_b32 s6, s2, 7", "s_add_u32 s6, s6, s%d" % S_B, "s_lshl_b32 s6, s6, 2",
                                       "s_add_u32 s6, s6, 0x%x" % (WS_DBG + 0xc0000 + ti * 256), "v_min_u32 v6, 1, v0", "v_lshlrev_b32 v6, 30, v6",
                                       ('vm', "buffer_store_dword v7, v6, %s, s6 offen" % srd(S_WSR), 'trc')])]
        for m0, m1, items in sd:
            for it in items:
                if isinstance(it, tuple) and it[0] == 'sync':
                    assert m0 % 32 > 20
                    syncs.setdefault(m0 // 32, []).append(it[1])

        def put(m, it, cost=1):
            if isinstance(it, list):
                for x in it:
                    put(m, x)
                return
            if isinstance(it, tuple) and it[0] == 'wait' and not isinstance(it[1], list):
                it = ('wait', [it[1]])
            gaps[m].append(it)
            load[m] += cost
        for q in range(4):
            put(32 * q + 20 - wv, ('wait', ['dma%d' % ((4 * P + q + 1) % 8)] + syncs.get(q, [])))
            put(32 * q + 20 - wv, "s_barrier")
        for f in range(64):
            fn = f + RD_AHEAD
            put(2 * f, (self.read(P, fn) if fn < 64 else self.read(1 - P, fn - 64))[0])
            if f % 2 == 1:
                put(2 * f + 1, "s_waitcnt lgkmcnt(%d)" % (RD_AHEAD - 2))
        qs = -self.la % 4
        for q in range(4):
            for j, o in enumerate((25, 1, 9, 17)):
                slot = (4 * P + q + self.la - (j > 0)) % 8
                m0, ld = self.dma(slot, j)
                put(32 * q + o - 1, m0)
                put(32 * q + o, ('vm', ld, 'dma%d' % slot), 2)
            put(32 * q + 21, "s_mov_b32 s%d, s%d" % (S_OFF, S_NOF) if q == qs else "s_add_u32 s%d, s%d, %d" % (S_OFF, S_OFF, self.qadv))
        vmfree = set(m for m in range(128) if m % 8 in self.vmslots)
        isvm = lambda it: any(map(isvm, it)) if isinstance(it, list) else isinstance(it, tuple) and it[0] == 'vm'
        size = lambda it: len(it) if isinstance(it, list) else 1
        later = []
        for m0, m1, items in [(32 * qs + 6, 32 * qs + 20, advance(True))] + list(sd):
            items = [it for it in items if not (isinstance(it, tuple) and it[0] == 'sync')]
            n = sum(map(size, items))
            nvm = sum(map(isvm, items))
            lo, seg, done, segs = m0, [], 0, []
            for it in items:
                if isvm(it):
                    cand = sorted(x for x in vmfree if lo <= x <= m1)
                    assert len(cand) >= nvm, (self.name, m0, m1, it)
                    x = min(cand[:len(cand) - nvm + 1], key=lambda x: abs(x - (m0 + (done * (m1 - m0)) // n)))
                    vmfree.discard(x)
                    nvm -= 1
                    segs.append((lo, x, seg, it))
                    load[x] += 1 + size(it)
                    lo, seg = x, []
                else:
                    seg.append(it)
                done += size(it)
            segs.append((lo, m1, seg, None))
            later.append(segs)
        for segs in later:
            for m0, m1, items, anchor in segs:
                n = sum(map(size, items))
                cap = 2
                while n and sum(max(cap - load[m], 0) for m in range(m0, m1 + 1)) < n:
                    cap += 1
                free = []
                for m in range(m0, m1 + 1):
                    free += [m] * max(cap - load[m], 0)
                i = 0
                for it in items:
                    put(free[(i * len(free)) // n], it)
                    i += size(it)
                if anchor is not None:
                    load[m1] -= size(anchor)
                    put(m1, anchor)
        out = []
        for m in range(128):
            out.append(self.mfma(P, m))
            out.extend(gaps[m])
        return out


def load_panel_t(a, s_base, stride, order, flags="", mid=None):
    I = a.I
    a.C("---- weight panel (transposing)")
    vg, vr = V_FR, V_FR + 1
    I("v_and_b32 v1, 15, v0")
    I("v_bfe_u32 v2, v0, 4, 2")
    I("v_lshrrev_b32 v3, 6, v0")
    I("v_lshlrev_b32 v4, 2, v2")
    I("v_xor_b32 v4, v4, v1")
    I("v_lshlrev_b32 v4, 4, v4")
    I("v_lshl_add_u32 v5, v3, 5, v2")
    I("s_mov_b32 s%d, %d" % (S_T, stride))
    I("v_mul_lo_u32 v5, v5, s%d" % S_T)
    I("v_add_u32 v%d, v5, v4" % vg)
    I("v_bfe_u32 v4, v0, 2, 2")
    I("v_lshl_add_u32 v5, v2, 3, v4")
    I("v_lshlrev_b32 v5, 8, v5")
    I("v_xor_b32 v4, v4, v3")
    I("v_lshl_add_u32 v5, v4, 6, v5")
    I("v_and_b32 v4, 3, v0")
    I("v_lshl_add_u32 v5, v4, 3, v5")
    if order == 'kv':
        I("v_and_b32 v4, 2, v4")
        I("v_lshl_add_u32 v%d, v4, 3, v5" % vr)
        I("v_add_u32 v%d, 16, v%d" % (vr + 1, vr))
    else:
        I("v_mov_b32 v%d, v5" % vr)
        I("v_add_u32 v%d, 32, v%d" % (vr + 1, vr))
    I("v_add_u32 v%d, 0x10000, v%d" % (vr + 2, vr))
    I("v_add_u32 v%d, 0x10000, v%d" % (vr + 3, vr + 1))
    I("s_lshl_b32 s%d, s%d, 13" % (S_T + 1, S_WV))
    I("s_mov_b32 s%d, s%d" % (S_T, s_base))

    def issue(p):
        for jj in range(8):
            I("s_add_u32 m0, s%d, %d" % (S_T + 1, (p % 4) * 32768 + jj * 1024))
            I("s_add_u32 s%d, s%d, %d" % (S_T + 2, S_T, (p * 128 + 4 * jj) * stride))
            I("buffer_load_dwordx4 v%d, %s, s%d offen%s lds" % (vg, srd(S_AUX), S_T + 2, flags))
    I("s_barrier")
    for p in range(4):
        issue(p)
    for p in range(8):
        I("s_waitcnt vmcnt(%d)" % (8 * min(3, 7 - p)))
        I("s_barrier")
        if p == 0 and mid:
            mid()
        for k in range(4):
            for c in range(2):
                for u in range(2):
                    d = (2 * (4 * p + k) + c) * 4 + 2 * u
                    I("ds_read_b64_tr_b16 a[%d:%d], v%d offset:%d" % (d, d + 1, vr + c + 2 * ((p % 4) >> 1), (p & 1) * 32768 + k * 8192 + u * 1024))
            if k % 2 == 1:
                I("s_waitcnt lgkmcnt(0)")
        if p + 4 < 8:
            I("s_barrier")
            issue(p + 4)


def load_panel_n(a, s_row, rowmap, srds, flags=""):
    I = a.I
    a.C("---- weight panel (rows)")
    vg, vr = V_FR, V_FR + 8
    I("v_and_b32 v1, 31, v0")
    I("v_bfe_u32 v2, v0, 5, 1")
    for i in range(8):
        I("v_add_u32 v3, %d, v2" % (2 * i))
        I("v_xor_b32 v4, v3, v1")
        I("v_lshlrev_b32 v4, 4, v4")
        if rowmap == 'il':
            I("v_lshlrev_b32 v3, 1, v3")
        I("v_add_u32 v3, s%d, v3" % s_row)
        I("v_lshl_add_u32 v%d, v3, 11, v4" % (vg + i))
    I("v_and_b32 v1, 15, v0")
    I("v_bfe_u32 v2, v0, 4, 2")
    I("v_lshrrev_b32 v3, 6, v0")
    I("v_lshlrev_b32 v3, 15, v3")
    I("v_lshl_add_u32 v3, v1, 9, v3")
    for k in range(4):
        I("v_add_u32 v4, %d, v2" % (4 * k))
        I("v_xor_b32 v4, v4, v1")
        I("v_lshl_add_u32 v%d, v4, 4, v3" % (vr + k))
    I("s_lshl_b32 s%d, s%d, 15" % (S_T + 1, S_WV))

    def issue(q):
        for c in range(2):
            I("s_mov_b32 s%d, %d" % (S_T + 2, q * 512 + (2048 * c if rowmap == 'il' else 0)))
            for i in range(8):
                I("s_add_u32 m0, s%d, %d" % (S_T + 1, (q & 1) * 16384 + c * 8192 + i * 1024))
                I("s_nop 0")
                I("buffer_load_dwordx4 v%d, %s, s%d offen%s lds" % (vg + i, srd(srds[c]), S_T + 2, flags))
    I("s_barrier")
    issue(0)
    issue(1)
    for q in range(4):
        I("s_waitcnt vmcnt(%d)" % (16 if q < 3 else 0))
        for k in range(8):
            for c in range(2):
                d = (2 * (8 * q + k) + c) * 4
                I("ds_read_b128 a[%d:%d], v%d offset:%d" % (d, d + 3, vr + (k & 3), (q & 1) * 16384 + c * 8192 + (k >> 2) * 256))
            if k % 4 == 3:
                I("s_waitcnt lgkmcnt(0)")
        if q + 2 < 4:
            issue(q + 2)
```

```python
from asmlib import *
from layout import *
from stream import *
import stream, os

EMU = E("EMUA", E("EMU", 0))
SEN0 = E("SEN0", 52)
OSC = ["", " sc1", " nt", " sc1 nt"][E("OSC", 0)]
PROG_LAG = 1 if E("PUBW", 1) == 1 else 0
HSC = "" if E("HPLAIN", 0) else " sc1"
WS = srd(S_WSR)
S_VAL = 37
S_P0, S_P1, S_P2, S_P3 = 38, 39, 42, 43
S_K0, S_K1, S_K2, S_K3, S_K4, S_K5 = 44, 45, 46, 47, 48, 50
S_F1 = 51
S_SA, S_SB = 94, 95
S_LST = 61
S_PO = 7
S_CNT = 52
S_M = 56
V_ONE, V_SIG, V_ST, V_G = V_E, V_E + 1, V_E + 2, V_E + 3
V_X = V_E + 4
L_GATE = L_Q
ABORT = [None]
TLP = [None]
INI = [None]
NT = lambda k, d: " nt" if E(k, d) else ""


def cvt(d, x, y):
    return "v_cvt_pk_bf16_f32 v%d, v%d, v%d" % (d, x, y)


def common(a):
    I = a.I
    a.srd(S_WSR, ptr(D_WS), 0, WS_SIZE)
    I("s_mov_b32 s%d, 0" % S_SPIN)
    I("v_mov_b32 v%d, 1" % V_ONE)
    I("v_min_u32 v%d, 1, v0" % V_SIG)
    I("v_lshlrev_b32 v%d, 30, v%d" % (V_SIG, V_SIG))


def signal(s_off):
    return ('vm', "buffer_atomic_add v%d, v%d, %s, s%d offen sc1" % (V_ONE, V_SIG, WS, s_off), 'sig')


def spin_check(a):
    a.I("s_add_u32 s%d, s%d, 1" % (S_SPIN, S_SPIN))
    a.I("s_cmp_gt_u32 s%d, 0x%x" % (S_SPIN, SPIN_LIMIT))
    a.I("s_cbranch_scc1 %s" % ABORT[0])


def poll(a, srd_, s_off, target, mask=False, sleep=4):
    I = a.I
    rt, ok = a.uid("L_pl"), a.uid("L_plok")
    I("v_mov_b32 v2, 0")
    a.L(rt)
    I("buffer_load_dword v1, v2, %s, s%d offen sc1" % (srd(srd_), s_off))
    spin_check(a)
    I("s_waitcnt vmcnt(0)")
    I("v_readfirstlane_b32 s%d, v1" % (S_T + 1))
    if mask:
        I("s_and_b32 s%d, s%d, 0xffff" % (S_T + 2, S_T + 1))
    I("s_cmp_ge_u32 s%d, %d" % (S_T + 2 if mask else S_T + 1, target))
    I("s_cbranch_scc1 %s" % ok)
    I("s_sleep %d" % sleep)
    I("s_branch %s" % rt)
    a.L(ok)


def wait_init(a, bases):
    I = a.I
    a.srd(S_AUX2, ptr(D_DBG), 0, 256)
    I("s_mov_b32 s%d, %d" % (S_T, DB_INIT))
    poll(a, S_AUX2, S_T, 256, mask=True)
    bases(a, S_T + 1, S_EVEN, S_ODD, S_T)


def adv_plain(stream_):
    return ["s_add_u32 s%d, s%d, 1" % (S_DB, S_DB),
            "s_min_u32 s%d, s%d, 63" % (S_DB, S_DB),
            "s_lshl_b32 s%d, s%d, 16" % (S_NOF, S_DB)]


def start_plain(a):
    I = a.I
    for s in (S_B, S_DB, S_OFF, S_VAL):
        I("s_mov_b32 s%d, 0" % s)
    I("s_mov_b32 s%d, 64" % S_END)


def valid(*regs):
    return ["s_cmp_eq_u32 s%d, 0" % S_VAL] + ["s_cselect_b32 s%d, 0x%x, s%d" % (r, OOB, r) for r in regs]


def warm(a, srd_, nbytes, s_idx, nwg):
    I = a.I
    I("v_lshlrev_b32 v1, 4, v0")
    I("s_lshl_b32 s%d, s%d, 12" % (S_T, s_idx))
    lw = a.uid("L_warm")
    a.L(lw)
    for k in range(16):
        I("buffer_load_dwordx4 %s, v1, %s, s%d offen" % (v4(V_FR + 4 * k), srd(srd_), S_T))
        I("s_add_u32 s%d, s%d, 0x%x" % (S_T, S_T, nwg * 4096))
    I("s_waitcnt vmcnt(16)")
    I("s_cmp_lt_u32 s%d, 0x%x" % (S_T, nbytes))
    I("s_cbranch_scc1 %s" % lw)
    I("s_waitcnt vmcnt(0)")


def first_blocks(a, nwg):
    I = a.I
    I("v_lshlrev_b32 v1, 4, v0")
    I("s_lshl_b32 s%d, s%d, 12" % (S_T, S_RK))
    for k in range(E("NFB", 4) * 16 // nwg):
        I("buffer_load_dwordx4 %s, v1, %s, s%d offen" % (v4(V_ACC), srd(S_SRC), S_T))
        I("s_add_u32 s%d, s%d, %d" % (S_T, S_T, nwg * 4096))


def proj_panel(a):
    I = a.I
    I("s_mov_b32 s%d, s%d" % (S_T, S_XW))
    I("s_cmp_eq_u32 s%d, 1" % S_T)
    I("s_cselect_b32 s%d, s%d, s%d" % (S_AUX, ptr(B_WV), ptr(B_WK)))
    I("s_cselect_b32 s%d, s%d, s%d" % (S_AUX + 1, ptr(B_WV) + 1, ptr(B_WK) + 1))
    I("s_cmp_eq_u32 s%d, 2" % S_T)
    I("s_cselect_b32 s%d, s%d, s%d" % (S_AUX, ptr(B_WQ), S_AUX))
    I("s_cselect_b32 s%d, s%d, s%d" % (S_AUX + 1, ptr(B_WQ) + 1, S_AUX + 1))
    I("s_and_b32 s%d, s%d, 0xffff" % (S_AUX + 1, S_AUX + 1))
    I("s_mov_b32 s%d, 0x%x" % (S_AUX + 2, 8 * MB))
    I("s_mov_b32 s%d, 0x00020000" % (S_AUX + 3))
    I("s_mov_b32 s%d, s%d" % (S_K2, S_RK))
    if E("QSLEEP", 0):
        lab = a.uid("L_nosl")
        I("s_cmp_lg_u32 s%d, 2" % S_XW)
        I("s_cbranch_scc1 %s" % lab)
        for _ in range(E("QSLEEP", 0)):
            I("s_sleep 127")
        a.L(lab)
    I("s_lshl_b32 s%d, s%d, 8" % (S_K0, S_K2))
    a.srd(S_SRC, ptr(B_X), 0, 4 * MB)
    first_blocks(a, 32)
    load_panel_t(a, S_K0, 8192, 'kv', flags=NT('NTP', 0))
    Stream(a, "p", 'row', True, 'kv').setup()
    I("v_lshlrev_b32 v%d, 4, v5" % V_ST)
    I("v_lshl_add_u32 v%d, v3, 9, v%d" % (V_ST, V_ST))
    I("s_lshl_b32 s%d, s%d, 15" % (S_K0, S_K2))
    I("s_lshr_b32 s%d, s%d, 1" % (S_T, S_WV))
    I("s_lshl_b32 s%d, s%d, 14" % (S_T, S_T))
    I("s_add_u32 s%d, s%d, s%d" % (S_K0, S_K0, S_T))
    I("s_and_b32 s%d, s%d, 1" % (S_T, S_WV))
    I("s_lshl_b32 s%d, s%d, 12" % (S_T, S_T))
    I("s_add_u32 s%d, s%d, s%d" % (S_K0, S_K0, S_T))
    start_plain(a)


def pack(st, P, isv):
    out = []
    for h in range(2):
        for k in range(2):
            r = st.acc(P, k, h) if isv else st.acc(P, h, k)
            out += [cvt(V_X + 4 * h + 2 * k, r, r + 1), cvt(V_X + 4 * h + 2 * k + 1, r + 2, r + 3)]
    return out


def run_kv(a, isv):
    st = Stream(a, "v" if isv else "k", 'row', not isv, 'kv')
    SEN, LIN = V_X + 8, V_X + 12
    for i in range(4):
        a.I("v_mov_b32 v%d, 0x%x" % (SEN + i, SENT))
    a.I("v_and_b32 v%d, 63, v0" % LIN)
    a.I("v_lshlrev_b32 v%d, 3, v%d" % (LIN + 1, LIN))
    a.I("v_lshlrev_b32 v%d, 4, v%d" % (LIN, LIN))

    def side(P):
        par = ["s_sub_u32 s%d, s%d, 1" % (S_P1, S_B),
               ["s_bitcmp1_b32 s%d, 1" % S_P1, "s_cselect_b32 s%d, s%d, s%d" % (S_P0, S_ODD, S_EVEN)],
               "s_add_u32 s%d, s%d, s%d" % (S_P0, S_P0, S_K0),
               "s_lshl_b32 s%d, s%d, 20" % (S_P2, S_P1),
               "s_add_u32 s%d, s%d, s%d" % (S_P0, S_P0, S_P2),
               "s_lshl_b32 s%d, s%d, 7" % (S_P1, S_P1),
               "s_add_u32 s%d, s%d, 0x%x" % (S_P1, S_P1, C_KV),
               valid(S_P0, S_P1)]
        pk = pack(st, P, isv)
        sto = lambda h: ('vm', "buffer_store_dwordx4 %s, v%d, %s, s%d offen offset:%d sc1" % (v4(V_X + 4 * h), V_ST, WS, S_P0, 2048 * isv + 128 * h), 'st')
        q = E("KVSIGQ", 2)
        poi = lambda s_, off: ('vm', "buffer_store_dwordx4 %s, v%d, %s, s%d offen offset:%d sc1" % (v4(SEN), LIN, WS, s_, off), 'st')
        ext = ["s_add_u32 s%d, s%d, 0x%x" % (S_P2, S_P0, WS_P - WS_B),
               ('vm', "buffer_store_dwordx2 %s, v%d, %s, s%d offen offset:%d sc1" % (v2(SEN), LIN + 1, WS, S_P2, 512 * isv), 'st')]
        assert E("PXB", 1) and E("NREPL", 2) <= 2
        if not isv:
            lab = a.uid("L_nokm")
            ext = [ext[0], ["s_cmp_le_u32 s%d, %d" % (S_B, SEN0), "s_cbranch_scc1 %s" % lab, poi(S_P2, KM_OFF)[1], lab + ":"], ext[1]]
        return [(0, E("KVST", 30), par[:] + pk[:4] + [sto(0)] + pk[4:] + [sto(1)] + ext),
                (32 * q + 21, 32 * q + 30, [('sync', 'st'), signal(S_P1), "s_mov_b32 s%d, 1" % S_VAL])]

    def flush(P):
        for _, _, items in side(P):
            st.emit_plain(items)
    st.run(adv_plain, side, flush)


A_AD = 96
A_KX, A_QF, A_VT, A_SX, A_VM, A_P, A_T, A_BI = 104, 136, 168, 200, 216, 224, 234, 240
A_SM = V_ACC + 16
S_AK, S_AO, S_PEND, S_SG, S_LM = S_K4, S_K5, S_K1, S_F1, S_PO
S_AP = S_SA
boff = lambda c: (c >> 1) * 16384 + (c & 1) * 4096


def attn_setup(a):
    I = a.I
    a.C("---- attention setup")
    lin, km, vt, vm, ost = range(A_AD, A_AD + 5)
    I("v_and_b32 v1, 31, v0")
    I("v_bfe_u32 v2, v0, 5, 1")
    I("v_and_b32 v%d, 63, v0" % lin)
    I("v_lshlrev_b32 v%d, 4, v%d" % (lin, lin))
    I("v_and_b32 v4, 7, v1")
    I("v_lshlrev_b32 v4, 4, v4")
    I("s_lshl_b32 s%d, s%d, 12" % (S_LM, S_WV))
    I("s_add_u32 s%d, s%d, 0x%x" % (S_LM, S_LM, L_Q + 4096))
    I("v_lshl_add_u32 v%d, v2, 7, v4" % km)
    I("v_add_u32 v%d, s%d, v%d" % (km, S_LM, km))
    I("v_bfe_u32 v5, v1, 2, 1")
    I("v_lshlrev_b32 v5, 4, v5")
    I("v_lshrrev_b32 v6, 3, v1")
    I("v_lshl_add_u32 v5, v6, 2, v5")
    I("v_and_b32 v6, 3, v1")
    I("v_add_u32 v5, v5, v6")
    I("v_lshlrev_b32 v5, 4, v5")
    I("v_lshl_add_u32 v%d, v2, 9, v5" % vt)
    I("v_lshl_add_u32 v%d, v2, 3, v5" % vm)
    I("v_add_u32 v%d, s%d, v%d" % (vm, S_LM, vm))
    I("v_lshlrev_b32 v4, 4, v1")
    I("v_lshl_add_u32 v%d, v2, 10, v4" % ost)
    I("v_and_b32 v%d, 63, v0" % V_SIG)
    I("v_min_u32 v%d, 1, v%d" % (V_SIG, V_SIG))
    I("v_lshlrev_b32 v%d, 30, v%d" % (V_SIG, V_SIG))
    I("v_lshlrev_b32 v4, 2, v2")
    I("v_sub_u32 v4, v1, v4")
    I("v_mov_b32 v5, 0xff800000")
    for i in range(16):
        I("v_cmp_gt_i32 vcc, %d, v4" % (8 * (i // 4) + (i % 4)))
        I("s_nop 1")
        I("v_cndmask_b32 v%d, 0, v5, vcc" % (A_BI + i))


def attn_bases(a):
    I = a.I
    I("s_add_u32 s%d, s%d, s%d" % (S_T + 2, S_K3, S_WV))
    I("s_lshl_b32 s%d, s%d, 20" % (S_T, S_T + 2))
    I("s_lshl_b32 s%d, s%d, 15" % (S_T + 1, S_K2))
    I("s_add_u32 s%d, s%d, s%d" % (S_T, S_T, S_T + 1))
    I("s_bitcmp1_b32 s%d, 1" % (S_T + 2))
    I("s_cselect_b32 s%d, s%d, s%d" % (S_AK, S_ODD, S_EVEN))
    I("s_cselect_b32 s%d, s%d, s%d" % (S_AO, S_EVEN, S_ODD))
    I("s_add_u32 s%d, s%d, s%d" % (S_AK, S_AK, S_T))
    I("s_add_u32 s%d, s%d, s%d" % (S_AO, S_AO, S_T))


def attn_xloads(ahead=False):
    lin, km, vt, vm, ost = range(A_AD, A_AD + 5)
    dst = (lambda r: "a[%d:%d]" % (r - A_KX, r - A_KX + 3)) if ahead else v4
    out = []
    for c, (base, reg, va, off) in [(c, x) for c in range(4) for x in ((S_AO, A_QF, lin, 0), (S_AK, A_KX, lin, 0))] + \
            [(c, (S_AK, A_VT, vt, 2048)) for c in range(4)]:
        if True:
            for u in range(2):
                out.append(["s_add_u32 s%d, s%d, %d" % (S_P3, base, boff(c) + 4 * MB * ahead),
                            ('vm', "buffer_load_dwordx4 %s, v%d, %s, s%d offen offset:%d" % (dst(reg + 8 * c + 4 * u), va, WS, S_P3, off + 1024 * u), 'pf')])
    return out


def attn_mloads():
    return [["s_add_u32 m0, s%d, %d" % (S_LM, c * 1024),
             "s_add_u32 s%d, s%d, 0x%x" % (S_P3, S_AK, WS_P - WS_B + boff(c) + KM_OFF),
             ('vm', "buffer_load_dwordx4 v%d, %s, s%d offen sc1 lds" % (A_AD, WS, S_P3), 'pf')] for c in range(4)]


def attn_compute(a, st):
    I = a.I
    lin, km, vt, vm, ost = range(A_AD, A_AD + 5)
    sg, so, st_, c1, c2 = S_P0, S_AO, S_P3, S_T + 3, S_T + 4
    m32 = lambda d, x, y, c: "v_mfma_f32_32x32x16_bf16 v[%d:%d], %s, %s, %s" % (d, d + 15, v4(x), v4(y), "0" if c is None else "v[%d:%d]" % (c, c + 15))
    a.C("---- attention")
    I("s_add_u32 s%d, s%d, s%d" % (sg, S_K3, S_WV))
    I("s_mov_b32 s%d, 0x%x" % (c1, 0x3fb8aa3b if EMU else 0x3e0293ee))
    I("s_mov_b32 s%d, 0x3db504f3" % c2)
    KM = A_KX
    mx, t1 = A_T, A_T + 1

    def emu(vals):
        if not EMU:
            return []
        return ["v_cvt_pk_bf16_f32 v%d, 0, v%d" % (v, v) for v in vals] + ["v_mul_f32 v%d, s%d, v%d" % (v, c2, v) for v in vals] + \
               ["v_cvt_pk_bf16_f32 v%d, 0, v%d" % (v, v) for v in vals]
    xs = lambda ks: m32(A_SX, A_KX + 4 * ks, A_QF + 4 * ks, A_BI if ks == 0 else A_SX)
    ms = lambda ks: m32(A_SM, KM + 4 * ks, A_QF + 4 * ks, None if ks == 0 else A_SM)
    rk = lambda ks: "ds_read_b128 %s, v%d offset:%d" % (v4(KM + 4 * ks), km, (ks >> 1) * 1024 + 256 * (ks & 1))
    rv = lambda c: "ds_read_b64 %s, v%d offset:%d" % (v2(A_VM + 2 * c), vm, c * 1024 + 512)
    m3 = lambda d, x, y, z: "v_max3_f32 v%d, v%d, v%d, v%d" % (d, x, y, z)
    xv = emu(range(A_SX, A_SX + 16)) + [m3(mx, A_SX, A_SX + 1, A_SX + 2), m3(t1, A_SX + 3, A_SX + 4, A_SX + 5)]
    for i in range(6, 14, 4):
        xv += [m3(mx, mx, A_SX + i, A_SX + i + 1), m3(t1, t1, A_SX + i + 2, A_SX + i + 3)]
    xv.append(m3(mx, mx, A_SX + 14, A_SX + 15))
    srv, tail = a.uid("L_asrv"), a.uid("L_atail")
    I("s_cmp_ge_u32 s%d, 64" % S_B)
    I("s_cbranch_scc1 %s" % srv)
    for c in range(4):
        I(rv(c))
    for ks in range(8):
        I(xs(ks))
        if ks:
            I(rk(ks - 1))
    I(rk(7))
    q = list(xv)
    for ks in range(8):
        I("s_waitcnt lgkmcnt(%d)" % min(7 - ks, 2) if ks in (0, 6, 7) else "s_nop 0")
        I(ms(ks))
        if ks >= 1:
            for _ in range(-(-len(xv) // 7)):
                if q:
                    I(q.pop(0))
    I("s_nop 7" if EMU else "s_nop 10")
    I("s_branch %s" % tail)
    a.L(srv)
    for ks in range(8):
        I(xs(ks))
    I("s_nop 11")
    for l in xv:
        I(l)
    rt, ok = a.uid("L_cw"), a.uid("L_cwok")
    I("s_add_u32 s%d, s%d, 1" % (S_T + 2, sg))
    I("s_sub_u32 s%d, s%d, %d" % (S_T + 1, sg, PROG_LAG))
    I("s_min_u32 s%d, s%d, %d" % (S_T + 1, S_T + 1, 62 - PROG_LAG))
    I("s_cmp_ge_u32 s%d, %d" % (sg, SEN0))
    I("s_cselect_b32 s%d, s%d, s%d" % (S_T + 2, S_T + 1, S_T + 2))
    I("v_mov_b32 v2, %d" % DB_PROG)
    a.L(rt)
    I("buffer_load_dword v1, v2, %s, 0 offen sc1" % srd(S_AUX2))
    spin_check(a)
    I("s_waitcnt vmcnt(0)")
    I("v_readfirstlane_b32 s%d, v1" % S_T)
    I("s_cmp_ge_u32 s%d, s%d" % (S_T, S_T + 2))
    I("s_cbranch_scc1 %s" % ok)
    I("s_sleep 4")
    I("s_branch %s" % rt)
    a.L(ok)
    st.emit_plain(attn_mloads())
    spin_check(a)
    I("s_waitcnt vmcnt(0)")
    for ks in range(8):
        I("ds_read_b128 %s, v%d offset:%d" % (v4(KM + 4 * ks), km, (ks >> 1) * 1024 + 256 * (ks & 1)))
        if ks % 2 == 1:
            I("ds_read_b64 %s, v%d offset:%d" % (v2(A_VM + ks - 1), vm, (ks >> 1) * 1024 + 512))
    I("v_mov_b32 v1, 0")
    for ks in range(8):
        I("s_waitcnt lgkmcnt(%d)" % (11 - ks - (ks + 1) // 2))
        I(m32(A_SM, KM + 4 * ks, A_QF + 4 * ks, None if ks == 0 else A_SM))
        I("v_max3_u32 v1, v1, v%d, v%d" % (KM + 4 * ks, KM + 4 * ks + 1))
        I("v_max3_u32 v1, v1, v%d, v%d" % (KM + 4 * ks + 2, KM + 4 * ks + 3))
        if ks % 2 == 1:
            I("v_max3_u32 v1, v1, v%d, v%d" % (A_VM + ks - 1, A_VM + ks))
    I("v_cmp_eq_u32 vcc, 0x%x, v1" % SENT)
    I("s_cbranch_vccnz %s" % ok)
    TLP[0](24, 192)
    I("s_nop 4")
    I("s_cmp_ge_u32 s%d, 60" % S_K3)
    I("s_cbranch_scc1 %s" % tail)
    st.emit_plain(attn_xloads(True))
    a.L(tail)
    for l in emu(range(A_SM, A_SM + 4)):
        I(l)
    I("v_max3_f32 v%d, v%d, v%d, v%d" % (t1, t1, A_SM, A_SM + 1))
    I("v_max3_f32 v%d, v%d, v%d, v%d" % (mx, mx, A_SM + 2, A_SM + 3))
    I("v_max_f32 v%d, v%d, v%d" % (mx, mx, t1))
    I("v_mov_b32 v%d, v%d" % (t1, mx))
    I("s_nop 1")
    I("v_permlane32_swap_b32 v%d, v%d" % (mx, t1))
    I("s_nop 0")
    I("v_max_f32 v%d, v%d, v%d" % (mx, mx, t1))
    I("v_mul_f32 v%d, s%d, v%d" % (mx, c1, mx))
    vals = [A_SX + i for i in range(16)] + [A_SM + i for i in range(4)]
    for v in vals:
        I("v_fma_f32 v%d, v%d, s%d, -v%d" % (v, v, c1, mx))
    for v in vals:
        I("v_exp_f32 v%d, v%d" % (v, v))
    sm = A_T + 2
    I("v_pk_add_f32 %s, %s, %s" % (v2(sm), v2(A_SX), v2(A_SX + 2)))
    for v in list(range(A_SX + 4, A_SX + 16, 2)) + [A_SM, A_SM + 2]:
        I("v_pk_add_f32 %s, %s, %s" % (v2(sm), v2(sm), v2(v)))
    I("v_add_f32 v%d, v%d, v%d" % (sm, sm, sm + 1))
    I("v_mov_b32 v%d, v%d" % (t1, sm))
    I("s_nop 1")
    I("v_permlane32_swap_b32 v%d, v%d" % (sm, t1))
    I("s_nop 0")
    I("v_add_f32 v%d, v%d, v%d" % (sm, sm, t1))
    I("v_rcp_f32 v%d, v%d" % (sm, sm))
    I("s_nop 0")
    for v in list(range(A_SX, A_SX + 16, 2)) + [A_SM, A_SM + 2]:
        I("v_pk_mul_f32 %s, %s, %s op_sel_hi:[1,0]" % (v2(v), v2(v), v2(sm)))
    for i in range(8):
        I(cvt(A_P + i, A_SX + 2 * i, A_SX + 2 * i + 1))
    I(cvt(A_P + 8, A_SM, A_SM + 1))
    I(cvt(A_P + 9, A_SM + 2, A_SM + 3))
    I("s_nop 1")
    OA = A_KX
    pack_ = lambda t: [cvt(A_VT + 8 * t + i, OA + 16 * t + 2 * i, OA + 16 * t + 2 * i + 1) for i in range(8)]
    misc = ["s_lshl_b32 s%d, s%d, 9" % (S_T, sg), "s_lshr_b32 s%d, s%d, 3" % (S_T + 1, S_K2),
            "s_lshl_b32 s%d, s%d, 7" % (S_T + 1, S_T + 1), "s_add_u32 s%d, s%d, s%d" % (S_T, S_T, S_T + 1),
            "s_add_u32 s%d, s%d, 0x%x" % (S_SG, S_T, C_O), "s_mov_b32 s%d, s%d" % (S_AP, so), "s_add_u32 s%d, s%d, 4" % (S_K3, S_K3)]
    for t in range(4):
        c = OA + 16 * t
        I(m32(c, A_VT + t * 8, A_P, None))
        I(m32(c, A_VT + t * 8 + 4, A_P + 4, c))
        p = pack_(t - 1) if t else misc
        for l in p[:4]:
            I(l)
        I("v_mfma_f32_32x32x8_bf16 v[%d:%d], %s, %s, v[%d:%d]" % (c, c + 15, v2(A_VM + 2 * t), v2(A_P + 8), c, c + 15))
        for l in p[4:]:
            I(l)
    I("s_nop 7")
    for l in pack_(3):
        I(l)


def attn_stores():
    out = []
    for t in range(4):
        for u in range(2):
            out.append(["s_add_u32 s%d, s%d, %d" % (S_P3, S_AP, boff(t)),
                        ('vm', "buffer_store_dwordx4 %s, v%d, %s, s%d offen offset:%d sc1" % (v4(A_VT + 8 * t + 4 * u), A_AD + 4, WS, S_P3, 2048 + 512 * u), 'ost')])
    return out


def run_q(a):
    I = a.I
    st = Stream(a, "q", 'row', True, 'kv')
    if not E("CWARM", 1):
        warm(a, S_SRC, 4 * MB, S_K2, 32)
    if E("WARMO", 0):
        a.srd(S_AUX, ptr(B_WO), 0, 8 * MB)
        warm(a, S_AUX, 8 * MB, S_K2, 32)
    attn_setup(a)
    att, nxt = a.uid("L_att"), a.uid("L_anext")
    GW, GR, GZ = 101, 102, 103
    I("s_mov_b32 s%d, 0" % S_K3)
    I("v_mov_b32 v%d, 0x%x" % (GR, L_GATE))
    I("v_lshl_add_u32 v%d, v0, 2, v%d" % (GW, GR))
    I("v_mov_b32 v%d, %d" % (GZ, DB_PROG))
    I("v_mov_b32 v%d, 0" % V_G)

    def items(P):
        par = ["s_sub_u32 s%d, s%d, 1" % (S_P1, S_B),
               ["s_bitcmp1_b32 s%d, 1" % S_P1, "s_cselect_b32 s%d, s%d, s%d" % (S_P0, S_EVEN, S_ODD)],
               "s_add_u32 s%d, s%d, s%d" % (S_P0, S_P0, S_K0),
               "s_lshl_b32 s%d, s%d, 20" % (S_P2, S_P1),
               "s_add_u32 s%d, s%d, s%d" % (S_P0, S_P0, S_P2),
               valid(S_P0), "s_mov_b32 s%d, 1" % S_VAL]
        pk = pack(st, P, False)
        sto = lambda h: ('vm', "buffer_store_dwordx4 %s, v%d, %s, s%d offen offset:%d" % (v4(V_X + 4 * h), V_ST, WS, S_P0, 128 * h), 'st')
        return par + pk[:4] + [sto(0)] + pk[4:] + [sto(1)]

    I("s_mov_b32 s%d, 0" % S_PEND)
    st.vmslots = (3, 6)
    st.full = True
    pf = attn_xloads() + attn_mloads()
    rets = [a.uid("L_attr") for _ in range(4)]

    def version(fetch, store):
        np0 = 12 if store else 15

        def side(P):
            out = [(0, 22, items(P))]
            if P == 0:
                if store:
                    out.append((50, 62, [('wait', 'ost'), signal(S_SG)]))
                if fetch:
                    out.append((0, 90, pf[np0:]))
                out.append((91, 100, [('vm', "buffer_load_dword v%d, v%d, %s, 0 offen sc1" % (V_G, GZ, srd(S_AUX2)), 'gate')]))
            else:
                out += [(4, 5, [('wait', 'gate'), "ds_write_b32 v%d, v%d" % (GW, V_G)]),
                        (22, 23, [('ds', "ds_read_b32 v%d, v%d" % (V_G, GR), 'gr')]),
                        (34, 34, [([('wait', 'pf')] if fetch else []) + ["s_branch %s" % (att if fetch else nxt), ('cut', ('pf', 'ost', 'sig')), rets[2 * store + fetch] + ":"]])]
                if store:
                    out.append((35, 127, attn_stores()))
                if fetch:
                    out.append((35, 127, pf[:np0]))
            return out
        return side

    def flush(P):
        if P == 0:
            return
        srv, fin = a.uid("L_aserve"), a.uid("L_afin")
        st.emit_plain(items(P) + [('sync', 'st')])
        TLP[0](28)
        I("s_mov_b32 s%d, 0x%x" % (S_T, C_KV + 63 * 128))
        poll(a, S_WSR, S_T, 64)
        I("s_cmp_eq_u32 s%d, 0" % S_PEND)
        I("s_cbranch_scc1 %s" % nxt)
        a.L(att)
        I("s_waitcnt lgkmcnt(0)")
        attn_compute(a, st)
        a.L(nxt)
        attn_bases(a)
        I("s_waitcnt lgkmcnt(4)")
        I("s_cmp_ge_u32 s%d, 64" % S_B)
        I("s_cbranch_scc1 %s" % srv)
        I("v_readfirstlane_b32 s%d, v%d" % (S_T, V_G))
        if E("QSTAG", 2):
            I("s_and_b32 s%d, s%d, 1" % (S_T + 1, S_K2))
            I("s_mul_i32 s%d, s%d, %d" % (S_T + 1, S_T + 1, E("QSTAG", 2)))
            I("s_sub_u32 s%d, s%d, s%d" % (S_T, S_T, S_T + 1))
        I("s_sub_u32 s%d, s%d, 3" % (S_T + 1, S_B))
        I("s_min_i32 s%d, s%d, s%d" % (S_T, S_T, S_T + 1))
        I("s_add_u32 s%d, s%d, 4" % (S_T + 1, S_K3))
        I("s_cmp_ge_i32 s%d, s%d" % (S_T, S_T + 1))
        go = a.uid("L_ago")
        I("s_cbranch_scc1 %s" % go)
        I("s_cmp_eq_u32 s%d, 0" % S_PEND)
        I("s_mov_b32 s%d, 0" % S_PEND)
        I("s_cbranch_scc1 %s" % rets[0])
        I("s_branch %s" % rets[2])
        a.L(go)
        I("s_cmp_eq_u32 s%d, 0" % S_PEND)
        I("s_mov_b32 s%d, 1" % S_PEND)
        I("s_cbranch_scc1 %s" % rets[1])
        I("s_branch %s" % rets[3])
        a.L(srv)
        first = a.uid("L_afirst")
        I("s_cmp_eq_u32 s%d, 0" % S_PEND)
        I("s_cbranch_scc1 %s" % first)
        st.emit_plain(attn_stores())
        I("s_waitcnt vmcnt(0)")
        I(signal(S_SG)[1])
        I("s_cmp_ge_u32 s%d, 64" % S_K3)
        I("s_cbranch_scc1 %s" % fin)
        for r in range(96):
            I("v_accvgpr_read_b32 v%d, a%d" % (A_KX + r, r))
        I("s_branch %s" % att)
        a.L(first)
        st.emit_plain(attn_xloads())
        I("s_mov_b32 s%d, 1" % S_PEND)
        I("s_waitcnt vmcnt(0)")
        I("s_branch %s" % att)
        a.L(fin)
        TLP[0](25, 192)
    st.run(adv_plain, [version(f, s_) for s_ in range(2) for f in range(2)], flush)


def run_g1(a, bases):
    I = a.I
    LR, LI, CR, CI, PR, PI, HR, HI = range(V_X, V_X + 8)
    NLI, NPI, NCR, NCI = 152, 153, 154, 155
    TB = 156
    XR, XI, NXR, NXI = range(V_X + 8, V_X + 12)
    G = V_X + 16
    OB = 120
    O = 128
    OT = 144
    ID, SL, TD = 116, 172, 180
    a.C("======== SSM input projection and scan")
    for _ in range(E("G1SLEEP", 0)):
        I("s_sleep 127")
    a.srd(S_SRC, ptr(A_X), 0, 4 * MB)
    first_blocks(a, 16)
    I("s_lshl_b32 s%d, s%d, 6" % (S_K2, S_RK))
    I("s_lshl_b32 s%d, s%d, 4" % (S_T, S_WV))
    I("s_add_u32 s%d, s%d, s%d" % (S_K2, S_K2, S_T))
    I("v_and_b32 v1, 15, v0")
    I("v_add_u32 v1, s%d, v1" % S_K2)
    I("v_bfe_u32 v2, v0, 4, 2")
    I("v_lshlrev_b32 v3, 1, v1")
    for i, src in enumerate((A_LRE, A_LIM, A_LOGDT)):
        a.srd(S_AUX, ptr(src), 0, 2048)
        I("buffer_load_ushort v%d, v3, %s, 0 offen" % (O + i, srd(S_AUX)))
    a.srd(S_AUX, ptr(A_BRE), 0, 2 * MB)
    a.srd(S_AUX2, ptr(A_BIM), 0, 2 * MB)
    I("v_and_b32 v5, 3, v0")
    I("v_cmp_eq_u32 vcc, v5, v2")
    I("v_and_b32 v5, 1, v0")
    I("v_lshlrev_b32 v5, 4, v5")
    I("v_cndmask_b32 v%d, 0, 1.0, vcc" % ID)
    I("v_mov_b32 v6, 0x3f80")
    I("v_lshlrev_b32 v6, v5, v6")
    I("v_bfe_u32 v5, v0, 1, 3")
    I("v_lshlrev_b32 v7, 2, v2")
    I("v_sub_u32 v5, v5, v7")
    for t in range(2):
        for r in range(4):
            I("v_cmp_eq_i32 vcc, %d, v5" % (r - 8 * t))
            I("s_nop 1")
            I("v_cndmask_b32 v%d, 0, v6, vcc" % (SL + 4 * t + r))
    I("s_lshl_b32 s%d, s%d, 6" % (S_T, S_K2))
    I("v_and_b32 v5, 15, v0")
    I("v_lshlrev_b32 v5, 4, v5")
    I("v_bfe_u32 v6, v0, 5, 1")
    I("v_lshl_add_u32 v5, v6, 9, v5")
    I("v_bfe_u32 v6, v0, 4, 1")
    I("v_lshl_add_u32 v5, v6, 3, v5")
    I("v_add_u32 v%d, s%d, v5" % (V_ST, S_T))
    load_panel_n(a, S_K2, 'two', (S_AUX, S_AUX2), NT("NTS", 1))
    lre, lim, ldt, x0, x1, x2, x3 = O, O + 1, O + 2, O + 3, O + 4, O + 5, O + 6
    for r in (lre, lim, ldt):
        I("v_lshlrev_b32 v%d, 16, v%d" % (r, r))
    I("v_mul_f32 v%d, 0x3fb8aa3b, v%d" % (x0, ldt))
    I("v_exp_f32 v%d, v%d" % (x0, x0))
    I("s_nop 0")
    I("v_cvt_pk_bf16_f32 v%d, 0, v%d" % (x0, x0))
    I("v_mul_f32 v%d, v%d, v%d" % (x1, x0, lre))
    I("v_mul_f32 v%d, v%d, v%d" % (x2, x0, lim))
    I("v_mul_f32 v%d, 0x3fb8aa3b, v%d" % (x1, x1))
    I("v_exp_f32 v%d, v%d" % (x1, x1))
    I("v_mul_f32 v%d, 0x3e22f983, v%d" % (x2, x2))
    I("v_fract_f32 v%d, v%d" % (x2, x2))
    I("v_cos_f32 v%d, v%d" % (x3, x2))
    I("v_sin_f32 v%d, v%d" % (x2, x2))
    I("s_nop 0")
    I("v_mul_f32 v%d, v%d, v%d" % (LR, x1, x3))
    I("v_mul_f32 v%d, v%d, v%d" % (LI, x1, x2))
    I("v_add_f32 v%d, -1.0, v%d" % (x0, LR))
    I("v_mul_f32 v%d, v%d, v%d" % (x1, x0, lre))
    I("v_fma_f32 v%d, v%d, v%d, v%d" % (x1, LI, lim, x1))
    I("v_mul_f32 v%d, v%d, v%d" % (x2, LI, lre))
    I("v_fma_f32 v%d, -v%d, v%d, v%d" % (x2, x0, lim, x2))
    I("v_mul_f32 v%d, v%d, v%d" % (x3, lre, lre))
    I("v_fma_f32 v%d, v%d, v%d, v%d" % (x3, lim, lim, x3))
    I("v_rcp_f32 v%d, v%d" % (x3, x3))
    I("s_nop 0")
    I("v_add_f32 v%d, v%d, v%d" % (x3, x3, x3))
    I("v_mul_f32 v%d, v%d, v%d" % (CR, x1, x3))
    I("v_mul_f32 v%d, v%d, v%d" % (CI, x2, x3))
    I("v_mov_b32 v%d, v%d" % (PR, LR))
    I("v_mov_b32 v%d, v%d" % (PI, LI))
    for k in range(3):
        I("v_mul_f32 v%d, v%d, v%d" % (x0, PI, PI))
        I("v_mul_f32 v%d, v%d, v%d" % (PI, PR, PI))
        I("v_fma_f32 v%d, v%d, v%d, -v%d" % (PR, PR, PR, x0))
        I("v_add_f32 v%d, v%d, v%d" % (PI, PI, PI))
    for n_, p_ in ((NLI, LI), (NPI, PI), (NCR, CR), (NCI, CI)):
        I("v_xor_b32 v%d, 0x80000000, v%d" % (n_, p_))
    for k in range(8):
        pr, pi = (CR, CI) if k == 0 else (TB + 2 * k - 2, TB + 2 * k - 1)
        I("v_mul_f32 v%d, v%d, v%d" % (TB + 2 * k, LR, pr))
        I("v_mul_f32 v%d, v%d, v%d" % (TB + 2 * k + 1, LR, pi))
        I("v_fmac_f32 v%d, v%d, v%d" % (TB + 2 * k, NLI, pi))
        I("v_fmac_f32 v%d, v%d, v%d" % (TB + 2 * k + 1, LI, pr))
    I("v_mov_b32 v%d, 0" % HR)
    I("v_mov_b32 v%d, 0" % HI)
    for i in range(16):
        I("v_mov_b32 v%d, 0" % (V_ACC + 16 + i))
    st = Stream(a, "g1", 'row', False, 't8')
    st.setup()
    wait_init(a, bases)
    TLP[0](17)
    for k, (lo, hi) in enumerate(((0xffff0000, 0xffffffff), (0, 0xffffffff), (0, 0xffff0000))):
        I("s_mov_b32 s%d, 0x%x" % (S_M + 2 * k, lo))
        I("s_mov_b32 s%d, 0x%x" % (S_M + 2 * k + 1, hi))
    start_plain(a)
    for r in (S_P0, S_P1, S_P3):
        I("s_mov_b32 s%d, 0x%x" % (r, OOB))

    fm = lambda d, x, y: "v_fmac_f32 v%d, v%d, v%d" % (d, x, y)
    mu = lambda d, x, y: "v_mul_f32 v%d, v%d, v%d" % (d, x, y)

    def cmac(dr, di, lr, li, nli, xr, xi):
        return [fm(dr, lr, xr), fm(di, lr, xi), fm(dr, nli, xi), fm(di, li, xr)]

    def scan(P):
        ur = lambda k: st.acc(P, k >> 2, 0) + (k & 3)
        ui = lambda k: st.acc(P, k >> 2, 1) + (k & 3)
        scl = lambda k: [mu(O + k, CR, ur(k)), mu(O + 8 + k, NCR, ui(k)), fm(O + k, NCI, ui(k)), fm(O + 8 + k, NCI, ur(k))]
        it = []
        for k in range(1, 8):
            c, d = cmac(ur(k), ui(k), LR, LI, NLI, ur(k - 1), ui(k - 1)), scl(k - 1)
            it += [c[0], c[1], d[0], d[1], c[2], c[3], d[2], d[3]]
        d = scl(7)
        it += ["v_mfma_f32_16x16x4_f32 %s, v%d, v%d, 0" % (v4(G), ID, ur(7)), "v_mfma_f32_16x16x4_f32 %s, v%d, v%d, 0" % (v4(G + 4), ID, ui(7))]
        it += d + ["s_nop 0"] * 7
        xr, xi = HR, HI
        for j in range(4):
            it += cmac(G + j, G + 4 + j, PR, PI, NPI, xr, xi)
            xr, xi = G + j, G + 4 + j
            if j < 3:
                src = (HR, HI) if j == 0 else (XR, XI)
                it += ["v_cndmask_b32 v%d, v%d, v%d, s[%d:%d]" % (XR + u, src[u], G + 4 * u + j, S_M + 2 * j, S_M + 2 * j + 1) for u in range(2)]
        it += ["v_xor_b32 v%d, 0x80000000, v%d" % (NXR, XR), "v_xor_b32 v%d, 0x80000000, v%d" % (NXI, XI),
               "v_mov_b32 v%d, v%d" % (HR, G + 3), "v_mov_b32 v%d, v%d" % (HI, G + 7)]
        for k in range(8):
            it += [fm(O + k, TB + 2 * k, XR), fm(O + 8 + k, TB + 2 * k, NXI), fm(O + k, TB + 2 * k + 1, NXI), fm(O + 8 + k, TB + 2 * k + 1, NXR)]
            if k % 2:
                it += [cvt(OB + k // 2, O + k - 1, O + k), cvt(OB + 4 + k // 2, O + 7 + k, O + 8 + k)]
        it += ["s_nop 0", "s_nop 0"]
        it += ["v_mfma_f32_16x16x32_bf16 %s, %s, %s, 0" % (v4(TD + 8 * k + 4 * t), v4(OB + 4 * k), v4(SL + 4 * t)) for k in range(2) for t in range(2)]
        it += ["s_sub_u32 s%d, s%d, 1" % (S_P1, S_B),
               "s_lshl_b32 s%d, s%d, 17" % (S_P0, S_P1),
               "s_add_u32 s%d, s%d, 0x%x" % (S_P0, S_P0, WS_HT),
               "s_add_u32 s%d, s%d, 0x10000" % (S_P3, S_P0),
               "s_lshl_b32 s%d, s%d, 7" % (S_P1, S_P1),
               "s_add_u32 s%d, s%d, 0x%x" % (S_P1, S_P1, C_H),
               valid(S_P0, S_P1, S_P3),
               "s_mov_b32 s%d, 1" % S_VAL]
        return it
    sto = []
    for k in range(2):
        for t in range(2):
            r, o = TD + 8 * k + 4 * t, OT + 4 * k + 2 * t
            sto += [cvt(o, r, r + 1), cvt(o + 1, r + 2, r + 3),
                    ('vm', "buffer_store_dwordx2 %s, v%d, %s, s%d offen offset:%d%s" % (v2(o), V_ST, WS, S_P3 if k else S_P0, 256 * t, HSC), 'st')]
    sig = [('sync', 'st'), signal(S_P1)]

    def side(P):
        sc = scan(P)
        if E("G1NODS", 0):
            sc = [it for it in sc if not (isinstance(it, str) and it.startswith("ds_write"))]
        if E("G1NOPL", 0):
            sc = [it for it in sc if not (isinstance(it, str) and "permlane" in it)]
        q = E("G1SIGQ", 2)
        return [(2, 30, sto), (32 * q + 21, 32 * q + 30, sig), (3, 127, sc)]

    def flush(P):
        st.emit_plain(sto + sig + scan(P) + sto + sig)
    st.run(adv_plain, side, flush)


class Reduce:
    R = V_X
    SUM = V_X + 8
    PK = V_X + 16
    LIN = V_X + 24
    TR, TW = V_X + 25, V_X + 26
    OWN = V_X + 28
    T = V_X + 36
    F = V_X + 40
    S_TAG = S_PO

    def __init__(self, a, st, sends, own, trans, target, cshift, src_addr, lead, seg=None):
        self.seg = seg or (lambda d: [])
        self.order = None
        self.la = 4
        self.a, self.st, self.sends, self.own, self.trans = a, st, sends, own, trans
        self.target, self.cshift, self.src_addr, self.lead = target, cshift, src_addr, lead
        self.nw = len(own(0)) // 2
        self.op = "dwordx%d" % self.nw

    def announce(self, s_rdy):
        I = self.a.I
        I("s_waitcnt vmcnt(0)")
        I("s_barrier")
        I(signal(s_rdy)[1])

    def prepare(self):
        I = self.a.I
        for i in range(4):
            I("v_mov_b32 v%d, 0" % (self.PK + i))
        I("v_and_b32 v2, 63, v0")
        I("v_lshlrev_b32 v3, 4, v2")
        I("v_lshlrev_b32 v%d, %d, v2" % (self.LIN, 1 + self.nw.bit_length()))
        for k in range(8):
            I("s_add_u32 s%d, s%d, %d" % (S_T + 3, S_K0, k * 1024))
            I("buffer_store_dwordx4 %s, v3, %s, s%d offen sc1" % (v4(self.PK), WS, S_T + 3))
        I("v_lshrrev_b32 v1, 6, v0")
        I("v_lshlrev_b32 v1, 11, v1")
        I("v_add_u32 v1, 0x%x, v1" % (L_GATE + 4096))

    def gload(self):
        return "buffer_load_dword v%d, v4, %s, s%d offen sc1" % (V_G, WS, S_F1)

    def gtest(self):
        return ["v_readfirstlane_b32 s%d, v%d" % (S_T + 5, V_G), "s_cmp_lt_u32 s%d, %d" % (S_T + 5, self.target)]

    def gwait(self, out, back):
        rt = self.a.uid("L_gw")
        out.append(rt + ":")
        if E("TL", 0):
            out.append("    s_add_u32 s%d, s%d, 0x10000" % (S_CNT, S_CNT))
        out += ["    " + self.gload(), "    s_add_u32 s%d, s%d, 1" % (S_SPIN, S_SPIN),
                "    s_cmp_gt_u32 s%d, 0x%x" % (S_SPIN, SPIN_LIMIT), "    s_cbranch_scc1 %s" % ABORT[0], "    s_waitcnt vmcnt(0)"]
        out += ["    " + l for l in self.gtest()]
        out += ["    s_cbranch_scc0 %s" % back, "    s_sleep 1", "    s_branch %s" % rt]
        return rt

    def advance(self, stream_):
        back = self.a.uid("L_gok")
        if not stream_:
            w = []
            self.gwait(w, back)
            return [l.strip() for l in w] + [back + ":", "s_add_u32 s%d, s%d, 1" % (S_DB, S_DB), "s_min_u32 s%d, s%d, s%d" % (S_DB, S_DB, S_LST)] + \
                self.src_addr() + self.caddr(1) + [self.gload()]
        rt = self.gwait(self.st.cold, back)
        t = self.gtest()
        return ["s_add_u32 s%d, s%d, 1" % (S_DB, S_DB), "s_min_u32 s%d, s%d, s%d" % (S_DB, S_DB, S_LST)] + self.src_addr() + \
               [('wait', 'gate'), t[0], "s_nop 0", "s_nop 0", [t[1], "s_cbranch_scc1 %s" % rt, back + ":"]]

    def caddr(self, add):
        d = S_F1
        return ["s_add_u32 s%d, s%d, %d" % (d, S_DB, add), "s_min_u32 s%d, s%d, s%d" % (d, d, S_LST)] + self.seg(d) + [
                "s_lshl_b32 s%d, s%d, %d" % (d, d, self.cshift),
                "s_add_u32 s%d, s%d, s%d" % (d, d, S_K4)]

    def gate(self):
        g0 = (70 + 32 * (-self.st.la % 4)) % 128
        pre, more = self.order() if self.order else ([], [])
        return [(g0 - len(pre), g0 + 16, pre + self.caddr(1) + [('vm', self.gload(), 'gate')])] + more

    def vr(self, r):
        return "v[%d:%d]" % (r, r + self.nw - 1)

    def loads(self):
        return [('vm', "buffer_load_%s %s, v%d, %s, s%d offen offset:%d sc1" % (self.op, self.vr(self.R + self.nw * j), self.LIN, WS, S_P1, j * 512), 'rcv')
                for j in range(len(self.sends))]

    def check(self):
        n = self.nw * len(self.sends)
        it = ["v_xor_b32 v%d, s%d, v%d" % (self.T, self.S_TAG, self.R)]
        it += ["v_bitop3_b32 v%d, v%d, v%d, s%d bitop3:0xf6" % (self.T, self.T, self.R + i, self.S_TAG) for i in range(1, n)]
        return it + ["v_and_b32 v%d, 1, v%d" % (self.T, self.T), "v_cmp_ne_u32 vcc, 0, v%d" % self.T]

    def send(self, P):
        it = ["s_sub_u32 s%d, s%d, 1" % (S_P0, S_B),
              "s_and_b32 s%d, s%d, 3" % (S_T + 6, S_P0),
              "s_lshl_b32 s%d, s%d, 11" % (S_T + 6, S_T + 6),
              "s_bfe_u32 s%d, s%d, 0x10002" % (S_P0, S_P0),
              "s_xor_b32 s%d, s%d, 1" % (S_P0, S_P0),
              ["s_cmp_eq_u32 s%d, 0" % S_VAL, "s_cselect_b32 s%d, 0x%x, s%d" % (S_T + 6, 0x40000000, S_T + 6),
               "s_cselect_b32 s%d, 0, s%d" % (S_P0, S_P0)]]
        for j, (regs, sk) in enumerate(self.sends):
            r, d = regs(P), self.PK + self.nw * j
            it += [cvt(d + k, r[2 * k], r[2 * k + 1]) for k in range(self.nw)]
            it += ["v_and_or_b32 v%d, v%d, -2, s%d" % (d + k, d + k, S_P0) for k in range(self.nw)]
            it += ["s_add_u32 s%d, s%d, s%d" % (S_T + 4, sk, S_T + 6),
                   ('vm', "buffer_store_%s %s, v%d, %s, s%d offen offset:%d%s" % (self.op, self.vr(d), self.LIN, WS, S_T + 4, j * 512, HSC), 'snd')]
        return it

    def finish(self, final):
        a, st = self.a, self.st
        bad, ok = a.uid("L_rbad"), a.uid("L_rok")
        C = st.cold
        C.append(bad + ":")
        if E("TL", 0):
            C.append("    s_add_u32 s%d, s%d, 1" % (S_CNT, S_CNT))
        C.extend("    " + l[1] for l in self.loads())
        C += ["    s_add_u32 s%d, s%d, 1" % (S_SPIN, S_SPIN), "    s_cmp_gt_u32 s%d, 0x%x" % (S_SPIN, SPIN_LIMIT),
              "    s_cbranch_scc1 %s" % ABORT[0], "    s_waitcnt vmcnt(0)"]
        C.extend("    " + l for l in self.check())
        C += ["    s_cbranch_vccnz %s" % bad, "    s_branch %s" % ok]
        one = [('wait', 'rcv')] + self.check() + ["s_nop 0", "s_nop 0", "s_nop 0", ["s_cbranch_vccnz %s" % bad, ok + ":"]]
        for j in range(len(self.sends)):
            for k in range(self.nw):
                r, src = self.R + self.nw * j + k, (self.OWN if j == 0 else self.SUM) + 2 * k
                one += ["v_lshlrev_b32 v%d, 16, v%d" % (self.T, r), "v_and_b32 v%d, 0xffff0000, v%d" % (self.T + 1, r),
                        "v_add_f32 v%d, v%d, v%d" % (self.SUM + 2 * k, src, self.T),
                        "v_add_f32 v%d, v%d, v%d" % (self.SUM + 2 * k + 1, src + 1, self.T + 1)]
        if not self.trans:
            return one, final
        one += self.trans
        one += [('ds', "ds_read_b128 %s, v%d offset:%d" % (v4(self.R + 4 * k), self.TR, 1024 * k), 'tr') for k in range(self.nw // 2)]
        return one, [('lwait', 'tr')] + final

    def fetch(self, P, params):
        it = ["v_mov_b32 v%d, v%d" % (self.OWN + i, r) for i, r in enumerate(self.own(P))]
        it += ["s_mov_b32 s%d, s%d" % (self.S_TAG, S_P0), "s_add_u32 s%d, s%d, s%d" % (S_P1, S_K0, S_T + 6)]
        return it + params + self.loads() + ["s_mov_b32 s%d, 1" % S_VAL]

    def runs(self, params, pre, final):
        a, I, st = self.a, self.a.I, self.st
        st.la, st.full = self.la, True
        I("s_mov_b32 s%d, 0" % S_CNT)
        I("v_mov_b32 v4, 0")
        I("s_mov_b32 s%d, 0" % S_B)
        I("s_sub_u32 s%d, s%d, 1" % (S_LST, S_END))
        I("s_mov_b32 s%d, s%d" % (S_DB, S_B))
        st.emit_plain(self.caddr(self.lead))
        go = a.uid("L_rgo")
        self.gwait(a.lines, go)
        a.L(go)
        st.emit_plain(self.caddr(1) + [self.gload()])
        I("s_mov_b32 s%d, 0" % S_VAL)
        I("s_mov_b32 s%d, 0" % self.S_TAG)
        for k in range(8):
            I("v_mov_b32 v%d, 0" % (self.R + k))
        st.emit_plain(self.src_addr())
        I("s_mov_b32 s%d, s%d" % (S_OFF, S_NOF))
        for r in (S_P1, S_P2, S_P3):
            I("s_mov_b32 s%d, 0x%x" % (r, OOB))
        f0, f1, f2 = self.plan
        if pre:
            final = [('wait', pre[-1][2])] + final

        def side(P):
            one, two = self.finish(final)
            return self.gate() + [(0, 38, self.send(P)), (f0, f1 - 4, one), (f1, f2 - 1, two), (f2, 127, self.fetch(P, params)), (0, 54, pre)]

        def flush(P):
            TLP[0](22 if st.name == 'g2' else 27)
            one, two = self.finish(final)
            st.emit_plain(self.send(P) + pre + one + two + self.fetch(P, params) + pre)
            one, two = self.finish(final)
            st.emit_plain(one + two)
        st.run(self.advance, side, flush)


def run_g2(a, bases):
    I = a.I
    a.C("======== SSM output projection")
    st = Stream(a, "g2", 'lin', False)
    kh = S_K3

    def src_addr():
        return ["s_lshl_b32 s%d, s%d, 17" % (S_NOF, S_DB), "s_add_u32 s%d, s%d, s%d" % (S_NOF, S_NOF, S_K5)]
    tile = lambda t: lambda P: [st.acc(P, t, c) + r for r in range(4) for c in range(2)]
    rd = Reduce(a, st, [(tile(1), S_K1)], tile(0), None, 16, 7, src_addr, E("G2LEAD", 1))
    rd.plan = (50, 76, 114)
    rd.la = E("G2LA", 5)
    DV, XV, XA, OA_ = rd.F, rd.F + 4, rd.F + 8, rd.F + 12
    T = rd.F + 2
    I("s_and_b32 s%d, s%d, 15" % (S_K2, S_RK))
    if E("G2WARM", 1):
        a.srd(S_AUX2, ptr(A_X), 0, 4 * MB)
        warm(a, S_AUX2, 4 * MB, S_K2, 16)
    wait_init(a, bases)
    I("s_lshl_b32 s%d, s%d, 15" % (S_K0, S_K2))
    I("s_lshl_b32 s%d, s%d, 13" % (S_T, S_WV))
    I("s_add_u32 s%d, s%d, s%d" % (S_K0, S_K0, S_T))
    I("s_xor_b32 s%d, s%d, 0x8000" % (S_K1, S_K0))
    I("s_add_u32 s%d, s%d, 0x%x" % (S_K0, S_K0, WS_INB))
    I("s_add_u32 s%d, s%d, 0x%x" % (S_K1, S_K1, WS_INB))
    I("s_lshr_b32 s%d, s%d, 1" % (S_K4, S_K2))
    I("s_lshl_b32 s%d, s%d, 7" % (S_K4, S_K4))
    I("s_add_u32 s%d, s%d, 0x%x" % (S_K4, S_K4, C_RDY + 32 * 128))
    rd.prepare()
    rd.announce(S_K4)
    poll(a, S_WSR, S_K4, 2)
    if E("G2WAIT", 0):
        I("s_mov_b32 s%d, 0x%x" % (S_T, C_KV))
        poll(a, S_WSR, S_T, E("G2WAIT", 0), sleep=16)
    I("s_and_b32 s%d, s%d, 1" % (kh, S_K2))
    I("s_cmp_eq_u32 s%d, 1" % kh)
    I("s_cselect_b32 s%d, s%d, s%d" % (S_AUX, ptr(A_CIM), ptr(A_CRE)))
    I("s_cselect_b32 s%d, s%d, s%d" % (S_AUX + 1, ptr(A_CIM) + 1, ptr(A_CRE) + 1))
    I("s_and_b32 s%d, s%d, 0xffff" % (S_AUX + 1, S_AUX + 1))
    I("s_mov_b32 s%d, 0x%x" % (S_AUX + 2, 2 * MB))
    I("s_mov_b32 s%d, 0x00020000" % (S_AUX + 3))
    I("s_lshr_b32 s%d, s%d, 1" % (S_T, S_K2))
    I("s_lshl_b32 s%d, s%d, 7" % (S_T, S_T))
    I("s_lshl_b32 s%d, s%d, 5" % (S_T + 1, S_WV))
    I("s_add_u32 s%d, s%d, s%d" % (S_T, S_T, S_T + 1))
    I("v_and_b32 v5, 15, v0")
    I("v_lshl_add_u32 v5, v5, 1, s%d" % S_T)
    I("s_lshl_b32 s%d, s%d, 4" % (S_T + 1, kh))
    I("v_bfe_u32 v6, v0, 4, 2")
    I("v_lshl_add_u32 v6, v6, 2, s%d" % (S_T + 1))
    I("v_lshlrev_b32 v7, 1, v5")
    I("v_lshl_add_u32 v%d, v6, 11, v7" % XA)
    I("v_add_u32 v%d, 0x1000, v%d" % (XA + 1, XA))
    I("v_lshlrev_b32 v5, 2, v5")
    I("v_lshl_add_u32 v%d, v6, 13, v5" % OA_)
    for r in range(1, 4):
        I("v_add_u32 v%d, 0x%x, v%d" % (OA_ + r, 8192 * r, OA_))
    a.srd(S_AUX2, ptr(A_DSKIP), 0, 2048)
    I("buffer_load_dword v%d, v7, %s, 0 offen" % (XV, srd(S_AUX2)))
    load_panel_n(a, S_T, 'il', (S_AUX, S_AUX), NT("NTS", 1))
    I("v_lshlrev_b32 v%d, 16, v%d" % (DV, XV))
    I("v_and_b32 v%d, 0xffff0000, v%d" % (DV + 1, XV))
    I("s_mov_b32 s%d, 0x%x" % (S_K4, C_H))
    I("s_lshl_b32 s%d, s%d, 16" % (S_K5, kh))
    I("s_add_u32 s%d, s%d, 0x%x" % (S_K5, S_K5, WS_HT))
    a.srd(S_SRC, ptr(D_WS), 0, WS_SIZE)
    a.srd(S_AUX, ptr(D_OUT), 0, 16 * MB)
    a.srd(S_AUX2, ptr(A_X), 0, 4 * MB)
    if not E("CWARM", 1):
        warm(a, S_AUX2, 4 * MB, S_K2, 16)
    I("s_lshl_b32 s%d, s%d, 8" % (kh, kh))
    st.setup(kh)
    TLP[0](17)
    I("s_mov_b32 s%d, 64" % S_END)
    params = ["s_sub_u32 s%d, s%d, 1" % (S_P3, S_B),
              "s_lshl_b32 s%d, s%d, 16" % (S_P2, S_P3),
              "s_lshl_b32 s%d, s%d, 18" % (S_P3, S_P3),
              valid(S_P2, S_P3)]
    pre = [('vm', "buffer_load_dword v%d, v%d, %s, s%d offen offset:%d" % (XV + r, XA + r // 2, srd(S_AUX2), S_P2, 2048 * (r & 1)), 'x') for r in range(4)]
    final = []
    for i in range(4):
        final += ["v_lshlrev_b32 v%d, 16, v%d" % (T, XV + i),
                  "v_and_b32 v%d, 0xffff0000, v%d" % (T + 1, XV + i),
                  "v_mul_f32 v%d, v%d, v%d" % (T, T, DV),
                  "v_mul_f32 v%d, v%d, v%d" % (T + 1, T + 1, DV + 1),
                  "v_cvt_pk_bf16_f32 v%d, 0, v%d" % (T, T),
                  "v_cvt_pk_bf16_f32 v%d, 0, v%d" % (T + 1, T + 1),
                  "v_add_f32 v%d, v%d, v%d" % (rd.SUM + 2 * i, rd.SUM + 2 * i, T),
                  "v_add_f32 v%d, v%d, v%d" % (rd.SUM + 2 * i + 1, rd.SUM + 2 * i + 1, T + 1),
                  ('vm', "buffer_store_dwordx2 %s, v%d, %s, s%d offen%s" % (v2(rd.SUM + 2 * i), OA_ + i, srd(S_AUX), S_P3, OSC), 'out')]
    rd.runs(params, pre, final)


def run_op(a):
    I = a.I
    a.C("======== attention output projection")
    st = Stream(a, "op", 'chunk', False)
    u, kq, nt = S_P0, S_P1, S_P2

    SEQ, L4, TK = Reduce.F + 1, Reduce.F + 2, Reduce.F + 3
    S_SQ, S_TKA, S_SQW = S_SA, S_SB, S_M + 4

    def seg(d):
        return ["v_readlane_b32 s%d, v%d, s%d" % (d, SEQ, d), "s_nop 0", "s_nop 0", "s_sub_u32 s%d, s%d, 1" % (d, d)]
    sload = "buffer_load_dword v%d, v%d, %s, s%d offen sc1" % (SEQ, L4, WS, S_SQ)

    def swait(out, back):
        rt = a.uid("L_sw")
        out += [rt + ":", "    " + sload, "    s_add_u32 s%d, s%d, 1" % (S_SPIN, S_SPIN), "    s_cmp_gt_u32 s%d, 0x%x" % (S_SPIN, SPIN_LIMIT),
                "    s_cbranch_scc1 %s" % ABORT[0], "    s_waitcnt vmcnt(0)", "    v_readlane_b32 s%d, v%d, s3" % (S_T + 3, SEQ),
                "    s_cmp_lg_u32 s%d, 0" % (S_T + 3), "    s_cbranch_scc1 %s" % back, "    s_sleep 1", "    s_branch %s" % rt]
        return rt
    stop = [["s_cmp_gt_u32 s%d, 64" % (S_T + 3), "s_cselect_b32 s3, s3, 64"], "s_min_u32 s%d, s%d, s3" % (S_END, S_END),
            "s_sub_u32 s%d, s%d, 1" % (S_LST, S_END)]

    def order():
        back = a.uid("L_sok")
        rt = swait(st.cold, back)
        pre = ["s_add_u32 s3, s%d, 2" % S_B, ('wait', 'seq'), "v_readlane_b32 s%d, v%d, s3" % (S_T + 3, SEQ), "s_nop 0", "s_nop 0",
               ["s_cmp_eq_u32 s%d, 0" % (S_T + 3), "s_cbranch_scc1 %s" % rt, back + ":"]] + stop
        return pre, [(0, 6, [["s_cmp_lt_u32 s%d, 57" % S_B, "s_cselect_b32 s%d, 1, 0" % (S_T + 2), "s_cselect_b32 s%d, 1, 0x80" % (S_T + 1)],
                             "v_mov_b32 v%d, s%d" % (TK, S_T + 2), ('vm', "buffer_atomic_add v%d, v%d, %s, s%d offen sc0 sc1" % (TK, V_SIG, WS, S_TKA), 'tk')]),
                     (8, 14, [('vm', sload, 'seq')]),
                     (60, 78, ["s_lshl_b32 s%d, s%d, 2" % (S_T + 2, S_B), "s_add_u32 s%d, s%d, s%d" % (S_T + 2, S_T + 2, S_SQW), ('wait', 'tk'),
                               "v_add_u32 v%d, s%d, v%d" % (TK, S_T + 1, TK),
                               ('vm', "buffer_store_dword v%d, v%d, %s, s%d offen offset:12 sc1" % (TK, V_SIG, WS, S_T + 2), 'sq')])]

    def src_addr():
        return ["s_mov_b32 s%d, s%d" % (S_T + 5, S_DB)] + seg(S_T + 5) + [
                ["s_bitcmp1_b32 s%d, 1" % (S_T + 5), "s_cselect_b32 s%d, s%d, s%d" % (S_NOF, S_EVEN, S_ODD)],
                "s_lshl_b32 s%d, s%d, 20" % (S_T + 5, S_T + 5),
                "s_add_u32 s%d, s%d, s%d" % (S_NOF, S_NOF, S_T + 5),
                "s_add_u32 s%d, s%d, s%d" % (S_NOF, S_NOF, S_K5)]
    part = lambda r: lambda P: [st.acc(P, t, c) + r for t in range(2) for c in range(2)]
    trans = ["ds_write2_b32 v%d, v%d, v%d offset0:%d offset1:%d" % (Reduce.TW, Reduce.SUM + 2 * t, Reduce.SUM + 2 * t + 1, 128 * t, 128 * t + 16) for t in range(2)]
    rd = Reduce(a, st, [(part(1), S_K1), (part(2), S_K2), (part(3), S_K3)], part(0), trans, 8, 9, src_addr, 0, seg)
    rd.plan = (56, 94, 104)
    rd.order = order
    OA_ = rd.F
    I("s_mov_b32 s%d, s%d" % (u, S_RK))
    I("s_and_b32 s%d, s%d, 3" % (kq, u))
    I("s_lshr_b32 s%d, s%d, 2" % (nt, u))
    I("s_lshl_b32 s%d, s%d, 5" % (S_K0, S_XW))
    I("s_add_u32 s%d, s%d, s%d" % (S_K0, S_K0, u))
    I("s_lshl_b32 s%d, s%d, 15" % (S_K0, S_K0))
    I("s_lshl_b32 s%d, s%d, 13" % (S_T, S_WV))
    I("s_add_u32 s%d, s%d, s%d" % (S_K0, S_K0, S_T))
    for j, r in enumerate((S_K1, S_K2, S_K3)):
        I("s_xor_b32 s%d, s%d, 0x%x" % (r, S_K0, (j + 1) << 15))
        I("s_add_u32 s%d, s%d, 0x%x" % (r, r, WS_INB + INB_OP))
    I("s_add_u32 s%d, s%d, 0x%x" % (S_K0, S_K0, WS_INB + INB_OP))
    I("s_lshl_b32 s%d, s%d, 3" % (S_K4, S_XW))
    I("s_lshr_b32 s%d, s%d, 2" % (S_T, u))
    I("s_add_u32 s%d, s%d, s%d" % (S_K4, S_K4, S_T))
    I("s_lshl_b32 s%d, s%d, 8" % (S_SQ, S_K4))
    I("s_add_u32 s%d, s%d, 0x%x" % (S_SQ, S_SQ, C_SEQ))
    I("s_lshl_b32 s%d, s%d, 7" % (S_TKA, nt))
    I("s_add_u32 s%d, s%d, 0x%x" % (S_TKA, S_TKA, C_TKT))
    I("s_cmp_eq_u32 s%d, 0" % kq)
    I("s_cselect_b32 s%d, s%d, 0x40000000" % (S_TKA, S_TKA))
    I("s_cselect_b32 s%d, s%d, 0x40000000" % (S_SQW, S_SQ))
    I("s_lshl_b32 s%d, s%d, 7" % (S_K4, S_K4))
    I("s_add_u32 s%d, s%d, 0x%x" % (S_K4, S_K4, C_RDY))
    a.srd(S_AUX, ptr(B_WO), 0, 8 * MB)
    I("s_lshl_b32 s%d, s%d, 21" % (S_K5, kq))
    I("s_lshl_b32 s%d, s%d, 8" % (S_T, nt))
    I("s_add_u32 s%d, s%d, s%d" % (S_K5, S_K5, S_T))
    rd.prepare()
    I("v_add_u32 v%d, v1, v3" % rd.TR)
    I("v_and_b32 v2, 15, v0")
    I("v_lshl_add_u32 v1, v2, 2, v1")
    I("v_bfe_u32 v2, v0, 4, 2")
    I("v_lshl_add_u32 v%d, v2, 7, v1" % rd.TW)
    load_panel_t(a, S_K5, 2048, 'nat', mid=lambda: I(signal(S_K4)[1]))
    poll(a, S_WSR, S_K4, 4)
    I("s_lshl_b32 s%d, s%d, 9" % (S_T, nt))
    I("s_lshl_b32 s%d, s%d, 7" % (S_T + 1, S_WV))
    I("s_add_u32 s%d, s%d, s%d" % (S_T, S_T, S_T + 1))
    I("s_lshl_b32 s%d, s%d, 13" % (S_T + 1, kq))
    I("s_add_u32 s%d, s%d, s%d" % (S_T, S_T, S_T + 1))
    I("s_add_u32 s%d, s%d, 4096" % (S_T, S_T))
    I("v_bfe_u32 v1, v0, 3, 3")
    I("v_and_b32 v2, 7, v0")
    I("v_lshlrev_b32 v1, 15, v1")
    I("v_lshl_add_u32 v1, v2, 4, v1")
    I("v_add_u32 v%d, s%d, v1" % (OA_, S_T))
    I("s_lshl_b32 s%d, s%d, 7" % (S_K4, kq))
    I("s_add_u32 s%d, s%d, 0x%x" % (S_K4, S_K4, C_O))
    I("s_lshl_b32 s%d, s%d, 18" % (S_K5, kq))
    I("s_add_u32 s%d, s%d, 2048" % (S_K5, S_K5))
    a.srd(S_SRC, ptr(D_WS), 0, WS_SIZE)
    a.srd(S_AUX, ptr(D_OUT), 0, 16 * MB)
    I("s_lshl_b32 s%d, s%d, 4" % (kq, kq))
    st.setup(kq)
    TLP[0](21)
    I("v_and_b32 v%d, 63, v0" % L4)
    I("v_lshlrev_b32 v%d, 2, v%d" % (L4, L4))
    I("v_mov_b32 v%d, 3" % TK)
    I("buffer_atomic_add v%d, v%d, %s, s%d offen sc0 sc1" % (TK, V_SIG, WS, S_TKA))
    I("s_waitcnt vmcnt(0)")
    for k in range(3):
        I("v_add_u32 v%d, %d, v%d" % (rd.R + k, k + 1, TK))
    I("buffer_store_dwordx3 v[%d:%d], v%d, %s, s%d offen sc1" % (rd.R, rd.R + 2, V_SIG, WS, S_SQW))
    I("s_mov_b32 s%d, 62" % S_END)
    done = a.uid("L_opdone")
    for k in range(2):
        back = a.uid("L_sok")
        I("s_mov_b32 s3, %d" % k)
        swait(a.lines, back)
        a.L(back)
        st.emit_plain(stop)
    I("s_cmp_eq_u32 s%d, 0" % S_END)
    I("s_cbranch_scc1 %s" % done)
    params = ["s_sub_u32 s%d, s%d, 1" % (S_P3, S_B), "s_and_b32 s%d, s%d, 63" % (S_P3, S_P3)] + seg(S_P3) + [
              "s_lshl_b32 s%d, s%d, 18" % (S_P3, S_P3),
              valid(S_P3)]
    final = ["v_cvt_pk_bf16_f32 v%d, 0, v%d" % (rd.SUM + i, rd.R + i) for i in range(4)]
    final += [('vm', "buffer_store_dwordx4 %s, v%d, %s, s%d offen%s" % (v4(rd.SUM), OA_, srd(S_AUX), S_P3, OSC), 'out')]
    rd.runs(params, [], final)
    a.L(done)


def worker(a, abort, bases, tlp, ini):
    I = a.I
    ABORT[0], TLP[0], INI[0] = abort, tlp, ini
    lv, lq, l1, l2, lop = (a.uid(x) for x in ("L_v", "L_q", "L_g1", "L_g2", "L_op"))
    common(a)
    I("s_cmp_eq_u32 s%d, 3" % S_XW)
    I("s_cbranch_scc1 %s" % l1)
    proj_panel(a)
    wait_init(a, bases)
    tlp(17)
    tlp(29)
    I("s_cmp_eq_u32 s%d, 2" % S_XW)
    I("s_cbranch_scc1 %s" % lq)
    I("s_cmp_eq_u32 s%d, 1" % S_XW)
    I("s_cbranch_scc1 %s" % lv)
    run_kv(a, False)
    tlp(18)
    I("s_branch %s" % lop)
    a.L(lv)
    run_kv(a, True)
    tlp(18)
    I("s_branch %s" % lop)
    a.L(lq)
    run_q(a)
    tlp(19)
    I("s_branch %s" % abort)
    a.L(l1)
    I("s_cmp_ge_u32 s%d, 16" % S_RK)
    I("s_cbranch_scc1 %s" % l2)
    run_g1(a, bases)
    tlp(20)
    I("s_branch %s" % lop)
    a.L(l2)
    run_g2(a, bases)
    tlp(15)
    a.L(lop)
    run_op(a)
    tlp(14)
```

```python
import sys, os
sys.path.insert(0, os.path.dirname(os.path.abspath(__file__)))
from asmlib import *
from layout import *
import chain2 as chain
import work

NAME = "concat_heads__ssm_conv_s5__memory_aug_recurrent_mem_tr__prompt"
HEADER = open(os.path.join(os.path.dirname(os.path.abspath(__file__)), "header.txt")).read()
E = chain.E
TL = E("TL", 0)

S_XW, S_RK, S_WV = 40, 41, 49
S_EVEN, S_ODD = 54, 55


def load_ptrs(a):
    I = a.I
    I("s_load_dwordx16 s[%d:%d], s[0:1], 0" % (PTR0, PTR0 + 15))
    I("s_load_dwordx16 s[%d:%d], s[0:1], 64" % (PTR0 + 16, PTR0 + 31))
    I("s_load_dwordx4 s[%d:%d], s[0:1], 128" % (PTR0 + 32, PTR0 + 35))
    I("s_load_dwordx2 s[%d:%d], s[0:1], 144" % (PTR0 + 36, PTR0 + 37))
    I("s_waitcnt lgkmcnt(0)")


def tl_probe(a, idx, v=249, tid=0):
    if not TL:
        return
    I = a.I
    I("s_memrealtime s[58:59]")
    I("s_memtime s[56:57]")
    q = 60 if v != 5 else 68
    a.srd(q, ptr(D_WS), WS_DBG + 0x80000, 65536)
    I("s_waitcnt lgkmcnt(0)")
    I("s_lshl_b32 s59, s2, 8")
    I("v_mov_b32 v%d, s58" % (v + 1))
    I("v_mov_b32 v%d, s56" % v)
    I("v_xor_b32 v%d, %d, v0" % (v + 2, tid))
    I("v_lshlrev_b32 v%d, 16, v%d" % (v + 2, v + 2))
    I("buffer_store_dword v%d, v%d, s[%d:%d], s59 offen offset:%d" % (v + 1, v + 2, q, q + 3, idx * 4))
    I("buffer_store_dword v%d, v%d, s[%d:%d], s59 offen offset:%d" % (v, v + 2, q, q + 3, 128 + idx * 4))
    if v == 5 and idx in (15, 14):
        I("v_mov_b32 v%d, s%d" % (v, work.S_CNT))
        I("buffer_store_dword v%d, v%d, s[%d:%d], s59 offen offset:%d" % (v, v + 2, q, q + 3, (idx - 14) * 4))


def role_ticket(a):
    I = a.I
    I("s_getreg_b32 s16, hwreg(HW_REG_XCC_ID)")
    I("s_and_b32 s16, s16, 7")
    if E("FAKEX", 0):
        I("s_mul_i32 s16, s2, 37")
        I("s_lshr_b32 s16, s16, 3")
        I("s_and_b32 s16, s16, 7")
        I("s_min_u32 s16, s16, 6")
    I("v_lshrrev_b32 v3, 6, v0")
    a.srd(12, ptr(D_DBG), 0, 256)
    I("v_readfirstlane_b32 s18, v3")
    I("s_lshl_b32 s3, s16, 5")
    I("v_mov_b32 v12, 1")
    I("v_lshlrev_b32 v13, 8, v0")
    I("buffer_atomic_add v12, v13, s[12:15], s3 offen offset:%d sc0 sc1" % DB_RANK)


def role_assign(a):
    I = a.I
    lab = a.uid("L_role")
    I("s_cmp_lg_u32 s18, 1")
    I("s_cbranch_scc1 %s" % lab)
    I("s_mov_b32 s7, 1")
    lw = a.uid("L_rolew")
    I("s_cmp_lg_u32 s16, 7")
    I("s_cbranch_scc1 %s" % lw)
    I("s_lshr_b32 s6, s2, 7")
    I("s_lshl_b32 s6, s6, 8")
    I("s_add_u32 s4, s4, s6")
    I("s_and_b32 s5, s2, 127")
    I("s_lshl_b32 s5, s5, 14")
    I("s_add_u32 s5, s5, s4")
    I("s_add_u32 s5, s5, 0x%x" % (WS_P + 64 * MB + 2048))
    I("s_add_u32 s12, s%d, s5" % ptr(D_WS))
    I("s_addc_u32 s13, s%d, 0" % (ptr(D_WS) + 1))
    I("s_mov_b32 s5, 0")
    I("s_mov_b32 s6, 0")
    I("s_atomic_add s5, s[12:13], 0x0 glc")
    I("s_atomic_add s6, s[12:13], 0x2000 glc")
    I("s_mov_b32 s24, -1")
    I("s_mov_b32 s25, -1")
    I("s_waitcnt lgkmcnt(0)")
    for pol in (0, 1, 1, 0)[:E("CALR", 2)]:
        I("s_mov_b32 s5, 0")
        I("s_memtime s[20:21]")
        I("s_waitcnt lgkmcnt(0)")
        I("s_atomic_add s5, s[12:13], 0x%x glc" % (pol * 8192))
        I("s_waitcnt lgkmcnt(0)")
        I("s_memtime s[22:23]")
        I("s_waitcnt lgkmcnt(0)")
        I("s_sub_u32 s22, s22, s20")
        I("s_min_u32 s%d, s%d, s22" % (24 + pol, 24 + pol))
    I("s_cmp_gt_u32 s25, s24")
    I("s_cselect_b32 s7, 0x10001, 1")
    a.L(lw)
    a.L(lab)
    I("v_lshlrev_b32 v2, 2, v0")
    I("s_waitcnt vmcnt(0)")
    I("ds_write_b32 v2, v12 offset:%d" % chain.L_ROLE)
    I("s_waitcnt lgkmcnt(0)")
    I("s_barrier")
    I("v_mov_b32 v2, 0")
    I("ds_read_b32 v4, v2 offset:%d" % chain.L_ROLE)
    lab = a.uid("L_nosig")
    I("s_waitcnt lgkmcnt(0)")
    I("v_readfirstlane_b32 s17, v4")
    I("s_cmp_lg_u32 s18, 1")
    I("s_cbranch_scc1 %s" % lab)
    lo = a.uid("L_noovf")
    I("s_cmp_lt_u32 s17, 32")
    I("s_cbranch_scc1 %s" % lo)
    I("s_mov_b32 s5, 1")
    I("s_atomic_add s5, s[%d:%d], 0x%x glc" % (ptr(D_DBG), ptr(D_DBG) + 1, DB_OVF))
    I("s_waitcnt lgkmcnt(0)")
    a.L(lo)
    I("s_atomic_add s7, s[%d:%d], 0x%x" % (ptr(D_DBG), ptr(D_DBG) + 1, DB_INIT))
    a.L(lab)


def role_overflow(a, abort):
    I = a.I
    ok, rt = a.uid("L_hasrole"), a.uid("L_ovw")
    I("s_cmp_lt_u32 s17, 32")
    I("s_cbranch_scc1 %s" % ok)
    a.srd(12, ptr(D_DBG), 0, 256)
    I("v_and_b32 v1, 7, v0")
    I("v_lshlrev_b32 v1, 5, v1")
    I("v_mov_b32 v2, 0")
    I("s_mov_b32 s3, 0")
    a.L(rt)
    I("buffer_load_dword v4, v2, s[12:15], 0 offen sc1")
    I("s_add_u32 s3, s3, 1")
    I("s_cmp_gt_u32 s3, 0x100000")
    I("s_cbranch_scc1 %s" % abort)
    I("s_waitcnt vmcnt(0)")
    I("v_readfirstlane_b32 s5, v4")
    I("s_and_b32 s5, s5, 0xffff")
    I("s_cmp_lt_u32 s5, 256")
    I("s_cbranch_scc1 %s" % rt)
    I("buffer_load_dword v4, v1, s[12:15], 0 offen offset:%d sc1" % DB_RANK)
    I("s_sub_u32 s17, s17, 32")
    I("s_waitcnt vmcnt(0)")
    for x in range(8):
        I("v_readlane_b32 s%d, v4, %d" % (20 + x, x))
    for x in range(7):
        I("s_max_u32 s5, s%d, 32" % (20 + x))
        I("s_sub_u32 s5, s5, 32")
        I("s_cmp_gt_u32 s16, %d" % x)
        I("s_cselect_b32 s5, s5, 0")
        I("s_add_u32 s17, s17, s5")
    for x in range(8):
        I("s_min_u32 s5, s%d, 32" % (20 + x))
        I("s_add_u32 s17, s17, s5")
        I("s_mov_b32 s16, %d" % x)
        I("s_cmp_lt_u32 s17, 32")
        I("s_cbranch_scc1 %s" % ok)
        I("s_sub_u32 s17, s17, 32")
    I("s_branch %s" % abort)
    a.L(ok)


def init(a):
    I = a.I
    role_ticket(a)
    a.srd(8, ptr(D_WS), XCH, XCH_BYTES)
    I("s_lshl_b32 s3, s2, 13")
    I("v_lshlrev_b32 v1, 4, v0")
    for i in range(4):
        I("v_mov_b32 v%d, 0x%x" % (4 + i, SENT))
    for i in range(2):
        I("buffer_store_dwordx4 v[4:7], v1, s[8:11], s3 offen sc1")
        I("s_add_u32 s3, s3, 4096")
    a.srd(8, ptr(D_WS), WS_P, 70 * MB)
    I("s_add_u32 s4, s8, 0x1fffff")
    I("s_and_b32 s4, s4, 0xffe00000")
    I("s_sub_u32 s4, s4, s8")
    if 'nowork' in chain.ABL:
        I("s_lshl_b32 s3, s2, 14")
        I("s_add_u32 s3, s3, s4")
        for k in range(16):
            for i in range(4):
                I("buffer_store_dwordx4 v[4:7], v1, s[8:11], s3 offen sc1")
                I("s_add_u32 s3, s3, 4096")
            I("s_add_u32 s3, s3, 0x%x" % (4 * MB - 16384))
    if 'warmkv' in chain.ABL:
        a.srd(8, ptr(D_WS), 0, 66 * MB)
        I("s_mul_i32 s3, s2, 66 * 4096")
        for i in range(4):
            I("v_mov_b32 v%d, 0" % (4 + i))
        for i in range(66):
            I("buffer_store_dwordx4 v[4:7], v1, s[8:11], s3 offen sc1")
            I("s_add_u32 s3, s3, 4096")
    a.srd(8, ptr(D_WS), WS_CNT, CNT_BYTES)
    I("s_lshl_b32 s3, s2, 12")
    for i in range(4):
        I("v_mov_b32 v%d, 0" % (8 + i))
    I("buffer_store_dwordx4 v[8:11], v1, s[8:11], s3 offen sc1")
    role_assign(a)


def kernel_chain(a, name):
    I = a.I
    a.raw(".globl %s\n.p2align 8\n.type %s,@function" % (name, name))
    a.L(name)
    I("s_cmp_lt_u32 s2, 256")
    I("s_cbranch_scc1 %s_go" % name)
    a.L("%s_end0" % name)
    I("s_endpgm")
    a.L("%s_go" % name)
    load_ptrs(a)
    tl_probe(a, 8)
    if E("CODEPF", 1):
        lab = a.uid("L_pc")
        I("s_getpc_b64 s[4:5]")
        a.L(lab)
        I("s_lshr_b32 s3, s2, 3")
        I("s_and_b32 s3, s3, 31")
        I("s_lshl_b32 s3, s3, 6")
        I("v_and_b32 v14, 63, v0")
        I("v_add_u32 v14, s3, v14")
        I("v_lshlrev_b32 v14, 6, v14")
        I("v_min_u32 v14, %s_end - %s, v14" % (name, lab))
        I("global_load_dword v15, v14, s[4:5]")
    init(a)
    tl_probe(a, 23)
    role_overflow(a, name + "_end0")
    I("s_cmp_ge_u32 s16, 4")
    I("s_cbranch_scc1 %s_worker" % name)
    chain.HOOK['done'] = lambda: tl_probe(a, 9)
    chain.HOOK['loopstart'] = lambda: tl_probe(a, 11)
    chain.HOOK['weights'] = lambda: tl_probe(a, 16)
    chain.chain_main(a, name)
    a.L("%s_worker" % name)
    if 'nowork' not in chain.ABL:
        worker(a, name)

    a.L("%s_wend" % name)
    tl_probe(a, 10)
    a.L("%s_end" % name)
    I("s_endpgm")


def worker(a, name):
    I = a.I
    rm = os.environ.get("ROLEMAP", "0123")
    I("s_sub_u32 s%d, s16, 4" % S_XW)
    I("s_lshl_b32 s%d, s%d, 2" % (S_XW, S_XW))
    I("s_lshr_b32 s%d, 0x%s, s%d" % (S_XW, rm[::-1], S_XW))
    I("s_and_b32 s%d, s%d, 3" % (S_XW, S_XW))
    I("s_mov_b32 s%d, s17" % S_RK)
    I("s_mov_b32 s%d, s18" % S_WV)
    work.worker(a, name + "_wend", chain.block_bases, lambda i, tid=0: tl_probe(a, i, 5, tid), None)


def build():
    a = Asm()
    launches = [("chain_kernel", 256, 256, 163840)]
    out = HEADER
    for k, g, b, l in launches:
        out += "; @launch kernel=%s grid=(%d,1,1) block=(%d,1,1) lds=%d\n" % (k, g, b, l)
    if os.environ.get("CFG"):
        out += "; cfg:%s\n" % os.environ["CFG"]
    out += '.amdgcn_target "amdgcn-amd-amdhsa--gfx950"\n.text\n'
    kernel_chain(a, "chain_kernel")
    out += a.text()
    out += kernel_desc("chain_kernel")
    return out


if __name__ == "__main__":
    dst = sys.argv[1] if len(sys.argv) > 1 else "/code/%s.s" % NAME
    open(dst, "w").write(build())
    print("wrote", dst)
```

```python
from asmlib import *
from layout import *
from stream import *
import stream, os

EMU = E("EMUA", E("EMU", 1))
SEN0 = E("SEN0", 52)
OSC = ["", " sc1", " nt", " sc1 nt"][E("OSC", 0)]
PROG_LAG = 1 if E("PUBW", 1) == 1 else 0
HSC = "" if E("HPLAIN", 0) else " sc1"
WS = srd(S_WSR)
S_VAL = 37
S_P0, S_P1, S_P2, S_P3 = 38, 39, 42, 43
S_K0, S_K1, S_K2, S_K3, S_K4, S_K5 = 44, 45, 46, 47, 48, 50
S_F1 = 51
S_SA, S_SB = 94, 95
S_LST = 61
S_PO = 7
S_CNT = 52
S_M = 56
V_ONE, V_SIG, V_ST, V_G = V_E, V_E + 1, V_E + 2, V_E + 3
V_X = V_E + 4
L_GATE = L_Q
ABORT = [None]
TLP = [None]
INI = [None]
NT = lambda k, d: " nt" if E(k, d) else ""


def cvt(d, x, y):
    return "v_cvt_pk_bf16_f32 v%d, v%d, v%d" % (d, x, y)


def common(a):
    I = a.I
    a.srd(S_WSR, ptr(D_WS), 0, WS_SIZE)
    I("s_mov_b32 s%d, 0" % S_SPIN)
    I("v_mov_b32 v%d, 1" % V_ONE)
    I("v_min_u32 v%d, 1, v0" % V_SIG)
    I("v_lshlrev_b32 v%d, 30, v%d" % (V_SIG, V_SIG))


def signal(s_off):
    return ('vm', "buffer_atomic_add v%d, v%d, %s, s%d offen sc1" % (V_ONE, V_SIG, WS, s_off), 'sig')


def spin_check(a):
    a.I("s_add_u32 s%d, s%d, 1" % (S_SPIN, S_SPIN))
    a.I("s_cmp_gt_u32 s%d, 0x%x" % (S_SPIN, SPIN_LIMIT))
    a.I("s_cbranch_scc1 %s" % ABORT[0])


def poll(a, srd_, s_off, target, mask=False, sleep=4):
    I = a.I
    rt, ok = a.uid("L_pl"), a.uid("L_plok")
    I("v_mov_b32 v2, 0")
    a.L(rt)
    I("buffer_load_dword v1, v2, %s, s%d offen sc1" % (srd(srd_), s_off))
    spin_check(a)
    I("s_waitcnt vmcnt(0)")
    I("v_readfirstlane_b32 s%d, v1" % (S_T + 1))
    if mask:
        I("s_and_b32 s%d, s%d, 0xffff" % (S_T + 2, S_T + 1))
    I("s_cmp_ge_u32 s%d, %d" % (S_T + 2 if mask else S_T + 1, target))
    I("s_cbranch_scc1 %s" % ok)
    I("s_sleep %d" % sleep)
    I("s_branch %s" % rt)
    a.L(ok)


def wait_init(a, bases):
    I = a.I
    a.srd(S_AUX2, ptr(D_DBG), 0, 256)
    I("s_mov_b32 s%d, %d" % (S_T, DB_INIT))
    poll(a, S_AUX2, S_T, 256, mask=True)
    bases(a, S_T + 1, S_EVEN, S_ODD, S_T)


def adv_plain(stream_):
    return ["s_add_u32 s%d, s%d, 1" % (S_DB, S_DB),
            "s_min_u32 s%d, s%d, 63" % (S_DB, S_DB),
            "s_lshl_b32 s%d, s%d, 16" % (S_NOF, S_DB)]


def start_plain(a):
    I = a.I
    for s in (S_B, S_DB, S_OFF, S_VAL):
        I("s_mov_b32 s%d, 0" % s)
    I("s_mov_b32 s%d, 64" % S_END)


def valid(*regs):
    return ["s_cmp_eq_u32 s%d, 0" % S_VAL] + ["s_cselect_b32 s%d, 0x%x, s%d" % (r, OOB, r) for r in regs]


def warm(a, srd_, nbytes, s_idx, nwg):
    I = a.I
    I("v_lshlrev_b32 v1, 4, v0")
    I("s_lshl_b32 s%d, s%d, 12" % (S_T, s_idx))
    lw = a.uid("L_warm")
    a.L(lw)
    for k in range(16):
        I("buffer_load_dwordx4 %s, v1, %s, s%d offen" % (v4(V_FR + 4 * k), srd(srd_), S_T))
        I("s_add_u32 s%d, s%d, 0x%x" % (S_T, S_T, nwg * 4096))
    I("s_waitcnt vmcnt(16)")
    I("s_cmp_lt_u32 s%d, 0x%x" % (S_T, nbytes))
    I("s_cbranch_scc1 %s" % lw)
    I("s_waitcnt vmcnt(0)")


def first_blocks(a, nwg):
    I = a.I
    I("v_lshlrev_b32 v1, 4, v0")
    I("s_lshl_b32 s%d, s%d, 12" % (S_T, S_RK))
    for k in range(E("NFB", 4) * 16 // nwg):
        I("buffer_load_dwordx4 %s, v1, %s, s%d offen" % (v4(V_ACC), srd(S_SRC), S_T))
        I("s_add_u32 s%d, s%d, %d" % (S_T, S_T, nwg * 4096))


def proj_panel(a):
    I = a.I
    I("s_mov_b32 s%d, s%d" % (S_T, S_XW))
    I("s_cmp_eq_u32 s%d, 1" % S_T)
    I("s_cselect_b32 s%d, s%d, s%d" % (S_AUX, ptr(B_WV), ptr(B_WK)))
    I("s_cselect_b32 s%d, s%d, s%d" % (S_AUX + 1, ptr(B_WV) + 1, ptr(B_WK) + 1))
    I("s_cmp_eq_u32 s%d, 2" % S_T)
    I("s_cselect_b32 s%d, s%d, s%d" % (S_AUX, ptr(B_WQ), S_AUX))
    I("s_cselect_b32 s%d, s%d, s%d" % (S_AUX + 1, ptr(B_WQ) + 1, S_AUX + 1))
    I("s_and_b32 s%d, s%d, 0xffff" % (S_AUX + 1, S_AUX + 1))
    I("s_mov_b32 s%d, 0x%x" % (S_AUX + 2, 8 * MB))
    I("s_mov_b32 s%d, 0x00020000" % (S_AUX + 3))
    I("s_mov_b32 s%d, s%d" % (S_K2, S_RK))
    if E("QSLEEP", 0):
        lab = a.uid("L_nosl")
        I("s_cmp_lg_u32 s%d, 2" % S_XW)
        I("s_cbranch_scc1 %s" % lab)
        for _ in range(E("QSLEEP", 0)):
            I("s_sleep 127")
        a.L(lab)
    I("s_lshl_b32 s%d, s%d, 8" % (S_K0, S_K2))
    a.srd(S_SRC, ptr(B_X), 0, 4 * MB)
    first_blocks(a, 32)
    load_panel_t(a, S_K0, 8192, 'kv', flags=NT('NTP', 0))
    Stream(a, "p", 'row', True, 'kv').setup()
    I("v_lshlrev_b32 v%d, 4, v5" % V_ST)
    I("v_lshl_add_u32 v%d, v3, 9, v%d" % (V_ST, V_ST))
    I("s_lshl_b32 s%d, s%d, 15" % (S_K0, S_K2))
    I("s_lshr_b32 s%d, s%d, 1" % (S_T, S_WV))
    I("s_lshl_b32 s%d, s%d, 14" % (S_T, S_T))
    I("s_add_u32 s%d, s%d, s%d" % (S_K0, S_K0, S_T))
    I("s_and_b32 s%d, s%d, 1" % (S_T, S_WV))
    I("s_lshl_b32 s%d, s%d, 12" % (S_T, S_T))
    I("s_add_u32 s%d, s%d, s%d" % (S_K0, S_K0, S_T))
    start_plain(a)


def pack(st, P, isv):
    out = []
    for h in range(2):
        for k in range(2):
            r = st.acc(P, k, h) if isv else st.acc(P, h, k)
            out += [cvt(V_X + 4 * h + 2 * k, r, r + 1), cvt(V_X + 4 * h + 2 * k + 1, r + 2, r + 3)]
    return out


def run_kv(a, isv):
    st = Stream(a, "v" if isv else "k", 'row', not isv, 'kv')
    SEN, LIN = V_X + 8, V_X + 12
    for i in range(4):
        a.I("v_mov_b32 v%d, 0x%x" % (SEN + i, SENT))
    a.I("v_and_b32 v%d, 63, v0" % LIN)
    a.I("v_lshlrev_b32 v%d, 3, v%d" % (LIN + 1, LIN))
    a.I("v_lshlrev_b32 v%d, 4, v%d" % (LIN, LIN))

    def side(P):
        par = ["s_sub_u32 s%d, s%d, 1" % (S_P1, S_B),
               ["s_bitcmp1_b32 s%d, 1" % S_P1, "s_cselect_b32 s%d, s%d, s%d" % (S_P0, S_ODD, S_EVEN)],
               "s_add_u32 s%d, s%d, s%d" % (S_P0, S_P0, S_K0),
               "s_lshl_b32 s%d, s%d, 20" % (S_P2, S_P1),
               "s_add_u32 s%d, s%d, s%d" % (S_P0, S_P0, S_P2),
               "s_lshl_b32 s%d, s%d, 7" % (S_P1, S_P1),
               "s_add_u32 s%d, s%d, 0x%x" % (S_P1, S_P1, C_KV),
               valid(S_P0, S_P1)]
        pk = pack(st, P, isv)
        sto = lambda h: ('vm', "buffer_store_dwordx4 %s, v%d, %s, s%d offen offset:%d sc1" % (v4(V_X + 4 * h), V_ST, WS, S_P0, 2048 * isv + 128 * h), 'st')
        q = E("KVSIGQ", 2)
        poi = lambda s_, off: ('vm', "buffer_store_dwordx4 %s, v%d, %s, s%d offen offset:%d sc1" % (v4(SEN), LIN, WS, s_, off), 'st')
        ext = ["s_add_u32 s%d, s%d, 0x%x" % (S_P2, S_P0, WS_P - WS_B),
               ('vm', "buffer_store_dwordx2 %s, v%d, %s, s%d offen offset:%d sc1" % (v2(SEN), LIN + 1, WS, S_P2, 512 * isv), 'st')]
        assert E("PXB", 1) and E("NREPL", 2) <= 2
        if not isv:
            lab = a.uid("L_nokm")
            ext = [ext[0], ["s_cmp_le_u32 s%d, %d" % (S_B, SEN0), "s_cbranch_scc1 %s" % lab, poi(S_P2, KM_OFF)[1], lab + ":"], ext[1]]
        return [(0, E("KVST", 30), par[:] + pk[:4] + [sto(0)] + pk[4:] + [sto(1)] + ext),
                (32 * q + 21, 32 * q + 30, [('sync', 'st'), signal(S_P1), "s_mov_b32 s%d, 1" % S_VAL])]

    def flush(P):
        for _, _, items in side(P):
            st.emit_plain(items)
    st.run(adv_plain, side, flush)


A_AD = 96
A_KX, A_QF, A_VT, A_SX, A_VM, A_P, A_T, A_BI = 104, 136, 168, 200, 216, 224, 234, 240
A_SM = V_ACC + 16
S_AK, S_AO, S_PEND, S_SG, S_LM = S_K4, S_K5, S_K1, S_F1, S_PO
S_AP = S_SA
boff = lambda c: (c >> 1) * 16384 + (c & 1) * 4096


def attn_setup(a):
    I = a.I
    a.C("---- attention setup")
    lin, km, vt, vm, ost = range(A_AD, A_AD + 5)
    I("v_and_b32 v1, 31, v0")
    I("v_bfe_u32 v2, v0, 5, 1")
    I("v_and_b32 v%d, 63, v0" % lin)
    I("v_lshlrev_b32 v%d, 4, v%d" % (lin, lin))
    I("v_and_b32 v4, 7, v1")
    I("v_lshlrev_b32 v4, 4, v4")
    I("s_lshl_b32 s%d, s%d, 12" % (S_LM, S_WV))
    I("s_add_u32 s%d, s%d, 0x%x" % (S_LM, S_LM, L_Q + 4096))
    I("v_lshl_add_u32 v%d, v2, 7, v4" % km)
    I("v_add_u32 v%d, s%d, v%d" % (km, S_LM, km))
    I("v_bfe_u32 v5, v1, 2, 1")
    I("v_lshlrev_b32 v5, 4, v5")
    I("v_lshrrev_b32 v6, 3, v1")
    I("v_lshl_add_u32 v5, v6, 2, v5")
    I("v_and_b32 v6, 3, v1")
    I("v_add_u32 v5, v5, v6")
    I("v_lshlrev_b32 v5, 4, v5")
    I("v_lshl_add_u32 v%d, v2, 9, v5" % vt)
    I("v_lshl_add_u32 v%d, v2, 3, v5" % vm)
    I("v_add_u32 v%d, s%d, v%d" % (vm, S_LM, vm))
    I("v_lshlrev_b32 v4, 4, v1")
    I("v_lshl_add_u32 v%d, v2, 10, v4" % ost)
    I("v_and_b32 v%d, 63, v0" % V_SIG)
    I("v_min_u32 v%d, 1, v%d" % (V_SIG, V_SIG))
    I("v_lshlrev_b32 v%d, 30, v%d" % (V_SIG, V_SIG))
    I("v_lshlrev_b32 v4, 2, v2")
    I("v_sub_u32 v4, v1, v4")
    I("v_mov_b32 v5, 0xff800000")
    for i in range(16):
        I("v_cmp_gt_i32 vcc, %d, v4" % (8 * (i // 4) + (i % 4)))
        I("s_nop 1")
        I("v_cndmask_b32 v%d, 0, v5, vcc" % (A_BI + i))


def attn_bases(a):
    I = a.I
    I("s_add_u32 s%d, s%d, s%d" % (S_T + 2, S_K3, S_WV))
    I("s_lshl_b32 s%d, s%d, 20" % (S_T, S_T + 2))
    I("s_lshl_b32 s%d, s%d, 15" % (S_T + 1, S_K2))
    I("s_add_u32 s%d, s%d, s%d" % (S_T, S_T, S_T + 1))
    I("s_bitcmp1_b32 s%d, 1" % (S_T + 2))
    I("s_cselect_b32 s%d, s%d, s%d" % (S_AK, S_ODD, S_EVEN))
    I("s_cselect_b32 s%d, s%d, s%d" % (S_AO, S_EVEN, S_ODD))
    I("s_add_u32 s%d, s%d, s%d" % (S_AK, S_AK, S_T))
    I("s_add_u32 s%d, s%d, s%d" % (S_AO, S_AO, S_T))


def attn_xloads():
    lin, km, vt, vm, ost = range(A_AD, A_AD + 5)
    out = []
    for c, (base, reg, va, off) in [(c, x) for c in range(4) for x in ((S_AO, A_QF, lin, 0), (S_AK, A_KX, lin, 0))] + \
            [(c, (S_AK, A_VT, vt, 2048)) for c in range(4)]:
        if True:
            for u in range(2):
                out.append(["s_add_u32 s%d, s%d, %d" % (S_P3, base, boff(c)),
                            ('vm', "buffer_load_dwordx4 %s, v%d, %s, s%d offen offset:%d" % (v4(reg + 8 * c + 4 * u), va, WS, S_P3, off + 1024 * u), 'pf')])
    return out


def attn_mloads():
    return [["s_add_u32 m0, s%d, %d" % (S_LM, c * 1024),
             "s_add_u32 s%d, s%d, 0x%x" % (S_P3, S_AK, WS_P - WS_B + boff(c) + KM_OFF),
             ('vm', "buffer_load_dwordx4 v%d, %s, s%d offen sc1 lds" % (A_AD, WS, S_P3), 'pf')] for c in range(4)]


def attn_compute(a, st):
    I = a.I
    lin, km, vt, vm, ost = range(A_AD, A_AD + 5)
    sg, so, st_, c1, c2 = S_P0, S_AO, S_P3, S_T + 3, S_T + 4
    m32 = lambda d, x, y, c: "v_mfma_f32_32x32x16_bf16 v[%d:%d], %s, %s, %s" % (d, d + 15, v4(x), v4(y), "0" if c is None else "v[%d:%d]" % (c, c + 15))
    a.C("---- attention")
    I("s_add_u32 s%d, s%d, s%d" % (sg, S_K3, S_WV))
    I("s_mov_b32 s%d, 0x%x" % (c1, 0x3fb8aa3b if EMU else 0x3e0293ee))
    I("s_mov_b32 s%d, 0x3db504f3" % c2)
    KM = A_KX
    mx, t1 = A_T, A_T + 1

    def emu(vals):
        if not EMU:
            return []
        return ["v_cvt_pk_bf16_f32 v%d, 0, v%d" % (v, v) for v in vals] + ["v_mul_f32 v%d, s%d, v%d" % (v, c2, v) for v in vals] + \
               ["v_cvt_pk_bf16_f32 v%d, 0, v%d" % (v, v) for v in vals]
    xs = lambda ks: m32(A_SX, A_KX + 4 * ks, A_QF + 4 * ks, A_BI if ks == 0 else A_SX)
    ms = lambda ks: m32(A_SM, KM + 4 * ks, A_QF + 4 * ks, None if ks == 0 else A_SM)
    rk = lambda ks: "ds_read_b128 %s, v%d offset:%d" % (v4(KM + 4 * ks), km, (ks >> 1) * 1024 + 256 * (ks & 1))
    rv = lambda c: "ds_read_b64 %s, v%d offset:%d" % (v2(A_VM + 2 * c), vm, c * 1024 + 512)
    m3 = lambda d, x, y, z: "v_max3_f32 v%d, v%d, v%d, v%d" % (d, x, y, z)
    xv = emu(range(A_SX, A_SX + 16)) + [m3(mx, A_SX, A_SX + 1, A_SX + 2), m3(t1, A_SX + 3, A_SX + 4, A_SX + 5)]
    for i in range(6, 14, 4):
        xv += [m3(mx, mx, A_SX + i, A_SX + i + 1), m3(t1, t1, A_SX + i + 2, A_SX + i + 3)]
    xv.append(m3(mx, mx, A_SX + 14, A_SX + 15))
    srv, tail = a.uid("L_asrv"), a.uid("L_atail")
    I("s_cmp_ge_u32 s%d, 64" % S_B)
    I("s_cbranch_scc1 %s" % srv)
    for c in range(4):
        I(rv(c))
    for ks in range(8):
        I(xs(ks))
        if ks:
            I(rk(ks - 1))
    I(rk(7))
    q = list(xv)
    for ks in range(8):
        I("s_waitcnt lgkmcnt(%d)" % min(7 - ks, 2) if ks in (0, 6, 7) else "s_nop 0")
        I(ms(ks))
        if ks >= 1:
            for _ in range(-(-len(xv) // 7)):
                if q:
                    I(q.pop(0))
    I("s_nop 7" if EMU else "s_nop 10")
    I("s_branch %s" % tail)
    a.L(srv)
    for ks in range(8):
        I(xs(ks))
    I("s_nop 11")
    for l in xv:
        I(l)
    rt, ok = a.uid("L_cw"), a.uid("L_cwok")
    I("s_add_u32 s%d, s%d, 1" % (S_T + 2, sg))
    I("s_sub_u32 s%d, s%d, %d" % (S_T + 1, sg, PROG_LAG))
    I("s_min_u32 s%d, s%d, %d" % (S_T + 1, S_T + 1, 62 - PROG_LAG))
    I("s_cmp_ge_u32 s%d, %d" % (sg, SEN0))
    I("s_cselect_b32 s%d, s%d, s%d" % (S_T + 2, S_T + 1, S_T + 2))
    I("v_mov_b32 v2, %d" % DB_PROG)
    a.L(rt)
    I("buffer_load_dword v1, v2, %s, 0 offen sc1" % srd(S_AUX2))
    spin_check(a)
    I("s_waitcnt vmcnt(0)")
    I("v_readfirstlane_b32 s%d, v1" % S_T)
    I("s_cmp_ge_u32 s%d, s%d" % (S_T, S_T + 2))
    I("s_cbranch_scc1 %s" % ok)
    I("s_sleep 4")
    I("s_branch %s" % rt)
    a.L(ok)
    st.emit_plain(attn_mloads())
    spin_check(a)
    I("s_waitcnt vmcnt(0)")
    for ks in range(8):
        I("ds_read_b128 %s, v%d offset:%d" % (v4(KM + 4 * ks), km, (ks >> 1) * 1024 + 256 * (ks & 1)))
        if ks % 2 == 1:
            I("ds_read_b64 %s, v%d offset:%d" % (v2(A_VM + ks - 1), vm, (ks >> 1) * 1024 + 512))
    I("v_mov_b32 v1, 0")
    for ks in range(8):
        I("s_waitcnt lgkmcnt(%d)" % (11 - ks - (ks + 1) // 2))
        I(m32(A_SM, KM + 4 * ks, A_QF + 4 * ks, None if ks == 0 else A_SM))
        I("v_max3_u32 v1, v1, v%d, v%d" % (KM + 4 * ks, KM + 4 * ks + 1))
        I("v_max3_u32 v1, v1, v%d, v%d" % (KM + 4 * ks + 2, KM + 4 * ks + 3))
        if ks % 2 == 1:
            I("v_max3_u32 v1, v1, v%d, v%d" % (A_VM + ks - 1, A_VM + ks))
    I("v_cmp_eq_u32 vcc, 0x%x, v1" % SENT)
    I("s_cbranch_vccnz %s" % ok)
    TLP[0](24, 192)
    I("s_nop 6")
    a.L(tail)
    for l in emu(range(A_SM, A_SM + 4)):
        I(l)
    I("v_max3_f32 v%d, v%d, v%d, v%d" % (t1, t1, A_SM, A_SM + 1))
    I("v_max3_f32 v%d, v%d, v%d, v%d" % (mx, mx, A_SM + 2, A_SM + 3))
    I("v_max_f32 v%d, v%d, v%d" % (mx, mx, t1))
    I("v_mov_b32 v%d, v%d" % (t1, mx))
    I("s_nop 1")
    I("v_permlane32_swap_b32 v%d, v%d" % (mx, t1))
    I("s_nop 0")
    I("v_max_f32 v%d, v%d, v%d" % (mx, mx, t1))
    I("v_mul_f32 v%d, s%d, v%d" % (mx, c1, mx))
    vals = [A_SX + i for i in range(16)] + [A_SM + i for i in range(4)]
    for v in vals:
        I("v_fma_f32 v%d, v%d, s%d, -v%d" % (v, v, c1, mx))
    for v in vals:
        I("v_exp_f32 v%d, v%d" % (v, v))
    sm = A_T + 2
    I("v_pk_add_f32 %s, %s, %s" % (v2(sm), v2(A_SX), v2(A_SX + 2)))
    for v in list(range(A_SX + 4, A_SX + 16, 2)) + [A_SM, A_SM + 2]:
        I("v_pk_add_f32 %s, %s, %s" % (v2(sm), v2(sm), v2(v)))
    I("v_add_f32 v%d, v%d, v%d" % (sm, sm, sm + 1))
    I("v_mov_b32 v%d, v%d" % (t1, sm))
    I("s_nop 1")
    I("v_permlane32_swap_b32 v%d, v%d" % (sm, t1))
    I("s_nop 0")
    I("v_add_f32 v%d, v%d, v%d" % (sm, sm, t1))
    I("v_rcp_f32 v%d, v%d" % (sm, sm))
    I("s_nop 0")
    for v in list(range(A_SX, A_SX + 16, 2)) + [A_SM, A_SM + 2]:
        I("v_pk_mul_f32 %s, %s, %s op_sel_hi:[1,0]" % (v2(v), v2(v), v2(sm)))
    for i in range(8):
        I(cvt(A_P + i, A_SX + 2 * i, A_SX + 2 * i + 1))
    I(cvt(A_P + 8, A_SM, A_SM + 1))
    I(cvt(A_P + 9, A_SM + 2, A_SM + 3))
    I("s_nop 1")
    OA = A_KX
    pack_ = lambda t: [cvt(A_VT + 8 * t + i, OA + 16 * t + 2 * i, OA + 16 * t + 2 * i + 1) for i in range(8)]
    misc = ["s_lshl_b32 s%d, s%d, 9" % (S_T, sg), "s_lshr_b32 s%d, s%d, 3" % (S_T + 1, S_K2),
            "s_lshl_b32 s%d, s%d, 7" % (S_T + 1, S_T + 1), "s_add_u32 s%d, s%d, s%d" % (S_T, S_T, S_T + 1),
            "s_add_u32 s%d, s%d, 0x%x" % (S_SG, S_T, C_O), "s_mov_b32 s%d, s%d" % (S_AP, so), "s_add_u32 s%d, s%d, 4" % (S_K3, S_K3)]
    for t in range(4):
        c = OA + 16 * t
        I(m32(c, A_VT + t * 8, A_P, None))
        I(m32(c, A_VT + t * 8 + 4, A_P + 4, c))
        p = pack_(t - 1) if t else misc
        for l in p[:4]:
            I(l)
        I("v_mfma_f32_32x32x8_bf16 v[%d:%d], %s, %s, v[%d:%d]" % (c, c + 15, v2(A_VM + 2 * t), v2(A_P + 8), c, c + 15))
        for l in p[4:]:
            I(l)
    I("s_nop 7")
    for l in pack_(3):
        I(l)


def attn_stores():
    out = []
    for t in range(4):
        for u in range(2):
            out.append(["s_add_u32 s%d, s%d, %d" % (S_P3, S_AP, boff(t)),
                        ('vm', "buffer_store_dwordx4 %s, v%d, %s, s%d offen offset:%d sc1" % (v4(A_VT + 8 * t + 4 * u), A_AD + 4, WS, S_P3, 2048 + 512 * u), 'ost')])
    return out + ["s_mov_b32 s%d, 0x40000000" % S_AP]


def run_q(a):
    I = a.I
    st = Stream(a, "q", 'row', True, 'kv')
    if not E("CWARM", 1):
        warm(a, S_SRC, 4 * MB, S_K2, 32)
    if E("WARMO", 0):
        a.srd(S_AUX, ptr(B_WO), 0, 8 * MB)
        warm(a, S_AUX, 8 * MB, S_K2, 32)
    attn_setup(a)
    att, ret = a.uid("L_att"), a.uid("L_attr")
    GW, GR, GZ = 101, 102, 103
    I("s_mov_b32 s%d, 0" % S_K3)
    I("v_mov_b32 v%d, 0x%x" % (GR, L_GATE))
    I("v_lshl_add_u32 v%d, v0, 2, v%d" % (GW, GR))
    I("v_mov_b32 v%d, %d" % (GZ, DB_PROG))
    I("v_mov_b32 v%d, 0" % V_G)

    def items(P):
        par = ["s_sub_u32 s%d, s%d, 1" % (S_P1, S_B),
               ["s_bitcmp1_b32 s%d, 1" % S_P1, "s_cselect_b32 s%d, s%d, s%d" % (S_P0, S_EVEN, S_ODD)],
               "s_add_u32 s%d, s%d, s%d" % (S_P0, S_P0, S_K0),
               "s_lshl_b32 s%d, s%d, 20" % (S_P2, S_P1),
               "s_add_u32 s%d, s%d, s%d" % (S_P0, S_P0, S_P2),
               valid(S_P0), "s_mov_b32 s%d, 1" % S_VAL]
        pk = pack(st, P, False)
        sto = lambda h: ('vm', "buffer_store_dwordx4 %s, v%d, %s, s%d offen offset:%d" % (v4(V_X + 4 * h), V_ST, WS, S_P0, 128 * h), 'st')
        return par + pk[:4] + [sto(0)] + pk[4:] + [sto(1)]

    for r in (S_AK, S_AO, S_SG, S_AP):
        I("s_mov_b32 s%d, 0x%x" % (r, 0x40000000))
    I("s_mov_b32 s%d, 0" % S_PEND)
    st.vmslots = (3, 6)
    st.full = bool(E("QFULL", 1))
    pf = attn_xloads() + attn_mloads()
    NP0 = 12

    def side(P):
        out = [(0, 22, items(P))]
        if P == 0:
            out += [(50, 62, [('wait', 'ost'), signal(S_SG), "s_mov_b32 s%d, 0x%x" % (S_SG, 0x40000000)]),
                    (0, 90, pf[NP0:]),
                    (91, 100, [('vm', "buffer_load_dword v%d, v%d, %s, 0 offen sc1" % (V_G, GZ, srd(S_AUX2)), 'gate')])]
        else:
            out += [(4, 5, [('wait', 'gate'), "ds_write_b32 v%d, v%d" % (GW, V_G)]),
                    (22, 23, [('ds', "ds_read_b32 v%d, v%d" % (V_G, GR), 'gr')]),
                    (34, 34, [[('wait', 'pf'), "s_branch %s" % att, ret + ":"]]),
                    (35, 127, attn_stores()), (35, 127, pf[:NP0])]
        return out

    def flush(P):
        if P == 0:
            return
        nxt, srv, fin = a.uid("L_anext"), a.uid("L_aserve"), a.uid("L_afin")
        st.emit_plain(items(P) + [('sync', 'st')])
        TLP[0](28)
        I("s_mov_b32 s%d, 0x%x" % (S_T, C_KV + 63 * 128))
        poll(a, S_WSR, S_T, 64)
        a.L(att)
        I("s_waitcnt lgkmcnt(0)")
        I("s_cmp_eq_u32 s%d, 0" % S_PEND)
        I("s_cbranch_scc1 %s" % nxt)
        attn_compute(a, st)
        a.L(nxt)
        attn_bases(a)
        I("s_cmp_ge_u32 s%d, 64" % S_B)
        I("s_cbranch_scc1 %s" % srv)
        I("v_readfirstlane_b32 s%d, v%d" % (S_T, V_G))
        if E("QSTAG", 2):
            I("s_and_b32 s%d, s%d, 1" % (S_T + 1, S_K2))
            I("s_mul_i32 s%d, s%d, %d" % (S_T + 1, S_T + 1, E("QSTAG", 2)))
            I("s_sub_u32 s%d, s%d, s%d" % (S_T, S_T, S_T + 1))
        I("s_sub_u32 s%d, s%d, 3" % (S_T + 1, S_B))
        I("s_min_i32 s%d, s%d, s%d" % (S_T, S_T, S_T + 1))
        I("s_add_u32 s%d, s%d, 4" % (S_T + 1, S_K3))
        I("s_cmp_ge_i32 s%d, s%d" % (S_T, S_T + 1))
        I("s_cselect_b32 s%d, 1, 0" % S_PEND)
        I("s_cselect_b32 s%d, s%d, 0x40000000" % (S_AK, S_AK))
        I("s_cselect_b32 s%d, s%d, 0x40000000" % (S_AO, S_AO))
        I("s_branch %s" % ret)
        a.L(srv)
        st.emit_plain(attn_stores())
        I("s_cmp_ge_u32 s%d, 64" % S_K3)
        I("s_cbranch_scc1 %s" % fin)
        xl = attn_xloads()
        st.emit_plain(xl[:8])
        I("s_waitcnt vmcnt(8)")
        I(signal(S_SG)[1])
        I("s_mov_b32 s%d, 0x%x" % (S_SG, 0x40000000))
        st.emit_plain(xl[8:])
        I("s_mov_b32 s%d, 1" % S_PEND)
        I("s_waitcnt vmcnt(0)")
        I("s_branch %s" % att)
        a.L(fin)
        I("s_waitcnt vmcnt(0)")
        I(signal(S_SG)[1])
        TLP[0](25, 192)
    st.run(adv_plain, side, flush)


def run_g1(a, bases):
    I = a.I
    LR, LI, CR, CI, PR, PI, HR, HI = range(V_X, V_X + 8)
    NLI, NPI, NCR, NCI = 152, 153, 154, 155
    TB = 156
    XR, XI, NXR, NXI = range(V_X + 8, V_X + 12)
    G = V_X + 14
    OB = 120
    O = 128
    OT = 144
    HW, HR2 = 116, 117
    a.C("======== SSM input projection and scan")
    for _ in range(E("G1SLEEP", 0)):
        I("s_sleep 127")
    a.srd(S_SRC, ptr(A_X), 0, 4 * MB)
    first_blocks(a, 16)
    I("s_lshl_b32 s%d, s%d, 6" % (S_K2, S_RK))
    I("s_lshl_b32 s%d, s%d, 4" % (S_T, S_WV))
    I("s_add_u32 s%d, s%d, s%d" % (S_K2, S_K2, S_T))
    I("v_and_b32 v1, 15, v0")
    I("v_add_u32 v1, s%d, v1" % S_K2)
    I("v_bfe_u32 v2, v0, 4, 2")
    I("v_lshlrev_b32 v3, 1, v1")
    for i, src in enumerate((A_LRE, A_LIM, A_LOGDT)):
        a.srd(S_AUX, ptr(src), 0, 2048)
        I("buffer_load_ushort v%d, v3, %s, 0 offen" % (O + i, srd(S_AUX)))
    a.srd(S_AUX, ptr(A_BRE), 0, 2 * MB)
    a.srd(S_AUX2, ptr(A_BIM), 0, 2 * MB)
    I("s_lshl_b32 s%d, s%d, 11" % (S_T, S_WV))
    I("s_add_u32 s%d, s%d, 0x%x" % (S_T, S_T, L_Q))
    I("v_bfe_u32 v5, v0, 1, 2")
    I("v_xor_b32 v5, v5, v2")
    I("v_lshlrev_b32 v5, 4, v5")
    I("v_and_b32 v6, 15, v0")
    I("v_lshl_add_u32 v5, v6, 6, v5")
    I("v_add_u32 v%d, s%d, v5" % (HW, S_T))
    I("v_bfe_u32 v5, v0, 5, 1")
    I("v_bfe_u32 v6, v0, 2, 2")
    I("v_lshl_add_u32 v5, v5, 3, v6")
    I("v_lshlrev_b32 v5, 6, v5")
    I("v_bfe_u32 v7, v0, 4, 1")
    I("v_lshlrev_b32 v7, 1, v7")
    I("v_bfe_u32 v%d, v0, 1, 1" % HR2)
    I("v_add_u32 v7, v7, v%d" % HR2)
    I("v_lshrrev_b32 v6, 1, v6")
    I("v_xor_b32 v7, v7, v6")
    I("v_lshl_add_u32 v5, v7, 4, v5")
    I("v_and_b32 v6, 1, v0")
    I("v_lshl_add_u32 v5, v6, 3, v5")
    I("v_add_u32 v%d, s%d, v5" % (HR2, S_T))
    I("v_xor_b32 v%d, 32, v%d" % (HR2 + 1, HR2))
    I("s_lshl_b32 s%d, s%d, 6" % (S_T, S_K2))
    I("v_and_b32 v5, 63, v0")
    I("v_lshlrev_b32 v5, 4, v5")
    I("v_add_u32 v%d, s%d, v5" % (V_ST, S_T))
    load_panel_n(a, S_K2, 'two', (S_AUX, S_AUX2), NT("NTS", 1))
    lre, lim, ldt, x0, x1, x2, x3 = O, O + 1, O + 2, O + 3, O + 4, O + 5, O + 6
    for r in (lre, lim, ldt):
        I("v_lshlrev_b32 v%d, 16, v%d" % (r, r))
    I("v_mul_f32 v%d, 0x3fb8aa3b, v%d" % (x0, ldt))
    I("v_exp_f32 v%d, v%d" % (x0, x0))
    I("s_nop 0")
    I("v_cvt_pk_bf16_f32 v%d, 0, v%d" % (x0, x0))
    I("v_mul_f32 v%d, v%d, v%d" % (x1, x0, lre))
    I("v_mul_f32 v%d, v%d, v%d" % (x2, x0, lim))
    I("v_mul_f32 v%d, 0x3fb8aa3b, v%d" % (x1, x1))
    I("v_exp_f32 v%d, v%d" % (x1, x1))
    I("v_mul_f32 v%d, 0x3e22f983, v%d" % (x2, x2))
    I("v_fract_f32 v%d, v%d" % (x2, x2))
    I("v_cos_f32 v%d, v%d" % (x3, x2))
    I("v_sin_f32 v%d, v%d" % (x2, x2))
    I("s_nop 0")
    I("v_mul_f32 v%d, v%d, v%d" % (LR, x1, x3))
    I("v_mul_f32 v%d, v%d, v%d" % (LI, x1, x2))
    I("v_add_f32 v%d, -1.0, v%d" % (x0, LR))
    I("v_mul_f32 v%d, v%d, v%d" % (x1, x0, lre))
    I("v_fma_f32 v%d, v%d, v%d, v%d" % (x1, LI, lim, x1))
    I("v_mul_f32 v%d, v%d, v%d" % (x2, LI, lre))
    I("v_fma_f32 v%d, -v%d, v%d, v%d" % (x2, x0, lim, x2))
    I("v_mul_f32 v%d, v%d, v%d" % (x3, lre, lre))
    I("v_fma_f32 v%d, v%d, v%d, v%d" % (x3, lim, lim, x3))
    I("v_rcp_f32 v%d, v%d" % (x3, x3))
    I("s_nop 0")
    I("v_add_f32 v%d, v%d, v%d" % (x3, x3, x3))
    I("v_mul_f32 v%d, v%d, v%d" % (CR, x1, x3))
    I("v_mul_f32 v%d, v%d, v%d" % (CI, x2, x3))
    I("v_mov_b32 v%d, v%d" % (PR, LR))
    I("v_mov_b32 v%d, v%d" % (PI, LI))
    for k in range(3):
        I("v_mul_f32 v%d, v%d, v%d" % (x0, PI, PI))
        I("v_mul_f32 v%d, v%d, v%d" % (PI, PR, PI))
        I("v_fma_f32 v%d, v%d, v%d, -v%d" % (PR, PR, PR, x0))
        I("v_add_f32 v%d, v%d, v%d" % (PI, PI, PI))
    for n_, p_ in ((NLI, LI), (NPI, PI), (NCR, CR), (NCI, CI)):
        I("v_xor_b32 v%d, 0x80000000, v%d" % (n_, p_))
    for k in range(8):
        pr, pi = (CR, CI) if k == 0 else (TB + 2 * k - 2, TB + 2 * k - 1)
        I("v_mul_f32 v%d, v%d, v%d" % (TB + 2 * k, LR, pr))
        I("v_mul_f32 v%d, v%d, v%d" % (TB + 2 * k + 1, LR, pi))
        I("v_fmac_f32 v%d, v%d, v%d" % (TB + 2 * k, NLI, pi))
        I("v_fmac_f32 v%d, v%d, v%d" % (TB + 2 * k + 1, LI, pr))
    I("v_mov_b32 v%d, 0" % HR)
    I("v_mov_b32 v%d, 0" % HI)
    for i in range(16):
        I("v_mov_b32 v%d, 0" % (V_ACC + 16 + i))
    st = Stream(a, "g1", 'row', False, 't8')
    st.setup()
    wait_init(a, bases)
    TLP[0](17)
    for k, (lo, hi) in enumerate(((0xffff0000, 0xffffffff), (0, 0xffffffff), (0, 0xffff0000))):
        I("s_mov_b32 s%d, 0x%x" % (S_M + 2 * k, lo))
        I("s_mov_b32 s%d, 0x%x" % (S_M + 2 * k + 1, hi))
    start_plain(a)
    for r in (S_P0, S_P1, S_P3):
        I("s_mov_b32 s%d, 0x%x" % (r, OOB))

    fm = lambda d, x, y: "v_fmac_f32 v%d, v%d, v%d" % (d, x, y)
    mu = lambda d, x, y: "v_mul_f32 v%d, v%d, v%d" % (d, x, y)

    def cmac(dr, di, lr, li, nli, xr, xi):
        return [fm(dr, lr, xr), fm(di, lr, xi), fm(dr, nli, xi), fm(di, li, xr)]

    def scan(P):
        ur = lambda k: st.acc(P, k >> 2, 0) + (k & 3)
        ui = lambda k: st.acc(P, k >> 2, 1) + (k & 3)
        scl = lambda k: [mu(O + k, CR, ur(k)), mu(O + 8 + k, NCR, ui(k)), fm(O + k, NCI, ui(k)), fm(O + 8 + k, NCI, ur(k))]
        it = []
        for k in range(1, 8):
            c, d = cmac(ur(k), ui(k), LR, LI, NLI, ur(k - 1), ui(k - 1)), scl(k - 1)
            it += [c[0], c[1], d[0], d[1], c[2], c[3], d[2], d[3]]
        d = scl(7)
        it += ["v_mov_b32 v%d, v%d" % (G, ur(7)), "v_mov_b32 v%d, v%d" % (G + 1, ur(7)),
               "v_mov_b32 v%d, v%d" % (G + 4, ui(7)), "v_mov_b32 v%d, v%d" % (G + 5, ui(7)), d[0], d[1],
               "v_permlane16_swap_b32 v%d, v%d" % (G, G + 1), "v_permlane16_swap_b32 v%d, v%d" % (G + 4, G + 5)]
        it += ["v_mov_b32 v%d, v%d" % (G + 2 + i + 2 * (i >> 1), G + i + 2 * (i >> 1)) for i in range(4)] + [d[2], d[3]]
        it += ["v_permlane32_swap_b32 v%d, v%d" % (G + i + 2 * (i >> 1), G + 2 + i + 2 * (i >> 1)) for i in range(4)]
        xr, xi = HR, HI
        for j in range(4):
            it += cmac(G + j, G + 4 + j, PR, PI, NPI, xr, xi)
            xr, xi = G + j, G + 4 + j
            if j < 3:
                src = (HR, HI) if j == 0 else (XR, XI)
                it += ["v_cndmask_b32 v%d, v%d, v%d, s[%d:%d]" % (XR + u, src[u], G + 4 * u + j, S_M + 2 * j, S_M + 2 * j + 1) for u in range(2)]
        it += ["v_xor_b32 v%d, 0x80000000, v%d" % (NXR, XR), "v_xor_b32 v%d, 0x80000000, v%d" % (NXI, XI),
               "v_mov_b32 v%d, v%d" % (HR, G + 3), "v_mov_b32 v%d, v%d" % (HI, G + 7)]
        for k in range(8):
            it += [fm(O + k, TB + 2 * k, XR), fm(O + 8 + k, TB + 2 * k, NXI), fm(O + k, TB + 2 * k + 1, NXI), fm(O + 8 + k, TB + 2 * k + 1, NXR)]
            if k % 2:
                it += [cvt(OB + k // 2, O + k - 1, O + k), cvt(OB + 4 + k // 2, O + 7 + k, O + 8 + k)]
        it += ["ds_write_b128 v%d, %s offset:%d" % (HW, v4(OB + 4 * k), 1024 * k) for k in range(2)]
        it += [('ds', "ds_read_b64_tr_b16 %s, v%d offset:%d" % (v2(OT + 4 * k + 2 * u), HR2 + u, 1024 * k + 256 * u), 'tr') for k in range(2) for u in range(2)]
        it += ["s_sub_u32 s%d, s%d, 1" % (S_P1, S_B),
               "s_lshl_b32 s%d, s%d, 17" % (S_P0, S_P1),
               "s_add_u32 s%d, s%d, 0x%x" % (S_P0, S_P0, WS_HT),
               "s_add_u32 s%d, s%d, 0x10000" % (S_P3, S_P0),
               "s_lshl_b32 s%d, s%d, 7" % (S_P1, S_P1),
               "s_add_u32 s%d, s%d, 0x%x" % (S_P1, S_P1, C_H),
               valid(S_P0, S_P1, S_P3),
               "s_mov_b32 s%d, 1" % S_VAL]
        return it
    sto = [('lwait', 'tr'),
           ('vm', "buffer_store_dwordx4 %s, v%d, %s, s%d offen%s" % (v4(OT), V_ST, WS, S_P0, HSC), 'st0'),
           ('vm', "buffer_store_dwordx4 %s, v%d, %s, s%d offen%s" % (v4(OT + 4), V_ST, WS, S_P3, HSC), 'st')]
    sig = [('sync', 'st'), signal(S_P1)]

    def side(P):
        sc = scan(P)
        if E("G1NODS", 0):
            sc = [it for it in sc if not (isinstance(it, str) and it.startswith("ds_write"))]
        if E("G1NOPL", 0):
            sc = [it for it in sc if not (isinstance(it, str) and "permlane" in it)]
        q = E("G1SIGQ", 2)
        return [(4, 14, sto), (32 * q + 21, 32 * q + 30, sig), (3, 127, sc)]

    def flush(P):
        st.emit_plain(sto + sig + scan(P) + sto + sig)
    st.run(adv_plain, side, flush)


class Reduce:
    R = V_X
    SUM = V_X + 8
    PK = V_X + 16
    LIN = V_X + 24
    TR, TW = V_X + 25, V_X + 26
    OWN = V_X + 28
    T = V_X + 36
    F = V_X + 40
    S_TAG = S_PO

    def __init__(self, a, st, sends, own, trans, target, cshift, src_addr, lead, seg=None):
        self.seg = seg or (lambda d: [])
        self.a, self.st, self.sends, self.own, self.trans = a, st, sends, own, trans
        self.target, self.cshift, self.src_addr, self.lead = target, cshift, src_addr, lead
        self.nw = len(own(0)) // 2
        self.op = "dwordx%d" % self.nw

    def announce(self, s_rdy):
        I = self.a.I
        I("s_waitcnt vmcnt(0)")
        I("s_barrier")
        I(signal(s_rdy)[1])

    def prepare(self):
        I = self.a.I
        for i in range(4):
            I("v_mov_b32 v%d, 0" % (self.PK + i))
        I("v_and_b32 v2, 63, v0")
        I("v_lshlrev_b32 v3, 4, v2")
        I("v_lshlrev_b32 v%d, %d, v2" % (self.LIN, 1 + self.nw.bit_length()))
        for k in range(8):
            I("s_add_u32 s%d, s%d, %d" % (S_T + 3, S_K0, k * 1024))
            I("buffer_store_dwordx4 %s, v3, %s, s%d offen sc1" % (v4(self.PK), WS, S_T + 3))
        I("v_lshrrev_b32 v1, 6, v0")
        I("v_lshlrev_b32 v1, 11, v1")
        I("v_add_u32 v1, 0x%x, v1" % (L_GATE + 4096))

    def gload(self):
        return "buffer_load_dword v%d, v4, %s, s%d offen sc1" % (V_G, WS, S_F1)

    def gtest(self):
        return ["v_readfirstlane_b32 s%d, v%d" % (S_T + 5, V_G), "s_cmp_lt_u32 s%d, %d" % (S_T + 5, self.target)]

    def gwait(self, out, back):
        rt = self.a.uid("L_gw")
        out.append(rt + ":")
        if E("TL", 0):
            out.append("    s_add_u32 s%d, s%d, 0x10000" % (S_CNT, S_CNT))
        out += ["    " + self.gload(), "    s_add_u32 s%d, s%d, 1" % (S_SPIN, S_SPIN),
                "    s_cmp_gt_u32 s%d, 0x%x" % (S_SPIN, SPIN_LIMIT), "    s_cbranch_scc1 %s" % ABORT[0], "    s_waitcnt vmcnt(0)"]
        out += ["    " + l for l in self.gtest()]
        out += ["    s_cbranch_scc0 %s" % back, "    s_sleep 1", "    s_branch %s" % rt]
        return rt

    def advance(self, stream_):
        assert stream_
        back = self.a.uid("L_gok")
        rt = self.gwait(self.st.cold, back)
        t = self.gtest()
        return ["s_add_u32 s%d, s%d, 1" % (S_DB, S_DB), "s_min_u32 s%d, s%d, s%d" % (S_DB, S_DB, S_LST)] + self.src_addr() + \
               [('wait', 'gate'), t[0], "s_nop 0", "s_nop 0", [t[1], "s_cbranch_scc1 %s" % rt, back + ":"]]

    def caddr(self, add):
        d = S_F1
        return ["s_add_u32 s%d, s%d, %d" % (d, S_DB, add), "s_min_u32 s%d, s%d, s%d" % (d, d, S_LST)] + self.seg(d) + [
                "s_lshl_b32 s%d, s%d, %d" % (d, d, self.cshift),
                "s_add_u32 s%d, s%d, s%d" % (d, d, S_K4)]

    def gate(self):
        return [(E("GATE", 70), E("GATE", 70) + 16, self.caddr(1) + [('vm', self.gload(), 'gate')])]

    def vr(self, r):
        return "v[%d:%d]" % (r, r + self.nw - 1)

    def loads(self):
        return [('vm', "buffer_load_%s %s, v%d, %s, s%d offen offset:%d sc1" % (self.op, self.vr(self.R + self.nw * j), self.LIN, WS, S_P1, j * 512), 'rcv')
                for j in range(len(self.sends))]

    def check(self):
        n = self.nw * len(self.sends)
        it = ["v_xor_b32 v%d, s%d, v%d" % (self.T, self.S_TAG, self.R)]
        it += ["v_bitop3_b32 v%d, v%d, v%d, s%d bitop3:0xf6" % (self.T, self.T, self.R + i, self.S_TAG) for i in range(1, n)]
        return it + ["v_and_b32 v%d, 1, v%d" % (self.T, self.T), "v_cmp_ne_u32 vcc, 0, v%d" % self.T]

    def send(self, P):
        it = ["s_sub_u32 s%d, s%d, 1" % (S_P0, S_B),
              "s_and_b32 s%d, s%d, 3" % (S_T + 6, S_P0),
              "s_lshl_b32 s%d, s%d, 11" % (S_T + 6, S_T + 6),
              "s_bfe_u32 s%d, s%d, 0x10002" % (S_P0, S_P0),
              "s_xor_b32 s%d, s%d, 1" % (S_P0, S_P0),
              ["s_cmp_eq_u32 s%d, 0" % S_VAL, "s_cselect_b32 s%d, 0x%x, s%d" % (S_T + 6, 0x40000000, S_T + 6),
               "s_cselect_b32 s%d, 0, s%d" % (S_P0, S_P0)]]
        for j, (regs, sk) in enumerate(self.sends):
            r, d = regs(P), self.PK + self.nw * j
            it += [cvt(d + k, r[2 * k], r[2 * k + 1]) for k in range(self.nw)]
            it += ["v_and_or_b32 v%d, v%d, -2, s%d" % (d + k, d + k, S_P0) for k in range(self.nw)]
            it += ["s_add_u32 s%d, s%d, s%d" % (S_T + 4, sk, S_T + 6),
                   ('vm', "buffer_store_%s %s, v%d, %s, s%d offen offset:%d%s" % (self.op, self.vr(d), self.LIN, WS, S_T + 4, j * 512, HSC), 'snd')]
        return it

    def finish(self, final):
        a, st = self.a, self.st
        bad, ok = a.uid("L_rbad"), a.uid("L_rok")
        C = st.cold
        C.append(bad + ":")
        if E("TL", 0):
            C.append("    s_add_u32 s%d, s%d, 1" % (S_CNT, S_CNT))
        C.extend("    " + l[1] for l in self.loads())
        C += ["    s_add_u32 s%d, s%d, 1" % (S_SPIN, S_SPIN), "    s_cmp_gt_u32 s%d, 0x%x" % (S_SPIN, SPIN_LIMIT),
              "    s_cbranch_scc1 %s" % ABORT[0], "    s_waitcnt vmcnt(0)"]
        C.extend("    " + l for l in self.check())
        C += ["    s_cbranch_vccnz %s" % bad, "    s_branch %s" % ok]
        one = [('wait', 'rcv')] + self.check() + ["s_nop 0", "s_nop 0", "s_nop 0", ["s_cbranch_vccnz %s" % bad, ok + ":"]]
        for j in range(len(self.sends)):
            for k in range(self.nw):
                r, src = self.R + self.nw * j + k, (self.OWN if j == 0 else self.SUM) + 2 * k
                one += ["v_lshlrev_b32 v%d, 16, v%d" % (self.T, r), "v_and_b32 v%d, 0xffff0000, v%d" % (self.T + 1, r),
                        "v_add_f32 v%d, v%d, v%d" % (self.SUM + 2 * k, src, self.T),
                        "v_add_f32 v%d, v%d, v%d" % (self.SUM + 2 * k + 1, src + 1, self.T + 1)]
        one += self.trans
        one += [('ds', "ds_read_b128 %s, v%d offset:%d" % (v4(self.R + 4 * k), self.TR, 1024 * k), 'tr') for k in range(self.nw // 2)]
        return one, [('lwait', 'tr')] + final

    def fetch(self, P, params):
        it = ["v_mov_b32 v%d, v%d" % (self.OWN + i, r) for i, r in enumerate(self.own(P))]
        it += ["s_mov_b32 s%d, s%d" % (self.S_TAG, S_P0), "s_add_u32 s%d, s%d, s%d" % (S_P1, S_K0, S_T + 6)]
        return it + params + self.loads() + ["s_mov_b32 s%d, 1" % S_VAL]

    def runs(self, params, pre, final):
        a, I, st = self.a, self.a.I, self.st
        st.la, st.full = 4, True
        I("s_mov_b32 s%d, 0" % S_CNT)
        I("v_mov_b32 v4, 0")
        I("s_sub_u32 s%d, s%d, 1" % (S_LST, S_END))
        I("s_mov_b32 s%d, 0" % S_B)
        I("s_mov_b32 s%d, 0" % S_DB)
        st.emit_plain(self.caddr(self.lead))
        go = a.uid("L_rgo")
        self.gwait(a.lines, go)
        a.L(go)
        st.emit_plain(self.caddr(1) + [self.gload()])
        I("s_mov_b32 s%d, 0" % S_VAL)
        I("s_mov_b32 s%d, 0" % self.S_TAG)
        for k in range(8):
            I("v_mov_b32 v%d, 0" % (self.R + k))
        st.emit_plain(self.src_addr())
        I("s_mov_b32 s%d, s%d" % (S_OFF, S_NOF))
        for r in (S_P1, S_P2, S_P3):
            I("s_mov_b32 s%d, 0x%x" % (r, OOB))
        f0, f1, f2 = self.plan
        if pre:
            final = [('wait', pre[-1][2])] + final

        def side(P):
            one, two = self.finish(final)
            return self.gate() + [(0, 38, self.send(P)), (f0, f1 - 4, one), (f1, f2 - 1, two), (f2, 127, self.fetch(P, params)), (0, 30, pre)]

        def flush(P):
            TLP[0](22 if st.name == 'g2' else 27)
            one, two = self.finish(final)
            st.emit_plain(self.send(P) + pre + one + two + self.fetch(P, params) + pre)
            one, two = self.finish(final)
            st.emit_plain(one + two)
        st.run(self.advance, side, flush)


def run_g2(a, bases):
    I = a.I
    a.C("======== SSM output projection")
    st = Stream(a, "g2", 'lin', True)
    kh = S_K3

    def src_addr():
        return ["s_lshl_b32 s%d, s%d, 17" % (S_NOF, S_DB), "s_add_u32 s%d, s%d, s%d" % (S_NOF, S_NOF, S_K5)]
    tile = lambda t: lambda P: list(range(st.acc(P, t, 0), st.acc(P, t, 0) + 8))
    trans = ["ds_write_b128 v%d, %s" % (Reduce.TW + k, v4(Reduce.SUM + 4 * k)) for k in range(2)]
    rd = Reduce(a, st, [(tile(1), S_K1)], tile(0), trans, 16, 7, src_addr, E("G2LEAD", 1))
    rd.plan = (54, 82, 112)
    DV, XV, XA, OA_ = rd.F, rd.F + 4, rd.F + 8, rd.F + 10
    T = rd.F + 12
    I("s_and_b32 s%d, s%d, 15" % (S_K2, S_RK))
    if E("G2WARM", 1):
        a.srd(S_AUX2, ptr(A_X), 0, 4 * MB)
        warm(a, S_AUX2, 4 * MB, S_K2, 16)
    wait_init(a, bases)
    I("s_lshl_b32 s%d, s%d, 15" % (S_K0, S_K2))
    I("s_lshl_b32 s%d, s%d, 13" % (S_T, S_WV))
    I("s_add_u32 s%d, s%d, s%d" % (S_K0, S_K0, S_T))
    I("s_xor_b32 s%d, s%d, 0x8000" % (S_K1, S_K0))
    I("s_add_u32 s%d, s%d, 0x%x" % (S_K0, S_K0, WS_INB))
    I("s_add_u32 s%d, s%d, 0x%x" % (S_K1, S_K1, WS_INB))
    I("s_lshr_b32 s%d, s%d, 1" % (S_K4, S_K2))
    I("s_lshl_b32 s%d, s%d, 7" % (S_K4, S_K4))
    I("s_add_u32 s%d, s%d, 0x%x" % (S_K4, S_K4, C_RDY + 32 * 128))
    rd.prepare()
    I("v_bfe_u32 v2, v0, 3, 3")
    I("v_lshlrev_b32 v2, 4, v2")
    I("v_xor_b32 v2, v2, v3")
    I("v_add_u32 v%d, v1, v2" % rd.TR)
    I("v_and_b32 v2, 15, v0")
    I("v_lshl_add_u32 v1, v2, 7, v1")
    I("v_bfe_u32 v2, v0, 4, 2")
    I("v_lshlrev_b32 v2, 1, v2")
    I("v_and_b32 v3, 7, v0")
    I("v_xor_b32 v2, v2, v3")
    I("v_lshl_add_u32 v%d, v2, 4, v1" % rd.TW)
    I("v_xor_b32 v%d, 16, v%d" % (rd.TW + 1, rd.TW))
    rd.announce(S_K4)
    poll(a, S_WSR, S_K4, 2)
    if E("G2WAIT", 0):
        I("s_mov_b32 s%d, 0x%x" % (S_T, C_KV))
        poll(a, S_WSR, S_T, E("G2WAIT", 0), sleep=16)
    I("s_and_b32 s%d, s%d, 1" % (kh, S_K2))
    I("s_cmp_eq_u32 s%d, 1" % kh)
    I("s_cselect_b32 s%d, s%d, s%d" % (S_AUX, ptr(A_CIM), ptr(A_CRE)))
    I("s_cselect_b32 s%d, s%d, s%d" % (S_AUX + 1, ptr(A_CIM) + 1, ptr(A_CRE) + 1))
    I("s_and_b32 s%d, s%d, 0xffff" % (S_AUX + 1, S_AUX + 1))
    I("s_mov_b32 s%d, 0x%x" % (S_AUX + 2, 2 * MB))
    I("s_mov_b32 s%d, 0x00020000" % (S_AUX + 3))
    I("s_lshr_b32 s%d, s%d, 1" % (S_T, S_K2))
    I("s_lshl_b32 s%d, s%d, 7" % (S_T, S_T))
    I("s_lshl_b32 s%d, s%d, 5" % (S_T + 1, S_WV))
    I("s_add_u32 s%d, s%d, s%d" % (S_T, S_T, S_T + 1))
    I("v_and_b32 v5, 7, v0")
    I("v_lshl_add_u32 v5, v5, 2, s%d" % S_T)
    I("s_lshl_b32 s%d, s%d, 4" % (S_T + 1, kh))
    I("v_bfe_u32 v6, v0, 3, 3")
    I("v_add_u32 v6, s%d, v6" % (S_T + 1))
    I("v_lshlrev_b32 v7, 1, v5")
    I("v_lshl_add_u32 v%d, v6, 11, v7" % XA)
    I("v_add_u32 v%d, 0x4000, v%d" % (XA + 1, XA))
    I("v_lshlrev_b32 v5, 2, v5")
    I("v_lshl_add_u32 v%d, v6, 13, v5" % OA_)
    I("v_add_u32 v%d, 0x10000, v%d" % (OA_ + 1, OA_))
    a.srd(S_AUX2, ptr(A_DSKIP), 0, 2048)
    I("buffer_load_dwordx2 %s, v7, %s, 0 offen" % (v2(XV), srd(S_AUX2)))
    load_panel_n(a, S_T, 't8', (S_AUX, S_AUX), NT("NTS", 1))
    for i in range(2):
        I("v_lshlrev_b32 v%d, 16, v%d" % (DV + 2 * i, XV + i))
        I("v_and_b32 v%d, 0xffff0000, v%d" % (DV + 2 * i + 1, XV + i))
    I("s_mov_b32 s%d, 0x%x" % (S_K4, C_H))
    I("s_lshl_b32 s%d, s%d, 16" % (S_K5, kh))
    I("s_add_u32 s%d, s%d, 0x%x" % (S_K5, S_K5, WS_HT))
    a.srd(S_SRC, ptr(D_WS), 0, WS_SIZE)
    a.srd(S_AUX, ptr(D_OUT), 0, 16 * MB)
    a.srd(S_AUX2, ptr(A_X), 0, 4 * MB)
    if not E("CWARM", 1):
        warm(a, S_AUX2, 4 * MB, S_K2, 16)
    I("s_lshl_b32 s%d, s%d, 8" % (kh, kh))
    st.setup(kh)
    TLP[0](17)
    I("s_mov_b32 s%d, 64" % S_END)
    params = ["s_sub_u32 s%d, s%d, 1" % (S_P3, S_B),
              "s_lshl_b32 s%d, s%d, 16" % (S_P2, S_P3),
              "s_lshl_b32 s%d, s%d, 18" % (S_P3, S_P3),
              valid(S_P2, S_P3)]
    pre = [('vm', "buffer_load_dwordx2 %s, v%d, %s, s%d offen" % (v2(XV + 2 * k), XA + k, srd(S_AUX2), S_P2), 'x') for k in range(2)]
    final = []
    for i in range(4):
        final += ["v_lshlrev_b32 v%d, 16, v%d" % (T, XV + i),
                  "v_and_b32 v%d, 0xffff0000, v%d" % (T + 1, XV + i),
                  "v_mul_f32 v%d, v%d, v%d" % (T, T, DV + 2 * (i & 1)),
                  "v_mul_f32 v%d, v%d, v%d" % (T + 1, T + 1, DV + 2 * (i & 1) + 1),
                  "v_cvt_pk_bf16_f32 v%d, 0, v%d" % (T, T),
                  "v_cvt_pk_bf16_f32 v%d, 0, v%d" % (T + 1, T + 1),
                  "v_add_f32 v%d, v%d, v%d" % (rd.SUM + 2 * i, rd.R + 2 * i, T),
                  "v_add_f32 v%d, v%d, v%d" % (rd.SUM + 2 * i + 1, rd.R + 2 * i + 1, T + 1)]
        if i & 1:
            final.append(('vm', "buffer_store_dwordx4 %s, v%d, %s, s%d offen%s" % (v4(rd.SUM + 2 * i - 2), OA_ + i // 2, srd(S_AUX), S_P3, OSC), 'out'))
    rd.runs(params, pre, final)


def run_op(a):
    I = a.I
    a.C("======== attention output projection")
    st = Stream(a, "op", 'chunk', False)
    u, kq, nt = S_P0, S_P1, S_P2

    def seg(d):
        return ["s_mul_i32 s3, s%d, 3" % d, "s_add_u32 s3, s3, s%d" % S_SB,
                "s_lshl1_add_u32 s%d, s%d, s%d" % (d, d, S_SA), "s_max_i32 s%d, s%d, s3" % (d, d)]

    def src_addr():
        return ["s_mov_b32 s%d, s%d" % (S_T + 5, S_DB)] + seg(S_T + 5) + [
                ["s_bitcmp1_b32 s%d, 1" % (S_T + 5), "s_cselect_b32 s%d, s%d, s%d" % (S_NOF, S_EVEN, S_ODD)],
                "s_lshl_b32 s%d, s%d, 20" % (S_T + 5, S_T + 5),
                "s_add_u32 s%d, s%d, s%d" % (S_NOF, S_NOF, S_T + 5),
                "s_add_u32 s%d, s%d, s%d" % (S_NOF, S_NOF, S_K5)]
    part = lambda r: lambda P: [st.acc(P, t, c) + r for t in range(2) for c in range(2)]
    trans = ["ds_write2_b32 v%d, v%d, v%d offset0:%d offset1:%d" % (Reduce.TW, Reduce.SUM + 2 * t, Reduce.SUM + 2 * t + 1, 128 * t, 128 * t + 16) for t in range(2)]
    rd = Reduce(a, st, [(part(1), S_K1), (part(2), S_K2), (part(3), S_K3)], part(0), trans, 8, 9, src_addr, 0, seg)
    rd.plan = (56, 94, 104)
    OA_ = rd.F
    I("s_mov_b32 s%d, s%d" % (u, S_RK))
    I("s_and_b32 s%d, s%d, 3" % (kq, u))
    I("s_lshr_b32 s%d, s%d, 2" % (nt, u))
    I("s_lshl_b32 s%d, s%d, 5" % (S_K0, S_XW))
    I("s_add_u32 s%d, s%d, s%d" % (S_K0, S_K0, u))
    I("s_lshl_b32 s%d, s%d, 15" % (S_K0, S_K0))
    I("s_lshl_b32 s%d, s%d, 13" % (S_T, S_WV))
    I("s_add_u32 s%d, s%d, s%d" % (S_K0, S_K0, S_T))
    for j, r in enumerate((S_K1, S_K2, S_K3)):
        I("s_xor_b32 s%d, s%d, 0x%x" % (r, S_K0, (j + 1) << 15))
        I("s_add_u32 s%d, s%d, 0x%x" % (r, r, WS_INB + INB_OP))
    I("s_add_u32 s%d, s%d, 0x%x" % (S_K0, S_K0, WS_INB + INB_OP))
    I("s_lshl_b32 s%d, s%d, 3" % (S_K4, S_XW))
    I("s_lshr_b32 s%d, s%d, 2" % (S_T, u))
    I("s_add_u32 s%d, s%d, s%d" % (S_K4, S_K4, S_T))
    I("s_lshl_b32 s%d, s%d, 7" % (S_K4, S_K4))
    I("s_add_u32 s%d, s%d, 0x%x" % (S_K4, S_K4, C_RDY))
    a.srd(S_AUX, ptr(B_WO), 0, 8 * MB)
    I("s_lshl_b32 s%d, s%d, 21" % (S_K5, kq))
    I("s_lshl_b32 s%d, s%d, 8" % (S_T, nt))
    I("s_add_u32 s%d, s%d, s%d" % (S_K5, S_K5, S_T))
    rd.prepare()
    I("v_add_u32 v%d, v1, v3" % rd.TR)
    I("v_and_b32 v2, 15, v0")
    I("v_lshl_add_u32 v1, v2, 2, v1")
    I("v_bfe_u32 v2, v0, 4, 2")
    I("v_lshl_add_u32 v%d, v2, 7, v1" % rd.TW)
    load_panel_t(a, S_K5, 2048, 'nat', mid=lambda: I(signal(S_K4)[1]))
    poll(a, S_WSR, S_K4, 4)
    I("s_lshl_b32 s%d, s%d, 9" % (S_T, nt))
    I("s_lshl_b32 s%d, s%d, 7" % (S_T + 1, S_WV))
    I("s_add_u32 s%d, s%d, s%d" % (S_T, S_T, S_T + 1))
    I("s_lshl_b32 s%d, s%d, 13" % (S_T + 1, kq))
    I("s_add_u32 s%d, s%d, s%d" % (S_T, S_T, S_T + 1))
    I("s_add_u32 s%d, s%d, 4096" % (S_T, S_T))
    I("v_bfe_u32 v1, v0, 3, 3")
    I("v_and_b32 v2, 7, v0")
    I("v_lshlrev_b32 v1, 15, v1")
    I("v_lshl_add_u32 v1, v2, 4, v1")
    I("v_add_u32 v%d, s%d, v1" % (OA_, S_T))
    I("s_lshl_b32 s%d, s%d, 7" % (S_K4, kq))
    I("s_add_u32 s%d, s%d, 0x%x" % (S_K4, S_K4, C_O))
    I("s_lshl_b32 s%d, s%d, 18" % (S_K5, kq))
    I("s_add_u32 s%d, s%d, 2048" % (S_K5, S_K5))
    a.srd(S_SRC, ptr(D_WS), 0, WS_SIZE)
    a.srd(S_AUX, ptr(D_OUT), 0, 16 * MB)
    I("s_lshl_b32 s%d, s%d, 4" % (kq, kq))
    st.setup(kq)
    TLP[0](21)
    I("s_cmp_lt_u32 s%d, 16" % S_RK)
    I("s_cselect_b32 s%d, %d, %d" % (S_T, E("OPS0", 12), E("OPS1", 24)))
    I("s_lshr_b32 s%d, s%d, 1" % (S_T + 1, S_T))
    I("s_sub_u32 s%d, s%d, s%d" % (S_SB, S_XW, S_T + 1))
    I("s_add_u32 s%d, s%d, 2" % (S_T, S_T))
    I("s_cmp_eq_u32 s%d, 3" % S_XW)
    I("s_cselect_b32 s%d, s%d, s%d" % (S_SB, S_T, S_SB))
    I("s_cselect_b32 s%d, 0, s%d" % (S_SA, S_XW))
    I("s_sub_u32 s%d, 66, s%d" % (S_END, S_SB))
    I("s_mul_i32 s%d, s%d, 43691" % (S_END, S_END))
    I("s_lshr_b32 s%d, s%d, 17" % (S_END, S_END))
    params = ["s_sub_u32 s%d, s%d, 1" % (S_P3, S_B)] + seg(S_P3) + [
              "s_lshl_b32 s%d, s%d, 18" % (S_P3, S_P3),
              valid(S_P3)]
    final = ["v_cvt_pk_bf16_f32 v%d, 0, v%d" % (rd.SUM + i, rd.R + i) for i in range(4)]
    final += [('vm', "buffer_store_dwordx4 %s, v%d, %s, s%d offen%s" % (v4(rd.SUM), OA_, srd(S_AUX), S_P3, OSC), 'out')]
    rd.runs(params, [], final)


def worker(a, abort, bases, tlp, ini):
    I = a.I
    ABORT[0], TLP[0], INI[0] = abort, tlp, ini
    lv, lq, l1, l2, lop = (a.uid(x) for x in ("L_v", "L_q", "L_g1", "L_g2", "L_op"))
    common(a)
    I("s_cmp_eq_u32 s%d, 3" % S_XW)
    I("s_cbranch_scc1 %s" % l1)
    proj_panel(a)
    wait_init(a, bases)
    tlp(17)
    tlp(29)
    I("s_cmp_eq_u32 s%d, 2" % S_XW)
    I("s_cbranch_scc1 %s" % lq)
    I("s_cmp_eq_u32 s%d, 1" % S_XW)
    I("s_cbranch_scc1 %s" % lv)
    run_kv(a, False)
    tlp(18)
    I("s_branch %s" % lop)
    a.L(lv)
    run_kv(a, True)
    tlp(18)
    I("s_branch %s" % lop)
    a.L(lq)
    run_q(a)
    tlp(19)
    I("s_branch %s" % abort)
    a.L(l1)
    I("s_cmp_ge_u32 s%d, 16" % S_RK)
    I("s_cbranch_scc1 %s" % l2)
    run_g1(a, bases)
    tlp(20)
    I("s_branch %s" % lop)
    a.L(l2)
    run_g2(a, bases)
    tlp(15)
    a.L(lop)
    run_op(a)
    tlp(14)
```

```python
import sys, os
sys.path.insert(0, os.path.dirname(os.path.abspath(__file__)))
from asmlib import *
from layout import *
import chain2 as chain
import work

NAME = "concat_heads__ssm_conv_s5__memory_aug_recurrent_mem_tr__prompt"
HEADER = open(os.path.join(os.path.dirname(os.path.abspath(__file__)), "header.txt")).read()
E = chain.E
TL = E("TL", 0)

S_XW, S_RK, S_WV = 40, 41, 49
S_EVEN, S_ODD = 54, 55


def load_ptrs(a):
    I = a.I
    I("s_load_dwordx16 s[%d:%d], s[0:1], 0" % (PTR0, PTR0 + 15))
    I("s_load_dwordx16 s[%d:%d], s[0:1], 64" % (PTR0 + 16, PTR0 + 31))
    I("s_load_dwordx4 s[%d:%d], s[0:1], 128" % (PTR0 + 32, PTR0 + 35))
    I("s_load_dwordx2 s[%d:%d], s[0:1], 144" % (PTR0 + 36, PTR0 + 37))
    I("s_waitcnt lgkmcnt(0)")


def tl_probe(a, idx, v=249, tid=0):
    if not TL:
        return
    I = a.I
    I("s_memrealtime s[58:59]")
    I("s_memtime s[56:57]")
    q = 60 if v != 5 else 68
    a.srd(q, ptr(D_WS), WS_DBG + 0x80000, 65536)
    I("s_waitcnt lgkmcnt(0)")
    I("s_lshl_b32 s59, s2, 8")
    I("v_mov_b32 v%d, s58" % (v + 1))
    I("v_mov_b32 v%d, s56" % v)
    I("v_xor_b32 v%d, %d, v0" % (v + 2, tid))
    I("v_lshlrev_b32 v%d, 16, v%d" % (v + 2, v + 2))
    I("buffer_store_dword v%d, v%d, s[%d:%d], s59 offen offset:%d" % (v + 1, v + 2, q, q + 3, idx * 4))
    I("buffer_store_dword v%d, v%d, s[%d:%d], s59 offen offset:%d" % (v, v + 2, q, q + 3, 128 + idx * 4))
    if v == 5 and idx in (15, 14):
        I("v_mov_b32 v%d, s%d" % (v, work.S_CNT))
        I("buffer_store_dword v%d, v%d, s[%d:%d], s59 offen offset:%d" % (v, v + 2, q, q + 3, (idx - 14) * 4))


def role_ticket(a):
    I = a.I
    I("s_getreg_b32 s16, hwreg(HW_REG_XCC_ID)")
    I("s_and_b32 s16, s16, 7")
    I("v_lshrrev_b32 v3, 6, v0")
    a.srd(12, ptr(D_DBG), 0, 256)
    I("v_readfirstlane_b32 s18, v3")
    I("s_lshl_b32 s3, s16, 5")
    I("v_mov_b32 v12, 1")
    I("v_lshlrev_b32 v13, 8, v0")
    I("buffer_atomic_add v12, v13, s[12:15], s3 offen offset:%d sc0 sc1" % DB_RANK)


def role_assign(a):
    I = a.I
    lab = a.uid("L_role")
    I("s_cmp_lg_u32 s18, 1")
    I("s_cbranch_scc1 %s" % lab)
    I("s_mov_b32 s7, 1")
    lw = a.uid("L_rolew")
    I("s_cmp_lg_u32 s16, 7")
    I("s_cbranch_scc1 %s" % lw)
    I("s_lshr_b32 s6, s2, 7")
    I("s_lshl_b32 s6, s6, 8")
    I("s_add_u32 s4, s4, s6")
    I("s_and_b32 s5, s2, 127")
    I("s_lshl_b32 s5, s5, 14")
    I("s_add_u32 s5, s5, s4")
    I("s_add_u32 s5, s5, 0x%x" % (WS_P + 64 * MB + 2048))
    I("s_add_u32 s12, s%d, s5" % ptr(D_WS))
    I("s_addc_u32 s13, s%d, 0" % (ptr(D_WS) + 1))
    I("s_mov_b32 s5, 0")
    I("s_mov_b32 s6, 0")
    I("s_atomic_add s5, s[12:13], 0x0 glc")
    I("s_atomic_add s6, s[12:13], 0x2000 glc")
    I("s_mov_b32 s24, -1")
    I("s_mov_b32 s25, -1")
    I("s_waitcnt lgkmcnt(0)")
    for pol in (0, 1, 1, 0)[:E("CALR", 2)]:
        I("s_mov_b32 s5, 0")
        I("s_memtime s[20:21]")
        I("s_waitcnt lgkmcnt(0)")
        I("s_atomic_add s5, s[12:13], 0x%x glc" % (pol * 8192))
        I("s_waitcnt lgkmcnt(0)")
        I("s_memtime s[22:23]")
        I("s_waitcnt lgkmcnt(0)")
        I("s_sub_u32 s22, s22, s20")
        I("s_min_u32 s%d, s%d, s22" % (24 + pol, 24 + pol))
    I("s_cmp_gt_u32 s25, s24")
    I("s_cselect_b32 s7, 0x10001, 1")
    a.L(lw)
    a.L(lab)
    I("v_lshlrev_b32 v2, 2, v0")
    I("s_waitcnt vmcnt(0)")
    I("ds_write_b32 v2, v12 offset:%d" % chain.L_ROLE)
    I("s_waitcnt lgkmcnt(0)")
    I("s_barrier")
    I("v_mov_b32 v2, 0")
    I("ds_read_b32 v4, v2 offset:%d" % chain.L_ROLE)
    lab = a.uid("L_nosig")
    I("s_waitcnt lgkmcnt(0)")
    I("v_readfirstlane_b32 s17, v4")
    I("s_cmp_lg_u32 s18, 1")
    I("s_cbranch_scc1 %s" % lab)
    I("s_atomic_add s7, s[%d:%d], 0x%x" % (ptr(D_DBG), ptr(D_DBG) + 1, DB_INIT))
    a.L(lab)


def init(a):
    I = a.I
    role_ticket(a)
    a.srd(8, ptr(D_WS), XCH, XCH_BYTES)
    I("s_lshl_b32 s3, s2, 13")
    I("v_lshlrev_b32 v1, 4, v0")
    for i in range(4):
        I("v_mov_b32 v%d, 0x%x" % (4 + i, SENT))
    for i in range(2):
        I("buffer_store_dwordx4 v[4:7], v1, s[8:11], s3 offen sc1")
        I("s_add_u32 s3, s3, 4096")
    a.srd(8, ptr(D_WS), WS_P, 70 * MB)
    I("s_add_u32 s4, s8, 0x1fffff")
    I("s_and_b32 s4, s4, 0xffe00000")
    I("s_sub_u32 s4, s4, s8")
    if 'nowork' in chain.ABL:
        I("s_lshl_b32 s3, s2, 14")
        I("s_add_u32 s3, s3, s4")
        for k in range(16):
            for i in range(4):
                I("buffer_store_dwordx4 v[4:7], v1, s[8:11], s3 offen sc1")
                I("s_add_u32 s3, s3, 4096")
            I("s_add_u32 s3, s3, 0x%x" % (4 * MB - 16384))
    if 'warmkv' in chain.ABL:
        a.srd(8, ptr(D_WS), 0, 66 * MB)
        I("s_mul_i32 s3, s2, 66 * 4096")
        for i in range(4):
            I("v_mov_b32 v%d, 0" % (4 + i))
        for i in range(66):
            I("buffer_store_dwordx4 v[4:7], v1, s[8:11], s3 offen sc1")
            I("s_add_u32 s3, s3, 4096")
    a.srd(8, ptr(D_WS), WS_CNT, CNT_BYTES)
    I("s_lshl_b32 s3, s2, 12")
    for i in range(4):
        I("v_mov_b32 v%d, 0" % (8 + i))
    I("buffer_store_dwordx4 v[8:11], v1, s[8:11], s3 offen sc1")
    role_assign(a)


def kernel_chain(a, name):
    I = a.I
    a.raw(".globl %s\n.p2align 8\n.type %s,@function" % (name, name))
    a.L(name)
    I("s_cmp_ge_u32 s2, 256")
    I("s_cbranch_scc1 %s_end" % name)
    load_ptrs(a)
    tl_probe(a, 8)
    init(a)
    tl_probe(a, 23)
    I("s_cmp_ge_u32 s17, 32")
    I("s_cbranch_scc1 %s_end" % name)
    I("s_cmp_ge_u32 s16, 4")
    I("s_cbranch_scc1 %s_worker" % name)
    chain.HOOK['done'] = lambda: tl_probe(a, 9)
    chain.HOOK['loopstart'] = lambda: tl_probe(a, 11)
    chain.HOOK['weights'] = lambda: tl_probe(a, 16)
    chain.chain_main(a, name)
    a.L("%s_worker" % name)
    if 'nowork' not in chain.ABL:
        worker(a, name)

    a.L("%s_wend" % name)
    tl_probe(a, 10)
    a.L("%s_end" % name)
    I("s_endpgm")


def worker(a, name):
    I = a.I
    I("s_sub_u32 s%d, s16, 4" % S_XW)
    I("s_mov_b32 s%d, s17" % S_RK)
    I("s_mov_b32 s%d, s18" % S_WV)
    work.worker(a, name + "_wend", chain.block_bases, lambda i, tid=0: tl_probe(a, i, 5, tid), None)


def build():
    a = Asm()
    launches = [("chain_kernel", 256, 256, 163840)]
    out = HEADER
    for k, g, b, l in launches:
        out += "; @launch kernel=%s grid=(%d,1,1) block=(%d,1,1) lds=%d\n" % (k, g, b, l)
    if os.environ.get("CFG"):
        out += "; cfg:%s\n" % os.environ["CFG"]
    out += '.amdgcn_target "amdgcn-amd-amdhsa--gfx950"\n.text\n'
    kernel_chain(a, "chain_kernel")
    out += a.text()
    out += kernel_desc("chain_kernel")
    return out


if __name__ == "__main__":
    dst = sys.argv[1] if len(sys.argv) > 1 else "/code/%s.s" % NAME
    open(dst, "w").write(build())
    print("wrote", dst)
```

```python
from asmlib import *
from layout import *
from gemm import Gemm, Operand


def attn_setup(a, SWS):
    I = a.I
    a.C("---- attention setup")
    I("v_and_b32 v1, 31, v0")
    I("v_bfe_u32 v2, v0, 5, 1")
    I("v_lshlrev_b32 v3, 13, v1")
    I("v_lshl_add_u32 v3, v2, 4, v3")
    I("v_and_b32 v4, 7, v1")
    I("v_lshlrev_b32 v4, 13, v4")
    I("v_lshl_add_u32 v4, v2, 4, v4")
    I("v_bfe_u32 v5, v1, 2, 1")
    I("v_lshlrev_b32 v5, 4, v5")
    I("v_lshrrev_b32 v6, 3, v1")
    I("v_lshl_add_u32 v5, v6, 2, v5")
    I("v_and_b32 v6, 3, v1")
    I("v_add_u32 v5, v5, v6")
    I("v_lshlrev_b32 v6, 6, v5")
    I("v_lshl_add_u32 v6, v2, 3, v6")
    I("v_lshlrev_b32 v7, 4, v5")
    I("v_lshl_add_u32 v7, v2, 3, v7")
    I("v_lshlrev_b32 v8, 6, v1")
    I("v_lshl_add_u32 v8, v2, 5, v8")
    I("v_lshlrev_b32 v9, 2, v2")
    I("v_sub_u32 v9, v1, v9")
    I("v_mov_b32 v10, 0xff800000")
    for i in range(16):
        key = 8 * (i // 4) + (i % 4)
        I("v_cmp_gt_i32 vcc, %d, v9" % key)
        I("s_nop 1")
        I("v_cndmask_b32 v%d, 0, v10, vcc" % (16 + i))


def attn_unit(a, SWS, s_seg, s_head, sc1=False, mid=None):
    I = a.I
    W = "s[%d:%d]" % (SWS, SWS + 3)
    sc = " sc1" if sc1 else ""
    KX, QF, KM = 32, 64, 96
    VT = 128
    VM = 160
    SXA, SMA = 176, 192
    P = 208
    T = 220
    a.C("---- attention unit")
    I("s_lshl_b32 s20, s%d, 18" % s_seg)
    I("s_lshl_b32 s21, s%d, 8" % s_head)
    I("s_add_u32 s20, s20, s21")
    I("s_add_u32 s22, s20, 0x%x" % WS_K)
    I("s_add_u32 s23, s20, 0x%x" % WS_Q)
    I("s_lshl_b32 s24, s%d, 16" % s_seg)
    I("s_add_u32 s24, s24, s21")
    I("s_add_u32 s24, s24, 0x%x" % WS_KM)
    for ks in range(8):
        I("buffer_load_dwordx4 v[%d:%d], v3, %s, s22 offen offset:%d" % (KX + 4 * ks, KX + 4 * ks + 3, W, 32 * ks))
        I("buffer_load_dwordx4 v[%d:%d], v3, %s, s23 offen offset:%d" % (QF + 4 * ks, QF + 4 * ks + 3, W, 32 * ks))
    I("s_lshl_b32 s25, s%d, 18" % s_seg)
    I("s_lshl_b32 s26, s%d, 13" % s_head)
    I("s_add_u32 s25, s25, s26")
    I("s_add_u32 s25, s25, 0x%x" % WS_VT)
    I("s_lshl_b32 s26, s%d, 16" % s_seg)
    I("s_lshl_b32 s27, s%d, 11" % s_head)
    I("s_add_u32 s26, s26, s27")
    I("s_add_u32 s26, s26, 0x%x" % WS_VMT)
    for t in range(4):
        for kp in range(2):
            d = VT + (t * 2 + kp) * 4
            I("buffer_load_dwordx2 v[%d:%d], v6, %s, s25 offen offset:%d" % (d, d + 1, W, (t % 2) * 2048 + kp * 32))
            I("buffer_load_dwordx2 v[%d:%d], v6, %s, s25 offen offset:%d" % (d + 2, d + 3, W, (t % 2) * 2048 + kp * 32 + 16))
        if t == 1:
            I("s_add_u32 s25, s25, 4096")
    nl = 16
    for ks in range(8):
        I("s_waitcnt vmcnt(%d)" % (nl + 2 * (7 - ks)))
        I("v_mfma_f32_32x32x16_bf16 v[%d:%d], v[%d:%d], v[%d:%d], %s" % (SXA, SXA + 15, KX + 4 * ks, KX + 4 * ks + 3, QF + 4 * ks, QF + 4 * ks + 3, "0" if ks == 0 else "v[%d:%d]" % (SXA, SXA + 15)))
    if mid:
        mid()
    for ks in range(8):
        I("buffer_load_dwordx4 v[%d:%d], v4, %s, s24 offen offset:%d" % (KM + 4 * ks, KM + 4 * ks + 3, W, 32 * ks))
    for t in range(4):
        I("buffer_load_dwordx2 v[%d:%d], v7, %s, s26 offen offset:%d" % (VM + 4 * t, VM + 4 * t + 1, W, t * 512))
        I("v_mov_b32 v%d, 0" % (VM + 4 * t + 2))
        I("v_mov_b32 v%d, 0" % (VM + 4 * t + 3))
    for ks in range(8):
        I("s_waitcnt vmcnt(%d)" % (4 + 7 - ks))
        I("v_mfma_f32_32x32x16_bf16 v[%d:%d], v[%d:%d], v[%d:%d], %s" % (SMA, SMA + 15, KM + 4 * ks, KM + 4 * ks + 3, QF + 4 * ks, QF + 4 * ks + 3, "0" if ks == 0 else "v[%d:%d]" % (SMA, SMA + 15)))
    I("s_mov_b32 s27, 0x3fb8aa3b")
    I("s_mov_b32 s26, 0x3db504f3")
    I("s_nop 7")
    for v in [SXA + i for i in range(16)] + [SMA + i for i in range(4)]:
        I("v_cvt_pk_bf16_f32 v%d, 0, v%d" % (v, v))
        I("v_mul_f32 v%d, s26, v%d" % (v, v))
        I("v_cvt_pk_bf16_f32 v%d, 0, v%d" % (v, v))
    for i in range(16):
        I("v_add_f32 v%d, v%d, v%d" % (SXA + i, SXA + i, 16 + i))
    mx, t1 = T, T + 1
    I("v_max3_f32 v%d, v%d, v%d, v%d" % (mx, SXA, SXA + 1, SXA + 2))
    I("v_max3_f32 v%d, v%d, v%d, v%d" % (t1, SXA + 3, SXA + 4, SXA + 5))
    for i in range(6, 14, 4):
        I("v_max3_f32 v%d, v%d, v%d, v%d" % (mx, mx, SXA + i, SXA + i + 1))
        I("v_max3_f32 v%d, v%d, v%d, v%d" % (t1, t1, SXA + i + 2, SXA + i + 3))
    I("v_max3_f32 v%d, v%d, v%d, v%d" % (mx, mx, SXA + 14, SXA + 15))
    I("s_nop 3")
    I("v_max3_f32 v%d, v%d, v%d, v%d" % (t1, t1, SMA, SMA + 1))
    I("v_max3_f32 v%d, v%d, v%d, v%d" % (mx, mx, SMA + 2, SMA + 3))
    I("v_max_f32 v%d, v%d, v%d" % (mx, mx, t1))
    I("v_mov_b32 v%d, v%d" % (t1, mx))
    I("s_nop 1")
    I("v_permlane32_swap_b32 v%d, v%d" % (mx, t1))
    I("s_nop 0")
    I("v_max_f32 v%d, v%d, v%d" % (mx, mx, t1))
    I("v_mul_f32 v%d, s27, v%d" % (mx, mx))
    vals = [SXA + i for i in range(16)] + [SMA + i for i in range(4)]
    for v in vals:
        I("v_fma_f32 v%d, v%d, s27, -v%d" % (v, v, mx))
    for v in vals:
        I("v_exp_f32 v%d, v%d" % (v, v))
    sm = T + 2
    I("v_pk_add_f32 v[%d:%d], v[%d:%d], v[%d:%d]" % (sm, sm + 1, SXA, SXA + 1, SXA + 2, SXA + 3))
    for v in list(range(SXA + 4, SXA + 16, 2)) + [SMA, SMA + 2]:
        I("v_pk_add_f32 v[%d:%d], v[%d:%d], v[%d:%d]" % (sm, sm + 1, sm, sm + 1, v, v + 1))
    I("v_add_f32 v%d, v%d, v%d" % (sm, sm, sm + 1))
    I("v_mov_b32 v%d, v%d" % (t1, sm))
    I("s_nop 1")
    I("v_permlane32_swap_b32 v%d, v%d" % (sm, t1))
    I("s_nop 0")
    I("v_add_f32 v%d, v%d, v%d" % (sm, sm, t1))
    I("v_rcp_f32 v%d, v%d" % (sm, sm))
    I("s_nop 0")
    I("v_mov_b32 v%d, v%d" % (sm + 1, sm))
    for v in list(range(SXA, SXA + 16, 2)) + [SMA, SMA + 2]:
        I("v_pk_mul_f32 v[%d:%d], v[%d:%d], v[%d:%d]" % (v, v + 1, v, v + 1, sm, sm + 1))
    for i in range(8):
        I("v_cvt_pk_bf16_f32 v%d, v%d, v%d" % (P + i, SXA + 2 * i, SXA + 2 * i + 1))
    I("v_cvt_pk_bf16_f32 v%d, v%d, v%d" % (P + 8, SMA, SMA + 1))
    I("v_cvt_pk_bf16_f32 v%d, v%d, v%d" % (P + 9, SMA + 2, SMA + 3))
    I("v_mov_b32 v%d, 0" % (P + 10))
    I("v_mov_b32 v%d, 0" % (P + 11))
    I("s_waitcnt vmcnt(0)")
    OA = 32
    for t in range(4):
        c = OA + 16 * t
        for kp in range(2):
            d = VT + (t * 2 + kp) * 4
            I("v_mfma_f32_32x32x16_bf16 v[%d:%d], v[%d:%d], v[%d:%d], %s" % (c, c + 15, d, d + 3, P + 4 * kp, P + 4 * kp + 3, "0" if kp == 0 else "v[%d:%d]" % (c, c + 15)))
        I("v_mfma_f32_32x32x16_bf16 v[%d:%d], v[%d:%d], v[%d:%d], v[%d:%d]" % (c, c + 15, VM + 4 * t, VM + 4 * t + 3, P + 8, P + 11, c, c + 15))
    I("s_lshr_b32 s23, s%d, 1" % s_seg)
    I("s_lshl_b32 s23, s23, 19")
    I("s_lshl_b32 s21, s%d, 14" % s_head)
    I("s_add_u32 s23, s23, s21")
    I("s_and_b32 s21, s%d, 1" % s_seg)
    I("s_lshl_b32 s21, s21, 11")
    I("s_add_u32 s23, s23, s21")
    I("s_add_u32 s23, s23, 0x%x" % WS_O)
    I("s_nop 7")
    I("s_nop 3")
    for t in range(4):
        c = OA + 16 * t
        o = 96 + 8 * t
        for i in range(8):
            I("v_cvt_pk_bf16_f32 v%d, v%d, v%d" % (o + i, c + 2 * i, c + 2 * i + 1))
        I("buffer_store_dwordx4 v[%d:%d], v8, %s, s23 offen%s" % (o, o + 3, W, sc))
        I("buffer_store_dwordx4 v[%d:%d], v8, %s, s23 offen offset:16%s" % (o + 4, o + 7, W, sc))
        I("s_add_u32 s23, s23, 4096")


def outproj_split(a, s_nt, s_tt, s_kq, s_tile):
    I = a.I
    SWO, SOO, SO = 8, 12, 16
    a.C("======== output projection (split K)")
    a.srd(SWO, ptr(B_WO), 0, 8 * MB)
    a.srd(SOO, ptr(D_WS), WS_O, 16 * MB)
    g = Gemm(a, "ops", Operand('t', 'x', 128, 2048, SWO, 20), Operand('n', 'y', 64, 524288, SOO, 21, rowmap='blk64'), 1024, nbuf=8, deep=True)
    g.stmp, g.swdx, g.swdy = 22, 23, 24
    g.setup(0, 1, 2, 3, 4)
    I("s_lshl_b32 s20, s%d, 8" % s_nt)
    I("s_lshl_b32 s26, s%d, 21" % s_kq)
    I("s_add_u32 s20, s20, s26")
    I("s_mul_i32 s21, s%d, %d" % (s_tt, 64 * 8192))
    I("s_lshl_b32 s26, s%d, 17" % s_kq)
    I("s_add_u32 s21, s21, s26")
    g.run(25)
    a.srd(SO, ptr(D_WS), WS_PART, 8 * MB)
    I("v_bfe_u32 v1, v0, 7, 1")
    I("v_lshlrev_b32 v1, 5, v1")
    I("v_and_b32 v2, 31, v0")
    I("v_add_u32 v1, v1, v2")
    I("v_bfe_u32 v2, v0, 5, 2")
    I("v_lshlrev_b32 v5, 7, v2")
    I("v_lshl_add_u32 v5, v1, 9, v5")
    I("s_lshl_b32 s28, s%d, 2" % s_tile)
    I("s_add_u32 s28, s28, s%d" % s_kq)
    I("s_lshl_b32 s28, s28, 15")
    for tx in range(2):
        c = g.acc(tx, 0)
        for q in range(4):
            I("buffer_store_dwordx4 a[%d:%d], v5, s[%d:%d], s28 offen offset:%d sc1" % (c + 4 * q, c + 4 * q + 3, SO, SO + 3, tx * 64 + 16 * q))


def outproj_reduce(a, s_nt, s_tt, s_tile):
    I = a.I
    SP, SO = 8, 16
    a.srd(SP, ptr(D_WS), WS_PART, 8 * MB)
    a.srd(SO, ptr(D_OUT), 0, 16 * MB)
    I("v_lshlrev_b32 v1, 7, v0")
    I("s_lshl_b32 s28, s%d, 17" % s_tile)
    for kq in range(4):
        for q in range(8):
            I("buffer_load_dwordx4 v[%d:%d], v1, s[%d:%d], s28 offen offset:%d sc1" % (32 + kq * 32 + 4 * q, 35 + kq * 32 + 4 * q, SP, SP + 3, 16 * q))
        I("s_add_u32 s28, s28, 32768")
    I("v_lshrrev_b32 v2, 2, v0")
    I("v_lshlrev_b32 v2, 13, v2")
    I("v_and_b32 v3, 3, v0")
    I("v_lshl_add_u32 v2, v3, 7, v2")
    I("s_mul_i32 s28, s%d, %d" % (s_tt, 64 * 8192))
    I("s_lshl_b32 s29, s%d, 9" % s_nt)
    I("s_add_u32 s28, s28, s29")
    I("s_add_u32 s28, s28, 4096")
    I("s_waitcnt vmcnt(0)")
    for i in range(0, 32, 2):
        r = 32 + i
        I("v_pk_add_f32 v[%d:%d], v[%d:%d], v[%d:%d]" % (r, r + 1, r, r + 1, r + 32, r + 33))
        I("v_pk_add_f32 v[%d:%d], v[%d:%d], v[%d:%d]" % (r + 64, r + 65, r + 64, r + 65, r + 96, r + 97))
        I("v_pk_add_f32 v[%d:%d], v[%d:%d], v[%d:%d]" % (r, r + 1, r, r + 1, r + 64, r + 65))
        I("v_cvt_pk_bf16_f32 v6, v%d, v%d" % (r, r + 1))
        I("v_lshlrev_b32 v%d, 16, v6" % r)
        I("v_and_b32 v%d, 0xffff0000, v6" % (r + 1))
    for q in range(8):
        I("buffer_store_dwordx4 v[%d:%d], v2, s[%d:%d], s28 offen offset:%d" % (32 + 4 * q, 35 + 4 * q, SO, SO + 3, 16 * q))


def outproj(a, s_nt, s_tt, TY=128, sc1=False):
    I = a.I
    SWO, SOO, SO = 8, 12, 16
    a.C("======== output projection")
    a.srd(SWO, ptr(B_WO), 0, 8 * MB)
    a.srd(SOO, ptr(D_WS), WS_O, 16 * MB)
    g = Gemm(a, "op%d" % TY, Operand('t', 'x', 128, 2048, SWO, 20), Operand('n', 'y', TY, 524288, SOO, 21, sc1=sc1, rowmap='blk64'), 4096, nbuf=8, deep=True)
    g.stmp, g.swdx, g.swdy = 22, 23, 24
    g.setup(0, 1, 2, 3, 4)
    I("s_lshl_b32 s20, s%d, 8" % s_nt)
    I("s_mul_i32 s21, s%d, %d" % (s_tt, TY * 8192))
    g.run(25)
    a.srd(SO, ptr(D_OUT), 0, 16 * MB)
    WY = TY // 2
    I("v_bfe_u32 v1, v0, 7, 1")
    I("v_mul_u32_u24 v1, %d, v1" % WY)
    I("v_and_b32 v2, 31, v0")
    I("v_add_u32 v1, v1, v2")
    I("v_bfe_u32 v2, v0, 5, 2")
    I("v_lshlrev_b32 v5, 7, v2")
    I("v_lshl_add_u32 v5, v1, 13, v5")
    I("s_mul_i32 s28, s%d, %d" % (s_tt, TY * 8192))
    I("s_lshl_b32 s29, s%d, 9" % s_nt)
    I("s_add_u32 s28, s28, s29")
    I("s_add_u32 s28, s28, 4096")
    for ty in range(g.Y.nt):
        R = 100 + 32 * (ty % 2)
        for i in range(16):
            tx, j = (2 * i) // 16, (2 * i) % 16
            c = g.acc(tx, ty) + j
            I("v_accvgpr_read_b32 v6, a%d" % c)
            I("v_accvgpr_read_b32 v7, a%d" % (c + 1))
            I("v_cvt_pk_bf16_f32 v6, v6, v7")
            I("v_lshlrev_b32 v%d, 16, v6" % (R + 2 * i))
            I("v_and_b32 v%d, 0xffff0000, v6" % (R + 2 * i + 1))
        for q in range(8):
            I("buffer_store_dwordx4 v[%d:%d], v5, s[%d:%d], s28 offen offset:%d" % (R + 4 * q, R + 4 * q + 3, SO, SO + 3, 16 * q))
        I("s_add_u32 s28, s28, 0x%x" % (32 * 8192))
```

```python
from asmlib import *
from layout import *
import os

E = lambda k, d: int(os.environ.get(k, str(d)))
EMU = E("EMU", 1)
NREP = E("NREPL", 2)
KRE = E("KRE", 2)
NSC = E("NSC", 2)
D_A, D_E = E("D_A", 24), E("D_E", 24)
PACE = E("PACE", 12)
D_C, G_C = E("D_C", 4), E("G_C", 24)
D_G, G_G = E("D_G", 80), E("G_G", 40)
D_H1, D_H2 = E("D_H1", 5), E("D_H2", 0)
STAMP = E("STAMP", 0)
KVW = E("KVW", 0)
PUBW = E("PUBW", 1)
POIW = E("POIW", 2)
FT = E("FT", 1)
W0L = E("W0L", 8)
PRIO = E("PRIO", 3)
PF = E("PF", 32)
PXW = E("PXW", 0)

S_WS = 8
S_TMPSRD = 12
S_X, S_J, S_W, S_STEP = 16, 17, 18, 19
S_T0, S_T1, S_T2, S_T3 = 20, 21, 22, 23
S_M8 = 24
S_M8H = 26
S_MM = 28
S_ROT = 30
S_KV = 31
S_KM = 32
S_SPIN = 33
S_SENT = 34
S_PXB = 35
S_BMEM = 36
S_BSX = 37
S_MEMC, S_MEMN, S_SX, S_OX, S_PX = 38, 39, 40, 41, 42
S_LKV = 43
S_C = 44
S_SCL = 46
S_L32 = 48
S_L16 = 50
S_PXB2 = 52
S_PFK = 54
S_PFV = 56
S_JUNK = 53
S_T4 = 58
S_ST = 64
S_ACC = 84

V_LIN = 1
V_XLD = 2
V_IDX = 6
V_CHK = 7
V_MEMST, V_SXST, V_SXM, V_OXST, V_PXST = 8, 9, 10, 11, 12
V_SXLD = 13
V_SXLM = 16
V_PXLD = 17
V_TW = 20
V_RVW, V_RVR, V_ROW, V_ROR = 21, 22, 23, 24
V_KFR, V_VTR = 25, 26
V_KLD, V_KLD2, V_VTLD = 27, 28, 29
V_KMST, V_VMST, V_VMW = 30, 31, 32
V_M0LD = 33
V_SMP = 34
V_SENT = 36
V_SEL = 40
V_ONE = 44
V_M = 48
V_ACC = 64
V_OA = 88
V_TA = 96
V_TD = 104
V_QK = 112
V_KX = 116
V_S0, V_S1, V_SM = 124, 128, 132
V_VT = 136
V_VM = 144
V_T = 148
V_TM = 152
V_X = 153
V_PB = 160
V_PM = 164
V_O = 168
V_SUM = 176
V_OB = 180
V_R = 168
V_L = 200
V_PT = 248
V_SEL2 = 252

L_T = 0
L_RV = 8192
L_RO = 16384
L_KV = 24576
L_KM = 32768
L_VM = 33792
L_ROLE = 0
L_STAGE = 32768

SPIN_LIMIT = 1 << 20
ABL = os.environ.get('ABL', '')
ABORT = [None]
COLD = []
HOOK = {}
W = "s[%d:%d]" % (S_WS, S_WS + 3)


def a_qkv(M, t, b):
    return ((M * 2 + t) * 4 + b) * 8


def a_wo(ct, b):
    return 192 + (ct * 4 + b) * 8


def acc(M, t):
    return V_ACC + (16 + 4 * t if M == 2 else 8 * t + 4 * M)


def vr4(r):
    return "v[%d:%d]" % (r, r + 3)


def vr2(r):
    return "v[%d:%d]" % (r, r + 1)


def nops(a, n):
    while n > 0:
        k = min(n, 16)
        a.I("s_nop %d" % (k - 1))
        n -= k


def exec_(a, m):
    a.I("s_mov_b64 exec, -1" if m is None else "s_mov_b64 exec, s[%d:%d]" % (m, m + 1))


def pk(a, d, x, y, op="add"):
    a.I("v_pk_%s_f32 %s, %s, %s" % (op, vr2(d), vr2(x), vr2(y)))


def spin(out, back=None):
    out.append("    s_add_u32 s%d, s%d, 1" % (S_SPIN, S_SPIN))
    out.append("    s_cmp_gt_u32 s%d, 0x%x" % (S_SPIN, SPIN_LIMIT))
    if back:
        out.append("    s_cbranch_scc0 %s" % back)
        out.append("    s_branch %s" % ABORT[0])
    else:
        out.append("    s_cbranch_scc1 %s" % ABORT[0])


def stamp(a, i):
    if STAMP == 1:
        a.I("s_memtime s[%d:%d]" % (S_ST + 2 * i, S_ST + 2 * i + 1))


def gather(a, soff, consume, tag, fill=()):
    I = a.I
    n = 4
    fill = list(fill)
    ld = lambda i: "buffer_load_dwordx4 %s, v%d, %s, s%d offen sc1" % (vr4(V_M + 4 * i), V_XLD + i, W, soff)
    for i in range(n):
        I(ld(i))
        if i < n - 1:
            k = PACE
            while fill and k > 0:
                I(fill.pop(0))
                k -= 1
            nops(a, k)
    for l in fill:
        I(l)
    chk = lambda i: ["v_max3_u32 v%d, v%d, v%d, v%d" % (V_CHK, V_M + 4 * i, V_M + 4 * i + 1, V_M + 4 * i + 2),
                     "v_max_u32 v%d, v%d, v%d" % (V_CHK, V_CHK, V_M + 4 * i + 3),
                     "v_cmp_eq_u32 vcc, s%d, v%d" % (S_SENT, V_CHK)]
    done = a.uid("L_gd_" + tag)
    labels, todo = {}, []

    def lab(key):
        if key not in labels:
            labels[key] = a.uid("L_q_" + tag)
            todo.append(key)
        return labels[key]

    def after_fail(i, jn, P):
        return lab(('f', i, jn, P)) if jn < n else lab(('p', P))
    I("s_waitcnt vmcnt(3)")
    for l in chk(0):
        I(l)
    I("s_cbranch_vccnz %s" % after_fail(0, 1, (0,)))
    for i in range(n):
        m = consume(i)
        if i == n - 1:
            for l in m:
                I(l)
            break
        c = chk(i + 1)
        I(m[0])
        I("s_waitcnt vmcnt(%d)" % (n - 2 - i))
        I(c[0])
        I(c[1])
        if len(m) > 2:
            I(m[1])
            I(c[2])
            for l in m[2:]:
                I(l)
        else:
            I(c[2])
            I(m[1])
        I("s_cbranch_vccnz %s" % after_fail(i + 1, i + 2, (i + 1,)))
    a.L(done)
    seen = set()
    while todo:
        key = todo.pop()
        if key in seen:
            continue
        seen.add(key)
        C = lambda l: COLD.append("    " + l)
        COLD.append("%s:" % lab(key))
        if key[0] == 'f':
            _, i0, jn, P = key
            C(ld(P[0]))
            Pn = P[1:] + P[:1]
            C("s_waitcnt vmcnt(%d)" % (n - 1 - i0))
            for l in chk(jn):
                C(l)
            C("s_cbranch_vccnz %s" % after_fail(i0, jn + 1, (jn,) + Pn))
            for l in consume(jn):
                C(l)
            C("s_branch %s" % after_fail(i0, jn + 1, Pn))
        else:
            P = key[1]
            oks = []
            for k, ci in enumerate(P):
                C(ld(ci))
                C("s_waitcnt vmcnt(%d)" % KRE)
                nx = P[(k + 1) % len(P)]
                for l in chk(nx):
                    C(l)
                ok = a.uid("L_ok_" + tag)
                oks.append((ok, nx))
                C("s_cbranch_vccz %s" % ok)
            spin(COLD, lab(key))
            for ok, ci in oks:
                COLD.append(ok + ":")
                for l in consume(ci):
                    C(l)
                rest = tuple(x for x in P if x != ci)
                C("s_branch %s" % (lab(('p', tuple(sorted(rest)))) if rest else done))


def rot_poll(a, nset, loads, summ, regs, ok, first_reissue, extra=0):
    C = lambda l: COLD.append("    " + l)
    nl = len(loads(0))
    if not first_reissue:
        for r in range(1, nset):
            c = []
            summ(c, r, nl * (nset - 1 - r) + extra)
            for l in c:
                C(l)
            C("s_cbranch_vccz %s" % ok)
        for r in range(1, nset):
            for l in loads(r):
                C(l)
            C("s_nop 11")
    rt = a.uid("L_rt")
    COLD.append(rt + ":")
    for k in range(nset):
        r = (k + 1) % nset
        for l in loads(k):
            C(l)
        c = []
        summ(c, r, nl * (nset - 1))
        for l in c:
            C(l)
        C("s_cbranch_vccz %s" % ok)
    spin(COLD)
    C("s_and_b32 s%d, s%d, 63" % (S_T0, S_SPIN))
    C("s_cbranch_scc1 %s" % rt)
    regs = list(regs)
    C("v_cmp_eq_u32 vcc, s%d, v%d" % (S_SENT, regs[0]))
    for r in regs[1:]:
        C("v_cmp_eq_u32 s[%d:%d], s%d, v%d" % (S_T0, S_T1, S_SENT, r))
        C("s_or_b64 vcc, vcc, s[%d:%d]" % (S_T0, S_T1))
    C("s_cbranch_vccnz %s" % rt)
    C("s_branch %s" % ok)


def prologue_addrs(a):
    I = a.I
    a.C("---- chain address registers")
    for s, lo, hi in ((S_M8, 0x00ff00ff, 0x00ff00ff), (S_M8H, 0xff00ff00, 0xff00ff00), (S_MM, 0, 0x00ff00ff),
                      (S_L32, 0xffffffff, 0), (S_L16, 0xffff, 0)):
        I("s_mov_b32 s%d, 0x%x" % (s, lo))
        I("s_mov_b32 s%d, 0x%x" % (s + 1, hi))
    c = 0x3fb8aa3b if EMU else 0x3e0293ee
    I("s_mov_b32 s%d, 0x%x" % (S_C, c))
    I("s_mov_b32 s%d, 0x%x" % (S_C + 1, c))
    I("s_mov_b32 s%d, 0x3db504f3" % S_SCL)
    I("s_mov_b32 s%d, 0x3db504f3" % (S_SCL + 1))
    I("s_mov_b32 s%d, 0x%x" % (S_SENT, SENT))
    I("s_lshl_b32 s%d, s%d, 14" % (S_BMEM, S_X))
    I("s_add_u32 s%d, s%d, 0x%x" % (S_BMEM, S_BMEM, X_MEM))
    I("s_lshl_b32 s%d, s%d, 16" % (S_BSX, S_X))
    I("s_add_u32 s%d, s%d, 0x%x" % (S_BSX, S_BSX, X_SX))
    for i in range(4):
        I("v_mov_b32 v%d, s%d" % (V_SENT + i, S_SENT))
        I("v_mov_b32 v%d, 0x3f803f80" % (V_ONE + i))
    n, g, l, w, t0, t1, t2 = range(V_PT, V_PT + 7)
    I("v_and_b32 v%d, 63, v0" % l)
    I("v_and_b32 v%d, 15, v0" % n)
    I("v_bfe_u32 v%d, v0, 4, 2" % g)
    I("v_lshrrev_b32 v%d, 6, v0" % w)
    I("v_lshlrev_b32 v%d, 4, v%d" % (V_LIN, l))
    I("s_lshl_b32 s%d, s%d, 10" % (S_T0, S_X))
    I("s_lshl_b32 s%d, s%d, 5" % (S_T1, S_J))
    I("s_add_u32 s%d, s%d, s%d" % (S_T0, S_T0, S_T1))
    I("s_and_b32 s%d, s%d, 3" % (S_ROT, S_J))
    I("v_lshl_add_u32 v%d, v%d, 12, v%d" % (t0, w, V_LIN))
    for i in range(4):
        I("s_add_u32 s%d, s%d, %d" % (S_T1, S_ROT, i))
        I("s_and_b32 s%d, s%d, 3" % (S_T1, S_T1))
        I("s_lshl_b32 s%d, s%d, 10" % (S_T1, S_T1))
        I("v_add_u32 v%d, s%d, v%d" % (V_XLD + i, S_T1, t0))
    I("v_mov_b32 v%d, 0x44444444" % V_IDX)
    I("v_mov_b32 v%d, 0xeeeeeeee" % t0)
    I("v_cndmask_b32 v%d, v%d, v%d, s[%d:%d]" % (V_IDX, V_IDX, t0, S_M8H, S_M8H + 1))
    I("v_bfe_u32 v%d, v%d, 1, 3" % (t0, l))
    I("v_and_b32 v%d, 1, v%d" % (t1, l))
    I("v_lshlrev_b32 v%d, 11, v%d" % (V_M0LD, t0))
    I("v_lshl_add_u32 v%d, v%d, 3, v%d" % (V_M0LD, t1, V_M0LD))
    I("v_lshl_add_u32 v%d, v%d, 4, v%d" % (V_M0LD, g, V_M0LD))
    I("s_lshl_b32 s%d, s%d, 6" % (S_T1, S_J))
    I("v_add_u32 v%d, s%d, v%d" % (V_M0LD, S_T1, V_M0LD))
    I("v_lshlrev_b32 v%d, 3, v%d" % (V_MEMST, l))
    I("s_lshl_b32 s%d, s%d, 9" % (S_T1, S_J))
    I("v_add_u32 v%d, s%d, v%d" % (V_MEMST, S_T1, V_MEMST))
    I("v_lshlrev_b32 v%d, 7, v%d" % (V_ROR, t0))
    I("v_lshl_add_u32 v%d, v%d, 4, v%d" % (V_ROR, t1, V_ROR))
    I("v_lshl_add_u32 v%d, v%d, 5, v%d" % (V_ROR, g, V_ROR))
    I("v_add_u32 v%d, %d, v%d" % (V_ROR, L_RO, V_ROR))
    I("v_lshlrev_b32 v%d, 4, v%d" % (V_OXST, n))
    I("v_lshl_add_u32 v%d, v%d, 7, v%d" % (V_OXST, g, V_OXST))
    I("v_add_u32 v%d, s%d, v%d" % (V_OXST, S_T1, V_OXST))
    I("s_lshr_b32 s%d, s%d, 2" % (S_T2, S_J))
    I("s_lshl_b32 s%d, s%d, 13" % (S_T2, S_T2))
    for k in range(4):
        I("s_add_u32 s%d, s%d, %d" % (S_T1, S_J, k))
        I("s_and_b32 s%d, s%d, 3" % (S_T1, S_T1))
        I("s_lshl_b32 s%d, s%d, 10" % (S_T1, S_T1))
        I("s_add_u32 s%d, s%d, s%d" % (S_T1, S_T1, S_T2))
        I("v_add_u32 v%d, s%d, v%d" % (V_SXST if k == 0 else V_SXLD + k - 1, S_T1, V_LIN))
    I("s_add_u32 s%d, s%d, 4096" % (S_T2, S_T2))
    I("v_add_u32 v%d, s%d, v%d" % (V_SXLM, S_T2, V_LIN))
    I("s_and_b32 s%d, s%d, 3" % (S_T1, S_J))
    I("s_lshl_b32 s%d, s%d, 8" % (S_T1, S_T1))
    I("s_add_u32 s%d, s%d, s%d" % (S_T1, S_T1, S_T2))
    I("v_and_b32 v%d, 1, v%d" % (t1, g))
    I("v_lshlrev_b32 v%d, 4, v%d" % (V_SXM, n))
    I("v_lshl_add_u32 v%d, v%d, 7, v%d" % (V_SXM, t1, V_SXM))
    I("v_add_u32 v%d, s%d, v%d" % (V_SXM, S_T1, V_SXM))
    I("v_lshl_add_u32 v%d, v%d, 11, v%d" % (V_TW, w, V_LIN))
    I("v_lshrrev_b32 v%d, 1, v%d" % (t0, g))
    I("v_lshl_add_u32 v%d, v%d, 1, v%d" % (t0, w, t0))
    I("v_lshlrev_b32 v%d, 10, v%d" % (V_RVW, t0))
    I("v_lshl_add_u32 v%d, v%d, 5, v%d" % (V_RVW, n, V_RVW))
    I("v_lshl_add_u32 v%d, v%d, 4, v%d" % (V_RVW, t1, V_RVW))
    I("v_add_u32 v%d, %d, v%d" % (V_RVW, L_RV, V_RVW))
    I("v_lshlrev_b32 v%d, 10, v%d" % (V_ROW, t0))
    I("v_lshl_add_u32 v%d, v%d, 9, v%d" % (V_ROW, t1, V_ROW))
    I("v_lshl_add_u32 v%d, v%d, 2, v%d" % (V_ROW, n, V_ROW))
    I("v_add_u32 v%d, %d, v%d" % (V_ROW, L_RO, V_ROW))
    I("v_lshlrev_b32 v%d, 5, v%d" % (V_RVR, n))
    I("v_lshl_add_u32 v%d, v%d, 3, v%d" % (V_RVR, g, V_RVR))
    I("v_add_u32 v%d, %d, v%d" % (V_RVR, L_RV, V_RVR))
    I("v_lshrrev_b32 v%d, 2, v%d" % (t1, n))
    I("v_and_b32 v%d, 3, v%d" % (t0, n))
    I("v_lshl_add_u32 v%d, v%d, 3, v%d" % (t1, t1, t0))
    I("v_add_u32 v%d, %d, v%d" % (V_KFR, L_KV, V_LIN))
    I("v_lshlrev_b32 v%d, 6, v%d" % (V_VTR, t1))
    I("v_lshl_add_u32 v%d, v%d, 3, v%d" % (V_VTR, g, V_VTR))
    I("v_add_u32 v%d, %d, v%d" % (V_VTR, L_KV + 2048, V_VTR))
    I("v_lshlrev_b32 v%d, 4, v%d" % (V_VMW, t1))
    I("v_lshl_add_u32 v%d, v%d, 2, v%d" % (V_VMW, g, V_VMW))
    I("v_add_u32 v%d, %d, v%d" % (V_VMW, L_VM, V_VMW))
    I("v_lshlrev_b32 v%d, 13, v%d" % (V_KLD, n))
    I("v_lshl_add_u32 v%d, v%d, 4, v%d" % (V_KLD, g, V_KLD))
    I("s_lshl_b32 s%d, s%d, 1" % (S_T1, S_T0))
    I("s_add_u32 s%d, s%d, 0x%x" % (S_T2, S_T1, WS_K))
    I("v_add_u32 v%d, s%d, v%d" % (V_KLD, S_T2, V_KLD))
    I("v_add_u32 v%d, 0x20000, v%d" % (V_KLD2, V_KLD))
    I("s_lshl_b32 s%d, s%d, 6" % (S_T2, S_T0))
    I("s_add_u32 s%d, s%d, 0x%x" % (S_T2, S_T2, WS_VT))
    I("v_add_u32 v%d, s%d, v%d" % (V_VTLD, S_T2, V_LIN))
    I("s_lshl_b32 s%d, s%d, 4" % (S_T2, S_T0))
    I("s_add_u32 s%d, s%d, 0x%x" % (S_T2, S_T2, WS_VMT))
    I("v_add_u32 v%d, s%d, v%d" % (V_VMST, S_T2, V_LIN))
    I("v_bfe_u32 v%d, v%d, 2, 1" % (t1, n))
    I("v_lshl_add_u32 v%d, v%d, 1, v%d" % (t0, t0, t1))
    I("v_cndmask_b32 v%d, v%d, v%d, s[%d:%d]" % (t0, n, t0, S_M8H, S_M8H + 1))
    I("v_lshlrev_b32 v%d, 13, v%d" % (V_KMST, t0))
    I("v_lshl_add_u32 v%d, v%d, 4, v%d" % (V_KMST, g, V_KMST))
    I("s_add_u32 s%d, s%d, 0x%x" % (S_T2, S_T1, WS_KM))
    I("v_add_u32 v%d, s%d, v%d" % (V_KMST, S_T2, V_KMST))
    I("v_and_b32 v%d, 1, v%d" % (t1, t0))
    I("v_lshlrev_b32 v%d, 4, v%d" % (t1, t1))
    I("v_mov_b32 v%d, 0x3f80" % t2)
    I("v_lshlrev_b32 v%d, v%d, v%d" % (t2, t1, t2))
    I("v_lshrrev_b32 v%d, 2, v%d" % (t1, t0))
    I("v_xor_b32 v%d, v%d, v%d" % (t1, t1, g))
    I("v_and_b32 v%d, 1, v%d" % (t1, t1))
    I("v_bfe_u32 v%d, v%d, 1, 1" % (t0, t0))
    I("v_lshl_add_u32 v%d, v%d, 2, v%d" % (t0, t1, t0))
    I("v_lshrrev_b32 v%d, 3, v%d" % (t1, n))
    I("v_lshl_add_u32 v%d, v%d, 1, v%d" % (t0, t1, t0))
    for r in range(4):
        I("v_cmp_eq_u32 vcc, %d, v%d" % (r, t0))
        I("s_nop 1")
        I("v_cndmask_b32 v%d, 0, v%d, vcc" % (V_SEL + r, t2))


def px_setup(a):
    I = a.I
    I("s_add_u32 s%d, s%d, 0x%x" % (S_PXB, ptr(D_WS), X_PXW + 0x1FFFFF))
    I("s_and_b32 s%d, s%d, 0xffe00000" % (S_PXB, S_PXB))
    I("s_sub_u32 s%d, s%d, s%d" % (S_PXB, S_PXB, ptr(D_WS)))
    lab = a.uid("L_nocal")
    I("s_or_b32 s%d, s%d, s%d" % (S_T1, S_X, S_J))
    I("s_or_b32 s%d, s%d, s%d" % (S_T1, S_T1, S_W))
    I("s_cmp_lg_u32 s%d, 0" % S_T1)
    I("s_cbranch_scc1 %s" % lab)
    I("v_mov_b32 v%d, 0" % V_SMP)
    I("s_mov_b64 exec, 1")
    for k in range(4):
        I("s_mov_b32 s%d, -1" % (56 + k))
    for rnd in range(E('CALR', 2)):
        for k in range(4):
            I("s_add_u32 s%d, s%d, 0x%x" % (S_T1, S_PXB, (k & 1) * 8192 + (k >> 1) * 0x200000))
            I("s_memtime s[%d:%d]" % (S_T2, S_T3))
            I("s_waitcnt lgkmcnt(0)")
            I("buffer_store_dword v%d, v%d, %s, s%d offen sc1" % (V_SENT, V_SMP, W, S_T1))
            I("s_waitcnt vmcnt(0)")
            I("s_memtime s[54:55]")
            I("s_waitcnt lgkmcnt(0)")
            I("s_sub_u32 s54, s54, s%d" % S_T2)
            I("s_min_u32 s%d, s%d, s54" % (56 + k, 56 + k))
    I("s_min_u32 s%d, s56, s59" % S_T1)
    I("s_min_u32 s%d, s57, s58" % S_T2)
    I("s_cmp_lt_u32 s%d, s%d" % (S_T2, S_T1))
    I("s_cselect_b32 s%d, 5, 6" % S_T1)
    a.srd(S_TMPSRD, ptr(D_DBG), 0, 256)
    I("v_mov_b32 v%d, s%d" % (V_SMP + 1, S_T1))
    I("v_mov_b32 v%d, 8" % V_SMP)
    I("buffer_atomic_add v%d, v%d, s[%d:%d], 0 offen sc1" % (V_SMP + 1, V_SMP, S_TMPSRD, S_TMPSRD + 3))
    if STAMP:
        for k in range(4):
            I("v_mov_b32 v%d, s%d" % (V_R + k, 56 + k))
        I("buffer_store_dwordx4 %s, v%d, s[%d:%d], 0 offen offset:8" % (vr4(V_R), V_SMP, S_TMPSRD, S_TMPSRD + 3))
    I("s_mov_b64 exec, -1")
    a.L(lab)


def px_finish(a):
    I = a.I
    I("s_mov_b32 s%d, 0" % S_T1)
    kv_wait(a, S_T1, 1, 8)
    if 'polx' in ABL:
        I("s_xor_b32 s%d, s%d, 3" % (S_T0, S_T0))
    I("s_and_b32 s%d, s%d, 2" % (S_T1, S_T0))
    I("s_lshl_b32 s%d, s%d, 12" % (S_T1, S_T1))
    I("s_add_u32 s%d, s%d, s%d" % (S_PXB2, S_PXB, S_T1))
    I("s_and_b32 s%d, s%d, 1" % (S_T0, S_T0))
    I("s_lshl_b32 s%d, s%d, 13" % (S_T0, S_T0))
    I("s_add_u32 s%d, s%d, s%d" % (S_PXB, S_PXB, S_T0))
    for xo in range(4):
        I("s_add_u32 s%d, s%d, %d" % (S_T1, S_X, xo))
        I("s_and_b32 s%d, s%d, 3" % (S_T1, S_T1))
        I("s_lshl_b32 s%d, s%d, 18" % (S_T1, S_T1))
        I("s_lshr_b32 s%d, s%d, 1" % (S_T2, S_J))
        I("s_lshl_b32 s%d, s%d, 14" % (S_T2, S_T2))
        I("s_add_u32 s%d, s%d, s%d" % (S_T1, S_T1, S_T2))
        I("s_and_b32 s%d, s%d, 1" % (S_T2, S_J))
        I("s_lshl_b32 s%d, s%d, 12" % (S_T2, S_T2))
        I("s_add_u32 s%d, s%d, s%d" % (S_T1, S_T1, S_T2))
        I("v_add_u32 v%d, s%d, v%d" % (V_PXST if xo == 0 else V_PXLD + xo - 1, S_T1, V_LIN))
    I("s_lshl_b32 s%d, s%d, 10" % (S_T0, S_X))
    I("s_lshl_b32 s%d, s%d, 5" % (S_T1, S_J))
    I("s_add_u32 s%d, s%d, s%d" % (S_T0, S_T0, S_T1))
    I("s_lshl_b32 s%d, s%d, 1" % (S_T1, S_T0))
    if PF == 32:
        I("s_and_b32 s%d, s%d, 1" % (S_T2, S_J))
        I("s_lshl_b32 s%d, s%d, 17" % (S_T2, S_T2))
        I("s_add_u32 s%d, s%d, s%d" % (S_T1, S_T1, S_T2))
    I("s_add_u32 s%d, s%d, 0x%x" % (S_T1, S_T1, WS_K + 0x40000))
    I("s_add_u32 s%d, s%d, s%d" % (S_PFK, ptr(D_WS), S_T1))
    I("s_addc_u32 s%d, s%d, 0" % (S_PFK + 1, ptr(D_WS) + 1))
    I("s_lshl_b32 s%d, s%d, 6" % (S_T1, S_T0))
    I("s_add_u32 s%d, s%d, 0x%x" % (S_T1, S_T1, WS_VT + 0x40000))
    I("s_add_u32 s%d, s%d, s%d" % (S_PFV, ptr(D_WS), S_T1))
    I("s_addc_u32 s%d, s%d, 0" % (S_PFV + 1, ptr(D_WS) + 1))


def l2_prefetch(a, w):
    I = a.I
    if not PF:
        return
    if PF == 32:
        items = [(S_PFK, r * 8192) for r in range(16)] + [(S_PFV, r * 128) for r in range(16)]
    else:
        items = [(S_PFK, r * 8192) for r in range(32)] + [(S_PFV, r * 64) for r in range(32)]
    for b in (S_PFK, S_PFV):
        I("s_add_u32 s%d, s%d, 0x40000" % (b, b))
        I("s_addc_u32 s%d, s%d, 0" % (b + 1, b + 1))
    lab = a.uid("L_nopf")
    I("s_cmp_ge_u32 s%d, 63" % S_STEP)
    I("s_cbranch_scc1 %s" % lab)
    for b, off in items[w - 1::3]:
        I("s_load_dword s%d, s[%d:%d], 0x%x" % (S_JUNK, b, b + 1, off))
    a.L(lab)


def load_weights(a):
    I = a.I
    a.C("---- load weights")
    t0, t1, va, vg, vg2 = V_PT, V_PT + 1, V_PT + 2, V_PT + 3, V_PT + 4
    vq, vo, vw = 240, 242, 244
    I("v_bfe_u32 v%d, v0, 4, 2" % t0)
    I("v_lshlrev_b32 v%d, 1, v%d" % (va, t0))
    I("v_bfe_u32 v%d, v0, 2, 1" % t0)
    I("v_add_u32 v%d, v%d, v%d" % (va, va, t0))
    I("v_bfe_u32 v%d, v0, 3, 1" % t0)
    I("v_lshl_add_u32 v%d, v%d, 3, v%d" % (va, t0, va))
    I("v_lshrrev_b32 v%d, 6, v0" % t0)
    I("v_lshl_add_u32 v%d, v%d, 8, v%d" % (va, t0, va))
    I("v_and_b32 v%d, 3, v0" % t1)
    I("v_lshlrev_b32 v%d, 13, v%d" % (vg, va))
    I("v_lshl_add_u32 v%d, v%d, 4, v%d" % (vg, t1, vg))
    I("s_lshl_b32 s%d, s%d, 1" % (S_T1, S_T0))
    I("v_add_u32 v%d, s%d, v%d" % (vg, S_T1, vg))
    I("s_lshl_b32 s%d, s%d, 10" % (S_T1, S_X))
    I("v_add_u32 v%d, s%d, v%d" % (vg2, S_T1, va))
    I("v_lshlrev_b32 v%d, 11, v%d" % (vg2, vg2))
    I("v_lshl_add_u32 v%d, v%d, 4, v%d" % (vg2, t1, vg2))
    I("s_lshl_b32 s%d, s%d, 6" % (S_T1, S_J))
    I("v_add_u32 v%d, s%d, v%d" % (vg2, S_T1, vg2))
    I("v_bfe_u32 v%d, v0, 4, 2" % t0)
    I("v_lshlrev_b32 v%d, 3, v%d" % (t0, t0))
    I("v_bfe_u32 v%d, v0, 2, 2" % vo)
    I("v_add_u32 v%d, v%d, v%d" % (t0, t0, vo))
    I("v_lshlrev_b32 v%d, 6, v%d" % (vo, t0))
    I("v_lshrrev_b32 v%d, 6, v0" % t0)
    I("v_lshl_add_u32 v%d, v%d, 14, v%d" % (vo, t0, vo))
    I("v_lshl_add_u32 v%d, v%d, 4, v%d" % (vq, t1, vo))
    I("v_lshl_add_u32 v%d, v%d, 3, v%d" % (vo, t1, vo))
    I("v_add_u32 v%d, 0x10000, v%d" % (vq + 1, vq))
    I("v_add_u32 v%d, 0x10000, v%d" % (vo + 1, vo))
    I("v_lshl_add_u32 v%d, v%d, 14, v%d" % (vw, t0, V_LIN))
    I("v_add_u32 v%d, 0x10000, v%d" % (vw + 1, vw))
    I("s_lshl_b32 s%d, s%d, 14" % (S_T2, S_W))
    I("s_add_u32 s%d, s%d, %d" % (S_T2, S_T2, L_STAGE))

    def soff(i, stride):
        I("s_add_u32 s%d, s%d, %d" % (S_T3, S_ROT, i >> 2))
        I("s_and_b32 s%d, s%d, 3" % (S_T3, S_T3))
        I("s_lshl_b32 s%d, s%d, 2" % (S_T3, S_T3))
        I("s_add_u32 s%d, s%d, %d" % (S_T3, S_T3, i & 3))
        I("s_mul_i32 s%d, s%d, %d" % (S_T3, S_T3, 16 * stride))

    def issue(src, half, vaddr, stride):
        a.srd(S_TMPSRD, ptr(src), 0, 8 * MB)
        for i in range(16):
            I("s_add_u32 m0, s%d, %d" % (S_T2, half * 65536 + i * 1024))
            soff(i, stride)
            I("buffer_load_dwordx4 v%d, s[%d:%d], s%d offen lds" % (vaddr, S_TMPSRD, S_TMPSRD + 3, S_T3))

    def issue_reg(src, vbase, vaddr, stride):
        a.srd(S_TMPSRD, ptr(src), 0, 8 * MB)
        for i in range(16):
            soff(i, stride)
            I("buffer_load_dwordx4 %s, v%d, s[%d:%d], s%d offen" % (vr4(vbase + 4 * i), vaddr, S_TMPSRD, S_TMPSRD + 3, S_T3))

    def reg_to_lds(vbase, half):
        for i in range(16):
            I("ds_write_b128 v%d, %s offset:%d" % (vw + half, vr4(vbase + 4 * i), L_STAGE + i * 1024))
        I("s_waitcnt lgkmcnt(0)")

    def reads(areg, half, va_, tstep):
        for b in range(4):
            for t in range(2):
                d = areg(t, b)
                for u, o in enumerate((0, 256, 2048, 2304)):
                    off = L_STAGE + b * 4096 + o + t * tstep
                    I("ds_read_b64_tr_b16 a[%d:%d], v%d offset:%d" % (d + 2 * u, d + 2 * u + 1, va_ + half, off))
            I("s_waitcnt lgkmcnt(0)")
    RV_, RO_ = 112, 48
    issue(B_WQ, 0, vg, 8192)
    issue(B_WK, 1, vg, 8192)
    issue_reg(B_WV, RV_, vg, 8192)
    I("s_waitcnt vmcnt(32)")
    issue_reg(B_WO, RO_, vg2, 2048)
    reads(lambda t, b: a_qkv(0, t, b), 0, vq, 8)
    I("s_waitcnt vmcnt(32)")
    reads(lambda t, b: a_qkv(1, t, b), 1, vq, 8)
    I("s_waitcnt vmcnt(16)")
    reg_to_lds(RV_, 0)
    reads(lambda t, b: a_qkv(2, t, b), 0, vq, 8)
    I("s_waitcnt vmcnt(0)")
    reg_to_lds(RO_, 1)
    if FT:
        reads(a_wo, 1, vq, 8)
    else:
        reads(a_wo, 1, vo, 32)
    t2 = V_PT + 2
    I("v_bfe_u32 v%d, v0, 1, 1" % t1)
    I("v_lshlrev_b32 v%d, 4, v%d" % (t1, t1))
    I("v_mov_b32 v%d, 0x3f80" % t2)
    I("v_lshlrev_b32 v%d, v%d, v%d" % (t2, t1, t2))
    I("v_bfe_u32 v%d, v0, 3, 1" % t0)
    I("v_bfe_u32 v%d, v0, 4, 1" % t1)
    I("v_xor_b32 v%d, v%d, v%d" % (t1, t1, t0))
    I("v_bfe_u32 v%d, v0, 2, 1" % t0)
    I("v_lshl_add_u32 v%d, v%d, 2, v%d" % (t0, t1, t0))
    I("v_and_b32 v%d, 1, v0" % t1)
    I("v_lshl_add_u32 v%d, v%d, 1, v%d" % (t0, t1, t0))
    for r in range(4):
        I("v_cmp_eq_u32 vcc, %d, v%d" % (r, t0))
        I("s_nop 1")
        I("v_cndmask_b32 v%d, 0, v%d, vcc" % (V_SEL2 + r, t2))
    for i in range(24):
        I("v_mov_b32 v%d, 0" % (V_ACC + i))
    for r in (V_VM + 1, V_VM + 3, V_PM + 1):
        I("v_mov_b32 v%d, 0" % r)


def kv_prefetch(a, parts=(0, 1, 2, 3)):
    I = a.I
    for i, (va, off) in enumerate(((V_KLD, 0), (V_KLD2, 0), (V_VTLD, 0), (V_VTLD, 1024))):
        if i not in parts:
            continue
        I("s_add_u32 m0, s%d, %d" % (S_LKV, i * 1024 - off))
        I("s_nop 0")
        I("buffer_load_dwordx4 v%d, %s, s%d offen offset:%d lds" % (va, W, S_KV, off))
    I("s_xor_b32 s%d, s%d, 4096" % (S_LKV, S_LKV))
    I("s_add_u32 s%d, s%d, 0x40000" % (S_KV, S_KV))
    I("s_min_u32 s%d, s%d, 0x%x" % (S_KV, S_KV, 63 * 262144))


def kv_signal(a, delta, wait):
    I = a.I
    I("s_add_u32 s%d, s%d, %d" % (S_T0, S_STEP, delta))
    I("v_mov_b32 v%d, s%d" % (V_CHK, S_T0))
    I("s_lshl_b32 s%d, s%d, 5" % (S_T0, S_X))
    I("s_add_u32 s%d, s%d, s%d" % (S_T0, S_T0, S_J))
    I("s_lshl_b32 s%d, s%d, 2" % (S_T0, S_T0))
    I("s_add_u32 s%d, s%d, 0x%x" % (S_T0, S_T0, X_FLG))
    I("v_mov_b32 v%d, 0" % V_SMP)
    if wait:
        I("s_waitcnt vmcnt(0)")
    I("s_mov_b64 exec, 1")
    I("buffer_store_dword v%d, v%d, %s, s%d offen sc1" % (V_CHK, V_SMP, W, S_T0))
    I("s_mov_b64 exec, -1")


def kv_wait(a, s_tt, target=32, base=224):
    I = a.I
    if 'nowork' in ABL and base == 224:
        return
    I("s_lshl_b32 s%d, s%d, 2" % (S_T0, s_tt))
    I("s_add_u32 s%d, s%d, %d" % (S_T0, S_T0, base))
    I("v_mov_b32 v%d, s%d" % (V_SMP, S_T0))
    rt, ok = a.uid("L_kvw"), a.uid("L_kvok")
    a.L(rt)
    I("buffer_load_dword v%d, v%d, s[%d:%d], 0 offen sc1" % (V_SMP + 1, V_SMP, S_TMPSRD, S_TMPSRD + 3))
    I("s_add_u32 s%d, s%d, 1" % (S_SPIN, S_SPIN))
    I("s_cmp_gt_u32 s%d, 0x%x" % (S_SPIN, SPIN_LIMIT))
    I("s_cbranch_scc1 %s" % ABORT[0])
    I("s_waitcnt vmcnt(0)")
    I("v_readfirstlane_b32 s%d, v%d" % (S_T0, V_SMP + 1))
    I("s_cmp_ge_u32 s%d, %d" % (S_T0, target))
    I("s_cbranch_scc1 %s" % ok)
    I("s_sleep 4")
    I("s_branch %s" % rt)
    a.L(ok)


def publish_read(a):
    a.I("ds_read_b128 %s, v%d offset:%d" % (vr4(V_R), V_LIN, L_KM))
    a.I("ds_read_b128 %s, v%d offset:%d" % (vr4(V_R + 4), V_LIN, L_VM))


def publish_kv(a):
    I = a.I
    I("s_waitcnt lgkmcnt(0)")
    exec_(a, S_M8H)
    I("buffer_store_dwordx4 %s, v%d, %s, s%d offen sc1" % (vr4(V_R), V_KMST, W, S_KM))
    exec_(a, S_L32)
    I("buffer_store_dwordx4 %s, v%d, %s, s%d offen sc1" % (vr4(V_R + 4), V_VMST, W, S_KM))
    exec_(a, None)
    I("s_add_u32 s%d, s%d, 0x10000" % (S_KM, S_KM))


def slots(step=S_STEP):
    return ["s_and_b32 s%d, s%d, 3" % (S_T0, step),
            "s_lshl_b32 s%d, s%d, 16" % (S_T1, S_T0),
            "s_add_u32 s%d, s%d, s%d" % (S_MEMC, S_BMEM, S_T1),
            "s_add_u32 s%d, s%d, 0x%x" % (S_OX, S_MEMC, X_OX - X_MEM),
            "s_lshl_b32 s%d, s%d, 18" % (S_T1, S_T0),
            "s_add_u32 s%d, s%d, s%d" % (S_SX, S_BSX, S_T1),
            "s_bitcmp1_b32 s%d, 1" % S_T0,
            "s_cselect_b32 s%d, s%d, s%d" % (S_PX, S_PXB2, S_PXB),
            "s_lshl_b32 s%d, s%d, 20" % (S_T1, step),
            "s_add_u32 s%d, s%d, s%d" % (S_PX, S_PX, S_T1),
            "s_add_u32 s%d, s%d, 1" % (S_T0, S_T0),
            "s_and_b32 s%d, s%d, 3" % (S_T0, S_T0),
            "s_lshl_b32 s%d, s%d, 16" % (S_T0, S_T0),
            "s_add_u32 s%d, s%d, s%d" % (S_MEMN, S_BMEM, S_T0)]


def smf(c, w, b):
    return "v_smfmac_f32_16x16x64_bf16 %s, %s, a[%d:%d], v%d" % (vr4(c), vr4(V_M + 4 * b), w, w + 7, V_IDX)


def mfma32(d, x, y, c=None):
    return "v_mfma_f32_16x16x32_bf16 %s, %s, %s, %s" % (vr4(d), vr4(x), vr4(y), "0" if c is None else vr4(c))


def mfma16(d, x, y):
    return "v_mfma_f32_16x16x16_bf16 %s, %s, %s, 0" % (vr4(d), vr2(x), vr2(y))


def cvt(d, x, y):
    return "v_cvt_pk_bf16_f32 v%d, v%d, v%d" % (d, x, y)


def step_loop(a, name, lsc):
    I = a.I
    loop, done = a.uid("L_step"), name + "_done"
    Lh1, Lb3, Lh2, Lb4, Lfin = (a.uid(x) for x in ("L_help1", "L_bar3", "L_help2", "L_bar4", "L_fin"))
    a.L(loop)
    a.C("==== A: gather the memory, q / k projection partials")
    nops(a, D_A)
    zo = ["v_mov_b32 v%d, 0" % (V_OA + i) for i in range(8)]
    kx = ["ds_read_b128 %s, v%d" % (vr4(V_KX), V_KFR), "ds_read_b128 %s, v%d offset:1024" % (vr4(V_KX + 4), V_KFR),
          "v_xor_b32 v%d, 0x1000, v%d" % (V_KFR, V_KFR)]
    gather(a, S_MEMC, lambda b: [smf(acc(M, t), a_qkv(M, t, b), b) for t in range(2) for M in range(2)], "a", zo + kx)
    stamp(a, 1)
    a.C("---- B: round the partials, transpose them with a selection MFMA (also adds the two K halves)")
    q0, k0, q1, k1 = acc(0, 0), acc(1, 0), acc(0, 1), acc(1, 1)
    I(cvt(V_TA, q0, q0 + 1))
    I(cvt(V_TA + 1, q0 + 2, q0 + 3))
    I(cvt(V_TA + 2, k0, k0 + 1))
    I(cvt(V_TA + 3, k0 + 2, k0 + 3))
    I("s_cmp_lg_u32 s%d, 0" % S_W)
    I(cvt(V_TA + 4, q1, q1 + 1))
    I(mfma32(V_TD, V_TA, V_SEL))
    I(cvt(V_TA + 5, q1 + 2, q1 + 3))
    I(cvt(V_TA + 6, k1, k1 + 1))
    I(cvt(V_TA + 7, k1 + 2, k1 + 3))
    I("s_nop 1")
    I(mfma32(V_TD + 4, V_TA + 4, V_SEL))
    I("s_cbranch_scc0 %s" % (Lh1 + "_w0"))
    I("s_nop 0")
    I("ds_write_b128 v%d, %s" % (V_TW, vr4(V_TD)))
    I("s_nop 4")
    I("ds_write_b128 v%d, %s offset:1024" % (V_TW, vr4(V_TD + 4)))
    I("s_waitcnt lgkmcnt(0)")
    I("s_barrier")
    a.C("---- waves 1, 2: poison the exchange slots everybody is done with")
    lp2, lpe = a.uid("L_po2"), a.uid("L_poe")
    I("s_cmp_lg_u32 s%d, 1" % S_W)
    I("s_cbranch_scc1 %s" % lp2)
    I("s_add_u32 s%d, s%d, 0x400000" % (S_T0, S_PX))
    for r in range(0 if 'prepois' in ABL or POIW != 1 else NREP):
        I("buffer_store_dwordx4 %s, v%d, %s, s%d offen offset:%d sc1" % (vr4(V_SENT), V_PXST, W, S_T0, r * 1024))
    I("s_branch %s" % lpe)
    a.L(lp2)
    I("s_cmp_lg_u32 s%d, 2" % S_W)
    I("s_cbranch_scc1 %s" % lpe)
    I("s_sub_u32 s%d, s%d, 1" % (S_T0, S_STEP))
    I("s_and_b32 s%d, s%d, 3" % (S_T0, S_T0))
    I("s_lshl_b32 s%d, s%d, 16" % (S_T1, S_T0))
    I("s_add_u32 s%d, s%d, s%d" % (S_T1, S_T1, S_BMEM))
    I("s_add_u32 s%d, s%d, 0x%x" % (S_T2, S_T1, X_OX - X_MEM))
    I("s_lshl_b32 s%d, s%d, 18" % (S_T3, S_T0))
    I("s_add_u32 s%d, s%d, s%d" % (S_T3, S_T3, S_BSX))
    I("buffer_store_dwordx2 %s, v%d, %s, s%d offen%s" % (vr2(V_SENT), V_MEMST, W, S_T1, lsc))
    I("buffer_store_dwordx2 %s, v%d, %s, s%d offen%s" % (vr2(V_SENT), V_MEMST, W, S_T2, lsc))
    I("buffer_store_dwordx4 %s, v%d, %s, s%d offen%s" % (vr4(V_SENT), V_SXST, W, S_T3, lsc))
    exec_(a, S_MM)
    I("buffer_store_dwordx4 %s, v%d, %s, s%d offen%s" % (vr4(V_SENT), V_SXM, W, S_T3, lsc))
    exec_(a, None)
    a.L(lpe)
    vp = [smf(acc(2, t), a_qkv(2, t, b), b) for b in range(4) for t in range(2)]
    for l in vp:
        I(l)
    I("s_nop 4")
    I("ds_write_b128 v%d, %s" % (V_RVW, vr4(acc(2, 0))))
    I("s_nop 1")
    I("ds_write_b128 v%d, %s offset:512" % (V_RVW, vr4(acc(2, 1))))
    I("s_waitcnt lgkmcnt(0)")
    I("s_barrier")
    lv, L2b = a.uid("L_vred"), a.uid("L_bar2b")
    I("s_cmp_eq_u32 s%d, 1" % S_W)
    I("s_cbranch_scc1 %s" % lv)
    a.L(L2b)
    I("s_barrier")
    if POIW == 2 and 'prepois' not in ABL:
        lq = a.uid("L_np")
        I("s_cmp_lg_u32 s%d, 1" % S_W)
        I("s_cbranch_scc1 %s" % lq)
        I("s_add_u32 s%d, s%d, 0x400000" % (S_T0, S_PX))
        for r in range(NREP):
            I("buffer_store_dwordx4 %s, v%d, %s, s%d offen offset:%d sc1" % (vr4(V_SENT), V_PXST, W, S_T0, r * 1024))
        a.L(lq)
    if PUBW == 2 and 'nopub' not in ABL:
        lq = a.uid("L_np")
        I("s_cmp_lg_u32 s%d, 2" % S_W)
        I("s_cbranch_scc1 %s" % lq)
        publish_read(a)
        publish_kv(a)
        I("s_sub_u32 s%d, s%d, 0x10000" % (S_KM, S_KM))
        a.L(lq)
    I("s_cmp_lg_u32 s%d, 3" % S_W)
    I("s_cbranch_scc1 %s" % Lb3)
    a.C("---- wave 3: k_x / v_x^T of the next step -> LDS; make sure the token tile of step+2 is there")
    if 'nokv' not in ABL:
        kv_prefetch(a, (0, 1, 2, 3) if KVW == 0 else (0, 1))
    I("s_and_b32 s%d, s%d, 7" % (S_T1, S_STEP))
    I("s_cmp_lg_u32 s%d, 6" % S_T1)
    I("s_cbranch_scc1 %s" % Lb3)
    I("s_add_u32 s%d, s%d, 2" % (S_T1, S_STEP))
    I("s_lshr_b32 s%d, s%d, 3" % (S_T1, S_T1))
    I("s_min_u32 s%d, s%d, 7" % (S_T1, S_T1))
    kv_wait(a, S_T1)
    I("s_branch %s" % Lb3)
    a.L(lv)
    a.C("---- wave 1: v_m = sum of the 8 partial planes")
    for p in range(8):
        for t in range(2):
            I("ds_read_b64 %s, v%d offset:%d" % (vr2(V_R + 4 * p + 2 * t), V_RVR, p * 1024 + t * 512))
            if p == 7 and t == 0:
                I("s_waitcnt lgkmcnt(11)")
    I("s_waitcnt lgkmcnt(8)")
    for (d, s_) in ((0, 1), (2, 3), (0, 2)):
        for t in range(2):
            pk(a, V_R + 4 * d + 2 * t, V_R + 4 * d + 2 * t, V_R + 4 * s_ + 2 * t)
    I("s_waitcnt lgkmcnt(0)")
    for (d, s_) in ((4, 5), (6, 7), (0, 4), (0, 6)):
        for t in range(2):
            pk(a, V_R + 4 * d + 2 * t, V_R + 4 * d + 2 * t, V_R + 4 * s_ + 2 * t)
    I(cvt(V_VM, V_R, V_R + 1))
    I(cvt(V_VM + 2, V_R + 2, V_R + 3))
    I("ds_write2_b32 v%d, v%d, v%d offset0:0 offset1:16" % (V_VMW, V_VM, V_VM + 2))
    I("s_waitcnt lgkmcnt(0)")
    I("s_branch %s" % L2b)
    a.L(Lh1 + "_w0")
    for l in vp:
        I(l)
    I("s_nop 4")
    I("ds_write_b128 v%d, %s" % (V_RVW, vr4(acc(2, 0))))
    I("s_nop 1")
    I("ds_write_b128 v%d, %s offset:512" % (V_RVW, vr4(acc(2, 1))))
    I("s_barrier")
    stamp(a, 2)
    for w in range(1, 4):
        for t in range(2):
            I("ds_read_b128 %s, v%d offset:%d" % (vr4(V_R + 8 * (w - 1) + 4 * t), V_LIN, L_T + w * 2048 + t * 1024))
    for w in range(3):
        I("s_waitcnt lgkmcnt(%d)" % (4 - 2 * w))
        for i in range(0, 8, 2):
            pk(a, V_TD + i, V_TD + i, V_R + 8 * w + i)
    for i in range(4):
        I(cvt(V_QK + i, V_TD + 2 * i, V_TD + 2 * i + 1))
    exec_(a, S_M8)
    I("s_nop 0")
    I(mfma32(V_S0, V_KX, V_QK))
    I(mfma32(V_S1, V_KX + 4, V_QK))
    I(mfma32(V_SM, V_QK, V_QK))
    I("s_nop 3")
    I("buffer_store_dwordx4 %s, v%d, %s, s%d offen%s" % (vr4(V_S0), V_SXST, W, S_SX, lsc))
    I("s_nop 0")
    I("buffer_store_dwordx4 %s, v%d, %s, s%d offen offset:128%s" % (vr4(V_S1), V_SXST, W, S_SX, lsc))
    exec_(a, S_MM)
    I("buffer_store_dwordx4 %s, v%d, %s, s%d offen%s" % (vr4(V_SM), V_SXM, W, S_SX, lsc))
    exec_(a, None)
    stamp(a, 3)
    I("s_barrier")
    a.C("---- C: partial scores of the other three workgroups of the head")
    I("ds_write_b128 v%d, %s offset:%d" % (V_LIN, vr4(V_QK), L_KM))
    for t in range(2):
        I("ds_read2_b64 %s, v%d offset0:%d offset1:%d" % (vr4(V_VT + 4 * t), V_VTR, t * 32, t * 32 + 4))
    for i in range(4):
        I("v_mov_b32_dpp v%d, v%d row_shr:8 row_mask:0xf bank_mask:0xc" % (V_S0 + i, V_S1 + i))
    I("v_xor_b32 v%d, 0x1000, v%d" % (V_VTR, V_VTR))
    I("s_cmp_eq_u32 s%d, 63" % S_STEP)
    I("s_cbranch_scc1 %s" % L2b)
    nops(a, D_C)

    def sx_loads(r):
        b = V_L + 16 * r
        return ["buffer_load_dwordx4 %s, v%d, %s, s%d offen sc1" % (vr4(b), V_SXLM, W, S_SX)] + \
               ["buffer_load_dwordx4 %s, v%d, %s, s%d offen sc1" % (vr4(b + 4 + 4 * k), V_SXLD + k, W, S_SX) for k in range(3)]
    for r in range(NSC):
        for l in sx_loads(r):
            I(l)
        if r < NSC - 1:
            nops(a, G_C)
    cok = a.uid("L_cok")

    def sx_sum(out, r, nlater):
        b = V_L + 16 * r
        P = lambda d, x, y: "v_pk_add_f32 %s, %s, %s" % (vr2(d), vr2(x), vr2(y))
        out += ["s_waitcnt vmcnt(%d)" % (3 + nlater),
                "v_permlane32_swap_b32 v%d, v%d" % (b, b + 2),
                "v_permlane32_swap_b32 v%d, v%d" % (b + 1, b + 3),
                "s_waitcnt vmcnt(%d)" % (2 + nlater),
                P(V_X + 1, b, b + 2),
                P(V_T, V_S0, b + 4),
                P(V_T + 2, V_S0 + 2, b + 6),
                "v_permlane16_swap_b32 v%d, v%d" % (V_X + 1, V_X + 2),
                "s_waitcnt vmcnt(%d)" % (1 + nlater),
                P(V_T, V_T, b + 8),
                P(V_T + 2, V_T + 2, b + 10),
                "v_add_f32 v%d, v%d, v%d" % (V_TM, V_X + 1, V_X + 2),
                "s_waitcnt vmcnt(%d)" % nlater,
                P(V_T, V_T, b + 12),
                P(V_T + 2, V_T + 2, b + 14),
                P(V_X + 1, V_T, V_T + 2),
                "v_add_f32 v%d, v%d, v%d" % (V_X + 1, V_X + 1, V_TM),
                "v_cmp_u_f32 vcc, v%d, v%d" % (V_X + 1, V_X + 2)]
    hot = []
    sx_sum(hot, 0, 4 * (NSC - 1))
    for l in hot:
        I(l)
    cf = a.uid("L_cf")
    COLD.append(cf + ":")
    rot_poll(a, NSC, sx_loads, sx_sum, range(V_L, V_L + 16), cok, True)
    vals = [V_T, V_T + 1, V_T + 2, V_T + 3, V_TM]
    mx, t1 = V_X + 1, V_X + 3
    if EMU:
        head = ["v_cvt_pk_bf16_f32 v%d, 0, v%d" % (V_PB + i if i < 4 else V_SUM, v) for i, v in enumerate(vals)]
    else:
        head = ["v_max3_f32 v%d, v%d, v%d, v%d" % (mx, V_T, V_T + 1, V_T + 2),
                "v_max3_f32 v%d, v%d, v%d, v%d" % (mx, mx, V_T + 3, V_TM),
                "s_nop 1",
                "v_max_f32_dpp v%d, v%d, v%d row_ror:8 row_mask:0xf bank_mask:0xf" % (mx, mx, mx)]
    for l in head:
        I(l)
    I("s_cbranch_vccnz %s" % cf)
    lskip = a.uid("L_chead")
    COLD.append(cok + ":")
    COLD.extend("    " + l for l in head)
    COLD.append("    s_branch %s" % lskip)
    a.L(lskip)
    stamp(a, 4)
    I("s_waitcnt lgkmcnt(0)")
    I("s_barrier")
    I("ds_read_b32 v%d, v%d" % (V_VM, V_VMW))
    I("ds_read_b32 v%d, v%d offset:64" % (V_VM + 2, V_VMW))
    a.C("---- D: softmax and P V")
    if EMU:
        I("v_pk_mul_f32 %s, %s, s[%d:%d]" % (vr2(V_T), vr2(V_PB), S_SCL, S_SCL + 1))
        I("v_pk_mul_f32 %s, %s, s[%d:%d]" % (vr2(V_T + 2), vr2(V_PB + 2), S_SCL, S_SCL + 1))
        I("v_mul_f32 v%d, s%d, v%d" % (V_TM, S_SCL, V_SUM))
        for v in vals:
            I("v_cvt_pk_bf16_f32 v%d, 0, v%d" % (v, v))
        I("v_max3_f32 v%d, v%d, v%d, v%d" % (mx, V_T, V_T + 1, V_T + 2))
        I("v_max3_f32 v%d, v%d, v%d, v%d" % (mx, mx, V_T + 3, V_TM))
        I("s_nop 1")
        I("v_max_f32_dpp v%d, v%d, v%d row_ror:8 row_mask:0xf bank_mask:0xf" % (mx, mx, mx))
    for sw in ("v_permlane16_swap_b32", "v_permlane32_swap_b32"):
        I("v_mov_b32 v%d, v%d" % (t1, mx))
        I("s_nop 1")
        I("%s v%d, v%d" % (sw, mx, t1))
        I("v_max_f32 v%d, v%d, v%d" % (mx, mx, t1))
    I("v_mul_f32 v%d, s%d, v%d" % (mx, S_C, mx))
    I("v_fma_f32 v%d, v%d, s%d, -v%d" % (V_TM, V_TM, S_C, mx))
    pf = "v_pk_fma_f32 %s, %s, s[%d:%d], %s op_sel_hi:[1,1,0] neg_lo:[0,0,1] neg_hi:[0,0,1]"
    I("v_exp_f32 v%d, v%d" % (V_TM, V_TM))
    I(pf % (vr2(V_T), vr2(V_T), S_C, S_C + 1, vr2(mx)))
    I(pf % (vr2(V_T + 2), vr2(V_T + 2), S_C, S_C + 1, vr2(mx)))
    I("v_mov_b32_dpp v%d, v%d row_ror:8 row_mask:0xf bank_mask:0xf" % (t1, V_TM))
    I("v_exp_f32 v%d, v%d" % (V_T, V_T))
    I(cvt(V_PM, V_TM, t1))
    I("v_exp_f32 v%d, v%d" % (V_T + 1, V_T + 1))
    I("v_exp_f32 v%d, v%d" % (V_T + 2, V_T + 2))
    I(mfma16(V_SUM, V_ONE, V_PM))
    I("v_exp_f32 v%d, v%d" % (V_T + 3, V_T + 3))
    I("s_waitcnt lgkmcnt(0)")
    I(cvt(V_PB, V_T, V_T + 1))
    I(mfma16(V_O, V_VM, V_PM))
    I(cvt(V_PB + 1, V_T + 2, V_T + 3))
    I("v_mov_b32_dpp v%d, v%d row_ror:8 row_mask:0xf bank_mask:0xf" % (V_PB + 2, V_PB))
    I(mfma16(V_O + 4, V_VM + 2, V_PM))
    I("v_mov_b32_dpp v%d, v%d row_ror:8 row_mask:0xf bank_mask:0xf" % (V_PB + 3, V_PB + 1))
    I("s_nop 0")
    exec_(a, S_M8)
    I(mfma32(V_SUM, V_ONE, V_PB, V_SUM))
    I(mfma32(V_O, V_VT, V_PB, V_O))
    I(mfma32(V_O + 4, V_VT + 4, V_PB, V_O + 4))
    I("s_nop 3")
    I("v_rcp_f32 v%d, v%d" % (V_SUM, V_SUM))
    I("s_nop 0")
    pm = "v_pk_mul_f32 %s, %s, %s op_sel_hi:[1,0]"
    I(pm % (vr2(V_O), vr2(V_O), vr2(V_SUM)))
    I(pm % (vr2(V_O + 2), vr2(V_O + 2), vr2(V_SUM)))
    I(pm % (vr2(V_O + 4), vr2(V_O + 4), vr2(V_SUM)))
    I(pm % (vr2(V_O + 6), vr2(V_O + 6), vr2(V_SUM)))
    for i in range(4):
        I(cvt(V_OB + i, V_O + 2 * i, V_O + 2 * i + 1))
    I("buffer_store_dwordx4 %s, v%d, %s, s%d offen%s" % (vr4(V_OB), V_OXST, W, S_OX, lsc))
    exec_(a, None)
    stamp(a, 5)
    I("s_barrier")
    nops(a, W0L)
    I("s_branch %s" % (Lb3 + "_e"))
    a.L(Lb3)
    I("s_waitcnt lgkmcnt(0)")
    I("s_barrier")
    I("s_cmp_eq_u32 s%d, 63" % S_STEP)
    I("s_cbranch_scc1 %s" % Lfin)
    a.L(Lb3 + "_e")
    a.C("==== E: gather the attention output of the XCD's heads, output projection partials")
    nops(a, max(D_E - 4, 0))
    za = ["v_mov_b32 v%d, 0" % (V_ACC + i) for i in range(24)]
    gather(a, S_OX, lambda b: [smf(V_OA + 4 * ct, a_wo(ct, b), b) for ct in range(2)], "e", za)
    stamp(a, 6)
    I("s_add_u32 s%d, s%d, 1" % (S_STEP, S_STEP))
    I("s_cmp_lg_u32 s%d, 0" % S_W)
    if FT:
        I("s_nop 2")
        I(cvt(V_TA, V_OA, V_OA + 1))
        I(cvt(V_TA + 1, V_OA + 2, V_OA + 3))
        I("s_nop 0")
        I(cvt(V_TA + 2, V_OA + 4, V_OA + 5))
        I(cvt(V_TA + 3, V_OA + 6, V_OA + 7))
        I("s_nop 1")
        I(mfma32(V_TD, V_TA, V_SEL2))
        I("s_cbranch_scc1 %s" % (Lh2 + "_w"))
        I("s_barrier")
    else:
        I("s_nop 2")
        for ct in range(2):
            if ct == 1:
                I("s_nop 0")
            for r in range(0, 4, 2):
                I("ds_write2_b32 v%d, v%d, v%d offset0:%d offset1:%d" % (V_ROW, V_OA + 4 * ct + r, V_OA + 4 * ct + r + 1, ct * 16 + r * 32, ct * 16 + r * 32 + 32))
        I("s_waitcnt lgkmcnt(0)")
        I("s_barrier")
        I("s_cbranch_scc1 %s" % Lh2)
    stamp(a, 7)
    a.C("---- F / G (wave 0): XCD partial -> PX, sum of the four partials -> MEMX")
    def add4(d, s):
        pk(a, V_R + 4 * d, V_R + 4 * d, V_R + 4 * s)
        pk(a, V_R + 4 * d + 2, V_R + 4 * d + 2, V_R + 4 * s + 2)

    def f_reduce(store):
        if FT:
            for w in range(1, 4):
                I("ds_read_b128 %s, v%d offset:%d" % (vr4(V_R + 4 * w), V_LIN, L_RO + w * 2048))
            for w in range(1, 4):
                I("s_waitcnt lgkmcnt(%d)" % (3 - w))
                src = V_TD if w == 1 else V_R
                pk(a, V_R, src, V_R + 4 * w)
                pk(a, V_R + 2, src + 2, V_R + 4 * w + 2)
        for p in range(0 if FT else 8):
            I("ds_read_b128 %s, v%d offset:%d" % (vr4(V_R + 4 * p), V_ROR, p * 1024))
        for wt, ps in (() if FT else ((6, (1,)), (4, (2, 3)), (2, (4, 5)), (1, (6,)), (0, (7,)))):
            I("s_waitcnt lgkmcnt(%d)" % wt)
            for p in ps:
                add4(0, p)
        if store:
            for r in range(NREP):
                I("buffer_store_dwordx4 %s, v%d, %s, s%d offen offset:%d sc1" % (vr4(V_R), V_PXST, W, S_PX, r * 1024))
    if PXW:
        nops(a, 16)
    f_reduce(not PXW)
    stamp(a, 8)
    I("s_mov_b32 s%d, s%d" % (S_T2, S_PX))
    I("s_mov_b32 s%d, s%d" % (S_T3, S_MEMN))
    sl = slots()
    for l in sl:
        I(l)
    nops(a, max(D_G - len(sl) - 2, 0))

    def px_loads(r):
        return ["buffer_load_dwordx4 %s, v%d, %s, s%d offen offset:%d sc1" % (vr4(V_L + 12 * r + 4 * k), V_PXLD + k, W, S_T2, r * 1024) for k in range(3)]
    for r in range(NREP):
        for l in px_loads(r):
            I(l)
        if r < NREP - 1:
            nops(a, G_G)

    NSH = 0
    if PUBW == 1 and 'nopub' not in ABL:
        I("ds_read_b128 %s, v%d offset:%d" % (vr4(V_R + 4), V_LIN, L_VM))
        exec_(a, S_M8H)
        I("buffer_store_dwordx4 %s, v%d, %s, s%d offen sc1" % (vr4(V_QK), V_KMST, W, S_KM))
        exec_(a, S_L32)
        I("s_waitcnt lgkmcnt(0)")
        I("buffer_store_dwordx4 %s, v%d, %s, s%d offen sc1" % (vr4(V_R + 4), V_VMST, W, S_KM))
        exec_(a, None)
        I("s_add_u32 s%d, s%d, 0x10000" % (S_KM, S_KM))
        NSH += 2
        if 'noflag' not in ABL:
            kv_signal(a, -1, False)
            NSH += 1
    if KVW == 2 and 'nokv' not in ABL:
        kv_prefetch(a, (2, 3))
        NSH += 2
    if POIW == 0 and 'prepois' not in ABL:
        I("s_add_u32 s%d, s%d, 0x400000" % (S_T0, S_T2))
        for r in range(NREP):
            I("buffer_store_dwordx4 %s, v%d, %s, s%d offen offset:%d sc1" % (vr4(V_SENT), V_PXST, W, S_T0, r * 1024))
        NSH += NREP

    def px_sum(out, r, nlater):
        b = V_L + 12 * r
        P = lambda d, x, y: "v_pk_add_f32 %s, %s, %s" % (vr2(d), vr2(x), vr2(y))
        for k in range(3):
            out += ["s_waitcnt vmcnt(%d)" % (2 - k + nlater),
                    P(V_T, V_R if k == 0 else V_T, b + 4 * k),
                    P(V_T + 2, V_R + 2 if k == 0 else V_T + 2, b + 4 * k + 2)]
        out += [P(V_X + 1, V_T, V_T + 2),
                "v_cmp_u_f32 vcc, v%d, v%d" % (V_X + 1, V_X + 2),
                cvt(V_OB, V_T, V_T + 1), cvt(V_OB + 1, V_T + 2, V_T + 3)]
    hot = []
    px_sum(hot, 0, 3 * (NREP - 1) + NSH)
    for l in hot:
        I(l)
    gf, gok, grt = a.uid("L_gf"), a.uid("L_gok"), a.uid("L_grt")
    I("s_cbranch_vccnz %s" % gf)
    a.L(gok)
    COLD.append(gf + ":")
    rot_poll(a, NREP, px_loads, px_sum, range(V_L, V_L + 12), gok, False, NSH)
    I("buffer_store_dwordx2 %s, v%d, %s, s%d offen%s" % (vr2(V_OB), V_MEMST, W, S_T3, lsc))
    stamp(a, 9)
    I("s_barrier")
    nops(a, W0L)
    if STAMP == 2:
        I("s_cmp_lg_u32 s%d, 5" % S_STEP)
        I("s_cbranch_scc1 %s" % loop)
        I("s_memrealtime s[%d:%d]" % (S_ST, S_ST + 1))
        I("s_mov_b32 s%d, 0" % S_SPIN)
        I("s_branch %s" % loop)
    elif STAMP:
        I("s_waitcnt lgkmcnt(0)")
        for i in range(9):
            I("s_sub_u32 s%d, s%d, s%d" % (S_T0, S_ST + 2 * i + 2, S_ST + 2 * i))
            I("s_add_u32 s%d, s%d, s%d" % (S_ACC + i, S_ACC + i, S_T0))
        I("s_mov_b32 s%d, s%d" % (S_ST, S_ST + 18))
        I("s_cmp_lg_u32 s%d, 5" % S_STEP)
        I("s_cbranch_scc1 %s" % (loop + "_nd"))
        for i in range(9):
            I("s_mov_b32 s%d, 0" % (S_ACC + i))
        I("s_mov_b32 s%d, 0" % S_SPIN)
        I("s_branch %s" % (loop + "_nd"))
    else:
        I("s_branch %s" % loop)
    if FT:
        a.L(Lh2 + "_w")
        I("s_nop 2")
        I("ds_write_b128 v%d, %s offset:%d" % (V_TW, vr4(V_TD), L_RO))
        I("s_waitcnt lgkmcnt(0)")
        I("s_barrier")
    a.L(Lh2)
    publish_read(a)
    if PXW:
        lnp = a.uid("L_nopx")
        I("s_cmp_lg_u32 s%d, 1" % S_W)
        I("s_cbranch_scc1 %s" % lnp)
        f_reduce(True)
        a.L(lnp)
    for l in sl:
        I(l)
    l3, l1b = a.uid("L_w3"), a.uid("L_w1b")
    I("s_cmp_eq_u32 s%d, 3" % S_W)
    I("s_cbranch_scc1 %s" % l3)
    I("s_cmp_eq_u32 s%d, 1" % S_W)
    I("s_cbranch_scc1 %s" % l1b)
    a.C("---- wave 2: publish k_m / v_m of the finished step")
    if PUBW != 0:
        I("s_add_u32 s%d, s%d, 0x10000" % (S_KM, S_KM))
    elif 'nopub' not in ABL:
        if D_H2:
            I("s_sleep %d" % D_H2)
        publish_kv(a)
        kv_signal(a, -1, False)
    l2_prefetch(a, 2)
    I("s_branch %s" % Lb4)
    a.L(l1b)
    l2_prefetch(a, 1)
    I("s_branch %s" % Lb4)
    a.L(l3)
    l2_prefetch(a, 3)
    a.L(Lb4)
    if STAMP:
        I("s_cmp_eq_u32 s%d, 5" % S_STEP)
        I("s_cselect_b32 s%d, 0, s%d" % (S_SPIN, S_SPIN))
    I("s_barrier")
    I("s_branch %s" % loop)
    a.L(Lfin)
    I("s_cmp_lg_u32 s%d, 2" % S_W)
    I("s_cbranch_scc1 %s" % done)
    publish_read(a)
    publish_kv(a)
    kv_signal(a, 1, True)
    I("s_branch %s" % done)
    return loop


def chain_main(a, name):
    I = a.I
    a.srd(S_WS, ptr(D_WS), 0, WS_SIZE)
    ABORT[0] = name + "_abort"
    I("s_mov_b32 s%d, 0" % S_SPIN)
    prologue_addrs(a)
    px_setup(a)
    load_weights(a)
    HOOK.get('weights', lambda: None)()
    a.C("---- initial memory -> MEMX slot 0, first prefetches")
    a.srd(S_TMPSRD, ptr(B_MEM0), 0, 16384)
    I("buffer_load_dwordx2 %s, v%d, s[%d:%d], 0 offen" % (vr2(V_R), V_M0LD, S_TMPSRD, S_TMPSRD + 3))
    I("s_waitcnt vmcnt(0)")
    a.srd(S_TMPSRD, ptr(D_DBG), 0, 256)
    I("s_mov_b32 s%d, 0" % S_STEP)
    I("s_mov_b32 s%d, 0" % S_KM)
    I("s_mov_b32 s%d, 0" % S_KV)
    I("s_mov_b32 s%d, %d" % (S_LKV, L_KV))
    I("s_mov_b32 s%d, 0" % S_T1)
    kv_wait(a, S_T1, 256, 0)
    px_finish(a)
    for l in slots():
        I(l)
    I("s_barrier")
    lab = a.uid("L_init")
    lab3 = a.uid("L_init3")
    I("s_cmp_eq_u32 s%d, 3" % S_W)
    I("s_cbranch_scc1 %s" % lab3)
    I("s_cmp_lg_u32 s%d, 0" % S_W)
    I("s_cbranch_scc1 %s" % lab)
    for i in range(2):
        I("v_cmp_eq_u32 vcc, s%d, v%d" % (S_SENT, V_R + i))
        I("s_nop 1")
        I("v_cndmask_b32 v%d, v%d, -1, vcc" % (V_R + i, V_R + i))
    I("buffer_store_dwordx2 %s, v%d, %s, s%d offen" % (vr2(V_R), V_MEMST, W, S_MEMC))
    kv_prefetch(a, ())
    I("s_setprio %d" % PRIO)
    I("s_branch %s" % lab)
    a.L(lab3)
    I("s_mov_b32 s%d, 0" % S_T1)
    kv_wait(a, S_T1, 128)
    kv_prefetch(a)
    if 'nokv' in ABL:
        kv_prefetch(a)
    I("s_waitcnt vmcnt(0)")
    a.L(lab)
    I("s_barrier")
    HOOK.get('loopstart', lambda: None)()
    if STAMP:
        for i in range(10):
            I("s_mov_b32 s%d, 0" % (S_ACC + i))
        I("s_memtime s[%d:%d]" % (S_ST, S_ST + 1))
    n0 = len(a.lines)
    loop = step_loop(a, name, "")
    if STAMP == 1:
        k = next(i for i in range(n0, len(a.lines)) if "buffer_load" in a.lines[i])
        a.lines.insert(k, loop + "_nd:")
    for line in COLD:
        a.raw(line)
    del COLD[:]
    a.L(ABORT[0])
    I("s_mov_b64 exec, 1")
    I("v_mov_b32 v1, s%d" % S_STEP)
    I("v_or_b32 v1, 0xdead0000, v1")
    I("v_mov_b32 v2, 124")
    I("buffer_store_dword v1, v2, s[%d:%d], 0 offen" % (S_TMPSRD, S_TMPSRD + 3))
    a.L(name + "_done")
    if STAMP == 2:
        I("s_memrealtime s[%d:%d]" % (S_ST + 2, S_ST + 3))
        I("s_waitcnt lgkmcnt(0)")
        I("s_sub_u32 s%d, s%d, s%d" % (S_ACC, S_ST + 2, S_ST))
        I("s_mul_i32 s%d, s%d, 10" % (S_ACC, S_ACC))
    if STAMP:
        I("s_mov_b64 exec, -1")
        I("v_mov_b32 v%d, 0" % V_R)
        for i in range(9):
            I("v_writelane_b32 v%d, s%d, %d" % (V_R, S_ACC + i, i))
        I("v_writelane_b32 v%d, s%d, 15" % (V_R, S_SPIN))
        I("s_lshl_b32 s56, s%d, 5" % S_X)
        I("s_add_u32 s56, s56, s%d" % S_J)
        I("s_lshl_b32 s56, s56, 2")
        I("s_add_u32 s56, s56, s%d" % S_W)
        I("s_lshl_b32 s56, s56, 8")
        I("s_add_u32 s56, s56, 0x%x" % (WS_DBG + 4096))
        I("v_lshrrev_b32 v%d, 2, v%d" % (V_R + 1, V_LIN))
        I("buffer_store_dword v%d, v%d, %s, s56 offen" % (V_R, V_R + 1, W))
    HOOK.get('done', lambda: None)()
    I("s_endpgm")
```

```python
from asmlib import vr, ar, sr

import os
BK = 32
NBUF = 4
XP = os.environ.get("XP", "")


def log2(n):
    b = n.bit_length() - 1
    assert 1 << b == n
    return b


class Operand:
    def __init__(self, kind, role, T, stride, srd, soff, rowmap=None, sc1=False):
        self.kind, self.role, self.T, self.stride = kind, role, T, stride
        self.srd = srd
        self.soff = soff
        self.rowmap = rowmap
        self.sc1 = sc1
        self.W = T // 2
        self.nt = self.W // 32
        self.ndma = T // 64
        if kind == 't':
            if role == 'y':
                self.swb = (2, 3)
            else:
                self.swb = (1, 2) if self.W == 128 else (1, 3)
                assert self.W in (64, 128)
        self.kadv = 64 if kind == 'n' else 32 * stride
        if rowmap == 'blk64':
            self.kadv = 4096


class GemmRegs:
    pass


class Gemm:
    def __init__(self, a, name, X, Y, K, vbase=16, lds_base=0, nbuf=4, deep=False):
        self.deep = deep
        self.a, self.name, self.X, self.Y, self.K = a, name, X, Y, K
        NBUF = self.NBUF = nbuf
        self.S = K // BK
        assert self.S % NBUF == 0 and self.S >= 2 * NBUF
        self.SB = (X.T + Y.T) * 64
        self.lds_base = lds_base
        self.lds_bytes = NBUF * self.SB
        self.nset = 2 if lds_base + self.lds_bytes > 65536 else 1
        assert lds_base + self.lds_bytes <= 131072 + 32768
        if lds_base + self.lds_bytes > 131072:
            self.nset = 3
        v = vbase
        self.vdma = {}
        for op in (X, Y):
            self.vdma[op.role] = list(range(v, v + op.ndma))
            v += op.ndma
        self.vrd = {}
        for op in (X, Y):
            n = 2 if op.kind == 'n' else op.nt
            self.vrd[op.role] = [list(range(v + s * n, v + (s + 1) * n)) for s in range(self.nset)]
            v += n * self.nset
        v = (v + 3) // 4 * 4
        self.frag = {}
        for st in range(4 if deep else 2):
            for op in (X, Y):
                self.frag[(st, op.role)] = [v + 4 * i for i in range(op.nt)]
                v += 4 * op.nt
        self.vend = v
        self.nacc = X.nt * Y.nt * 16
        self.ndma = X.ndma + Y.ndma

    def acc(self, tx, ty):
        return (tx * self.Y.nt + ty) * 16

    def setup(self, vtid, t0, t1, t2, t3):
        a = self.a
        I = a.I
        a.C("---- gemm %s setup" % self.name)
        for op in (self.X, self.Y):
            wsel_shift = 6 if op.role == 'x' else 7
            for j in range(op.ndma):
                d = self.vdma[op.role][j]
                I("v_lshrrev_b32 v%d, 6, v%d" % (t0, vtid))
                I("v_mul_u32_u24 v%d, %d, v%d" % (t0, op.ndma, t0))
                I("v_add_u32 v%d, %d, v%d" % (t0, j, t0))
                I("v_and_b32 v%d, 63, v%d" % (t1, vtid))
                if op.kind == 'n':
                    I("v_lshrrev_b32 v%d, 2, v%d" % (t2, t1))
                    I("v_lshl_add_u32 v%d, v%d, 4, v%d" % (t0, t0, t2))
                    if op.rowmap == 'reim':
                        I("v_lshrrev_b32 v%d, 6, v%d" % (t2, t0))
                        I("v_and_b32 v%d, 31, v%d" % (t0, t0))
                        I("v_lshl_add_u32 v%d, v%d, 5, v%d" % (t0, t2, t0))
                    I("v_lshrrev_b32 v%d, 4, v%d" % (t2, t1))
                    I("v_xor_b32 v%d, v%d, v%d" % (t2, t2, t1))
                    I("v_and_b32 v%d, 3, v%d" % (t2, t2))
                    I("v_lshlrev_b32 v%d, 4, v%d" % (t2, t2))
                    I("s_mov_b32 s%d, %d" % (self.stmp, op.stride))
                    if op.rowmap == 'blk64':
                        I("v_and_b32 v%d, 63, v%d" % (t1, t0))
                        I("v_lshl_add_u32 v%d, v%d, 6, v%d" % (t2, t1, t2))
                        I("v_lshrrev_b32 v%d, 6, v%d" % (t0, t0))
                    I("v_mul_lo_u32 v%d, v%d, s%d" % (t0, t0, self.stmp))
                    I("v_add_u32 v%d, v%d, v%d" % (d, t0, t2))
                else:
                    cpr = op.T // 8
                    rpi = 64 // cpr
                    I("v_lshrrev_b32 v%d, %d, v%d" % (t2, log2(cpr), t1))
                    I("v_lshl_add_u32 v%d, v%d, %d, v%d" % (t0, t0, log2(rpi), t2))
                    I("v_and_b32 v%d, %d, v%d" % (t1, cpr - 1, t1))
                    b0, b1 = op.swb
                    I("v_and_b32 v%d, 1, v%d" % (t2, t0))
                    I("v_lshlrev_b32 v%d, %d, v%d" % (t2, b0, t2))
                    I("v_xor_b32 v%d, v%d, v%d" % (t1, t1, t2))
                    I("v_bfe_u32 v%d, v%d, 1, 1" % (t2, t0))
                    I("v_lshlrev_b32 v%d, %d, v%d" % (t2, b1, t2))
                    I("v_xor_b32 v%d, v%d, v%d" % (t1, t1, t2))
                    I("v_lshlrev_b32 v%d, 4, v%d" % (t1, t1))
                    I("s_mov_b32 s%d, %d" % (self.stmp, op.stride))
                    I("v_mul_lo_u32 v%d, v%d, s%d" % (t0, t0, self.stmp))
                    I("v_add_u32 v%d, v%d, v%d" % (d, t0, t1))
            rd = self.vrd[op.role]
            I("v_bfe_u32 v%d, v%d, %d, 1" % (t3, vtid, wsel_shift))
            if op.kind == 'n':
                I("v_and_b32 v%d, 31, v%d" % (t1, vtid))
                if op.role == 'x':
                    I("v_bfe_u32 v%d, v%d, 2, 1" % (t0, t1))
                    I("v_mul_u32_u24 v%d, %d, v%d" % (t0, op.W // 2, t0))
                    I("v_lshrrev_b32 v%d, 3, v%d" % (t2, t1))
                    I("v_lshl_add_u32 v%d, v%d, 2, v%d" % (t0, t2, t0))
                    I("v_and_b32 v%d, 3, v%d" % (t1, t1))
                    I("v_add_u32 v%d, v%d, v%d" % (t0, t0, t1))
                else:
                    I("v_mov_b32 v%d, v%d" % (t0, t1))
                    I("v_bfe_u32 v%d, v%d, 2, 2" % (t2, t1))
                I("v_mul_u32_u24 v%d, %d, v%d" % (t3, op.W, t3))
                I("v_add_u32 v%d, v%d, v%d" % (t0, t0, t3))
                I("v_bfe_u32 v%d, v%d, 5, 1" % (t1, vtid))
                I("v_xor_b32 v%d, v%d, v%d" % (t1, t1, t2))
                I("v_lshlrev_b32 v%d, 4, v%d" % (t1, t1))
                I("v_lshl_add_u32 v%d, v%d, 6, v%d" % (rd[0][0], t0, t1))
                I("v_xor_b32 v%d, 32, v%d" % (rd[0][1], rd[0][0]))
            else:
                b0, b1 = op.swb
                for t in range(op.nt):
                    I("v_mul_u32_u24 v%d, %d, v%d" % (t0, op.W // 8, t3))
                    I("v_bfe_u32 v%d, v%d, 4, 1" % (t1, vtid))
                    if op.role == 'x':
                        I("v_add_u32 v%d, v%d, v%d" % (t0, t0, t1))
                        I("v_and_b32 v%d, 1, v%d" % (t1, vtid))
                        I("v_mul_u32_u24 v%d, %d, v%d" % (t1, op.W // 16, t1))
                        I("v_add_u32 v%d, v%d, v%d" % (t0, t0, t1))
                        I("v_add_u32 v%d, %d, v%d" % (t0, 2 * t, t0))
                        half_bit = 1
                    else:
                        I("v_lshl_add_u32 v%d, v%d, 1, v%d" % (t0, t1, t0))
                        I("v_bfe_u32 v%d, v%d, 1, 1" % (t1, vtid))
                        I("v_add_u32 v%d, v%d, v%d" % (t0, t0, t1))
                        I("v_add_u32 v%d, %d, v%d" % (t0, 4 * t, t0))
                        half_bit = 0
                    I("v_bfe_u32 v%d, v%d, 2, 1" % (t1, vtid))
                    I("v_lshlrev_b32 v%d, %d, v%d" % (t1, b0, t1))
                    I("v_xor_b32 v%d, v%d, v%d" % (t0, t0, t1))
                    I("v_bfe_u32 v%d, v%d, 3, 1" % (t1, vtid))
                    I("v_lshlrev_b32 v%d, %d, v%d" % (t1, b1, t1))
                    I("v_xor_b32 v%d, v%d, v%d" % (t0, t0, t1))
                    I("v_lshlrev_b32 v%d, 4, v%d" % (t0, t0))
                    I("v_bfe_u32 v%d, v%d, %d, 1" % (t1, vtid, half_bit))
                    I("v_lshl_add_u32 v%d, v%d, 3, v%d" % (t0, t1, t0))
                    I("v_bfe_u32 v%d, v%d, 5, 1" % (t1, vtid))
                    I("v_bfe_u32 v%d, v%d, 2, 2" % (t2, vtid))
                    I("v_lshl_add_u32 v%d, v%d, 3, v%d" % (t1, t1, t2))
                    I("v_mul_u32_u24 v%d, %d, v%d" % (t1, 2 * op.T, t1))
                    I("v_add_u32 v%d, v%d, v%d" % (rd[0][t], t0, t1))
            for s in range(1, self.nset):
                for i, r in enumerate(rd[s]):
                    I("v_add_u32 v%d, 0x%x, v%d" % (r, 65536 * s, rd[0][i]))
        I("v_lshrrev_b32 v%d, 6, v%d" % (t0, vtid))
        I("s_nop 0")
        I("v_readfirstlane_b32 s%d, v%d" % (self.stmp, t0))
        I("s_mul_i32 s%d, s%d, %d" % (self.swdx, self.stmp, self.X.ndma * 1024))
        I("s_mul_i32 s%d, s%d, %d" % (self.swdy, self.stmp, self.Y.ndma * 1024))

    def region(self, op, buf):
        return self.lds_base + buf * self.SB + (0 if op.role == 'x' else self.X.T * 64)

    def dma_instrs(self, buf, ops):
        out = []
        for op in ops:
            sw = self.swdx if op.role == 'x' else self.swdy
            for j in range(op.ndma):
                dest = self.region(op, buf) + j * 1024
                g = ["s_add_u32 m0, s%d, 0x%x" % (sw, dest), "s_nop 0",
                     "buffer_load_dwordx4 v%d, s[%d:%d], s%d offen%s lds" % (
                         self.vdma[op.role][j], op.srd, op.srd + 3, op.soff, " sc1" if op.sc1 else "")]
                if j == op.ndma - 1 and "samek" not in XP:
                    g.append("s_add_u32 s%d, s%d, 0x%x" % (op.soff, op.soff, op.kadv))
                out.append(g)
        return out

    def _lds(self, regs_by_set, idx, off):
        s = off // 65536
        return regs_by_set[s][idx], off - s * 65536

    def read_instrs(self, buf, step, fs):
        out = []
        order = []
        nx, ny = self.X.nt, self.Y.nt
        seq = [(self.X, 0)] + [(self.Y, t) for t in range(ny)] + [(self.X, t) for t in range(1, nx)]
        for op, t in seq:
            f = self.frag[(fs, op.role)][t]
            base = self.region(op, buf)
            if op.kind == 'n':
                off = base + t * (1024 if op.role == 'x' else 2048)
                r, imm = self._lds(self.vrd[op.role], step, off)
                out.append("ds_read_b128 v[%d:%d], v%d offset:%d" % (f, f + 3, r, imm))
            else:
                for u in range(2):
                    off = base + (16 * step + 4 * u) * 2 * op.T
                    r, imm = self._lds(self.vrd[op.role], t, off)
                    out.append("ds_read_b64_tr_b16 v[%d:%d], v%d offset:%d" % (f + 2 * u, f + 2 * u + 1, r, imm))
        return out

    def mfmas(self, fs, zero=False):
        out = []
        for tx in range(self.X.nt):
            for ty in range(self.Y.nt):
                c = self.acc(tx, ty)
                fx = self.frag[(fs, 'x')][tx]
                fy = self.frag[(fs, 'y')][ty]
                src = "0" if zero else "a[%d:%d]" % (c, c + 15)
                out.append("v_mfma_f32_32x32x16_bf16 a[%d:%d], v[%d:%d], v[%d:%d], %s" % (
                    c, c + 15, fx, fx + 3, fy, fy + 3, src))
        return out

    def interleave(self, mf, reads, dmas):
        I = self.a.I
        n = len(mf)
        per = [[] for _ in range(n)]
        span = max(1, n // 2)
        for i, grp in enumerate(reads):
            per[min((i * span) // len(reads), n - 1)].append(grp)
        for i, grp in enumerate(dmas):
            k = ((2 * i + 1) * n) // (2 * len(dmas))
            per[min(k, n - 1)].append(grp)
        for i, m in enumerate(mf):
            I(m)
            for grp in per[i]:
                for line in (grp if isinstance(grp, list) else [grp]):
                    I(line)

    def stage(self, buf, dmaY, dmaX, vmwait, last=False, zero=False):
        a = self.a
        I = a.I
        if "nodma" in XP:
            dmaX = dmaY = False
            vmwait = 0
        I("s_waitcnt lgkmcnt(0)")
        self.interleave(self.mfmas(0, zero), self.read_instrs(buf, 1, 1),
                        self.dma_instrs((buf + self.NBUF - 1) % self.NBUF, [self.Y]) if dmaY else [])
        if last:
            I("s_waitcnt lgkmcnt(0)")
            self.interleave(self.mfmas(1), [], [])
            return
        if "novm" in XP:
            vmwait = 40
        I("s_waitcnt vmcnt(%d) lgkmcnt(0)" % vmwait)
        I("s_barrier")
        self.interleave(self.mfmas(1), self.read_instrs((buf + 1) % self.NBUF, 0, 0),
                        self.dma_instrs(buf, [self.X]) if dmaX else [])

    def stage_deep(self, buf, dmaY, dmaX, vmwait, last=False, zero=False):
        I = self.a.I
        nr = len(self.read_instrs(0, 0, 0))
        nb = (buf + 1) % self.NBUF
        f0, f1 = 2 * (buf & 1), 2 * (buf & 1) + 1
        n0, n1 = 2 * (nb & 1), 2 * (nb & 1) + 1
        I("s_waitcnt lgkmcnt(%d)" % min(nr, 15))
        self.interleave(self.mfmas(f0, zero), [] if last else self.read_instrs(nb, 0, n0),
                        self.dma_instrs((buf + self.NBUF - 1) % self.NBUF, [self.Y]) if dmaY else [])
        if last:
            I("s_waitcnt lgkmcnt(0)")
            self.interleave(self.mfmas(f1), [], [])
            return
        I("s_waitcnt vmcnt(%d) lgkmcnt(%d)" % (vmwait, min(nr, 15)))
        I("s_barrier")
        self.interleave(self.mfmas(f1), self.read_instrs(nb, 1, n1),
                        self.dma_instrs(buf, [self.X]) if dmaX else [])

    def run(self, sloop, midhookX=None):
        a = self.a
        I = a.I
        S = self.S
        nd = self.ndma
        a.C("---- gemm %s tile" % self.name)
        I("s_barrier")
        for b in range(self.NBUF):
            for g in self.dma_instrs(b, [self.X, self.Y]):
                for line in g:
                    I(line)
        dp = 1 if self.deep else 0
        stage = self.stage_deep if self.deep else self.stage
        I("s_waitcnt vmcnt(%d)" % (nd * (self.NBUF - 1 - dp)))
        I("s_barrier")
        for line in self.read_instrs(0, 0, 0):
            I(line)
        if self.deep:
            assert len(self.read_instrs(0, 0, 0)) <= 15
            for line in self.read_instrs(0, 1, 1):
                I(line)
        niter = S // self.NBUF
        if getattr(self, "stamp", None):
            self.stamp()
        for b in range(self.NBUF):
            stage(b, b > 0, True, nd * (self.NBUF - 2 - dp), zero=(b == 0))
        if niter > 2:
            I("s_mov_b32 s%d, 1" % sloop)
            lab = a.uid("L_%s_loop" % self.name)
            a.L(lab)
            if midhookX:
                it, lines = midhookX
                skip = a.uid("L_%s_nomid" % self.name)
                I("s_cmp_lg_u32 s%d, %d" % (sloop, it))
                I("s_cbranch_scc1 %s" % skip)
                for line in lines:
                    I(line)
                a.L(skip)
            for b in range(self.NBUF):
                stage(b, True, True, nd * (self.NBUF - 2 - dp))
            I("s_add_u32 s%d, s%d, 1" % (sloop, sloop))
            I("s_cmp_lt_u32 s%d, %d" % (sloop, niter - 1))
            I("s_cbranch_scc1 %s" % lab)
        for b in range(self.NBUF):
            rem = self.NBUF - 2 - dp - b
            stage(b, b == 0, False, nd * max(rem, 0), last=(b == self.NBUF - 1))
        I("s_nop 15")
        I("s_nop 7")


def epi_lds_bf16(g, srd, sbase, stmp, mode, ostride, vt, lds_base=0, sc1=False):
    a = g.a
    I = a.I
    WX, WY = g.X.W, g.Y.W
    CR = WX // 8
    RB = 2 * WX
    wbytes = WY * RB
    aw = vt
    ard = vt + 8
    vo = vt + 12
    t0, t1, t2 = vt + 13, vt + 14, vt + 15
    dat = vt + 16
    a.C("---- lds epilogue %s" % mode)
    I("s_barrier")
    I("v_lshrrev_b32 v%d, 6, v0" % t0)
    I("v_mul_u32_u24 v%d, 0x%x, v%d" % (t0, wbytes, t0))
    if lds_base:
        I("v_add_u32 v%d, 0x%x, v%d" % (t0, lds_base, t0))
    I("v_and_b32 v%d, 31, v0" % t1)
    I("v_mul_u32_u24 v%d, %d, v%d" % (t2, RB, t1))
    I("v_add_u32 v%d, v%d, v%d" % (t2, t2, t0))
    I("v_and_b32 v%d, %d, v%d" % (t1, CR - 1, t1))
    I("v_bfe_u32 v%d, v0, 5, 1" % vo)
    I("v_mul_u32_u24 v%d, %d, v%d" % (vo, CR // 2, vo))
    I("v_xor_b32 v%d, v%d, v%d" % (t1, t1, vo))
    for tx in range(g.X.nt):
        for u in range(2):
            r = aw + 2 * tx + u
            I("v_xor_b32 v%d, %d, v%d" % (r, 2 * tx + u, t1))
            I("v_lshl_add_u32 v%d, v%d, 4, v%d" % (r, r, t2))
    k = 0
    for ty in range(g.Y.nt):
        for tx in range(g.X.nt):
            c = g.acc(tx, ty)
            t = dat + (k % 2) * 24
            k += 1
            for j in range(16):
                I("v_accvgpr_read_b32 v%d, a%d" % (t + j, c + j))
            for j in range(8):
                I("v_cvt_pk_bf16_f32 v%d, v%d, v%d" % (t + 16 + j, t + 2 * j, t + 2 * j + 1))
            I("ds_write_b128 v%d, v[%d:%d] offset:%d" % (aw + 2 * tx, t + 16, t + 19, ty * 32 * RB))
            I("ds_write_b128 v%d, v[%d:%d] offset:%d" % (aw + 2 * tx + 1, t + 20, t + 23, ty * 32 * RB))
    sc = " sc1" if sc1 else ""
    I("v_and_b32 v%d, 63, v0" % t1)
    if mode == 'row':
        rpi = 64 // CR
        nit = WY // rpi
        nvar = max(1, CR // rpi)
        lc = CR.bit_length() - 1
        I("v_lshrrev_b32 v%d, %d, v%d" % (t2, lc, t1))
        I("v_and_b32 v%d, %d, v%d" % (t1, CR - 1, t1))
        for q in range(nvar):
            r = ard + q
            I("v_add_u32 v%d, %d, v%d" % (r, q * rpi, t2))
            I("v_and_b32 v%d, %d, v%d" % (vo, CR - 1, r))
            I("v_xor_b32 v%d, v%d, v%d" % (vo, vo, t1))
            I("v_lshlrev_b32 v%d, 4, v%d" % (vo, vo))
            I("v_mul_u32_u24 v%d, %d, v%d" % (r, RB, r))
            I("v_add3_u32 v%d, v%d, v%d, v%d" % (r, r, vo, t0))
        I("v_bfe_u32 v%d, v0, 7, 1" % vo)
        I("v_mul_u32_u24 v%d, %d, v%d" % (vo, WY, vo))
        I("v_add_u32 v%d, v%d, v%d" % (vo, vo, t2))
        I("s_mov_b32 s%d, %d" % (stmp, ostride))
        I("v_mul_lo_u32 v%d, v%d, s%d" % (vo, vo, stmp))
        I("v_lshl_add_u32 v%d, v%d, 4, v%d" % (vo, t1, vo))
        I("v_bfe_u32 v%d, v0, 6, 1" % t1)
        I("v_mul_u32_u24 v%d, %d, v%d" % (t1, RB, t1))
        I("v_add_u32 v%d, v%d, v%d" % (vo, vo, t1))
        I("s_waitcnt lgkmcnt(0)")
        items = [(ard + it % nvar, (it // nvar) * nvar * rpi * RB, it * rpi * ostride) for it in range(nit)]
    else:
        nseg = WX // 32
        I("v_lshrrev_b32 v%d, 2, v%d" % (t2, t1))
        I("v_and_b32 v%d, 3, v%d" % (t1, t1))
        I("v_and_b32 v%d, %d, v%d" % (vo, CR - 1, t2))
        I("v_xor_b32 v%d, v%d, v%d" % (vo, t1, vo))
        for sg in range(nseg):
            r = ard + sg
            I("v_xor_b32 v%d, %d, v%d" % (r, 4 * sg, vo))
            I("v_lshlrev_b32 v%d, 4, v%d" % (r, r))
            I("v_lshl_add_u32 v%d, v%d, %d, v%d" % (r, t2, RB.bit_length() - 1, r))
            I("v_add_u32 v%d, v%d, v%d" % (r, r, t0))
        I("v_bfe_u32 v%d, v0, 7, 1" % vo)
        I("v_mul_u32_u24 v%d, %d, v%d" % (vo, WY, vo))
        I("v_add_u32 v%d, v%d, v%d" % (vo, vo, t2))
        I("v_lshlrev_b32 v%d, 6, v%d" % (vo, vo))
        I("v_lshl_add_u32 v%d, v%d, 4, v%d" % (vo, t1, vo))
        I("v_bfe_u32 v%d, v0, 6, 1" % t1)
        I("v_lshl_add_u32 v%d, v%d, %d, v%d" % (vo, t1, 18 + nseg.bit_length() - 1, vo))
        I("s_waitcnt lgkmcnt(0)")
        items = [(ard + sg, it * 16 * RB, sg * 262144 + it * 1024) for sg in range(nseg) for it in range(WY // 16)]
    D = 8
    n = len(items)
    for i in range(n + D):
        if i < n:
            r, imm, _ = items[i]
            d = dat + (i % 12) * 4
            I("ds_read_b128 v[%d:%d], v%d offset:%d" % (d, d + 3, r, imm))
        j = i - D + 1 if i >= D - 1 else -1
        if 0 <= j < n:
            pend = min(i, n - 1) - j
            I("s_waitcnt lgkmcnt(%d)" % pend)
            d = dat + (j % 12) * 4
            I("s_add_u32 s%d, s%d, 0x%x" % (stmp, sbase, items[j][2]))
            I("buffer_store_dwordx4 v[%d:%d], v%d, s[%d:%d], s%d offen%s" % (d, d + 3, vo, srd, srd + 3, stmp, sc))
```

```python
A_X, A_LRE, A_LIM, A_BRE, A_BIM, A_CRE, A_CIM, A_LOGDT, A_DSKIP, B_X, B_MEM0, B_WQ, B_WK, B_WV, B_WO, B_SEG, D_OUT, D_DBG, D_WS = range(19)
MB = 1 << 20
WS_K = 0
WS_VT = 16 * MB
WS_Q = 32 * MB
WS_O = 48 * MB
WS_HT = 64 * MB
WS_KM = 72 * MB
WS_VM = 76 * MB
WS_MISC = 80 * MB
PTR0 = 64
def ptr(i):
    return PTR0 + 2 * i

XCH = WS_MISC
X_MEM = XCH
X_SX = XCH + 512 * 1024
X_OX = X_SX + 1024 * 1024
X_PX = X_OX + 256 * 1024
X_AGG = X_PX + 1024 * 1024
X_FLG = X_AGG + 65536
XCH_END = X_FLG + 4096
XCH_BYTES = XCH_END - XCH
WS_VMT = WS_VM
WS_SSM = 88 * MB
WS_SIZE = 268435456
WS_DBG = 100 * MB
WS_PART = 104 * MB
X_PXW = 128 * MB
SENT = 0xFF81FF81
TL_NAMES = [(16, 'weights'), (17, 'kv0'), (11, 'loopstart'), (9, 'chain_end'), (15, 'gemm2_end'), (12, 'attn_end'), (14, 'op_end'), (10, 'worker_end')]
```

```python
import sys, os
sys.path.insert(0, os.path.dirname(os.path.abspath(__file__)))
from asmlib import *
from layout import *
from gemm import Gemm, Operand, epi_lds_bf16
import chain2 as chain
import ssm, attn

NAME = "concat_heads__ssm_conv_s5__memory_aug_recurrent_mem_tr__prompt"
HEADER = open(os.path.join(os.path.dirname(os.path.abspath(__file__)), "header.txt")).read()


def load_ptrs(a):
    I = a.I
    I("s_load_dwordx16 s[%d:%d], s[0:1], 0" % (PTR0, PTR0 + 15))
    I("s_load_dwordx16 s[%d:%d], s[0:1], 64" % (PTR0 + 16, PTR0 + 31))
    I("s_load_dwordx4 s[%d:%d], s[0:1], 128" % (PTR0 + 32, PTR0 + 35))
    I("s_load_dwordx2 s[%d:%d], s[0:1], 144" % (PTR0 + 36, PTR0 + 37))
    I("s_waitcnt lgkmcnt(0)")


STAMP = int(os.environ.get("STAMP", "0"))
def stamp(a, idx, wg=0):
    if not STAMP:
        return
    I = a.I
    lab = a.uid("L_stamp")
    I("s_cmp_lg_u32 s2, %d" % wg)
    I("s_cbranch_scc1 %s" % lab)
    I("s_memtime s[56:57]")
    a.srd(60, ptr(D_DBG), 0, 256)
    I("s_waitcnt lgkmcnt(0)")
    I("v_mov_b32 v250, s56")
    I("v_mov_b32 v251, %d" % (idx * 4))
    I("buffer_store_dword v250, v251, s[60:63], 0 offen")
    a.L(lab)


def epi_bf16(a, g, srd, vaddr, sbase, stmp, ty_stride, tx_off, vt):
    I = a.I
    k = 0
    for ty in range(g.Y.nt):
        for tx in range(g.X.nt):
            c = g.acc(tx, ty)
            t = vt + (k % 2) * 24
            k += 1
            for j in range(16):
                I("v_accvgpr_read_b32 v%d, a%d" % (t + j, c + j))
            for j in range(8):
                I("v_cvt_pk_bf16_f32 v%d, v%d, v%d" % (t + 16 + j, t + 2 * j, t + 2 * j + 1))
            so, imm = tx_off(tx)
            I("s_add_u32 s%d, s%d, 0x%x" % (stmp, sbase, ty * ty_stride + so))
            I("buffer_store_dwordx4 v[%d:%d], v%d, s[%d:%d], s%d offen offset:%d" % (t + 16, t + 19, vaddr, srd, srd + 3, stmp, imm))
            I("buffer_store_dwordx4 v[%d:%d], v%d, s[%d:%d], s%d offen offset:%d" % (t + 20, t + 23, vaddr, srd, srd + 3, stmp, imm + 16))


def kernel_init(a, name):
    I = a.I
    a.raw(".globl %s\n.p2align 8\n.type %s,@function" % (name, name))
    a.L(name)
    I("s_cmp_ge_u32 s2, 256")
    I("s_cbranch_scc1 %s_end" % name)
    load_ptrs(a)
    a.srd(8, ptr(D_WS), XCH, XCH_BYTES)
    I("s_mul_i32 s3, s2, 12288")
    I("v_lshlrev_b32 v1, 4, v0")
    for i in range(4):
        I("v_mov_b32 v%d, 0x%x" % (4 + i, SENT))
    for i in range(3):
        I("buffer_store_dwordx4 v[4:7], v1, s[8:11], s3 offen")
        I("s_add_u32 s3, s3, 4096")
    if int(os.environ.get("TL", "0")):
        a.srd(8, ptr(D_WS), WS_DBG, 256)
        I("v_lshlrev_b32 v1, 2, v0")
        I("v_mov_b32 v4, 0")
        I("buffer_store_dword v4, v1, s[8:11], 0 offen")
    ssm.ssm_params(a, 2)
    a.L("%s_end" % name)
    I("s_endpgm")


def kvproj(a, s_ct, s_tt):
    I = a.I
    SX, SW, SO = 8, 12, 16
    lv, le = a.uid("L_vtile"), a.uid("L_kvend")
    a.C("======== K / V projection")
    a.srd(SX, ptr(B_X), 0, 4 * MB)
    I("s_and_b32 s30, s%d, 15" % s_ct)
    I("s_cmp_ge_u32 s%d, 16" % s_ct)
    I("s_cbranch_scc1 %s" % lv)
    a.srd(SW, ptr(B_WK), 0, 8 * MB)
    a.srd(SO, ptr(D_WS), WS_K, 16 * MB)
    g = Gemm(a, "kp", Operand('t', 'x', 256, 8192, SW, 20), Operand('n', 'y', 256, 2048, SX, 21), 1024)
    g.stmp, g.swdx, g.swdy = 22, 23, 24
    g.setup(0, 1, 2, 3, 4)
    I("s_lshl_b32 s20, s30, 9")
    I("s_lshl_b32 s21, s%d, 19" % s_tt)
    g.run(25)
    I("s_lshl_b32 s26, s%d, 21" % s_tt)
    I("s_lshl_b32 s27, s30, 9")
    I("s_add_u32 s26, s26, s27")
    epi_lds_bf16(g, SO, 26, 27, 'row', 8192, 160, sc1=True)
    I("s_branch %s" % le)
    a.L(lv)
    a.srd(SW, ptr(B_WV), 0, 8 * MB)
    a.srd(SO, ptr(D_WS), WS_VT, 16 * MB)
    g = Gemm(a, "vp", Operand('n', 'x', 256, 2048, SX, 20), Operand('t', 'y', 256, 8192, SW, 21), 1024)
    g.stmp, g.swdx, g.swdy = 22, 23, 24
    g.setup(0, 1, 2, 3, 4)
    I("s_lshl_b32 s20, s%d, 19" % s_tt)
    I("s_lshl_b32 s21, s30, 9")
    g.run(25)
    I("s_lshl_b32 s26, s%d, 21" % s_tt)
    I("s_lshl_b32 s27, s30, 14")
    I("s_add_u32 s26, s26, s27")
    epi_lds_bf16(g, SO, 26, 27, 'vt', 0, 160, sc1=True)
    a.L(le)
    I("s_lshl_b32 s26, s%d, 2" % s_tt)
    I("s_add_u32 s26, s26, 224")
    signal(a, 26)


TL = int(os.environ.get("TL", "0"))
def tl_probe(a, idx, op="umax"):
    if not TL:
        return
    I = a.I
    I("s_memrealtime s[58:59]")
    a.srd(60, ptr(D_WS), WS_DBG, 256)
    I("s_waitcnt lgkmcnt(0)")
    I("s_mov_b64 vcc, exec")
    I("s_mov_b64 exec, 1")
    I("v_mov_b32 v250, s58")
    I("v_mov_b32 v251, %d" % (idx * 4))
    I("buffer_atomic_%s v250, v251, s[60:63], 0 offen sc1" % op)
    I("s_mov_b64 exec, vcc")


def kvproj0(a, s_kind, s_ct, s_tq):
    I = a.I
    SX, SW, SO = 8, 12, 16
    lv, le = a.uid("L_vtile0"), a.uid("L_kvend0")
    a.C("======== K / V projection, first token tile")
    a.srd(SX, ptr(B_X), 0, 4 * MB)
    I("s_cmp_lg_u32 s%d, 0" % s_kind)
    I("s_cbranch_scc1 %s" % lv)
    a.srd(SW, ptr(B_WK), 0, 8 * MB)
    a.srd(SO, ptr(D_WS), WS_K, 16 * MB)
    g = Gemm(a, "kp0", Operand('t', 'x', 256, 8192, SW, 20), Operand('n', 'y', 64, 2048, SX, 21), 1024, nbuf=8, deep=True)
    g.stmp, g.swdx, g.swdy = 22, 23, 24
    g.setup(0, 1, 2, 3, 4)
    I("s_lshl_b32 s20, s%d, 9" % s_ct)
    I("s_lshl_b32 s21, s%d, 17" % s_tq)
    g.run(25)
    I("s_lshl_b32 s26, s%d, 19" % s_tq)
    I("s_lshl_b32 s27, s%d, 9" % s_ct)
    I("s_add_u32 s26, s26, s27")
    epi_lds_bf16(g, SO, 26, 27, 'row', 8192, 160, sc1=True)
    I("s_branch %s" % le)
    a.L(lv)
    a.srd(SW, ptr(B_WV), 0, 8 * MB)
    a.srd(SO, ptr(D_WS), WS_VT, 16 * MB)
    g = Gemm(a, "vp0", Operand('n', 'x', 64, 2048, SX, 20), Operand('t', 'y', 256, 8192, SW, 21), 1024, nbuf=8, deep=True)
    g.stmp, g.swdx, g.swdy = 22, 23, 24
    g.setup(0, 1, 2, 3, 4)
    I("s_lshl_b32 s20, s%d, 17" % s_tq)
    I("s_lshl_b32 s21, s%d, 9" % s_ct)
    g.run(25)
    I("s_lshl_b32 s26, s%d, 19" % s_tq)
    I("s_lshl_b32 s27, s%d, 14" % s_ct)
    I("s_add_u32 s26, s26, s27")
    epi_lds_bf16(g, SO, 26, 27, 'vt', 0, 160, sc1=True)
    a.L(le)
    I("s_mov_b32 s26, 224")
    signal(a, 26)


def role_assign(a, name):
    I = a.I
    I("s_getreg_b32 s16, hwreg(HW_REG_XCC_ID)")
    I("s_and_b32 s16, s16, 7")
    I("v_lshrrev_b32 v1, 6, v0")
    I("s_nop 0")
    I("v_readfirstlane_b32 s18, v1")
    a.srd(12, ptr(D_DBG), 0, 256)
    lab = a.uid("L_role")
    I("s_cmp_lg_u32 s18, 0")
    I("s_cbranch_scc1 %s" % lab)
    I("s_lshl_b32 s3, s16, 2")
    I("s_add_u32 s3, s3, 128")
    I("v_mov_b32 v1, 1")
    I("v_mov_b32 v2, s3")
    I("s_mov_b64 exec, 1")
    I("buffer_atomic_add v1, v2, s[12:15], 0 offen sc0 sc1")
    I("v_mov_b32 v2, %d" % chain.L_ROLE)
    I("s_waitcnt vmcnt(0)")
    I("ds_write_b32 v2, v1")
    I("s_mov_b64 exec, -1")
    I("s_waitcnt lgkmcnt(0)")
    a.L(lab)
    I("s_barrier")
    I("v_mov_b32 v2, %d" % chain.L_ROLE)
    I("ds_read_b32 v1, v2")
    I("s_waitcnt lgkmcnt(0)")
    I("v_readfirstlane_b32 s17, v1")
    I("s_nop 4")


def kernel_chain(a, name):
    I = a.I
    a.raw(".globl %s\n.p2align 8\n.type %s,@function" % (name, name))
    a.L(name)
    I("s_cmp_ge_u32 s2, 256")
    I("s_cbranch_scc1 %s_end" % name)
    load_ptrs(a)
    a.srd(8, ptr(D_WS), XCH, XCH_BYTES)
    I("s_mul_i32 s3, s2, 12288")
    I("v_lshlrev_b32 v1, 4, v0")
    for i in range(4):
        I("v_mov_b32 v%d, 0x%x" % (4 + i, SENT))
    for i in range(3):
        I("buffer_store_dwordx4 v[4:7], v1, s[8:11], s3 offen sc1")
        I("s_add_u32 s3, s3, 4096")
    a.srd(8, ptr(D_WS), X_PXW, 70 * MB)
    I("s_add_u32 s4, s8, 0x1fffff")
    I("s_and_b32 s4, s4, 0xffe00000")
    I("s_sub_u32 s4, s4, s8")
    I("s_lshl_b32 s3, s2, 14")
    I("s_add_u32 s3, s3, s4")
    for k in range(16 if 'prepois' in chain.ABL else 1):
        for i in range(4):
            I("buffer_store_dwordx4 v[4:7], v1, s[8:11], s3 offen sc1")
            I("s_add_u32 s3, s3, 4096")
        I("s_add_u32 s3, s3, 0x%x" % (4 * MB - 16384))
    if 'warmkv' in chain.ABL:
        a.srd(8, ptr(D_WS), 0, 32 * MB)
        I("s_lshl_b32 s3, s2, 17")
        for i in range(4):
            I("v_mov_b32 v%d, 0" % (4 + i))
        for i in range(32):
            I("buffer_store_dwordx4 v[4:7], v1, s[8:11], s3 offen sc1")
            I("s_add_u32 s3, s3, 4096")
    ssm.ssm_params(a, 2)
    I("s_mov_b32 s26, 0")
    signal(a, 26)
    role_assign(a, name)
    tl_probe(a, 8)
    I("s_cmp_ge_u32 s17, 32")
    I("s_cbranch_scc1 %s_end" % name)
    I("s_cmp_ge_u32 s16, 4")
    I("s_cbranch_scc1 %s_worker" % name)
    chain.HOOK['done'] = lambda: tl_probe(a, 9)
    chain.HOOK['loopstart'] = lambda: tl_probe(a, 11)
    chain.HOOK['weights'] = lambda: tl_probe(a, 16)
    chain.chain_main(a, name)
    a.L("%s_worker" % name)
    if 'nowork' not in chain.ABL:
        worker(a, name)
    a.L("%s_wend" % name)
    tl_probe(a, 10)
    a.L("%s_end" % name)
    I("s_endpgm")


def qproj(a, s_ct, s_tt):
    I = a.I
    SX, SW, SO = 8, 12, 16
    a.C("======== Q projection")
    a.srd(SX, ptr(B_X), 0, 4 * MB)
    a.srd(SW, ptr(B_WQ), 0, 8 * MB)
    a.srd(SO, ptr(D_WS), WS_Q, 16 * MB)
    g = Gemm(a, "qp", Operand('t', 'x', 256, 8192, SW, 20), Operand('n', 'y', 256, 2048, SX, 21), 1024)
    g.stmp, g.swdx, g.swdy = 22, 23, 24
    g.setup(0, 1, 2, 3, 4)
    I("s_lshl_b32 s20, s%d, 9" % s_ct)
    I("s_lshl_b32 s21, s%d, 19" % s_tt)
    g.run(25)
    I("s_lshl_b32 s26, s%d, 21" % s_tt)
    I("s_lshl_b32 s27, s%d, 9" % s_ct)
    I("s_add_u32 s26, s26, s27")
    epi_lds_bf16(g, SO, 26, 27, 'row', 8192, 160, sc1=True)
    I("s_lshl_b32 s26, s%d, 2" % s_tt)
    I("s_add_u32 s26, s26, 192")
    signal(a, 26)


def signal(a, s_off):
    I = a.I
    I("s_waitcnt vmcnt(0)")
    I("s_barrier")
    lab = a.uid("L_nosig")
    I("v_cmp_eq_u32 vcc, 0, v0")
    I("s_and_saveexec_b64 s[28:29], vcc")
    I("s_cbranch_execz %s" % lab)
    a.srd(8, ptr(D_DBG), 0, 256)
    I("v_mov_b32 v1, 1")
    I("v_mov_b32 v2, s%d" % s_off)
    I("buffer_atomic_add v1, v2, s[8:11], 0 offen sc1")
    a.L(lab)
    I("s_mov_b64 exec, s[28:29]")


def worker(a, name):
    I = a.I
    abort = name + "_wend"
    I("s_sub_u32 s40, s16, 4")
    I("s_mov_b32 s41, s17")
    I("s_mov_b32 s49, s18")
    I("s_lshr_b32 s42, s41, 4")
    I("s_and_b32 s43, s41, 3")
    I("s_lshl_b32 s44, s40, 2")
    I("s_add_u32 s43, s43, s44")
    I("s_bfe_u32 s44, s41, 0x20002")
    kvproj0(a, 42, 43, 44)
    tl_probe(a, 17)
    if os.environ.get("WW"):
        I("s_mov_b32 s26, 4")
        ssm.wait_counter(a, 26, 128, abort)
    I("s_mov_b32 s44, s41")
    lkv, lkve = a.uid("L_kvloop"), a.uid("L_kvloope")
    a.L(lkv)
    I("s_cmp_ge_u32 s44, 56")
    I("s_cbranch_scc1 %s" % lkve)
    I("s_and_b32 s42, s44, 7")
    I("s_lshl_b32 s43, s40, 3")
    I("s_add_u32 s42, s42, s43")
    I("s_lshr_b32 s43, s44, 3")
    I("s_add_u32 s43, s43, 1")
    kvproj(a, 42, 43)
    I("s_add_u32 s44, s44, 32")
    I("s_branch %s" % lkv)
    a.L(lkve)
    I("s_mov_b32 s26, 0")
    ssm.wait_counter(a, 26, 256, abort)
    I("s_and_b32 s42, s41, 7")
    I("s_lshr_b32 s43, s41, 3")
    I("s_lshl_b32 s44, s40, 2")
    I("s_add_u32 s43, s43, s44")
    ssm.gemm1_scan(a, 42, 43, abort)
    qproj(a, 43, 42)
    ssm.gemm2(a, 42, 43, abort)
    tl_probe(a, 15)
    GMAX = int(os.environ.get("GMAX", "16"))
    lop = a.uid("L_opduty")
    I("s_cmp_ge_u32 s41, 16")
    I("s_cbranch_scc1 %s" % lop)
    I("s_bfe_u32 s45, s41, 0x10003")
    lg = a.uid("L_grp")
    lsp = a.uid("L_split")
    a.L(lg)
    I("s_cmp_ge_u32 s45, %d" % GMAX)
    I("s_cbranch_scc1 %s" % lsp)
    I("s_lshr_b32 s26, s45, 1")
    I("s_lshl_b32 s26, s26, 2")
    I("s_add_u32 s26, s26, 192")
    ssm.wait_counter(a, 26, 16, abort)
    I("s_add_u32 s26, s26, 32")
    I("s_cmp_eq_u32 s26, 224")
    I("s_cselect_b32 s52, 128, 32")
    ssm.wait_counter(a, 26, "s52", abort)
    a.srd(8, ptr(D_WS), 0, WS_SIZE)
    attn.attn_setup(a, 8)
    I("s_and_b32 s46, s41, 7")
    I("s_lshl_b32 s46, s46, 2")
    I("s_add_u32 s46, s46, s49")
    I("s_lshl_b32 s47, s45, 2")
    I("s_add_u32 s47, s47, s40")
    def chain_wait():
        I("s_lshl_b32 s47, s45, 2")
        I("s_add_u32 s47, s47, s40")
        a.srd(12, ptr(D_WS), X_FLG, 512)
        I("v_and_b32 v240, 63, v0")
        I("v_lshlrev_b32 v240, 3, v240")
        I("s_mov_b32 s30, 0")
        lw, lok = a.uid("L_cw"), a.uid("L_cwok")
        a.L(lw)
        I("buffer_load_dwordx2 v[242:243], v240, s[12:15], 0 offen sc1")
        I("s_add_u32 s30, s30, 1")
        I("s_cmp_gt_u32 s30, 0x%x" % ssm.SPIN_LIMIT)
        I("s_cbranch_scc1 %s" % abort)
        I("s_waitcnt vmcnt(0)")
        I("v_min_i32 v242, v242, v243")
        I("v_cmp_ge_i32 vcc, s47, v242")
        I("s_cbranch_vccz %s" % lok)
        I("s_sleep 8")
        I("s_branch %s" % lw)
        a.L(lok)
    attn.attn_unit(a, 8, 47, 46, sc1=True, mid=chain_wait)
    I("s_lshl_b32 s26, s45, 2")
    I("s_add_u32 s26, s26, 64")
    signal(a, 26)
    tl_probe(a, 12)
    I("s_add_u32 s45, s45, 2")
    I("s_branch %s" % lg)
    a.L(lop)
    GBIG = int(os.environ.get("GBIG", "8"))
    I("s_bfe_u32 s45, s41, 0x30001")
    lgb, lgbe = a.uid("L_grpb"), a.uid("L_grpbe")
    a.L(lgb)
    I("s_cmp_ge_u32 s45, %d" % min(GMAX, GBIG))
    I("s_cbranch_scc1 %s" % lgbe)
    I("s_lshl_b32 s26, s45, 2")
    I("s_add_u32 s26, s26, 64")
    ssm.wait_counter(a, 26, 32, abort)
    I("s_and_b32 s47, s41, 1")
    I("s_lshl_b32 s48, s40, 1")
    I("s_add_u32 s47, s47, s48")
    attn.outproj(a, 47, 45, TY=128, sc1=False)
    I("s_add_u32 s45, s45, 8")
    I("s_branch %s" % lgb)
    a.L(lgbe)
    I("s_bfe_u32 s45, s41, 0x20002")
    I("s_add_u32 s45, s45, %d" % GBIG)
    lg = a.uid("L_grpo")
    a.L(lg)
    GSPLIT = int(os.environ.get("GSPLIT", "16"))
    I("s_cmp_ge_u32 s45, %d" % min(GMAX, GSPLIT))
    I("s_cbranch_scc1 %s" % abort)
    I("s_lshl_b32 s26, s45, 2")
    I("s_add_u32 s26, s26, 64")
    ssm.wait_counter(a, 26, 32, abort)
    I("s_and_b32 s47, s41, 1")
    I("s_lshl_b32 s48, s40, 1")
    I("s_add_u32 s47, s47, s48")
    I("s_bfe_u32 s48, s41, 0x10001")
    I("s_lshl_b32 s46, s45, 1")
    I("s_add_u32 s48, s48, s46")
    attn.outproj(a, 47, 48, TY=64, sc1=False)
    tl_probe(a, 14)
    I("s_add_u32 s45, s45, 4")
    I("s_branch %s" % lg)
    a.L(lsp)
    if GSPLIT >= 16:
        return
    I("s_mov_b32 s45, %d" % GSPLIT)
    lg2 = a.uid("L_grps")
    a.L(lg2)
    I("s_cmp_ge_u32 s45, %d" % GMAX)
    I("s_cbranch_scc1 %s" % abort)
    I("s_lshl_b32 s26, s45, 2")
    I("s_add_u32 s26, s26, 64")
    ssm.wait_counter(a, 26, 32, abort)
    I("s_and_b32 s47, s41, 1")
    I("s_lshl_b32 s48, s40, 1")
    I("s_add_u32 s47, s47, s48")
    I("s_bfe_u32 s48, s41, 0x10001")
    I("s_lshl_b32 s50, s47, 1")
    I("s_add_u32 s50, s50, s48")
    I("s_lshl_b32 s46, s45, 1")
    I("s_add_u32 s48, s48, s46")
    I("s_bfe_u32 s51, s41, 0x20002")
    I("s_and_b32 s53, s45, 3")
    I("s_lshl_b32 s53, s53, 4")
    I("s_add_u32 s53, s53, s50")
    attn.outproj_split(a, 47, 48, 51, 53)
    I("s_lshl_b32 s26, s50, 2")
    signal(a, 26)
    tl_probe(a, 13)
    lnr = a.uid("L_nored")
    I("s_cmp_lg_u32 s51, 0")
    I("s_cbranch_scc1 %s" % lnr)
    I("s_lshl_b32 s26, s50, 2")
    I("s_sub_u32 s52, s45, %d" % (GSPLIT - 1))
    I("s_lshl_b32 s52, s52, 2")
    ssm.wait_counter(a, 26, "s52", abort)
    attn.outproj_reduce(a, 47, 48, 53)
    I("s_waitcnt vmcnt(0)")
    a.L(lnr)
    I("s_add_u32 s45, s45, 1")
    I("s_branch %s" % lg2)


def kernel_attn(a, name):
    I = a.I
    a.raw(".globl %s\n.p2align 8\n.type %s,@function" % (name, name))
    a.L(name)
    I("s_cmp_ge_u32 s2, 512")
    I("s_cbranch_scc1 %s_end" % name)
    load_ptrs(a)
    a.srd(8, ptr(D_WS), 0, WS_SIZE)
    attn.attn_setup(a, 8)
    I("v_lshrrev_b32 v11, 6, v0")
    I("s_nop 0")
    I("v_readfirstlane_b32 s3, v11")
    I("s_lshl_b32 s4, s2, 2")
    I("s_add_u32 s4, s4, s3")
    I("s_lshr_b32 s5, s4, 5")
    I("s_and_b32 s6, s4, 31")
    attn.attn_unit(a, 8, 5, 6)
    a.L("%s_end" % name)
    I("s_endpgm")


def kernel_op(a, name):
    I = a.I
    a.raw(".globl %s\n.p2align 8\n.type %s,@function" % (name, name))
    a.L(name)
    I("s_cmp_ge_u32 s2, 256")
    I("s_cbranch_scc1 %s_end" % name)
    load_ptrs(a)
    I("s_and_b32 s3, s2, 7")
    I("s_lshr_b32 s4, s2, 3")
    I("s_and_b32 s40, s4, 7")
    I("s_lshr_b32 s41, s4, 3")
    I("s_lshl_b32 s3, s3, 2")
    I("s_add_u32 s41, s41, s3")
    attn.outproj(a, 40, 41, TY=64)
    a.L("%s_end" % name)
    I("s_endpgm")


def build():
    a = Asm()
    launches = [("chain_kernel", 256, 256, 163840)]
    out = HEADER
    for k, g, b, l in launches:
        out += "; @launch kernel=%s grid=(%d,1,1) block=(%d,1,1) lds=%d\n" % (k, g, b, l)
    if os.environ.get("CFG"):
        out += "; cfg:%s\n" % os.environ["CFG"]
    out += '.amdgcn_target "amdgcn-amd-amdhsa--gfx950"\n.text\n'
    kernel_chain(a, "chain_kernel")
    out += a.text()
    out += kernel_desc("chain_kernel")

    return out


if __name__ == "__main__":
    dst = sys.argv[1] if len(sys.argv) > 1 else "/code/%s.s" % NAME
    open(dst, "w").write(build())
    print("wrote", dst)
```

```python
from asmlib import *
from layout import *
from gemm import Gemm, Operand

SPIN_LIMIT = 1 << 22


def ssm_params(a, swg):
    I = a.I
    lab = a.uid("L_noprm")
    I("s_cmp_ge_u32 s%d, 4" % swg)
    I("s_cbranch_scc1 %s" % lab)
    I("s_lshl_b32 s3, s%d, 8" % swg)
    I("v_add_u32 v1, s3, v0")
    I("v_lshlrev_b32 v2, 1, v1")
    for i, src in enumerate((A_LRE, A_LIM, A_LOGDT)):
        a.srd(8, ptr(src), 0, 2048)
        I("buffer_load_ushort v%d, v2, s[8:11], 0 offen" % (3 + i))
    I("s_waitcnt vmcnt(0)")
    for i in range(3):
        I("v_lshlrev_b32 v%d, 16, v%d" % (3 + i, 3 + i))
    I("v_mul_f32 v6, 0x3fb8aa3b, v5")
    I("v_exp_f32 v6, v6")
    I("s_nop 0")
    I("v_cvt_pk_bf16_f32 v6, v6, v6")
    I("v_lshlrev_b32 v6, 16, v6")
    I("v_mul_f32 v7, v6, v3")
    I("v_mul_f32 v8, v6, v4")
    I("v_mul_f32 v7, 0x3fb8aa3b, v7")
    I("v_exp_f32 v7, v7")
    I("v_mul_f32 v8, 0x3e22f983, v8")
    I("v_fract_f32 v8, v8")
    I("v_cos_f32 v9, v8")
    I("v_sin_f32 v10, v8")
    I("s_nop 0")
    I("v_mul_f32 v12, v7, v9")
    I("v_mul_f32 v13, v7, v10")
    I("v_add_f32 v9, -1.0, v12")
    I("v_mul_f32 v10, v9, v3")
    I("v_fma_f32 v10, v13, v4, v10")
    I("v_mul_f32 v11, v13, v3")
    I("v_fma_f32 v11, -v9, v4, v11")
    I("v_mul_f32 v16, v3, v3")
    I("v_fma_f32 v16, v4, v4, v16")
    I("v_rcp_f32 v16, v16")
    I("s_nop 0")
    I("v_add_f32 v16, v16, v16")
    I("v_mul_f32 v14, v10, v16")
    I("v_mul_f32 v15, v11, v16")
    a.srd(8, ptr(D_WS), WS_SSM, 16384)
    I("v_lshlrev_b32 v2, 4, v1")
    I("buffer_store_dwordx4 v[12:15], v2, s[8:11], 0 offen sc1")
    a.L(lab)


def cmul(a, d, x, y, t):
    I = a.I
    I("v_pk_mul_f32 v[%d:%d], v[%d:%d], v[%d:%d] op_sel:[0,0] op_sel_hi:[0,1]" % (t, t + 1, x, x + 1, y, y + 1))
    I("v_pk_fma_f32 v[%d:%d], v[%d:%d], v[%d:%d], v[%d:%d] op_sel:[1,1,0] op_sel_hi:[1,0,1] neg_lo:[1,0,0]" % (d, d + 1, x, x + 1, y, y + 1, t, t + 1))


def cfma(a, d, x, y, c, t):
    I = a.I
    I("v_pk_fma_f32 v[%d:%d], v[%d:%d], v[%d:%d], v[%d:%d] op_sel:[0,0,0] op_sel_hi:[0,1,1]" % (t, t + 1, x, x + 1, y, y + 1, c, c + 1))
    I("v_pk_fma_f32 v[%d:%d], v[%d:%d], v[%d:%d], v[%d:%d] op_sel:[1,1,0] op_sel_hi:[1,0,1] neg_lo:[1,0,0]" % (d, d + 1, x, x + 1, y, y + 1, t, t + 1))


def gemm1_scan(a, s_tt, s_cg, abort):
    I = a.I
    SX, SB, SWS = 8, 12, 16
    a.C("======== SSM GEMM1 + scan")
    a.srd(SX, ptr(A_X), 0, 4 * MB)
    a.srd(SWS, ptr(D_WS), 0, WS_SIZE)
    I("v_bfe_u32 v1, v0, 6, 1")
    I("s_nop 0")
    I("v_readfirstlane_b32 s28, v1")
    I("s_cmp_eq_u32 s28, 0")
    I("s_cselect_b32 s%d, s%d, s%d" % (SB, ptr(A_BRE), ptr(A_BIM)))
    I("s_cselect_b32 s%d, s%d, s%d" % (SB + 1, ptr(A_BRE) + 1, ptr(A_BIM) + 1))
    I("s_and_b32 s%d, s%d, 0xffff" % (SB + 1, SB + 1))
    I("s_mov_b32 s%d, 0x%x" % (SB + 2, 2 * MB))
    I("s_mov_b32 s%d, 0x00020000" % (SB + 3))
    g = Gemm(a, "g1", Operand('n', 'x', 256, 2048, SX, 20), Operand('n', 'y', 128, 2048, SB, 21, rowmap='reim'), 1024)
    g.stmp, g.swdx, g.swdy = 22, 23, 24
    assert g.vend <= 100
    g.setup(0, 1, 2, 3, 4)
    I("s_lshl_b32 s20, s%d, 19" % s_tt)
    I("s_lshl_b32 s21, s%d, 17" % s_cg)
    g.run(25)
    U = 120
    PRM = 100
    L64, L256, E, T, H = 104, 106, 108, 110, 112
    EX = 114
    vp, va = 5, 6
    a.C("---- scan epilogue")
    I("v_bfe_u32 v1, v0, 7, 1")
    I("v_and_b32 v2, 31, v0")
    I("v_lshl_add_u32 v%d, v1, 5, v2" % vp)
    I("s_lshl_b32 s26, s%d, 6" % s_cg)
    I("v_add_u32 v%d, s26, v%d" % (vp, vp))
    I("v_lshlrev_b32 v%d, 4, v%d" % (va, vp))
    I("s_mov_b32 s26, 0x%x" % WS_SSM)
    I("buffer_load_dwordx4 v[%d:%d], v%d, s[%d:%d], s26 offen" % (PRM, PRM + 3, va, SWS, SWS + 3))
    for tx in range(4):
        for j in range(16):
            k = 16 * tx + j
            I("v_accvgpr_read_b32 v%d, a%d" % (U + 2 * k, g.acc(tx, 0) + j))
            I("v_accvgpr_read_b32 v%d, a%d" % (U + 2 * k + 1, g.acc(tx, 1) + j))
    I("s_waitcnt vmcnt(0)")
    I("v_mov_b32 v%d, v%d" % (E, U))
    I("v_mov_b32 v%d, v%d" % (E + 1, U + 1))
    I("v_mov_b32 v%d, v%d" % (L64, PRM))
    I("v_mov_b32 v%d, v%d" % (L64 + 1, PRM + 1))
    for k in range(1, 64):
        cfma(a, E, PRM, E, U + 2 * k, T)
        if k <= 6:
            cmul(a, L64, L64, L64, EX)
    cmul(a, L256, L64, L64, EX)
    cmul(a, L256, L256, L256, EX)
    I("s_barrier")
    I("v_bfe_u32 v1, v0, 7, 1")
    I("v_lshlrev_b32 v1, 10, v1")
    I("v_lshl_add_u32 v1, v2, 3, v1")
    I("v_bfe_u32 v3, v0, 5, 2")
    I("v_lshl_add_u32 v4, v3, 8, v1")
    I("ds_write_b64 v4, v[%d:%d]" % (E, E + 1))
    I("s_waitcnt lgkmcnt(0)")
    I("s_barrier")
    ER = 8
    for r in range(4):
        I("ds_read_b64 v[%d:%d], v1 offset:%d" % (ER + 2 * r, ER + 2 * r + 1, r * 256))
    I("s_waitcnt lgkmcnt(0)")
    I("v_mov_b32 v%d, v%d" % (E, ER))
    I("v_mov_b32 v%d, v%d" % (E + 1, ER + 1))
    for r in range(1, 4):
        cfma(a, E, L64, E, ER + 2 * r, T)
    I("v_lshlrev_b32 v%d, 3, v%d" % (va, vp))
    I("s_lshl_b32 s26, s%d, 13" % s_tt)
    I("s_add_u32 s26, s26, 0x%x" % X_AGG)
    I("v_cmp_eq_u32 vcc, 0, v3")
    I("s_and_saveexec_b64 s[28:29], vcc")
    lab = a.uid("L_noagg")
    I("s_cbranch_execz %s" % lab)
    I("buffer_store_dwordx2 v[%d:%d], v%d, s[%d:%d], s26 offen sc1" % (E, E + 1, va, SWS, SWS + 3))
    a.L(lab)
    I("s_mov_b64 exec, s[28:29]")
    I("v_mov_b32 v%d, 0" % H)
    I("v_mov_b32 v%d, 0" % (H + 1))
    I("s_mov_b32 s27, 0")
    I("s_mov_b32 s26, 0x%x" % X_AGG)
    I("s_mov_b32 s30, 0")
    lp, le = a.uid("L_lb"), a.uid("L_lbe")
    a.L(lp)
    I("s_cmp_ge_u32 s27, s%d" % s_tt)
    I("s_cbranch_scc1 %s" % le)
    rt = a.uid("L_lbr")
    a.L(rt)
    I("buffer_load_dwordx2 v[%d:%d], v%d, s[%d:%d], s26 offen sc1" % (EX, EX + 1, va, SWS, SWS + 3))
    I("s_add_u32 s30, s30, 1")
    I("s_cmp_gt_u32 s30, 0x%x" % SPIN_LIMIT)
    I("s_cbranch_scc1 %s" % abort)
    I("s_waitcnt vmcnt(0)")
    I("v_max_u32 v4, v%d, v%d" % (EX, EX + 1))
    I("v_cmp_eq_u32 vcc, 0x%x, v4" % SENT)
    I("s_cbranch_vccnz %s" % rt)
    cfma(a, H, L256, H, EX, T)
    I("s_add_u32 s27, s27, 1")
    I("s_add_u32 s26, s26, 8192")
    I("s_branch %s" % lp)
    a.L(le)
    for r in range(3):
        cfma(a, EX, L64, H, ER + 2 * r, T)
        I("v_cmp_lt_u32 vcc, %d, v3" % r)
        I("s_nop 1")
        I("v_cndmask_b32 v%d, v%d, v%d, vcc" % (H, H, EX))
        I("v_cndmask_b32 v%d, v%d, v%d, vcc" % (H + 1, H + 1, EX + 1))
    I("v_lshrrev_b32 v1, 6, v0")
    I("v_lshlrev_b32 v1, 14, v1")
    I("v_add_u32 v1, 4096, v1")
    I("v_lshl_add_u32 v4, v2, 8, v1")
    I("v_and_b32 v7, 15, v0")
    I("v_bfe_u32 v8, v0, 5, 1")
    I("v_lshlrev_b32 v8, 3, v8")
    I("v_xor_b32 v7, v7, v8")
    C2 = PRM + 2
    OB = 16
    for k in range(64):
        cfma(a, H, PRM, H, U + 2 * k, T)
        u = U + 2 * k
        I("v_pk_mul_f32 v[%d:%d], v[%d:%d], v[%d:%d] op_sel:[0,0] op_sel_hi:[0,1]" % (EX, EX + 1, C2, C2 + 1, H, H + 1))
        I("v_pk_fma_f32 v[%d:%d], v[%d:%d], v[%d:%d], v[%d:%d] op_sel:[1,1,0] op_sel_hi:[1,0,1] neg_lo:[1,0,0] neg_hi:[1,0,1]" % (u, u + 1, C2, C2 + 1, H, H + 1, EX, EX + 1))
        if k % 2 == 1:
            q = (k % 8) // 2
            I("v_cvt_pk_bf16_f32 v%d, v%d, v%d" % (OB + q, u - 2, u))
            I("v_cvt_pk_bf16_f32 v%d, v%d, v%d" % (OB + 4 + q, u - 1, u + 1))
        if k % 8 == 7:
            I("v_xor_b32 v9, %d, v7" % (k >> 3))
            I("v_lshl_add_u32 v9, v9, 4, v4")
            I("ds_write_b128 v9, v[%d:%d]" % (OB, OB + 3))
            I("ds_write_b128 v9, v[%d:%d] offset:8192" % (OB + 4, OB + 7))
            OB = 24 if OB == 16 else 16
    I("v_bfe_u32 v2, v0, 4, 2")
    I("v_and_b32 v3, 15, v0")
    for q in range(4):
        I("v_add_u32 v%d, %d, v2" % (10 + q, 4 * q))
        I("v_xor_b32 v9, v%d, v3" % (10 + q))
        I("v_lshlrev_b32 v9, 4, v9")
        I("v_lshl_add_u32 v%d, v%d, 8, v9" % (10 + q, 10 + q))
        I("v_add_u32 v%d, v%d, v1" % (10 + q, 10 + q))
    I("v_bfe_u32 v9, v0, 7, 1")
    I("v_lshl_add_u32 v9, v9, 5, v2")
    I("v_lshlrev_b32 v9, 12, v9")
    I("v_lshl_add_u32 v9, v3, 4, v9")
    I("v_bfe_u32 v8, v0, 6, 1")
    I("v_lshl_add_u32 v9, v8, 8, v9")
    I("s_lshl_b32 s26, s%d, 18" % s_cg)
    I("s_lshl_b32 s27, s%d, 9" % s_tt)
    I("s_add_u32 s26, s26, s27")
    I("s_add_u32 s26, s26, 0x%x" % WS_HT)
    I("s_waitcnt lgkmcnt(0)")
    D = 32
    for it in range(16):
        I("ds_read_b128 v[%d:%d], v%d offset:%d" % (D + 4 * it, D + 4 * it + 3, 10 + it % 4, (it // 4) * 4096))
    for it in range(16):
        ri, rr = it // 8, (it % 8) * 4
        I("s_waitcnt lgkmcnt(%d)" % (15 - it))
        I("s_add_u32 s27, s26, 0x%x" % (ri * 1024 * 4096 + rr * 4096))
        I("buffer_store_dwordx4 v[%d:%d], v9, s[%d:%d], s27 offen sc1" % (D + 4 * it, D + 4 * it + 3, SWS, SWS + 3))
    I("s_waitcnt vmcnt(0)")
    I("s_barrier")
    lab = a.uid("L_nosig")
    I("v_cmp_eq_u32 vcc, 0, v0")
    I("s_and_saveexec_b64 s[28:29], vcc")
    I("s_cbranch_execz %s" % lab)
    a.srd(8, ptr(D_DBG), 0, 256)
    I("s_lshl_b32 s26, s%d, 2" % s_tt)
    I("s_add_u32 s26, s26, 160")
    I("v_mov_b32 v1, 1")
    I("v_mov_b32 v2, s26")
    I("buffer_atomic_add v1, v2, s[8:11], 0 offen sc1")
    a.L(lab)
    I("s_mov_b64 exec, s[28:29]")


def wait_counter(a, dbg_off_sreg, target, abort):
    I = a.I
    a.srd(8, ptr(D_DBG), 0, 256)
    I("v_mov_b32 v2, s%d" % dbg_off_sreg)
    I("s_mov_b32 s30, 0")
    rt = a.uid("L_wc")
    a.L(rt)
    I("buffer_load_dword v1, v2, s[8:11], 0 offen sc1")
    I("s_add_u32 s30, s30, 1")
    I("s_cmp_gt_u32 s30, 0x%x" % SPIN_LIMIT)
    I("s_cbranch_scc1 %s" % abort)
    I("s_waitcnt vmcnt(0)")
    I("v_readfirstlane_b32 s31, v1")
    I("s_cmp_ge_u32 s31, %s" % target)
    ok = a.uid("L_wcok")
    I("s_cbranch_scc1 %s" % ok)
    I("s_sleep 8")
    I("s_branch %s" % rt)
    a.L(ok)


def gemm2(a, s_dt, s_tt, abort):
    I = a.I
    SC, SH, SO = 8, 12, 16
    a.C("======== SSM GEMM2")
    I("s_lshr_b32 s26, s%d, 1" % s_tt)
    I("s_lshl_b32 s26, s26, 2")
    I("s_add_u32 s26, s26, 160")
    wait_counter(a, 26, 16, abort)
    a.srd(SC, ptr(A_CRE), 0, 2 * MB)
    a.srd(SH, ptr(D_WS), WS_HT, 8 * MB)
    g = Gemm(a, "g2", Operand('n', 'x', 128, 2048, SC, 20), Operand('t', 'y', 128, 4096, SH, 21), 2048, nbuf=8, deep=True)
    g.stmp, g.swdx, g.swdy = 22, 23, 24
    g.setup(0, 1, 2, 3, 4)
    I("s_lshl_b32 s20, s%d, 18" % s_dt)
    I("s_lshl_b32 s21, s%d, 8" % s_tt)
    hook = ["s_mov_b32 s%d, s%d" % (SC, ptr(A_CIM)),
            "s_and_b32 s%d, s%d, 0xffff" % (SC + 1, ptr(A_CIM) + 1),
            "s_sub_u32 s20, s20, 2048"]
    g.run(25, midhookX=(32 // g.NBUF - 1, hook))
    a.srd(SO, ptr(D_OUT), 0, 16 * MB)
    a.srd(SC, ptr(A_X), 0, 4 * MB)
    a.srd(SH, ptr(A_DSKIP), 0, 2048)
    I("v_bfe_u32 v1, v0, 7, 1")
    I("v_and_b32 v2, 31, v0")
    I("v_lshl_add_u32 v1, v1, 6, v2")
    I("v_bfe_u32 v2, v0, 5, 2")
    I("v_lshlrev_b32 v3, 6, v2")
    I("v_lshl_add_u32 v4, v1, 11, v3")
    I("v_lshlrev_b32 v5, 7, v2")
    I("v_lshl_add_u32 v5, v1, 13, v5")
    I("s_lshl_b32 s26, s%d, 8" % s_dt)
    DS, XV, R = 100, 116, 132
    for q in range(4):
        I("buffer_load_dwordx4 v[%d:%d], v3, s[%d:%d], s26 offen offset:%d" % (DS + 4 * q, DS + 4 * q + 3, SH, SH + 3, 16 * q))
    I("s_lshl_b32 s27, s%d, 18" % s_tt)
    I("s_add_u32 s27, s27, s26")
    I("s_lshl_b32 s28, s%d, 20" % s_tt)
    I("s_lshl_b32 s29, s%d, 9" % s_dt)
    I("s_add_u32 s28, s28, s29")
    for ty in range(2):
        for q in range(4):
            I("buffer_load_dwordx4 v[%d:%d], v4, s[%d:%d], s27 offen offset:%d" % (XV + 4 * q, XV + 4 * q + 3, SC, SC + 3, 16 * q))
        I("s_add_u32 s27, s27, 0x%x" % (32 * 2048))
        I("s_waitcnt vmcnt(0)")
        for i in range(16):
            tx, j = (2 * i) // 16, (2 * i) % 16
            c = g.acc(tx, ty) + j
            I("v_lshlrev_b32 v6, 16, v%d" % (XV + i))
            I("v_and_b32 v7, 0xffff0000, v%d" % (XV + i))
            I("v_lshlrev_b32 v8, 16, v%d" % (DS + i))
            I("v_and_b32 v9, 0xffff0000, v%d" % (DS + i))
            I("v_mul_f32 v6, v6, v8")
            I("v_mul_f32 v7, v7, v9")
            I("v_cvt_pk_bf16_f32 v6, v6, v7")
            I("v_accvgpr_read_b32 v%d, a%d" % (R + 2 * i, c))
            I("v_accvgpr_read_b32 v%d, a%d" % (R + 2 * i + 1, c + 1))
            I("v_lshlrev_b32 v8, 16, v6")
            I("v_and_b32 v9, 0xffff0000, v6")
            I("v_add_f32 v%d, v%d, v8" % (R + 2 * i, R + 2 * i))
            I("v_add_f32 v%d, v%d, v9" % (R + 2 * i + 1, R + 2 * i + 1))
        for q in range(8):
            I("buffer_store_dwordx4 v[%d:%d], v5, s[%d:%d], s28 offen offset:%d" % (R + 4 * q, R + 4 * q + 3, SO, SO + 3, 16 * q))
        I("s_add_u32 s28, s28, 0x%x" % (32 * 8192))
        if ty == 0:
            I("s_nop 1")
```

```python
import sys, os
sys.path.insert(0, os.path.dirname(os.path.abspath(__file__)))
from asmlib import *
from layout import *
import main as M
from gemm import Gemm, Operand, epi_lds_bf16
ALLX = int(os.environ.get("ALLX", "0"))

def st(a, i):
    a.I("s_memtime s[%d:%d]" % (44 + 2 * i, 45 + 2 * i))

def build():
    a = Asm(); I = a.I
    name = "gt_kernel"
    a.raw(".globl %s\n.p2align 8\n.type %s,@function" % (name, name))
    a.L(name)
    I("s_cmp_ge_u32 s2, 256")
    I("s_cbranch_scc1 %s_end" % name)
    M.load_ptrs(a)
    M.role_assign(a, name)
    if not ALLX:
        I("s_cmp_lt_u32 s16, 4")
        I("s_cbranch_scc1 %s_end" % name)
    I("s_and_b32 s40, s16, 3")
    I("s_mov_b32 s41, s17")
    I("s_mov_b32 s39, s18")
    I("s_lshl_b32 s38, s16, 5")
    I("s_add_u32 s38, s38, s17")
    I("s_and_b32 s42, s41, 7")
    I("s_lshr_b32 s43, s41, 3")
    I("s_lshl_b32 s36, s40, 2")
    I("s_add_u32 s43, s43, s36")
    I("s_mov_b32 s37, 0")
    lp = a.uid("L_rep")
    a.L(lp)
    SX, SW, SO = 8, 12, 16
    st(a, 0)
    a.srd(SX, ptr(B_X), 0, 4 * MB)
    I("s_cmp_eq_u32 s37, 1")
    I("s_cselect_b32 s%d, s%d, s%d" % (SW, ptr(B_WK), ptr(B_WQ)))
    I("s_cselect_b32 s%d, s%d, s%d" % (SW + 1, ptr(B_WK) + 1, ptr(B_WQ) + 1))
    I("s_and_b32 s%d, s%d, 0xffff" % (SW + 1, SW + 1))
    I("s_mov_b32 s%d, 0x%x" % (SW + 2, 8 * MB))
    I("s_mov_b32 s%d, 0x00020000" % (SW + 3))
    a.srd(SO, ptr(D_WS), WS_Q, 16 * MB)
    g = Gemm(a, "qp", Operand('t', 'x', 256, 8192, SW, 20), Operand('n', 'y', 256, 2048, SX, 21), 1024)
    g.stmp, g.swdx, g.swdy = 22, 23, 24
    g.setup(0, 1, 2, 3, 4)
    I("s_lshl_b32 s20, s43, 9")
    I("s_lshl_b32 s21, s42, 19")
    st(a, 1)
    g.stamp = lambda: st(a, 2)
    g.run(25)
    st(a, 3)
    I("s_lshl_b32 s26, s42, 21")
    I("s_lshl_b32 s27, s43, 9")
    I("s_add_u32 s26, s26, s27")
    epi_lds_bf16(g, SO, 26, 27, 'row', 8192, 160, sc1=True)
    st(a, 4)
    I("s_waitcnt vmcnt(0)")
    st(a, 5)
    I("s_memrealtime s[56:57]")
    I("s_waitcnt lgkmcnt(0)")
    a.srd(8, ptr(D_WS), 0, WS_SIZE)
    I("v_mov_b32 v2, 0")
    for i in range(6):
        I("v_writelane_b32 v2, s%d, %d" % (44 + 2 * i, i))
    I("v_writelane_b32 v2, s56, 6")
    I("s_lshl_b32 s26, s38, 2")
    I("s_add_u32 s26, s26, s39")
    I("s_lshl_b32 s26, s26, 2")
    I("s_add_u32 s26, s26, s37")
    I("s_lshl_b32 s26, s26, 6")
    I("s_add_u32 s26, s26, 0x%x" % (WS_DBG + 4096))
    I("v_and_b32 v3, 63, v0")
    I("v_lshlrev_b32 v3, 2, v3")
    I("s_mov_b64 exec, 0xffff")
    I("buffer_store_dword v2, v3, s[8:11], s26 offen")
    I("s_mov_b64 exec, -1")
    I("s_add_u32 s37, s37, 1")
    I("s_cmp_lt_u32 s37, 3")
    I("s_cbranch_scc1 %s" % lp)
    a.L("%s_end" % name)
    I("s_endpgm")
    out = M.HEADER + "; @launch kernel=gt_kernel grid=(256,1,1) block=(256,1,1) lds=163840\n"
    out += "; cfg:%s\n" % os.environ.get("CFG", "")
    out += '.amdgcn_target "amdgcn-amd-amdhsa--gfx950"\n.text\n' + a.text() + kernel_desc(name)
    return out
open(sys.argv[1], "w").write(build())
```

```python
from asmlib import *
from layout import *
import os

E = lambda k, d: int(os.environ.get(k, str(d)))
EMU = E("EMU", 0)
NREP = E("NREPL", 2)
KRE = E("KRE", 2)
NSC = E("NSC", 2)
D_A, D_E = E("D_A", 24), E("D_E", 24)
PACE = E("PACE", 12)
D_C, G_C = E("D_C", 12), E("G_C", 30)
D_G, G_G = E("D_G", 66), E("G_G", 60)
STAMP = E("STAMP", 0)
NT0 = E("NT0", 62)
DUP = E("DUP", 0)
H_A = E("H_A", -1)
B3P = E("B3P", 0)
H_E = E("H_E", 20)
PXB = E("PXB", 1)
VROT, OROT = E("VROT", 2), E("OROT", 8)
KVW = E("KVW", 0)
PUBW = E("PUBW", 1)
PRIO = E("PRIO", 3)

S_WS = 8
S_TMPSRD = 12
S_X, S_J, S_W, S_STEP = 16, 17, 18, 19
S_T0, S_T1, S_T2, S_T3 = 20, 21, 22, 23
S_M8 = 24
S_M8H = 26
S_MM = 28
S_ROT = 30
S_KV = 31
S_SPIN = 33
S_SENT = 34
S_PXB = 35
S_BMEM = 36
S_BSX = 37
S_MEMC, S_MEMN, S_SX, S_OX, S_PX = 38, 39, 40, 41, 42
S_LKV = 43
S_C = 44
S_SCL = 46
S_L32 = 48
S_L16 = 50
S_PXB2 = 52
S_ONE = 53
S_SLOW = 32
S_CKV = 54
S_ST = 64
S_ACC = 84

V_LIN = 1
V_XLD = 2
V_IDX = 6
V_CHK = 7
V_MEMST, V_SXST, V_SXM, V_OXST, V_PXST = 8, 9, 10, 11, 12
V_SXLD = 13
V_SXLM = 16
V_PXLD = 17
V_TW = 20
V_RVW, V_RVR = 21, 22
V_KFR, V_VTR = 25, 26
V_KLD, V_VTLD = 27, 29
V_KMST, V_VMST, V_VMW = 30, 31, 32
V_OXPO = 28
V_M0LD = 33
V_SMP = 34
V_SENT = 36
V_SEL = 40
V_ONE = 44
V_M = 48
V_ACC = 64
V_OA = 88
V_TA = 96
V_TD = 104
V_QK = 112
V_KX = 116
V_S0, V_S1, V_SM = 124, 128, 132
V_VT = 136
V_VM = 144
V_T = 148
V_TM = 152
V_X = 153
V_PB = 160
V_PM = 164
V_O = 168
V_SUM = 176
V_OB = 180
V_R = 168
V_L = 200
V_PT = 248
V_SEL2 = 252

L_T = 0
L_RV = 8192
L_RO = 16384
L_KV = 24576
L_KM = 32768
L_VM = 33792
L_ROLE = 0
L_STAGE = 32768

SPIN_LIMIT = 1 << 20
ABL = os.environ.get('ABL', '')
ABORT = [None]
COLD = []
COLD2 = []
HOOK = {}
W = "s[%d:%d]" % (S_WS, S_WS + 3)


def a_qkv(M, t, b):
    return ((M * 2 + t) * 4 + b) * 8


def a_wo(ct, b):
    return 192 + (ct * 4 + b) * 8


def acc(M, t):
    return V_ACC + (16 + 4 * t if M == 2 else 8 * t + 4 * M)


def vr4(r):
    return "v[%d:%d]" % (r, r + 3)


def vr2(r):
    return "v[%d:%d]" % (r, r + 1)


def nops(a, n):
    while n > 0:
        k = min(n, 16)
        a.I("s_nop %d" % (k - 1))
        n -= k


def exec_(a, m):
    a.I("s_mov_b64 exec, -1" if m is None else "s_mov_b64 exec, s[%d:%d]" % (m, m + 1))


def pk(a, d, x, y, op="add"):
    a.I("v_pk_%s_f32 %s, %s, %s" % (op, vr2(d), vr2(x), vr2(y)))


def spin(out, back=None):
    out.append("    s_add_u32 s%d, s%d, 1" % (S_SPIN, S_SPIN))
    out.append("    s_cmp_gt_u32 s%d, 0x%x" % (S_SPIN, SPIN_LIMIT))
    if back:
        out.append("    s_cbranch_scc0 %s" % back)
        out.append("    s_branch %s" % ABORT[0])
    else:
        out.append("    s_cbranch_scc1 %s" % ABORT[0])


def stamp(a, i):
    if STAMP == 1:
        a.I("s_memtime s[%d:%d]" % (S_ST + 2 * i, S_ST + 2 * i + 1))


def gather(a, soff, consume, tag, fill=()):
    I = a.I
    fill = list(fill)
    ld = lambda i: "buffer_load_dwordx4 %s, v%d, %s, s%d offen sc1" % (vr4(V_M + 4 * i), V_XLD + i, W, soff)
    first = [0, 1, 2, 3] + [0] * DUP
    for k, i in enumerate(first):
        I(ld(i))
        if k < len(first) - 1:
            n = PACE
            while fill and n > 0:
                I(fill.pop(0))
                n -= 1
            nops(a, n)
    for l in fill:
        I(l)
    chk = lambda i: ["v_max3_u32 v%d, v%d, v%d, v%d" % (V_CHK, V_M + 4 * i, V_M + 4 * i + 1, V_M + 4 * i + 2),
                     "v_max_u32 v%d, v%d, v%d" % (V_CHK, V_CHK, V_M + 4 * i + 3),
                     "v_cmp_eq_u32 vcc, s%d, v%d" % (S_SENT, V_CHK)]
    done = a.uid("L_gd_" + tag)
    labels, todo, emitted = {}, [], set()

    def lab(key):
        if key not in labels:
            labels[key] = a.uid("L_q_" + tag)
            todo.append(key)
        return labels[key]

    def failed(c, fl, rem, seen):
        again = c in seen
        t = lab(('p', tuple(sorted(rem)))) if again else lab(('x', c, fl, rem, seen | {c}))
        if STAMP == 3 and not again:
            u = a.uid("L_cnt")
            r = S_ACC + (1 if tag == 'a' else 2)
            COLD2.extend([u + ":", "    s_add_u32 s%d, s%d, 0x%x" % (r, r, 1 << (8 * c)), "    s_branch %s" % t])
            return u
        return t

    def valid(out, c, fl, rem, seen, hot):
        while True:
            key = ('v', c, fl, rem, seen & rem)
            if key in emitted:
                out.append("    s_branch %s" % labels[key])
                return
            emitted.add(key)
            labels[key] = a.uid("L_v_" + tag)
            out.append(labels[key] + ":")
            m = consume(c)
            if not rem:
                out.extend("    " + l for l in m)
                if not hot:
                    out.append("    s_branch %s" % done)
                return
            k = next(x for x in range(len(fl)) if fl[x] in rem)
            n, q = fl[k], chk(fl[k])
            w = "s_waitcnt vmcnt(%d)" % (len(fl) - 1 - k)
            seq = [m[0], w, q[0], q[1], m[1], q[2]] + m[2:] if len(m) > 2 else [m[0], w] + q + [m[1]]
            out.extend("    " + l for l in seq)
            out.append("    s_cbranch_vccnz %s" % failed(n, fl[k + 1:], rem, seen))
            c, fl, rem, seen = n, fl[k + 1:], rem - {n}, seen | {n}
    fl, rem = tuple(first[1:]), frozenset(range(4))
    I("s_waitcnt vmcnt(%d)" % len(fl))
    for l in chk(0):
        I(l)
    I("s_cbranch_vccnz %s" % failed(0, fl, rem, frozenset()))
    valid(a.lines, 0, fl, rem - {0}, frozenset({0}), True)
    a.L(done)
    C = lambda l: COLD.append("    " + l)
    while todo:
        key = todo.pop()
        COLD.append("%s:" % labels[key])
        if key[0] == 'x':
            _, c, fl, rem, seen = key
            if c not in fl:
                C(ld(c))
                fl += (c,)
            k = next(x for x in range(len(fl)) if fl[x] in rem)
            n = fl[k]
            if DUP and n not in seen and n not in fl[k + 1:] and n < 2:
                C(ld(n))
                fl += (n,)
            C("s_waitcnt vmcnt(%d)" % (len(fl) - 1 - k))
            for l in chk(n):
                C(l)
            C("s_cbranch_vccnz %s" % failed(n, fl[k + 1:], rem, seen))
            valid(COLD, n, fl[k + 1:], rem - {n}, seen | {n}, False)
        else:
            P = key[1]
            oks = []
            for k, ci in enumerate(P):
                C(ld(ci))
                C("s_waitcnt vmcnt(%d)" % KRE)
                nx = P[(k + 1) % len(P)]
                for l in chk(nx):
                    C(l)
                ok = a.uid("L_ok_" + tag)
                oks.append((ok, nx))
                C("s_cbranch_vccz %s" % ok)
            spin(COLD, labels[key])
            for ok, ci in oks:
                COLD.append(ok + ":")
                for l in consume(ci):
                    C(l)
                rest = tuple(x for x in P if x != ci)
                C("s_branch %s" % (lab(('p', rest)) if rest else done))


def rot_poll(a, nset, loads, summ, regs, ok, first_reissue, extra=0):
    C = lambda l: COLD.append("    " + l)
    nl = len(loads(0))
    if not first_reissue:
        for r in range(1, nset):
            c = []
            summ(c, r, nl * (nset - 1 - r) + extra)
            for l in c:
                C(l)
            C("s_cbranch_vccz %s" % ok)
        if STAMP == 3:
            C("s_add_u32 s%d, s%d, 0x100" % (S_ACC + 4, S_ACC + 4))
        for r in range(1, nset):
            for l in loads(r):
                C(l)
            C("s_nop 11")
    rt = a.uid("L_rt")
    COLD.append(rt + ":")
    for k in range(nset):
        r = (k + 1) % nset
        for l in loads(k):
            C(l)
        c = []
        summ(c, r, nl * (nset - 1))
        for l in c:
            C(l)
        C("s_cbranch_vccz %s" % ok)
        if STAMP == 3:
            C("s_add_u32 s%d, s%d, 0x%x" % ((S_ACC + 3, S_ACC + 3, 0x100) if first_reissue else (S_ACC + 4, S_ACC + 4, 0x10000)))
    spin(COLD)
    C("s_and_b32 s%d, s%d, 63" % (S_T0, S_SPIN))
    C("s_cbranch_scc1 %s" % rt)
    regs = list(regs)
    C("v_cmp_eq_u32 vcc, s%d, v%d" % (S_SENT, regs[0]))
    for r in regs[1:]:
        C("v_cmp_eq_u32 s[%d:%d], s%d, v%d" % (S_T0, S_T1, S_SENT, r))
        C("s_or_b64 vcc, vcc, s[%d:%d]" % (S_T0, S_T1))
    C("s_cbranch_vccnz %s" % rt)
    C("s_branch %s" % ok)


def block_bases(a, s_init, s_even, s_odd, tmp):
    I = a.I
    I("s_lshr_b32 s%d, s%d, 24" % (s_odd, s_init))
    I("s_bfe_u32 s%d, s%d, 0x80010" % (tmp, s_init))
    I("s_cmp_gt_u32 s%d, s%d" % (tmp, s_odd))
    I("s_cselect_b32 s%d, 0x%x, 0x%x" % ((tmp, 0, 0x2000) if 'polx' in ABL else (tmp, 0x2000, 0)))
    I("s_add_u32 s%d, s%d, 0x1fffff" % (s_even, ptr(D_WS)))
    I("s_and_b32 s%d, s%d, 0xffe00000" % (s_even, s_even))
    I("s_sub_u32 s%d, s%d, s%d" % (s_odd, s_even, ptr(D_WS)))
    I("s_add_u32 s%d, s%d, s%d" % (s_even, s_odd, tmp))
    I("s_xor_b32 s%d, s%d, 0x2000" % (tmp, tmp))
    I("s_add_u32 s%d, s%d, s%d" % (s_odd, s_odd, tmp))


def prologue_addrs(a):
    I = a.I
    a.C("---- chain address registers")
    for s, lo, hi in ((S_M8, 0x00ff00ff, 0x00ff00ff), (S_M8H, 0xff00ff00, 0xff00ff00), (S_MM, 0, 0x00ff00ff),
                      (S_L32, 0xffffffff, 0), (S_L16, 0xffff, 0)):
        I("s_mov_b32 s%d, 0x%x" % (s, lo))
        I("s_mov_b32 s%d, 0x%x" % (s + 1, hi))
    c = 0x3fb8aa3b if EMU else 0x3e0293ee
    I("s_mov_b32 s%d, 0x%x" % (S_C, c))
    I("s_mov_b32 s%d, 0x%x" % (S_C + 1, c))
    I("s_mov_b32 s%d, 0x3db504f3" % S_SCL)
    I("s_mov_b32 s%d, 0x3db504f3" % (S_SCL + 1))
    I("s_mov_b32 s%d, 0x%x" % (S_SENT, SENT))
    I("s_lshl_b32 s%d, s%d, 14" % (S_BMEM, S_X))
    I("s_add_u32 s%d, s%d, 0x%x" % (S_BMEM, S_BMEM, X_MEM))
    I("s_lshl_b32 s%d, s%d, 16" % (S_BSX, S_X))
    I("s_add_u32 s%d, s%d, 0x%x" % (S_BSX, S_BSX, X_SX))
    for i in range(4):
        I("v_mov_b32 v%d, s%d" % (V_SENT + i, S_SENT))
        I("v_mov_b32 v%d, 0x3f803f80" % (V_ONE + i))
    n, g, l, w, t0, t1, t2 = range(V_PT, V_PT + 7)
    I("v_and_b32 v%d, 63, v0" % l)
    I("v_and_b32 v%d, 15, v0" % n)
    I("v_bfe_u32 v%d, v0, 4, 2" % g)
    I("v_lshrrev_b32 v%d, 6, v0" % w)
    I("v_lshlrev_b32 v%d, 4, v%d" % (V_LIN, l))
    I("s_lshl_b32 s%d, s%d, 10" % (S_T0, S_X))
    I("s_lshl_b32 s%d, s%d, 5" % (S_T1, S_J))
    I("s_add_u32 s%d, s%d, s%d" % (S_T0, S_T0, S_T1))
    I("s_and_b32 s%d, s%d, 3" % (S_ROT, S_J))
    I("v_lshl_add_u32 v%d, v%d, 12, v%d" % (t0, w, V_LIN))
    for i in range(4):
        I("s_add_u32 s%d, s%d, %d" % (S_T1, S_ROT, i))
        I("s_and_b32 s%d, s%d, 3" % (S_T1, S_T1))
        I("s_lshl_b32 s%d, s%d, 10" % (S_T1, S_T1))
        I("v_add_u32 v%d, s%d, v%d" % (V_XLD + i, S_T1, t0))
    I("v_mov_b32 v%d, 0x44444444" % V_IDX)
    I("v_mov_b32 v%d, 0xeeeeeeee" % t0)
    I("v_cndmask_b32 v%d, v%d, v%d, s[%d:%d]" % (V_IDX, V_IDX, t0, S_M8H, S_M8H + 1))
    I("v_bfe_u32 v%d, v%d, 1, 3" % (t0, l))
    I("v_and_b32 v%d, 1, v%d" % (t1, l))
    I("v_lshlrev_b32 v%d, 11, v%d" % (V_M0LD, t0))
    I("v_lshl_add_u32 v%d, v%d, 3, v%d" % (V_M0LD, t1, V_M0LD))
    I("v_lshl_add_u32 v%d, v%d, 4, v%d" % (V_M0LD, g, V_M0LD))
    I("s_xor_b32 s%d, s%d, %d" % (S_T2, S_J, OROT))
    I("s_lshl_b32 s%d, s%d, 6" % (S_T1, S_T2))
    I("v_add_u32 v%d, s%d, v%d" % (V_M0LD, S_T1, V_M0LD))
    I("v_lshlrev_b32 v%d, 3, v%d" % (V_MEMST, l))
    I("s_xor_b32 s%d, s%d, %d" % (S_T1, S_J, VROT))
    I("s_lshl_b32 s%d, s%d, 9" % (S_T1, S_T1))
    I("v_add_u32 v%d, s%d, v%d" % (V_OXPO, S_T1, V_MEMST))
    I("s_lshl_b32 s%d, s%d, 9" % (S_T2, S_T2))
    I("v_add_u32 v%d, s%d, v%d" % (V_MEMST, S_T2, V_MEMST))
    I("v_lshlrev_b32 v%d, 4, v%d" % (V_OXST, n))
    I("v_lshl_add_u32 v%d, v%d, 7, v%d" % (V_OXST, g, V_OXST))
    I("v_add_u32 v%d, s%d, v%d" % (V_OXST, S_T1, V_OXST))
    I("s_lshr_b32 s%d, s%d, 2" % (S_T2, S_J))
    I("s_lshl_b32 s%d, s%d, 13" % (S_T2, S_T2))
    for k in range(4):
        I("s_add_u32 s%d, s%d, %d" % (S_T1, S_J, k))
        I("s_and_b32 s%d, s%d, 3" % (S_T1, S_T1))
        I("s_lshl_b32 s%d, s%d, 10" % (S_T1, S_T1))
        I("s_add_u32 s%d, s%d, s%d" % (S_T1, S_T1, S_T2))
        I("v_add_u32 v%d, s%d, v%d" % (V_SXST if k == 0 else V_SXLD + k - 1, S_T1, V_LIN))
    I("s_add_u32 s%d, s%d, 4096" % (S_T2, S_T2))
    I("v_add_u32 v%d, s%d, v%d" % (V_SXLM, S_T2, V_LIN))
    I("s_and_b32 s%d, s%d, 3" % (S_T1, S_J))
    I("s_lshl_b32 s%d, s%d, 8" % (S_T1, S_T1))
    I("s_add_u32 s%d, s%d, s%d" % (S_T1, S_T1, S_T2))
    I("v_and_b32 v%d, 1, v%d" % (t1, g))
    I("v_lshlrev_b32 v%d, 4, v%d" % (V_SXM, n))
    I("v_lshl_add_u32 v%d, v%d, 7, v%d" % (V_SXM, t1, V_SXM))
    I("v_add_u32 v%d, s%d, v%d" % (V_SXM, S_T1, V_SXM))
    I("v_lshl_add_u32 v%d, v%d, 11, v%d" % (V_TW, w, V_LIN))
    I("v_lshrrev_b32 v%d, 1, v%d" % (t0, g))
    I("v_lshl_add_u32 v%d, v%d, 1, v%d" % (t0, w, t0))
    I("v_lshlrev_b32 v%d, 10, v%d" % (V_RVW, t0))
    I("v_lshl_add_u32 v%d, v%d, 5, v%d" % (V_RVW, n, V_RVW))
    I("v_lshl_add_u32 v%d, v%d, 4, v%d" % (V_RVW, t1, V_RVW))
    I("v_add_u32 v%d, %d, v%d" % (V_RVW, L_RV, V_RVW))
    I("v_lshlrev_b32 v%d, 5, v%d" % (V_RVR, n))
    I("v_lshl_add_u32 v%d, v%d, 3, v%d" % (V_RVR, g, V_RVR))
    I("v_add_u32 v%d, %d, v%d" % (V_RVR, L_RV, V_RVR))
    I("v_lshrrev_b32 v%d, 2, v%d" % (t1, n))
    I("v_and_b32 v%d, 3, v%d" % (t0, n))
    I("v_lshl_add_u32 v%d, v%d, 3, v%d" % (t1, t1, t0))
    I("v_add_u32 v%d, %d, v%d" % (V_KFR, L_KV, V_LIN))
    I("v_add_u32 v%d, %d, v%d" % (V_VTR, L_KV + 2048, V_LIN))
    I("v_lshlrev_b32 v%d, 4, v%d" % (V_VMW, t1))
    I("v_lshl_add_u32 v%d, v%d, 9, v%d" % (V_VTLD, g, V_VMW))
    I("v_lshl_add_u32 v%d, v%d, 2, v%d" % (V_VMW, g, V_VMW))
    I("v_add_u32 v%d, %d, v%d" % (V_VMW, L_VM, V_VMW))
    for xo in range(4):
        I("s_add_u32 s%d, s%d, %d" % (S_T1, S_X, xo))
        I("s_and_b32 s%d, s%d, 3" % (S_T1, S_T1))
        I("s_lshl_b32 s%d, s%d, 18" % (S_T1, S_T1))
        I("s_lshr_b32 s%d, s%d, 1" % (S_T2, S_J))
        I("s_lshl_b32 s%d, s%d, 14" % (S_T2, S_T2))
        I("s_add_u32 s%d, s%d, s%d" % (S_T1, S_T1, S_T2))
        I("s_and_b32 s%d, s%d, 1" % (S_T2, S_J))
        I("s_lshl_b32 s%d, s%d, 12" % (S_T2, S_T2))
        I("s_add_u32 s%d, s%d, s%d" % (S_T3 if xo == 0 else S_T1, S_T1, S_T2))
        I("v_lshl_add_u32 v%d, v%d, %d, s%d" % (V_PXST if xo == 0 else V_PXLD + xo - 1, l, 3 if PXB else 4, S_T3 if xo == 0 else S_T1))
    I("s_xor_b32 s%d, s%d, 0x%x" % (S_T1, S_T3, VROT << 13))
    I("v_add_u32 v%d, s%d, v%d" % (V_VTLD, S_T1, V_VTLD))
    I("v_add_u32 v%d, s%d, v%d" % (V_VMST, S_T1, V_LIN))
    I("v_and_b32 v%d, 8, v%d" % (t1, n))
    I("v_add_u32 v%d, v%d, v%d" % (t1, t1, n))
    I("v_lshlrev_b32 v%d, 4, v%d" % (V_KLD, t1))
    I("v_lshl_add_u32 v%d, v%d, 9, v%d" % (V_KLD, g, V_KLD))
    I("v_add_u32 v%d, s%d, v%d" % (V_KLD, S_T3, V_KLD))
    I("v_bfe_u32 v%d, v%d, 2, 1" % (t1, n))
    I("v_lshl_add_u32 v%d, v%d, 1, v%d" % (t0, t0, t1))
    I("v_cndmask_b32 v%d, v%d, v%d, s[%d:%d]" % (t0, n, t0, S_M8H, S_M8H + 1))
    I("v_lshlrev_b32 v%d, 4, v%d" % (V_KMST, t0))
    I("v_lshl_add_u32 v%d, v%d, 7, v%d" % (V_KMST, g, V_KMST))
    I("v_add_u32 v%d, s%d, v%d" % (V_KMST, S_T3, V_KMST))
    I("v_and_b32 v%d, 1, v%d" % (t1, t0))
    I("v_lshlrev_b32 v%d, 4, v%d" % (t1, t1))
    I("v_mov_b32 v%d, 0x3f80" % t2)
    I("v_lshlrev_b32 v%d, v%d, v%d" % (t2, t1, t2))
    I("v_lshrrev_b32 v%d, 2, v%d" % (t1, t0))
    I("v_xor_b32 v%d, v%d, v%d" % (t1, t1, g))
    I("v_and_b32 v%d, 1, v%d" % (t1, t1))
    I("v_bfe_u32 v%d, v%d, 1, 1" % (t0, t0))
    I("v_lshl_add_u32 v%d, v%d, 2, v%d" % (t0, t1, t0))
    I("v_lshrrev_b32 v%d, 3, v%d" % (t1, n))
    I("v_lshl_add_u32 v%d, v%d, 1, v%d" % (t0, t1, t0))
    for r in range(4):
        I("v_cmp_eq_u32 vcc, %d, v%d" % (r, t0))
        I("s_nop 1")
        I("v_cndmask_b32 v%d, 0, v%d, vcc" % (V_SEL + r, t2))


def load_weights(a):
    I = a.I
    a.C("---- load weights")
    t0, t1, va, vg, vg2 = V_PT, V_PT + 1, V_PT + 2, V_PT + 3, V_PT + 4
    vq, vo, vw = 240, 242, 244
    I("v_bfe_u32 v%d, v0, 4, 2" % t0)
    I("v_lshlrev_b32 v%d, 1, v%d" % (va, t0))
    I("v_bfe_u32 v%d, v0, 2, 1" % t0)
    I("v_add_u32 v%d, v%d, v%d" % (va, va, t0))
    I("v_bfe_u32 v%d, v0, 3, 1" % t0)
    I("v_lshl_add_u32 v%d, v%d, 3, v%d" % (va, t0, va))
    I("v_lshrrev_b32 v%d, 6, v0" % t0)
    I("v_lshl_add_u32 v%d, v%d, 8, v%d" % (va, t0, va))
    I("v_and_b32 v%d, 3, v0" % t1)
    I("v_lshlrev_b32 v%d, 13, v%d" % (vg, va))
    I("v_lshl_add_u32 v%d, v%d, 4, v%d" % (vg, t1, vg))
    I("s_lshl_b32 s%d, s%d, 1" % (S_T1, S_T0))
    I("v_add_u32 v%d, s%d, v%d" % (vg, S_T1, vg))
    I("s_lshl_b32 s%d, s%d, 10" % (S_T1, S_X))
    I("v_add_u32 v%d, s%d, v%d" % (vg2, S_T1, va))
    I("v_lshlrev_b32 v%d, 11, v%d" % (vg2, vg2))
    I("v_lshl_add_u32 v%d, v%d, 4, v%d" % (vg2, t1, vg2))
    I("s_xor_b32 s%d, s%d, %d" % (S_T1, S_J, OROT))
    I("s_lshl_b32 s%d, s%d, 6" % (S_T1, S_T1))
    I("v_add_u32 v%d, s%d, v%d" % (vg2, S_T1, vg2))
    I("v_bfe_u32 v%d, v0, 4, 2" % t0)
    I("v_lshlrev_b32 v%d, 3, v%d" % (t0, t0))
    I("v_bfe_u32 v%d, v0, 2, 2" % vo)
    I("v_add_u32 v%d, v%d, v%d" % (t0, t0, vo))
    I("v_lshlrev_b32 v%d, 6, v%d" % (vo, t0))
    I("v_lshrrev_b32 v%d, 6, v0" % t0)
    I("v_lshl_add_u32 v%d, v%d, 14, v%d" % (vo, t0, vo))
    I("v_lshl_add_u32 v%d, v%d, 3, v%d" % (vq, t1, vo))
    I("v_and_b32 v%d, 2, v%d" % (vq + 1, t1))
    I("v_lshl_add_u32 v%d, v%d, 3, v%d" % (vq, vq + 1, vq))
    I("v_lshl_add_u32 v%d, v%d, 4, v%d" % (vo, t1, vo))
    I("v_add_u32 v%d, 0x10000, v%d" % (vq + 1, vq))
    I("v_add_u32 v%d, 0x10000, v%d" % (vo + 1, vo))
    I("v_lshl_add_u32 v%d, v%d, 14, v%d" % (vw, t0, V_LIN))
    I("v_add_u32 v%d, 0x10000, v%d" % (vw + 1, vw))
    I("s_lshl_b32 s%d, s%d, 14" % (S_T2, S_W))
    I("s_add_u32 s%d, s%d, %d" % (S_T2, S_T2, L_STAGE))

    nt = lambda src: " nt" if E("NTC", 0) >> (src - B_WQ) & 1 else ""

    TH = E("THR", 0)
    I("s_and_b32 s%d, s%d, 14" % (S_T3, S_J))
    I("s_cmp_eq_u32 s%d, 6" % S_T3)
    I("s_cselect_b64 vcc, 0, -1")

    def throttle():
        if TH:
            lab = a.uid("L_th")
            I("s_cbranch_vccz %s" % lab)
            I("s_waitcnt vmcnt(%d)" % TH)
            a.L(lab)

    def soff(i, stride):
        throttle()
        I("s_add_u32 s%d, s%d, %d" % (S_T3, S_ROT, i >> 2))
        I("s_and_b32 s%d, s%d, 3" % (S_T3, S_T3))
        I("s_lshl_b32 s%d, s%d, 2" % (S_T3, S_T3))
        I("s_add_u32 s%d, s%d, %d" % (S_T3, S_T3, i & 3))
        I("s_mul_i32 s%d, s%d, %d" % (S_T3, S_T3, 16 * stride))

    def issue(src, half, vaddr, stride):
        a.srd(S_TMPSRD, ptr(src), 0, 8 * MB)
        for i in range(16):
            I("s_add_u32 m0, s%d, %d" % (S_T2, half * 65536 + i * 1024))
            soff(i, stride)
            I("buffer_load_dwordx4 v%d, s[%d:%d], s%d offen%s lds" % (vaddr, S_TMPSRD, S_TMPSRD + 3, S_T3, nt(src)))

    def issue_reg(src, vbase, vaddr, stride):
        a.srd(S_TMPSRD, ptr(src), 0, 8 * MB)
        for i in range(16):
            soff(i, stride)
            I("buffer_load_dwordx4 %s, v%d, s[%d:%d], s%d offen%s" % (vr4(vbase + 4 * i), vaddr, S_TMPSRD, S_TMPSRD + 3, S_T3, nt(src)))

    def reg_to_lds(vbase, half):
        for i in range(16):
            I("ds_write_b128 v%d, %s offset:%d" % (vw + half, vr4(vbase + 4 * i), L_STAGE + i * 1024))
        I("s_waitcnt lgkmcnt(0)")

    def reads(areg, half, va_, tstep):
        for b in range(4):
            for t in range(2):
                d = areg(t, b)
                for u, o in enumerate((0, 256, 2048, 2304)):
                    off = L_STAGE + b * 4096 + o + t * tstep
                    I("ds_read_b64_tr_b16 a[%d:%d], v%d offset:%d" % (d + 2 * u, d + 2 * u + 1, va_ + half, off))
            I("s_waitcnt lgkmcnt(0)")
    RV_, RO_ = 112, 48
    vgv = V_PT + 5
    I("v_xor_b32 v%d, %d, v%d" % (vgv, 64 * VROT, vg))
    M = {'q': (B_WQ, vg, 8192, lambda t, b: a_qkv(0, t, b), vq, 16), 'k': (B_WK, vg, 8192, lambda t, b: a_qkv(1, t, b), vq, 16),
         'v': (B_WV, vgv, 8192, lambda t, b: a_qkv(2, t, b), vo, 8), 'o': (B_WO, vg2, 2048, a_wo, vo, 8)}
    def early():
        a.srd(S_TMPSRD, ptr(B_MEM0), 0, 16384)
        I("buffer_load_dwordx2 %s, v%d, s[%d:%d], 0 offen" % (vr2(V_L), V_M0LD, S_TMPSRD, S_TMPSRD + 3))
        a.srd(S_TMPSRD, ptr(D_DBG), 0, 256)
        I("v_mov_b32 v%d, 0" % V_SMP)
        I("buffer_load_dwordx4 %s, v%d, s[%d:%d], 0 offen sc1" % (vr4(V_L + 4), V_SMP, S_TMPSRD, S_TMPSRD + 3))

    def order(word):
        m = [M[c] for c in word]
        issue(m[0][0], 0, m[0][1], m[0][2])
        issue(m[1][0], 1, m[1][1], m[1][2])
        issue_reg(m[2][0], RV_, m[2][1], m[2][2])
        I("s_waitcnt vmcnt(32)")
        issue_reg(m[3][0], RO_, m[3][1], m[3][2])
        early()
        reads(m[0][3], 0, *m[0][4:])
        I("s_waitcnt vmcnt(34)")
        reads(m[1][3], 1, *m[1][4:])
        I("s_waitcnt vmcnt(18)")
        reg_to_lds(RV_, 0)
        reads(m[2][3], 0, *m[2][4:])
        I("s_waitcnt vmcnt(0)")
        reg_to_lds(RO_, 1)
        reads(m[3][3], 1, *m[3][4:])
    w1, w2 = os.environ.get("WORD", "kvqo"), os.environ.get("WORD2", "kvqo")
    if w1 == w2:
        order(w1)
    else:
        l2, le = a.uid("L_wo2"), a.uid("L_woe")
        I("s_cbranch_vccz %s" % l2)
        order(w1)
        I("s_branch %s" % le)
        a.L(l2)
        order(w2)
        a.L(le)
    t2 = V_PT + 2
    I("v_bfe_u32 v%d, v0, 1, 1" % t1)
    I("v_lshlrev_b32 v%d, 4, v%d" % (t1, t1))
    I("v_mov_b32 v%d, 0x3f80" % t2)
    I("v_lshlrev_b32 v%d, v%d, v%d" % (t2, t1, t2))
    I("v_bfe_u32 v%d, v0, 3, 1" % t0)
    I("v_bfe_u32 v%d, v0, 4, 1" % t1)
    I("v_xor_b32 v%d, v%d, v%d" % (t1, t1, t0))
    I("v_bfe_u32 v%d, v0, 2, 1" % t0)
    I("v_lshl_add_u32 v%d, v%d, 2, v%d" % (t0, t1, t0))
    I("v_and_b32 v%d, 1, v0" % t1)
    I("v_lshl_add_u32 v%d, v%d, 1, v%d" % (t0, t1, t0))
    for r in range(4):
        I("v_cmp_eq_u32 vcc, %d, v%d" % (r, t0))
        I("s_nop 1")
        I("v_cndmask_b32 v%d, 0, v%d, vcc" % (V_SEL2 + r, t2))
    for i in range(24):
        I("v_mov_b32 v%d, 0" % (V_ACC + i))
    for r in (V_VM + 1, V_VM + 3, V_PM + 1):
        I("v_mov_b32 v%d, 0" % r)


def kv_prefetch(a, parts=(0, 1, 2, 3)):
    I = a.I
    for i, (va, off) in enumerate(((V_KLD, 0), (V_KLD, 128), (V_VTLD, 2048), (V_VTLD, 2048 + 64))):
        if i not in parts:
            continue
        I("s_add_u32 m0, s%d, %d" % (S_LKV, i * 1024 - off))
        I("s_nop 0")
        I("buffer_load_dwordx4 v%d, %s, s%d offen offset:%d lds" % (va, W, S_KV, off))
    I("s_xor_b32 s%d, s%d, 4096" % (S_LKV, S_LKV))


def cnt_wait(a, kind, s_seg=None):
    I = a.I
    if 'nowork' in ABL and kind != 'init':
        return
    rt, ok = a.uid("L_dw"), a.uid("L_dwok")
    if kind != 'init':
        I("s_lshl_b32 s%d, s%d, 7" % (S_T1, s_seg))
    if kind == 'kv':
        I("s_add_u32 s%d, s%d, 0x%x" % (S_T1, S_T1, C_KV))
    I("v_mov_b32 v%d, 0" % V_SMP)
    a.L(rt)
    if kind == 'init':
        I("buffer_load_dword v%d, v%d, s[%d:%d], 0 offen sc1" % (V_SMP + 1, V_SMP, S_TMPSRD, S_TMPSRD + 3))
    elif kind == 'kv':
        I("buffer_load_dword v%d, v%d, %s, s%d offen sc1" % (V_SMP + 1, V_SMP, W, S_T1))
    else:
        I("s_load_dword s%d, s[%d:%d], s%d glc" % (S_T0, S_CKV, S_CKV + 1, S_T1))
    I("s_add_u32 s%d, s%d, 1" % (S_SPIN, S_SPIN))
    I("s_cmp_gt_u32 s%d, 0x%x" % (S_SPIN, SPIN_LIMIT))
    I("s_waitcnt lgkmcnt(0)" if kind == 'kvs' else "s_waitcnt vmcnt(0)")
    I("s_cbranch_scc1 %s" % ABORT[0])
    if kind != 'kvs':
        I("v_readfirstlane_b32 s%d, v%d" % (S_T0, V_SMP + 1))
    if kind == 'init':
        I("s_and_b32 s%d, s%d, 0xffff" % (S_T2, S_T0))
        I("s_cmp_ge_u32 s%d, 256" % S_T2)
    else:
        I("s_cmp_ge_u32 s%d, 64" % S_T0)
    I("s_cbranch_scc1 %s" % ok)
    I("s_sleep 2")
    I("s_branch %s" % rt)
    a.L(ok)


def publish_kv(a, soff, qk):
    I = a.I
    if qk is None:
        qk = V_R
        I("ds_read_b128 %s, v%d offset:%d" % (vr4(V_R), V_LIN, L_KM))
    I("ds_read_b128 %s, v%d offset:%d" % (vr4(V_R + 4), V_LIN, L_VM))
    exec_(a, S_M8H)
    I("s_waitcnt lgkmcnt(1)")
    I("buffer_store_dwordx4 %s, v%d, %s, s%d offen offset:%d sc1" % (vr4(qk), V_KMST, W, soff, KM_OFF))
    exec_(a, S_L32)
    I("s_waitcnt lgkmcnt(0)")
    I("buffer_store_dwordx4 %s, v%d, %s, s%d offen offset:%d sc1" % (vr4(V_R + 4), V_VMST, W, soff, VM_OFF))
    exec_(a, None)


def slots(step=S_STEP):
    return ["s_and_b32 s%d, s%d, 3" % (S_T0, step),
            "s_lshl_b32 s%d, s%d, 16" % (S_T1, S_T0),
            "s_add_u32 s%d, s%d, s%d" % (S_MEMC, S_BMEM, S_T1),
            "s_add_u32 s%d, s%d, 0x%x" % (S_OX, S_MEMC, X_OX - X_MEM),
            "s_lshl_b32 s%d, s%d, 18" % (S_T1, S_T0),
            "s_add_u32 s%d, s%d, s%d" % (S_SX, S_BSX, S_T1),
            "s_add_u32 s%d, s%d, 0x%x" % (S_PX, S_KV, WS_P - WS_B),
            "s_add_u32 s%d, s%d, 1" % (S_T1, step),
            "s_bitcmp1_b32 s%d, 1" % S_T1,
            "s_cselect_b32 s%d, s%d, s%d" % (S_KV, S_PXB2, S_PXB),
            "s_lshl_b32 s%d, s%d, 20" % (S_T1, S_T1),
            "s_add_u32 s%d, s%d, s%d" % (S_KV, S_KV, S_T1),
            "s_add_u32 s%d, s%d, 1" % (S_T0, S_T0),
            "s_and_b32 s%d, s%d, 3" % (S_T0, S_T0),
            "s_lshl_b32 s%d, s%d, 16" % (S_T0, S_T0),
            "s_add_u32 s%d, s%d, s%d" % (S_MEMN, S_BMEM, S_T0)]


def smf(c, w, b):
    return "v_smfmac_f32_16x16x64_bf16 %s, %s, a[%d:%d], v%d" % (vr4(c), vr4(V_M + 4 * b), w, w + 7, V_IDX)


def mfma32(d, x, y, c=None):
    return "v_mfma_f32_16x16x32_bf16 %s, %s, %s, %s" % (vr4(d), vr4(x), vr4(y), "0" if c is None else vr4(c))


def mfma16(d, x, y):
    return "v_mfma_f32_16x16x16_bf16 %s, %s, %s, 0" % (vr4(d), vr2(x), vr2(y))


def cvt(d, x, y):
    return "v_cvt_pk_bf16_f32 v%d, v%d, v%d" % (d, x, y)


def step_loop(a, name, lsc):
    I = a.I
    loop, done = a.uid("L_step"), name + "_done"
    Lh1, Lb3, Lh2, Lb4, Lfin = (a.uid(x) for x in ("L_help1", "L_bar3", "L_help2", "L_bar4", "L_fin"))
    a.L(loop)
    a.C("==== A: gather the memory, q / k projection partials")
    nops(a, D_A)
    zo = ["v_mov_b32 v%d, 0" % (V_OA + i) for i in range(8)]
    kx = ["ds_read_b128 %s, v%d" % (vr4(V_KX), V_KFR), "ds_read_b128 %s, v%d offset:1024" % (vr4(V_KX + 4), V_KFR),
          "v_xor_b32 v%d, 0x1000, v%d" % (V_KFR, V_KFR)]
    gather(a, S_MEMC, lambda b: [smf(acc(M, t), a_qkv(M, t, b), b) for t in range(2) for M in range(2)], "a", zo + kx)
    stamp(a, 1)
    a.C("---- B: round the partials, transpose them with a selection MFMA (also adds the two K halves)")
    q0, k0, q1, k1 = acc(0, 0), acc(1, 0), acc(0, 1), acc(1, 1)
    I(cvt(V_TA, q0, q0 + 1))
    I(cvt(V_TA + 1, q0 + 2, q0 + 3))
    I(cvt(V_TA + 2, k0, k0 + 1))
    I(cvt(V_TA + 3, k0 + 2, k0 + 3))
    I("s_cmp_lg_u32 s%d, 0" % S_W)
    I(cvt(V_TA + 4, q1, q1 + 1))
    I(mfma32(V_TD, V_TA, V_SEL))
    I(cvt(V_TA + 5, q1 + 2, q1 + 3))
    I(cvt(V_TA + 6, k1, k1 + 1))
    I(cvt(V_TA + 7, k1 + 2, k1 + 3))
    I("s_nop 1")
    I(mfma32(V_TD + 4, V_TA + 4, V_SEL))
    I("s_cbranch_scc0 %s" % (Lh1 + "_w0"))
    I("s_nop 0")
    I("ds_write_b128 v%d, %s" % (V_TW, vr4(V_TD)))
    I("s_nop 4")
    I("ds_write_b128 v%d, %s offset:1024" % (V_TW, vr4(V_TD + 4)))
    I("s_waitcnt lgkmcnt(0)")
    I("s_barrier")
    def local_poison():
        a.C("---- wave 2: poison the exchange slots everybody is done with")
        lpe = a.uid("L_poe")
        I("s_cmp_lg_u32 s%d, 2" % S_W)
        I("s_cbranch_scc1 %s" % lpe)
        I("s_sub_u32 s%d, s%d, 1" % (S_T0, S_STEP))
        I("s_and_b32 s%d, s%d, 3" % (S_T0, S_T0))
        I("s_lshl_b32 s%d, s%d, 16" % (S_T1, S_T0))
        I("s_add_u32 s%d, s%d, s%d" % (S_T1, S_T1, S_BMEM))
        I("s_add_u32 s%d, s%d, 0x%x" % (S_T2, S_T1, X_OX - X_MEM))
        I("s_lshl_b32 s%d, s%d, 18" % (S_T3, S_T0))
        I("s_add_u32 s%d, s%d, s%d" % (S_T3, S_T3, S_BSX))
        I("buffer_store_dwordx2 %s, v%d, %s, s%d offen%s" % (vr2(V_SENT), V_MEMST, W, S_T1, lsc))
        I("buffer_store_dwordx2 %s, v%d, %s, s%d offen%s" % (vr2(V_SENT), V_OXPO, W, S_T2, lsc))
        I("buffer_store_dwordx4 %s, v%d, %s, s%d offen%s" % (vr4(V_SENT), V_SXST, W, S_T3, lsc))
        exec_(a, S_MM)
        I("buffer_store_dwordx4 %s, v%d, %s, s%d offen%s" % (vr4(V_SENT), V_SXM, W, S_T3, lsc))
        exec_(a, None)
        a.L(lpe)
    if E("LPOI", 1) == 0:
        local_poison()
    vp = [smf(acc(2, t), a_qkv(2, t, b), b) for b in range(4) for t in range(2)]
    for l in vp:
        I(l)
    I("s_nop 4")
    I("ds_write_b128 v%d, %s" % (V_RVW, vr4(acc(2, 0))))
    I("s_nop 1")
    I("ds_write_b128 v%d, %s offset:512" % (V_RVW, vr4(acc(2, 1))))
    I("s_waitcnt lgkmcnt(0)")
    lv, L2b = a.uid("L_vred"), a.uid("L_bar2b")
    a.L(L2b + "_2")
    I("s_barrier")
    I("s_cmp_eq_u32 s%d, 1" % S_W)
    I("s_cbranch_scc1 %s" % lv)
    a.L(L2b)
    I("s_waitcnt lgkmcnt(0)")
    I("s_barrier")
    I("s_cmp_eq_u32 s%d, 63" % S_STEP)
    I("s_cbranch_scc1 %s" % Lfin)
    if E("LPOI", 1) == 1:
        local_poison()
    if PUBW == 2 and 'nopub' not in ABL:
        lq = a.uid("L_np")
        I("s_cmp_lg_u32 s%d, 2" % S_W)
        I("s_cbranch_scc1 %s" % lq)
        publish_kv(a, S_PX, None)
        a.L(lq)
    I("s_cmp_lg_u32 s%d, 3" % S_W)
    I("s_cbranch_scc1 %s" % Lb3)
    a.C("---- wave 3: k_x / v_x^T of the next step -> LDS")
    lg0 = a.uid("L_gated")
    I("s_cmp_ge_u32 s%d, 2" % S_STEP)
    I("s_cbranch_scc1 %s" % lg0)
    I("s_add_u32 s%d, s%d, 1" % (S_T3, S_STEP))
    cnt_wait(a, 'kv', S_T3)
    a.L(lg0)
    if 'nokv' not in ABL:
        kv_prefetch(a, (0, 1, 2, 3) if KVW == 0 else (0, 1))
    I("s_branch %s" % Lb3)
    a.L(lv)
    a.C("---- wave 1: v_m = sum of the 8 partial planes")
    for p in range(8):
        for t in range(2):
            I("ds_read_b64 %s, v%d offset:%d" % (vr2(V_R + 4 * p + 2 * t), V_RVR, p * 1024 + t * 512))
            if p == 7 and t == 0:
                I("s_waitcnt lgkmcnt(11)")
    I("s_waitcnt lgkmcnt(8)")
    for (d, s_) in ((0, 1), (2, 3), (0, 2)):
        for t in range(2):
            pk(a, V_R + 4 * d + 2 * t, V_R + 4 * d + 2 * t, V_R + 4 * s_ + 2 * t)
    I("s_waitcnt lgkmcnt(0)")
    for (d, s_) in ((4, 5), (6, 7), (0, 4), (0, 6)):
        for t in range(2):
            pk(a, V_R + 4 * d + 2 * t, V_R + 4 * d + 2 * t, V_R + 4 * s_ + 2 * t)
    I(cvt(V_VM, V_R, V_R + 1))
    I(cvt(V_VM + 2, V_R + 2, V_R + 3))
    I("ds_write2_b32 v%d, v%d, v%d offset0:0 offset1:16" % (V_VMW, V_VM, V_VM + 2))
    I("s_branch %s" % L2b)
    a.L(Lh1 + "_w0")
    for l in vp:
        I(l)
    I("s_nop 4")
    I("ds_write_b128 v%d, %s" % (V_RVW, vr4(acc(2, 0))))
    I("s_nop 1")
    I("ds_write_b128 v%d, %s offset:512" % (V_RVW, vr4(acc(2, 1))))
    I("s_barrier")
    stamp(a, 2)
    for w in range(1, 4):
        for t in range(2):
            I("ds_read_b128 %s, v%d offset:%d" % (vr4(V_R + 8 * (w - 1) + 4 * t), V_LIN, L_T + w * 2048 + t * 1024))
    for w in range(3):
        I("s_waitcnt lgkmcnt(%d)" % (4 - 2 * w))
        for i in range(0, 8, 2):
            pk(a, V_TD + i, V_TD + i, V_R + 8 * w + i)
    for i in range(4):
        I(cvt(V_QK + i, V_TD + 2 * i, V_TD + 2 * i + 1))
    exec_(a, S_MM)
    I("s_nop 0")
    I(mfma32(V_SM, V_QK, V_QK))
    I(mfma32(V_S0, V_KX, V_QK))
    I(mfma32(V_S1, V_KX + 4, V_QK))
    I("s_nop 3")
    I("buffer_store_dwordx4 %s, v%d, %s, s%d offen%s" % (vr4(V_SM), V_SXM, W, S_SX, lsc))
    exec_(a, S_M8)
    I("buffer_store_dwordx4 %s, v%d, %s, s%d offen%s" % (vr4(V_S0), V_SXST, W, S_SX, lsc))
    I("s_nop 0")
    I("buffer_store_dwordx4 %s, v%d, %s, s%d offen offset:128%s" % (vr4(V_S1), V_SXST, W, S_SX, lsc))
    exec_(a, None)
    stamp(a, 3)
    B2L = E("B2L", 1)
    if not B2L:
        I("s_barrier")
    a.C("---- C: partial scores of the other three workgroups of the head")
    I("ds_write_b128 v%d, %s offset:%d" % (V_LIN, vr4(V_QK), L_KM))
    for t in range(2):
        I("ds_read_b128 %s, v%d offset:%d" % (vr4(V_VT + 4 * t), V_VTR, t * 1024))
    for i in range(4):
        I("v_mov_b32_dpp v%d, v%d row_shr:8 row_mask:0xf bank_mask:0xc" % (V_S0 + i, V_S1 + i))
    I("v_xor_b32 v%d, 0x1000, v%d" % (V_VTR, V_VTR))
    I("s_cmp_eq_u32 s%d, 63" % S_STEP)
    I("s_cbranch_scc1 %s" % (L2b + "_2" if B2L else L2b))
    nops(a, D_C)

    def sx_loads(r):
        b = V_L + 16 * r
        return ["buffer_load_dwordx4 %s, v%d, %s, s%d offen sc1" % (vr4(b), V_SXLM, W, S_SX)] + \
               ["buffer_load_dwordx4 %s, v%d, %s, s%d offen sc1" % (vr4(b + 4 + 4 * k), V_SXLD + k, W, S_SX) for k in range(3)]
    for r in range(NSC):
        for l in sx_loads(r):
            I(l)
        if r == 0 and B2L:
            I("s_barrier")
        if r < NSC - 1:
            nops(a, G_C)
    cok = a.uid("L_cok")

    def sx_sum(out, r, nlater):
        b = V_L + 16 * r
        P = lambda d, x, y: "v_pk_add_f32 %s, %s, %s" % (vr2(d), vr2(x), vr2(y))
        out += ["s_waitcnt vmcnt(%d)" % (3 + nlater),
                "v_permlane32_swap_b32 v%d, v%d" % (b, b + 2),
                "v_permlane32_swap_b32 v%d, v%d" % (b + 1, b + 3),
                "s_waitcnt vmcnt(%d)" % (2 + nlater),
                P(V_X + 1, b, b + 2),
                P(V_T, V_S0, b + 4),
                P(V_T + 2, V_S0 + 2, b + 6),
                "v_permlane16_swap_b32 v%d, v%d" % (V_X + 1, V_X + 2),
                "s_waitcnt vmcnt(%d)" % (1 + nlater),
                P(V_T, V_T, b + 8),
                P(V_T + 2, V_T + 2, b + 10),
                "v_add_f32 v%d, v%d, v%d" % (V_TM, V_X + 1, V_X + 2),
                "s_waitcnt vmcnt(%d)" % nlater,
                P(V_T, V_T, b + 12),
                P(V_T + 2, V_T + 2, b + 14),
                P(V_X + 1, V_T, V_T + 2),
                "v_add_f32 v%d, v%d, v%d" % (V_X + 1, V_X + 1, V_TM),
                "v_cmp_u_f32 vcc, v%d, v%d" % (V_X + 1, V_X + 2)]
    hot = []
    sx_sum(hot, 0, 4 * (NSC - 1))
    for l in hot:
        I(l)
    cf = a.uid("L_cf")
    COLD.append(cf + ":")
    if STAMP == 3:
        COLD.append("    s_add_u32 s%d, s%d, 1" % (S_ACC + 3, S_ACC + 3))
    rot_poll(a, NSC, sx_loads, sx_sum, range(V_L, V_L + 16), cok, E('CRE', 1))
    vals = [V_T, V_T + 1, V_T + 2, V_T + 3, V_TM]
    mx, t1 = V_X + 1, V_X + 3
    if EMU:
        head = ["v_cvt_pk_bf16_f32 v%d, 0, v%d" % (V_PB + i if i < 4 else V_SUM, v) for i, v in enumerate(vals)]
    else:
        head = ["v_max3_f32 v%d, v%d, v%d, v%d" % (mx, V_T, V_T + 1, V_T + 2),
                "v_max3_f32 v%d, v%d, v%d, v%d" % (mx, mx, V_T + 3, V_TM),
                "s_nop 1",
                "v_max_f32_dpp v%d, v%d, v%d row_ror:8 row_mask:0xf bank_mask:0xf" % (mx, mx, mx)]
    for l in head:
        I(l)
    I("s_cbranch_vccnz %s" % cf)
    lskip = a.uid("L_chead")
    COLD.append(cok + ":")
    COLD.extend("    " + l for l in head)
    COLD.append("    s_branch %s" % lskip)
    a.L(lskip)
    stamp(a, 4)
    a.C("---- D: softmax and P V")
    nops(a, E("CHPAD", 0))
    if EMU:
        I("v_pk_mul_f32 %s, %s, s[%d:%d]" % (vr2(V_T), vr2(V_PB), S_SCL, S_SCL + 1))
        I("v_pk_mul_f32 %s, %s, s[%d:%d]" % (vr2(V_T + 2), vr2(V_PB + 2), S_SCL, S_SCL + 1))
        I("v_mul_f32 v%d, s%d, v%d" % (V_TM, S_SCL, V_SUM))
        for v in vals:
            I("v_cvt_pk_bf16_f32 v%d, 0, v%d" % (v, v))
        I("v_max3_f32 v%d, v%d, v%d, v%d" % (mx, V_T, V_T + 1, V_T + 2))
        I("v_max3_f32 v%d, v%d, v%d, v%d" % (mx, mx, V_T + 3, V_TM))
        I("s_nop 1")
        I("v_max_f32_dpp v%d, v%d, v%d row_ror:8 row_mask:0xf bank_mask:0xf" % (mx, mx, mx))
    for sw in ("v_permlane16_swap_b32", "v_permlane32_swap_b32"):
        I("v_mov_b32 v%d, v%d" % (t1, mx))
        if "16" in sw:
            I("s_waitcnt lgkmcnt(0)")
            I("s_barrier")
        else:
            I("ds_read_b32 v%d, v%d" % (V_VM, V_VMW))
            I("ds_read_b32 v%d, v%d offset:64" % (V_VM + 2, V_VMW))
        I("%s v%d, v%d" % (sw, mx, t1))
        I("v_max_f32 v%d, v%d, v%d" % (mx, mx, t1))
    if B3P == 2:
        I("s_barrier")
    I("v_mul_f32 v%d, s%d, v%d" % (mx, S_C, mx))
    I("v_fma_f32 v%d, v%d, s%d, -v%d" % (V_TM, V_TM, S_C, mx))
    pf = "v_pk_fma_f32 %s, %s, s[%d:%d], %s op_sel_hi:[1,1,0] neg_lo:[0,0,1] neg_hi:[0,0,1]"
    I("v_exp_f32 v%d, v%d" % (V_TM, V_TM))
    I(pf % (vr2(V_T), vr2(V_T), S_C, S_C + 1, vr2(mx)))
    I(pf % (vr2(V_T + 2), vr2(V_T + 2), S_C, S_C + 1, vr2(mx)))
    I("v_mov_b32_dpp v%d, v%d row_ror:8 row_mask:0xf bank_mask:0xf" % (t1, V_TM))
    I("v_exp_f32 v%d, v%d" % (V_T, V_T))
    I(cvt(V_PM, V_TM, t1))
    I("v_exp_f32 v%d, v%d" % (V_T + 1, V_T + 1))
    I("v_exp_f32 v%d, v%d" % (V_T + 2, V_T + 2))
    I(mfma16(V_SUM, V_ONE, V_PM))
    I("v_exp_f32 v%d, v%d" % (V_T + 3, V_T + 3))
    I("s_waitcnt lgkmcnt(0)")
    I(cvt(V_PB, V_T, V_T + 1))
    I(mfma16(V_O, V_VM, V_PM))
    I(cvt(V_PB + 1, V_T + 2, V_T + 3))
    I("v_mov_b32_dpp v%d, v%d row_ror:8 row_mask:0xf bank_mask:0xf" % (V_PB + 2, V_PB))
    I(mfma16(V_O + 4, V_VM + 2, V_PM))
    I("v_mov_b32_dpp v%d, v%d row_ror:8 row_mask:0xf bank_mask:0xf" % (V_PB + 3, V_PB + 1))
    I("s_nop 0")
    exec_(a, S_M8)
    I(mfma32(V_SUM, V_ONE, V_PB, V_SUM))
    I(mfma32(V_O, V_VT, V_PB, V_O))
    I(mfma32(V_O + 4, V_VT + 4, V_PB, V_O + 4))
    if B3P == 1:
        I("s_barrier")
        I("s_nop 2")
    else:
        I("s_nop 3")
    I("v_rcp_f32 v%d, v%d" % (V_SUM, V_SUM))
    I("s_nop 0")
    pm = "v_pk_mul_f32 %s, %s, %s op_sel_hi:[1,0]"
    I(pm % (vr2(V_O), vr2(V_O), vr2(V_SUM)))
    I(pm % (vr2(V_O + 2), vr2(V_O + 2), vr2(V_SUM)))
    I(pm % (vr2(V_O + 4), vr2(V_O + 4), vr2(V_SUM)))
    I(pm % (vr2(V_O + 6), vr2(V_O + 6), vr2(V_SUM)))
    for i in range(4):
        I(cvt(V_OB + i, V_O + 2 * i, V_O + 2 * i + 1))
    I("buffer_store_dwordx4 %s, v%d, %s, s%d offen%s" % (vr4(V_OB), V_OXST, W, S_OX, lsc))
    exec_(a, None)
    stamp(a, 5)
    if B3P == 0:
        I("s_barrier")
    nops(a, max(D_E - 4, 0))
    I("s_branch %s" % (Lb3 + "_e"))
    a.L(Lb3)
    I("s_waitcnt lgkmcnt(0)")
    I("s_barrier")
    nops(a, H_E + 4)
    a.L(Lb3 + "_e")
    a.C("==== E: gather the attention output of the XCD's heads, output projection partials")
    za = ["v_mov_b32 v%d, 0" % (V_ACC + i) for i in range(24)]
    gather(a, S_OX, lambda b: [smf(V_OA + 4 * ct, a_wo(ct, b), b) for ct in range(2)], "e", za)
    stamp(a, 6)
    I("s_add_u32 s%d, s%d, 1" % (S_STEP, S_STEP))
    I("s_cmp_lg_u32 s%d, 0" % S_W)
    I("s_nop 2")
    I(cvt(V_TA, V_OA, V_OA + 1))
    I(cvt(V_TA + 1, V_OA + 2, V_OA + 3))
    I("s_nop 0")
    I(cvt(V_TA + 2, V_OA + 4, V_OA + 5))
    I(cvt(V_TA + 3, V_OA + 6, V_OA + 7))
    I("s_nop 1")
    I(mfma32(V_TD, V_TA, V_SEL2))
    I("s_cbranch_scc1 %s" % Lh2)
    I("s_barrier")
    stamp(a, 7)
    a.C("---- F / G (wave 0): XCD partial -> PX, sum of the four partials -> MEMX")
    for w in range(1, 4):
        I("ds_read_b128 %s, v%d offset:%d" % (vr4(V_R + 4 * w), V_LIN, L_RO + w * 2048))
    for w in range(1, 4):
        I("s_waitcnt lgkmcnt(%d)" % (3 - w))
        src = V_TD if w == 1 else V_R
        pk(a, V_R, src, V_R + 4 * w)
        pk(a, V_R + 2, src + 2, V_R + 4 * w + 2)
    if PXB:
        I(cvt(V_TA, V_R, V_R + 1))
        I(cvt(V_TA + 1, V_R + 2, V_R + 3))
    for r in range(NREP):
        if PXB:
            I("buffer_store_dwordx2 %s, v%d, %s, s%d offen offset:%d sc1" % (vr2(V_TA), V_PXST, W, S_PX, r * 512))
        else:
            I("buffer_store_dwordx4 %s, v%d, %s, s%d offen offset:%d sc1" % (vr4(V_R), V_PXST, W, S_PX, r * 1024))
    stamp(a, 8)
    I("s_mov_b32 s%d, s%d" % (S_T2, S_PX))
    I("s_mov_b32 s%d, s%d" % (S_T3, S_MEMN))
    sl = slots()
    for l in sl:
        I(l)
    nops(a, max(D_G - len(sl) - 2, 0))

    def px_loads(r):
        if PXB:
            return ["buffer_load_dwordx2 %s, v%d, %s, s%d offen offset:%d sc1" % (vr2(V_L + 12 * r + 2 * k), V_PXLD + k, W, S_T2, r * 512) for k in range(3)]
        return ["buffer_load_dwordx4 %s, v%d, %s, s%d offen offset:%d sc1" % (vr4(V_L + 12 * r + 4 * k), V_PXLD + k, W, S_T2, r * 1024) for k in range(3)]
    for r in range(NREP):
        for l in px_loads(r):
            I(l)
        if r < NREP - 1:
            nops(a, G_G)

    NSH = 0
    if PUBW == 1 and 'nopub' not in ABL:
        publish_kv(a, S_T2, V_QK)
        NSH += 2
    if KVW == 2 and 'nokv' not in ABL:
        I("s_sub_u32 s%d, s%d, 0x%x" % (S_T0, S_PX, WS_P - WS_B))
        n0 = len(a.lines)
        kv_prefetch(a, (2, 3))
        a.lines[n0:] = [l.replace("s%d offen" % S_KV, "s%d offen" % S_T0) for l in a.lines[n0:]]
        NSH += 2

    def px_sum(out, r, nlater):
        b = V_L + 12 * r
        P = lambda d, x, y: "v_pk_add_f32 %s, %s, %s" % (vr2(d), vr2(x), vr2(y))
        for k in range(3 if PXB else 0):
            u = V_TA + 4
            out += ["s_waitcnt vmcnt(%d)" % (2 - k + nlater),
                    "v_lshlrev_b32 v%d, 16, v%d" % (u, b + 2 * k), "v_and_b32 v%d, 0xffff0000, v%d" % (u + 1, b + 2 * k),
                    "v_lshlrev_b32 v%d, 16, v%d" % (u + 2, b + 2 * k + 1), "v_and_b32 v%d, 0xffff0000, v%d" % (u + 3, b + 2 * k + 1),
                    P(V_T, V_R if k == 0 else V_T, u), P(V_T + 2, V_R + 2 if k == 0 else V_T + 2, u + 2)]
        if PXB:
            out += ["v_cmp_u_f32 vcc, v%d, v%d" % (V_T, V_T + 2), cvt(V_OB, V_T, V_T + 1), cvt(V_OB + 1, V_T + 2, V_T + 3)]
            return
        for k in range(3):
            out += ["s_waitcnt vmcnt(%d)" % (2 - k + nlater),
                    P(V_T, V_R if k == 0 else V_T, b + 4 * k),
                    P(V_T + 2, V_R + 2 if k == 0 else V_T + 2, b + 4 * k + 2)]
        out += [P(V_X + 1, V_T, V_T + 2),
                "v_cmp_u_f32 vcc, v%d, v%d" % (V_X + 1, V_X + 2),
                cvt(V_OB, V_T, V_T + 1), cvt(V_OB + 1, V_T + 2, V_T + 3)]
    if H_A >= 0:
        I("s_barrier")
    hot = []
    px_sum(hot, 0, 3 * (NREP - 1) + NSH)
    for l in hot:
        I(l)
    gf, gok, grt = a.uid("L_gf"), a.uid("L_gok"), a.uid("L_grt")
    I("s_cbranch_vccnz %s" % gf)
    a.L(gok)
    COLD.append(gf + ":")
    if STAMP == 3:
        COLD.append("    s_add_u32 s%d, s%d, 1" % (S_ACC + 4, S_ACC + 4))
    rot_poll(a, NREP, px_loads, px_sum, range(V_L, V_L + (6 if PXB else 12)), gok, False, NSH)
    I("buffer_store_dwordx2 %s, v%d, %s, s%d offen%s" % (vr2(V_OB), V_MEMST, W, S_T3, lsc))
    stamp(a, 9)
    if H_A < 0:
        I("s_barrier")
    if STAMP >= 2:
        I("s_cmp_lg_u32 s%d, 5" % S_STEP)
        I("s_cbranch_scc1 %s" % loop)
        I("s_memrealtime s[%d:%d]" % (S_ST, S_ST + 1))
        I("s_mov_b32 s%d, 0" % S_SPIN)
        I("s_branch %s" % loop)
    elif STAMP:
        I("s_waitcnt lgkmcnt(0)")
        for i in range(9):
            I("s_sub_u32 s%d, s%d, s%d" % (S_T0, S_ST + 2 * i + 2, S_ST + 2 * i))
            I("s_add_u32 s%d, s%d, s%d" % (S_ACC + i, S_ACC + i, S_T0))
        I("s_mov_b32 s%d, s%d" % (S_ST, S_ST + 18))
        I("s_cmp_lg_u32 s%d, 5" % S_STEP)
        I("s_cbranch_scc1 %s" % (loop + "_nd"))
        for i in range(9):
            I("s_mov_b32 s%d, 0" % (S_ACC + i))
        I("s_mov_b32 s%d, 0" % S_SPIN)
        I("s_branch %s" % (loop + "_nd"))
    else:
        I("s_branch %s" % loop)
    a.L(Lh2)
    I("s_nop 2")
    I("ds_write_b128 v%d, %s offset:%d" % (V_TW, vr4(V_TD), L_RO))
    I("s_waitcnt lgkmcnt(0)")
    I("s_barrier")
    for l in sl:
        I(l)
    l3 = a.uid("L_w3")
    I("s_cmp_eq_u32 s%d, 3" % S_W)
    I("s_cbranch_scc1 %s" % l3)
    a.C("---- wave 2 of one workgroup: one more segment's k_m / v_m are complete everywhere")
    I("s_xor_b32 s%d, s%d, 2" % (S_T0, S_W))
    I("s_or_b32 s%d, s%d, s%d" % (S_T0, S_T0, S_X))
    I("s_or_b32 s%d, s%d, s%d" % (S_T0, S_T0, S_J))
    I("s_cbranch_scc1 %s" % Lb4)
    I("s_cmp_lt_u32 s%d, %d" % (S_STEP, 3 if PUBW == 1 else 2))
    I("s_cbranch_scc1 %s" % Lb4)
    I("s_atomic_add s%d, s[%d:%d], 0x%x" % (S_ONE, ptr(D_DBG), ptr(D_DBG) + 1, DB_PROG))
    I("s_branch %s" % Lb4)
    a.L(l3)
    a.C("---- wave 3 of one workgroup: hold the chain until the segment fetched in the step after next exists")
    I("s_or_b32 s%d, s%d, s%d" % (S_T0, S_X, S_J))
    I("s_cbranch_scc1 %s" % Lb4)
    I("s_add_u32 s%d, s%d, 2" % (S_T3, S_STEP))
    I("s_min_u32 s%d, s%d, 63" % (S_T3, S_T3))
    cnt_wait(a, 'kvs', S_T3)
    a.L(Lb4)
    if STAMP:
        I("s_cmp_eq_u32 s%d, 5" % S_STEP)
        I("s_cselect_b32 s%d, 0, s%d" % (S_SPIN, S_SPIN))
    I("s_barrier")
    if H_A >= 0:
        nops(a, H_A)
        I("s_branch %s" % (loop + "_nd"))
    else:
        I("s_branch %s" % loop)
    a.L(Lfin)
    I("s_cmp_lg_u32 s%d, 2" % S_W)
    I("s_cbranch_scc1 %s" % done)
    publish_kv(a, S_PX, None)
    I("s_branch %s" % done)
    return loop


def final_proj(a):
    I = a.I
    D, AC, OWN, AD = 48, 112, 160, 2
    TA, TD = 144, 200
    VS, VO, VW, VRD, t0, t1 = 8, 9, 10, 11, 13, 14
    a.C("==== output projection of the last segments")
    exec_(a, None)
    I("s_setprio 0")
    I("v_bfe_u32 v%d, v0, 3, 2" % t0)
    I("v_lshlrev_b32 v%d, 9, v%d" % (t0, t0))
    I("v_and_b32 v%d, 7, v0" % t1)
    I("v_lshl_add_u32 v%d, v%d, 4, v%d" % (t0, t1, t0))
    I("v_bfe_u32 v%d, v0, 5, 1" % t1)
    I("v_lshl_add_u32 v%d, v%d, 11, v%d" % (t0, t1, t0))
    I("s_lshl_b32 s%d, s%d, 2" % (S_T0, S_X))
    I("s_add_u32 s%d, s%d, s%d" % (S_T0, S_T0, S_W))
    I("s_lshl_b32 s%d, s%d, 16" % (S_T0, S_T0))
    for i in range(4):
        I("s_add_u32 s%d, s%d, %d" % (S_T1, S_ROT, i))
        I("s_and_b32 s%d, s%d, 3" % (S_T1, S_T1))
        I("s_lshl_b32 s%d, s%d, 14" % (S_T1, S_T1))
        I("s_add_u32 s%d, s%d, s%d" % (S_T1, S_T1, S_T0))
        I("v_add_u32 v%d, s%d, v%d" % (AD + i, S_T1, t0))
    I("s_sub_u32 s%d, s%d, s%d" % (S_T0, S_W, S_X))
    I("s_lshl_b32 s%d, s%d, 18" % (S_T1, S_T0))
    I("s_sub_u32 s%d, 0, s%d" % (S_T0, S_T0))
    I("s_and_b32 s%d, s%d, 3" % (S_T0, S_T0))
    I("s_lshl_b32 s%d, s%d, 9" % (S_T0, S_T0))
    I("s_add_u32 s%d, s%d, s%d" % (S_T0, S_T0, S_T1))
    I("v_add_u32 v%d, s%d, v%d" % (VS, S_T0, V_PXST))
    I("v_bfe_u32 v%d, v0, 1, 3" % t0)
    I("v_lshlrev_b32 v%d, 13, v%d" % (VO, t0))
    I("v_bfe_u32 v%d, v0, 4, 2" % t0)
    I("v_lshl_add_u32 v%d, v%d, 5, v%d" % (VO, t0, VO))
    I("v_and_b32 v%d, 1, v0" % t0)
    I("v_lshl_add_u32 v%d, v%d, 4, v%d" % (VO, t0, VO))
    I("s_xor_b32 s%d, s%d, %d" % (S_T0, S_J, OROT))
    I("s_lshl_b32 s%d, s%d, 7" % (S_T0, S_T0))
    I("s_lshl_b32 s%d, s%d, 16" % (S_T1, S_X))
    I("s_add_u32 s%d, s%d, s%d" % (S_T0, S_T0, S_T1))
    I("s_add_u32 s%d, s%d, 4096" % (S_T0, S_T0))
    I("v_add_u32 v%d, s%d, v%d" % (VO, S_T0, VO))
    I("v_lshlrev_b32 v%d, 4, v0" % VW)
    I("v_add_u32 v%d, 0x10000, v%d" % (VW, VW))
    I("s_lshl_b32 s%d, s%d, 12" % (S_T0, S_W))
    I("s_add_u32 s%d, s%d, 0x10000" % (S_T0, S_T0))
    I("v_add_u32 v%d, s%d, v%d" % (VRD, S_T0, V_LIN))
    AP, WP = 216, 232
    for p in range(4):
        I("s_xor_b32 s%d, s%d, s%d" % (S_T0, S_W, S_J))
        I("s_xor_b32 s%d, s%d, %d" % (S_T0, S_T0, p))
        I("s_and_b32 s%d, s%d, 3" % (S_T0, S_T0))
        I("s_lshl_b32 s%d, s%d, 7" % (S_T1, S_T0))
        for i in range(4):
            I("v_add_u32 v%d, s%d, v%d" % (AP + 4 * p + i, S_T1, AD + i))
        I("s_lshl_b32 s%d, s%d, 12" % (S_T1, S_T0))
        I("v_add_u32 v%d, s%d, v%d" % (WP + p, S_T1, VW))
    VP = 15
    I("s_lshl_b32 s%d, s%d, 18" % (S_T0, S_X))
    I("s_lshr_b32 s%d, s%d, 1" % (S_T1, S_J))
    I("s_lshl_b32 s%d, s%d, 14" % (S_T1, S_T1))
    I("s_add_u32 s%d, s%d, s%d" % (S_T0, S_T0, S_T1))
    I("s_and_b32 s%d, s%d, 1" % (S_T1, S_J))
    I("s_lshl_b32 s%d, s%d, 11" % (S_T1, S_T1))
    I("s_add_u32 s%d, s%d, s%d" % (S_T0, S_T0, S_T1))
    I("s_lshl_b32 s%d, s%d, 9" % (S_T1, S_W))
    I("s_add_u32 s%d, s%d, s%d" % (S_T0, S_T0, S_T1))
    I("v_and_b32 v%d, 7, v0" % VP)
    I("v_lshl_add_u32 v%d, v%d, 6, s%d" % (VP, VP, S_T0))
    a.srd(56, ptr(D_OUT), 0, 16 * MB)
    I("v_mov_b32 v%d, 0" % V_SMP)
    I("s_lshl_b32 s%d, s%d, 7" % (S_KV, S_X))
    P = lambda d, x, y: pk(a, d, x, y)

    SG, SN, SF, SPN, SPO = S_STEP, S_MEMC, S_MEMN, S_SX, S_OX
    PRV = OWN + 4
    top, fin, skip, rt, end = (a.uid(x) for x in ("L_fp", "L_ffin", "L_fskip", "L_frt", "L_fend"))
    I("s_mov_b32 s%d, %d" % (SG, NT0))
    I("s_mov_b32 s%d, 0x40000000" % SPN)
    I("s_mov_b32 s%d, 0x40000000" % SPO)
    NE = 62 - NT0
    if NE > 0:
        ew = a.uid("L_few")
        I("v_and_b32 v%d, 63, v0" % t0)
        I("v_min_u32 v%d, %d, v%d" % (t0, NE - 1, t0))
        I("v_lshlrev_b32 v%d, 9, v%d" % (t0, t0))
        I("s_add_u32 s%d, s%d, 0x%x" % (S_T1, S_KV, C_O + NT0 * 512))
        a.L(ew)
        I("buffer_load_dword v%d, v%d, %s, s%d offen sc1" % (t1, t0, W, S_T1))
        spin(a.lines)
        I("s_waitcnt vmcnt(0)")
        I("v_cmp_gt_u32 vcc, 8, v%d" % t1)
        I("s_cbranch_vccnz %s" % ew)
        for sg in range(NT0, 62):
            I("s_add_u32 s%d, s%d, 0x%x" % (S_T2, S_PXB if sg & 2 else S_PXB2, WS_B + sg * MB))
            I("buffer_load_dword v%d, v%d, %s, s%d offen offset:2048" % (t1, VP, W, S_T2))
    a.L(top)
    I("s_lshl_b32 s%d, s%d, 9" % (S_T1, SG))
    I("s_add_u32 s%d, s%d, s%d" % (S_T1, S_T1, S_KV))
    I("s_add_u32 s%d, s%d, 0x%x" % (S_T1, S_T1, C_O))
    gw = a.uid("L_fw")
    I("s_bitcmp1_b32 s%d, 1" % SG)
    I("s_cselect_b32 s%d, s%d, s%d" % (SN, S_PXB2, S_PXB))
    I("s_cselect_b32 s%d, s%d, s%d" % (SF, S_PXB, S_PXB2))
    I("s_lshl_b32 s%d, s%d, 20" % (S_T0, SG))
    I("s_add_u32 s%d, s%d, s%d" % (SF, SF, S_T0))
    I("s_add_u32 s%d, s%d, s%d" % (SN, SN, S_T0))
    I("s_add_u32 s%d, s%d, 0x%x" % (SN, SN, WS_P))
    for i in range(32):
        I("v_mov_b32 v%d, 0" % (AC + i))
    go = a.uid("L_fgo")
    I("s_cmp_lt_u32 s%d, 62" % SG)
    I("s_cbranch_scc1 %s" % go)
    a.L(gw)
    I("buffer_load_dword v%d, v%d, %s, s%d offen sc1" % (V_SMP + 1, V_SMP, W, S_T1))
    spin(a.lines)
    I("s_waitcnt vmcnt(0)")
    I("v_readfirstlane_b32 s%d, v%d" % (S_T0, V_SMP + 1))
    I("s_cmp_ge_u32 s%d, 8" % S_T0)
    I("s_cbranch_scc0 %s" % gw)
    I("buffer_load_dword v%d, v%d, %s, s%d offen offset:2048" % (t1, VP, W, SF))
    a.L(go)
    for p in range(4):
        for i in range(4):
            I("buffer_load_dwordx4 %s, v%d, %s, s%d offen offset:2048" % (vr4(D + 16 * p + 4 * i), AP + 4 * p + i, W, SF))
    r, u = OWN + 8, OWN + 16
    rcv = ["buffer_load_dwordx2 %s, v%d, %s, s%d offen offset:%d sc1" % (vr2(r + 2 * k), V_PXST, W, SPN, 1024 + 512 * k) for k in range(3)]
    for l in rcv:
        I(l)

    def trans(p):
        c = AC + 8 * p
        return [cvt(TA + 4 * p + k, c + 2 * k, c + 2 * k + 1) for k in range(4)] + ["s_nop 1", mfma32(TD + 4 * p, TA + 4 * p, V_SEL2)]
    wr = lambda p: "ds_write_b128 v%d, %s" % (WP + p, vr4(TD + 4 * p))
    for p in range(4):
        for i in range(4):
            I("s_waitcnt vmcnt(%d)" % (18 - 4 * p - i))
            for ct in range(2):
                I("v_smfmac_f32_16x16x64_bf16 %s, %s, a[%d:%d], v%d" % (vr4(AC + 8 * p + 4 * ct), vr4(D + 16 * p + 4 * i), a_wo(ct, i), a_wo(ct, i) + 7, V_IDX))
            if i == 1 and p >= 1:
                for l in trans(p - 1):
                    I(l)
            if i == 3 and p >= 1:
                I(wr(p - 1))
    I("s_nop 6")
    for l in trans(3):
        I(l)
    I("s_nop 7")
    I(wr(3))
    I("s_waitcnt lgkmcnt(0)")
    I("s_barrier")
    for w in range(4):
        I("ds_read_b128 %s, v%d offset:%d" % (vr4(TD + 4 * w), VRD, w * 1024))
    for p in range(4):
        I("v_xor_b32 v%d, 0x4000, v%d" % (WP + p, WP + p))
    I("v_xor_b32 v%d, 0x4000, v%d" % (VRD, VRD))
    I("s_cmp_eq_u32 s%d, s%d" % (S_W, S_X))
    I("s_cselect_b32 s%d, 0x40000000, s%d" % (S_T2, SN))
    I("s_waitcnt lgkmcnt(2)")
    P(OWN, TD, TD + 4)
    P(OWN + 2, TD + 2, TD + 6)
    I("s_waitcnt lgkmcnt(0)")
    P(TD + 8, TD + 8, TD + 12)
    P(TD + 10, TD + 10, TD + 14)
    P(OWN, OWN, TD + 8)
    P(OWN + 2, OWN + 2, TD + 10)
    I(cvt(TD, OWN, OWN + 1))
    I(cvt(TD + 1, OWN + 2, OWN + 3))
    I("buffer_store_dwordx2 %s, v%d, %s, s%d offen offset:512 sc1" % (vr2(TD), VS, W, S_T2))
    I("s_cbranch_scc0 %s" % skip)
    have = a.uid("L_fhave")
    I("s_waitcnt vmcnt(1)")
    I("s_branch %s" % have)
    a.L(fin)
    nops(a, E("D_FN", 64))
    a.L(rt)
    for l in rcv:
        I(l)
    spin(a.lines)
    I("s_waitcnt vmcnt(0)")
    a.L(have)
    I("v_max3_u32 v%d, v%d, v%d, v%d" % (V_CHK, r, r + 1, r + 2))
    I("v_max3_u32 v%d, v%d, v%d, v%d" % (V_CHK, V_CHK, r + 3, r + 4))
    I("v_max_u32 v%d, v%d, v%d" % (V_CHK, V_CHK, r + 5))
    I("v_cmp_eq_u32 vcc, s%d, v%d" % (S_SENT, V_CHK))
    I("s_cbranch_vccnz %s" % rt)
    for k in range(3):
        for h in range(2):
            I("v_lshlrev_b32 v%d, 16, v%d" % (u + 2 * h, r + 2 * k + h))
            I("v_and_b32 v%d, 0xffff0000, v%d" % (u + 2 * h + 1, r + 2 * k + h))
        P(PRV, PRV, u)
        P(PRV + 2, PRV + 2, u + 2)
    for i in range(4):
        I("v_cvt_pk_bf16_f32 v%d, 0, v%d" % (u + i, PRV + i))
    I("buffer_store_dwordx4 %s, v%d, s[56:59], s%d offen" % (vr4(u), VO, SPO))
    for i in range(4):
        I("v_mov_b32 v%d, v%d" % (PRV + i, OWN + i))
    I("s_mov_b32 s%d, s%d" % (SPN, SN))
    I("s_lshl_b32 s%d, s%d, 18" % (SPO, SG))
    I("s_add_u32 s%d, s%d, 1" % (SG, SG))
    I("s_cmp_lt_u32 s%d, 64" % SG)
    I("s_cbranch_scc1 %s" % top)
    I("s_cmp_eq_u32 s%d, 64" % SG)
    I("s_cbranch_scc1 %s" % fin)
    I("s_branch %s" % end)
    a.L(skip)
    I("s_add_u32 s%d, s%d, 1" % (SG, SG))
    I("s_cmp_lt_u32 s%d, 64" % SG)
    I("s_cbranch_scc1 %s" % top)
    a.L(end)


def chain_main(a, name):
    I = a.I
    a.srd(S_WS, ptr(D_WS), 0, WS_SIZE)
    ABORT[0] = name + "_abort"
    I("s_mov_b32 s%d, 0" % S_SPIN)
    prologue_addrs(a)
    load_weights(a)
    HOOK.get('weights', lambda: None)()
    if E("CWARM", 1):
        a.C("---- half of the workgroups pull the token matrices into the memory-side cache for the worker streams")
        lw, le = a.uid("L_cwarm"), a.uid("L_cwarme")
        I("s_bitcmp1_b32 s%d, 2" % S_J)
        I("s_cbranch_scc1 %s" % le)
        I("s_lshr_b32 s%d, s%d, 3" % (S_T0, S_J))
        I("s_lshl_b32 s%d, s%d, 2" % (S_T0, S_T0))
        I("s_and_b32 s%d, s%d, 3" % (S_T1, S_J))
        I("s_add_u32 s%d, s%d, s%d" % (S_T0, S_T0, S_T1))
        I("s_lshl_b32 s%d, s%d, 4" % (S_T1, S_X))
        I("s_add_u32 s%d, s%d, s%d" % (S_T0, S_T0, S_T1))
        I("s_lshl_b32 s%d, s%d, 12" % (S_T0, S_T0))
        I("v_lshlrev_b32 v%d, 4, v0" % V_SMP)
        a.srd(S_TMPSRD, ptr(B_X), 0, 4 * MB)
        a.srd(56, ptr(A_X), 0, 4 * MB)
        for k in range(16):
            I("buffer_load_dwordx4 %s, v%d, s[%d:%d], s%d offen" % (vr4(V_R), V_SMP, S_TMPSRD, S_TMPSRD + 3, S_T0))
            if not E("G2WARM", 1):
                I("buffer_load_dwordx4 %s, v%d, s[56:59], s%d offen" % (vr4(V_R), V_SMP, S_T0))
            I("s_add_u32 s%d, s%d, 0x40000" % (S_T0, S_T0))
        a.L(le)
    a.C("---- initial memory -> MEMX slot 0, first prefetches")
    a.srd(S_TMPSRD, ptr(D_DBG), 0, 256)
    I("s_mov_b32 s%d, 0" % S_STEP)
    I("s_mov_b32 s%d, 1" % S_ONE)
    I("s_mov_b32 s%d, %d" % (S_LKV, L_KV))
    I("s_add_u32 s%d, s%d, 0x%x" % (S_CKV, ptr(D_WS), C_KV))
    I("s_addc_u32 s%d, s%d, 0" % (S_CKV + 1, ptr(D_WS) + 1))
    rt, ok = a.uid("L_iw"), a.uid("L_iok")
    a.L(rt)
    I("v_readfirstlane_b32 s%d, v%d" % (S_T0, V_L + 4))
    I("v_readfirstlane_b32 s%d, v%d" % (S_SLOW, V_L + 4 + DB_OVF // 4))
    I("s_and_b32 s%d, s%d, 0xffff" % (S_T2, S_T0))
    I("s_cmp_ge_u32 s%d, 256" % S_T2)
    I("s_cbranch_scc1 %s" % ok)
    I("v_mov_b32 v%d, 0" % V_SMP)
    I("buffer_load_dwordx4 %s, v%d, s[%d:%d], 0 offen sc1" % (vr4(V_L + 4), V_SMP, S_TMPSRD, S_TMPSRD + 3))
    I("s_waitcnt vmcnt(0)")
    spin(a.lines, rt)
    a.L(ok)
    block_bases(a, S_T0, S_PXB, S_PXB2, S_T1)
    I("s_mov_b32 s%d, s%d" % (S_KV, S_PXB))
    l3 = a.uid("L_init3")
    I("s_cmp_lg_u32 s%d, 3" % S_W)
    I("s_cbranch_scc1 %s" % l3)
    cnt_wait(a, 'kv', S_STEP)
    kv_prefetch(a)
    if 'nokv' in ABL:
        kv_prefetch(a)
    I("s_waitcnt vmcnt(0)")
    a.L(l3)
    for l in slots():
        I(l)
    lab = a.uid("L_init")
    I("s_cmp_lg_u32 s%d, 0" % S_W)
    I("s_cbranch_scc1 %s" % lab)
    for i in range(2):
        I("v_cmp_eq_u32 vcc, s%d, v%d" % (S_SENT, V_L + i))
        I("s_nop 1")
        I("v_cndmask_b32 v%d, v%d, -1, vcc" % (V_L + i, V_L + i))
    I("buffer_store_dwordx2 %s, v%d, %s, s%d offen sc1" % (vr2(V_L), V_MEMST, W, S_MEMC))
    kv_prefetch(a, ())
    I("s_setprio %d" % PRIO)
    a.L(lab)
    I("s_barrier")
    HOOK.get('loopstart', lambda: None)()
    if STAMP:
        for i in range(10):
            I("s_mov_b32 s%d, 0" % (S_ACC + i))
        I("s_memtime s[%d:%d]" % (S_ST, S_ST + 1))
    slow = a.uid("L_slow")
    I("s_cmp_lg_u32 s%d, 0" % S_SLOW)
    I("s_cbranch_scc1 %s" % slow)
    for lsc in ("", " sc1"):
        if lsc:
            a.L(slow)
        n0 = len(a.lines)
        loop = step_loop(a, name, lsc)
        k = next(i for i in range(n0, len(a.lines)) if "buffer_load" in a.lines[i])
        a.lines.insert(k, loop + "_nd:")
        for line in COLD + COLD2:
            a.raw(line)
        del COLD[:], COLD2[:]
    a.L(ABORT[0])
    I("s_mov_b64 exec, 1")
    I("v_mov_b32 v1, s%d" % S_STEP)
    I("v_or_b32 v1, 0xdead0000, v1")
    I("v_mov_b32 v2, 124")
    I("buffer_store_dword v1, v2, s[%d:%d], 0 offen" % (S_TMPSRD, S_TMPSRD + 3))
    I("s_endpgm")
    a.L(name + "_done")
    if STAMP >= 2:
        I("s_memrealtime s[%d:%d]" % (S_ST + 2, S_ST + 3))
        I("s_waitcnt lgkmcnt(0)")
        I("s_sub_u32 s%d, s%d, s%d" % (S_ACC, S_ST + 2, S_ST))
        I("s_mul_i32 s%d, s%d, 10" % (S_ACC, S_ACC))
    if STAMP:
        I("s_mov_b64 exec, -1")
        I("v_mov_b32 v%d, 0" % V_R)
        for i in range(9):
            I("v_writelane_b32 v%d, s%d, %d" % (V_R, S_ACC + i, i))
        I("v_writelane_b32 v%d, s%d, 15" % (V_R, S_SPIN))
        I("s_lshl_b32 s56, s%d, 5" % S_X)
        I("s_add_u32 s56, s56, s%d" % S_J)
        I("s_lshl_b32 s56, s56, 2")
        I("s_add_u32 s56, s56, s%d" % S_W)
        I("s_lshl_b32 s56, s56, 8")
        I("s_add_u32 s56, s56, 0x%x" % (WS_DBG + 4096))
        I("v_lshrrev_b32 v%d, 2, v%d" % (V_R + 1, V_LIN))
        I("buffer_store_dword v%d, v%d, %s, s56 offen" % (V_R, V_R + 1, W))
    HOOK.get('done', lambda: None)()
    if NT0 < 64 and 'nowork' not in ABL:
        final_proj(a)
        HOOK.get('end', lambda: None)()
    I("s_endpgm")
```

```python
A_X, A_LRE, A_LIM, A_BRE, A_BIM, A_CRE, A_CIM, A_LOGDT, A_DSKIP, B_X, B_MEM0, B_WQ, B_WK, B_WV, B_WO, B_SEG, D_OUT, D_DBG, D_WS = range(19)
MB = 1 << 20
PTR0 = 64
def ptr(i):
    return PTR0 + 2 * i

WS_B = 0
WS_HT = 68 * MB
WS_MISC = 80 * MB
WS_P = 128 * MB
KM_OFF, VM_OFF = 3072, 3584

XCH = WS_MISC
X_MEM = XCH
X_SX = XCH + 256 * 1024
X_OX = X_SX + 1024 * 1024
XCH_END = X_OX + 256 * 1024
XCH_BYTES = XCH_END - XCH
WS_SSM = 88 * MB
WS_CNT = 89 * MB
C_KV = WS_CNT
C_H = C_KV + 64 * 128
C_O = C_H + 64 * 128
C_RDY = C_O + 256 * 128
C_TKT = C_RDY + 40 * 128
C_SEQ = C_TKT + 8 * 128
CNT_BYTES = 65536
WS_SIZE = 268435456
WS_DBG = 100 * MB
WS_INB = 104 * MB
INB_OP = 1 * MB
SENT = 0xFF81FF81

DB_INIT = 0
DB_PROG = 4
DB_OVF = 8
DB_RANK = 24
TL_NAMES = [(23, 'init'), (16, 'weights'), (11, 'loopstart'), (9, 'chain_end'), (17, 'panel'), (29, 'kvq_panel'), (18, 'kv_end'), (28, 'q_run'), (19, 'q_end'), (20, 'g1_end'), (22, 'g2_run'), (15, 'g2_end'), (21, 'panel2'), (24, 'att3_go'), (25, 'att3_done'), (26, 'op_lastgo'), (27, 'op_lastrun'), (14, 'op_end'), (30, 'fproj_end'), (10, 'end')]
TL_PAIRS = [(17, 18), (17, 19), (17, 20), (17, 15), (21, 14), (11, 9)]
```

```python
from asmlib import *
from layout import *
import os

E = lambda k, d: int(os.environ.get(k, str(d)))

S_SRC = 8
S_WSR = 12
S_AUX = 16
S_OFF = 20
S_WD = 21
S_B = 22
S_END = 23
S_DB = 24
S_T = 25
S_AUX2 = 32
S_SPIN = 36
S_NOF = 53
S_XW, S_RK, S_WV = 40, 41, 49
S_EVEN, S_ODD = 54, 55
OOB = 0x7ff00000

V_DMA = 8
V_RD = 12
V_FR = 20
V_ACC = 52
V_E = 84
L_Q = 131072
SPIN_LIMIT = 1 << E("SPINL", 20)
RD_AHEAD = 6


def v4(r):
    return "v[%d:%d]" % (r, r + 3)


def v2(r):
    return "v[%d:%d]" % (r, r + 1)


def srd(r):
    return "s[%d:%d]" % (r, r + 3)


class Stream:
    def __init__(self, a, name, kind, wa, rowmap=None, step=1):
        self.a, self.name, self.kind, self.wa, self.rowmap, self.step = a, name, kind, wa, rowmap, step
        self.qadv = {'row': 512, 'chunk': 65536, 'lin': 16384}[kind]
        self.rpf = 1
        self.cold = []
        self.vmslots = (5,)
        self.la = 7
        self.full = False

    def setup(self, s_kt=None):
        I = self.a.I
        self.a.C("---- stream %s setup" % self.name)
        I("s_lshl_b32 s%d, s%d, 12" % (S_WD, S_WV))
        I("v_and_b32 v1, 63, v0")
        I("v_and_b32 v2, 15, v0")
        I("v_bfe_u32 v3, v0, 4, 2")
        I("v_lshrrev_b32 v4, 6, v0")
        if self.kind == 'row':
            for j in range(4):
                I("v_lshrrev_b32 v5, 5, v1")
                I("v_lshl_add_u32 v5, v4, 3, v5")
                I("v_add_u32 v5, %d, v5" % (2 * j))
                if self.rowmap == 'kv':
                    I("v_and_b32 v6, 7, v5")
                    I("v_lshrrev_b32 v7, 4, v5")
                    I("v_lshl_add_u32 v6, v7, 3, v6")
                else:
                    I("v_and_b32 v6, 3, v5")
                    I("v_lshrrev_b32 v7, 3, v5")
                    I("v_lshl_add_u32 v6, v7, 2, v6")
                I("v_and_b32 v7, 31, v1")
                I("v_xor_b32 v6, v6, v7")
                I("v_lshlrev_b32 v6, 4, v6")
                I("v_lshl_add_u32 v%d, v5, 11, v6" % (V_DMA + j))
            if self.rowmap == 'kv':
                I("v_and_b32 v5, 8, v2")
                I("v_add_u32 v5, v5, v2")
            else:
                I("v_and_b32 v5, 12, v2")
                I("v_add_u32 v5, v5, v2")
            for k in range(4):
                I("v_add_u32 v6, %d, v3" % (4 * k))
                I("v_xor_b32 v6, v6, v2")
                I("v_lshlrev_b32 v6, 4, v6")
                I("v_lshl_add_u32 v%d, v5, 9, v6" % (V_RD + k))
            nrd = 4
        else:
            ch = self.kind == 'chunk'
            I("v_lshlrev_b32 v5, 4, v1")
            I("v_lshl_add_u32 v5, v4, %d, v5" % (14 if ch else 12))
            for j in range(4):
                I("v_add_u32 v%d, %d, v5" % (V_DMA + j, j * 1024))
            I("v_lshlrev_b32 v5, 4, v2")
            I("v_lshl_add_u32 v5, v3, 9, v5")
            I("v_xor_b32 v%d, s%d, v5" % (V_RD, s_kt))
            I("v_xor_b32 v%d, 0x100, v%d" % (V_RD + 1, V_RD))
            nrd = 2
        for k in range(nrd):
            I("v_add_u32 v%d, 0x10000, v%d" % (V_RD + 4 + k, V_RD + k))

    def read(self, P, f):
        q, s, t = f >> 4, (f >> 1) & 7, f & 1
        d = V_FR + 4 * (f % 8)
        b = V_RD + 4 * P
        if self.kind == 'row':
            toff = 4096 if self.rowmap == 'kv' else 2048
            return ["ds_read_b128 %s, v%d offset:%d" % (v4(d), b + (s & 3), q * 16384 + t * toff + (s >> 2) * 256)]
        return ["ds_read_b128 %s, v%d offset:%d" % (v4(d), b + t, q * 16384 + s * 2048)]

    def dma(self, slot, j):
        return ("s_add_u32 m0, s%d, %d" % (S_WD, slot * 16384 + j * 1024),
                "buffer_load_dwordx4 v%d, %s, s%d offen lds" % (V_DMA + j, srd(S_SRC), S_OFF))

    def acc(self, P, t, c):
        return V_ACC + 16 * P + 4 * (2 * t + c)

    def mfma(self, P, m):
        f, c = m >> 1, m & 1
        s, t = f >> 1, f & 1
        if E("SNAKE", 0):
            c ^= t
        fr, w, d = v4(V_FR + 4 * (f % 8)), "a[%d:%d]" % ((2 * s + c) * 4, (2 * s + c) * 4 + 3), v4(self.acc(P, t, c))
        x, y = (w, fr) if self.wa else (fr, w)
        return "v_mfma_f32_16x16x32_bf16 %s, %s, %s, %s" % (d, x, y, "0" if s == 0 else d)

    def run(self, advance, side, flush, first=None):
        a, I = self.a, self.a.I
        a.C("---- stream %s: prologue" % self.name)
        I("s_barrier")
        LA = self.la
        for Q in range(LA):
            if Q == 4:
                self.emit_plain(advance(False))
                I("s_mov_b32 s%d, s%d" % (S_OFF, S_NOF))
            for j in range(4 if Q < LA - 1 else 1):
                m0, ld = self.dma(Q, j)
                I(m0)
                I("s_nop 0")
                I(ld)
            if Q not in (3, LA - 1):
                I("s_add_u32 s%d, s%d, %d" % (S_OFF, S_OFF, self.qadv))
        if first:
            first()
        I("s_waitcnt vmcnt(%d)" % (0 if self.full else 4 * LA - 7))
        I("s_barrier")
        for f in range(RD_AHEAD):
            for l in self.read(0, f):
                I(l)
        I("s_waitcnt lgkmcnt(%d)" % ((RD_AHEAD - 2) * self.rpf))
        f0, f1, end = a.uid("L_fl0"), a.uid("L_fl1"), a.uid("L_ste")
        sides = side if isinstance(side, list) else [side]
        for k, sd in enumerate(sides):
            self.loop(a.uid("L_st"), f0, advance, sd, 0)
            if k < len(sides) - 1:
                I("s_branch %s" % f1)
        a.L(f1)
        I("s_waitcnt lgkmcnt(0)")
        I("s_nop 7")
        flush(1)
        I("s_branch %s" % end)
        for l in self.cold:
            a.raw(l)
        self.cold = []
        a.L(f0)
        I("s_waitcnt lgkmcnt(0)")
        I("s_nop 7")
        flush(0)
        if self.cold:
            I("s_branch %s" % end)
            for l in self.cold:
                a.raw(l)
            self.cold = []
        a.L(end)

    def loop(self, loop, f0, advance, side, wv):
        a, I = self.a, self.a.I
        seq = [self.body(P, advance, side, wv) for P in range(2)]
        allit = seq[0] + seq[1]
        n = len(allit)
        for i, it in enumerate(allit):
            if isinstance(it, tuple) and it[0] == 'wait':
                best = 63
                for tag in it[1]:
                    cnt, k, cntd, skip = 0, i, 0, ()
                    while True:
                        k = (k - 1) % n
                        o = allit[k]
                        assert k != i, tag
                        if isinstance(o, tuple) and o[0] == 'cut':
                            skip = o[1]
                            assert tag not in skip
                        if isinstance(o, tuple) and o[0] == 'vm':
                            if o[2] == tag:
                                break
                            cnt += o[2] not in skip and o[2] != 'opt'
                            cntd += o[2].startswith('dma')
                    best = min(best, cntd if tag.startswith('dma') and not self.full else cnt)
                allit[i] = "s_waitcnt vmcnt(%d)" % best
        for i, it in enumerate(allit):
            if isinstance(it, tuple) and it[0] == 'cut':
                allit[i] = "; ----"
        for i, it in enumerate(allit):
            if isinstance(it, tuple) and it[0] == 'lwait':
                cnt, k = 0, i
                while True:
                    k = (k - 1) % n
                    o = allit[k]
                    if isinstance(o, tuple) and o[0] == 'ds' and o[2] == it[1]:
                        break
                    cnt += (o[1] if isinstance(o, tuple) else o).startswith("ds_")
                allit[i] = "s_waitcnt lgkmcnt(%d)" % min(cnt, 15)
        a.L(loop)
        k = 0
        for P in range(2):
            a.C("---- stream %s: block, set %d" % (self.name, P))
            for it in allit[k:k + len(seq[P])]:
                self.emit(it)
            k += len(seq[P])
            I("s_add_u32 s%d, s%d, %s" % (S_B, S_B, self.step))
            I("s_cmp_ge_u32 s%d, s%d" % (S_B, S_END))
            I("s_cbranch_scc1 %s" % f0 if P == 0 else "s_cbranch_scc0 %s" % loop)

    def emit(self, it):
        if isinstance(it, tuple):
            assert it[0] in ('vm', 'ds'), it
            it = it[1]
        if it.endswith(":"):
            self.a.raw(it)
        else:
            self.a.I(it)

    def emit_plain(self, items):
        for it in items:
            if isinstance(it, list):
                self.emit_plain(it)
            elif isinstance(it, tuple) and it[0] == 'wait':
                self.a.I("s_waitcnt vmcnt(0)")
            elif isinstance(it, tuple) and it[0] == 'lwait':
                self.a.I("s_waitcnt lgkmcnt(0)")
            elif isinstance(it, tuple) and it[0] == 'sync':
                self.a.I("s_waitcnt vmcnt(0)")
                self.a.I("s_barrier")
            else:
                self.emit(it)

    def body(self, P, advance, side, wv):
        gaps = [[] for _ in range(128)]
        load = [0] * 128
        syncs = {}
        sd = side(1 - P)
        if E("STPAD", 0):
            sd = list(sd) + [(0, 127, ["s_nop 15"] * E("STPAD", 0))]
        if E("TRACE", 0):
            ti = {'k': 0, 'v': 0, 'q': 0, 'g1': 0, 'g2': 0, 'op': 1}[self.name]
            sd = list(sd) + [(0, 1, ["s_memrealtime s[4:5]"]),
                             (40, 127, ["v_mov_b32 v7, s4", "s_lshl_b32 s6, s2, 7", "s_add_u32 s6, s6, s%d" % S_B, "s_lshl_b32 s6, s6, 2",
                                       "s_add_u32 s6, s6, 0x%x" % (WS_DBG + 0xc0000 + ti * 256), "v_min_u32 v6, 1, v0", "v_lshlrev_b32 v6, 30, v6",
                                       ('vm', "buffer_store_dword v7, v6, %s, s6 offen" % srd(S_WSR), 'trc')])]
        for m0, m1, items in sd:
            for it in items:
                if isinstance(it, tuple) and it[0] == 'sync':
                    assert m0 % 32 > 20
                    syncs.setdefault(m0 // 32, []).append(it[1])

        def put(m, it, cost=1):
            if isinstance(it, list):
                for x in it:
                    put(m, x)
                return
            if isinstance(it, tuple) and it[0] == 'wait' and not isinstance(it[1], list):
                it = ('wait', [it[1]])
            gaps[m].append(it)
            load[m] += cost
        for q in range(4):
            put(32 * q + 20 - wv, ('wait', ['dma%d' % ((4 * P + q + 1) % 8)] + syncs.get(q, [])))
            put(32 * q + 20 - wv, "s_barrier")
        for f in range(64):
            fn = f + RD_AHEAD
            put(2 * f, (self.read(P, fn) if fn < 64 else self.read(1 - P, fn - 64))[0])
            if f % 2 == 1:
                put(2 * f + 1, "s_waitcnt lgkmcnt(%d)" % (RD_AHEAD - 2))
        qs = -self.la % 4
        for q in range(4):
            for j, o in enumerate((25, 1, 9, 17)):
                slot = (4 * P + q + self.la - (j > 0)) % 8
                m0, ld = self.dma(slot, j)
                put(32 * q + o - 1, m0)
                put(32 * q + o, ('vm', ld, 'dma%d' % slot), 2)
            put(32 * q + 21, "s_mov_b32 s%d, s%d" % (S_OFF, S_NOF) if q == qs else "s_add_u32 s%d, s%d, %d" % (S_OFF, S_OFF, self.qadv))
        vmfree = set(m for m in range(128) if m % 8 in self.vmslots)
        isvm = lambda it: any(map(isvm, it)) if isinstance(it, list) else isinstance(it, tuple) and it[0] == 'vm'
        size = lambda it: len(it) if isinstance(it, list) else 1
        later = []
        for m0, m1, items in [(32 * qs + 6, 32 * qs + 20, advance(True))] + list(sd):
            items = [it for it in items if not (isinstance(it, tuple) and it[0] == 'sync')]
            n = sum(map(size, items))
            nvm = sum(map(isvm, items))
            lo, seg, done, segs = m0, [], 0, []
            for it in items:
                if isvm(it):
                    cand = sorted(x for x in vmfree if lo <= x <= m1)
                    assert len(cand) >= nvm, (self.name, m0, m1, it)
                    x = min(cand[:len(cand) - nvm + 1], key=lambda x: abs(x - (m0 + (done * (m1 - m0)) // n)))
                    vmfree.discard(x)
                    nvm -= 1
                    segs.append((lo, x, seg, it))
                    load[x] += 1 + size(it)
                    lo, seg = x, []
                else:
                    seg.append(it)
                done += size(it)
            segs.append((lo, m1, seg, None))
            later.append(segs)
        for segs in later:
            for m0, m1, items, anchor in segs:
                n = sum(map(size, items))
                cap = 2
                while n and sum(max(cap - load[m], 0) for m in range(m0, m1 + 1)) < n:
                    cap += 1
                free = []
                for m in range(m0, m1 + 1):
                    free += [m] * max(cap - load[m], 0)
                i = 0
                for it in items:
                    put(free[(i * len(free)) // n], it)
                    i += size(it)
                if anchor is not None:
                    load[m1] -= size(anchor)
                    put(m1, anchor)
        out = []
        for m in range(128):
            out.append(self.mfma(P, m))
            out.extend(gaps[m])
        return out


def load_panel_t(a, s_base, stride, order, flags="", mid=None):
    I = a.I
    a.C("---- weight panel (transposing)")
    vg, vr = V_FR, V_FR + 1
    I("v_and_b32 v1, 15, v0")
    I("v_bfe_u32 v2, v0, 4, 2")
    I("v_lshrrev_b32 v3, 6, v0")
    I("v_lshlrev_b32 v4, 2, v2")
    I("v_xor_b32 v4, v4, v1")
    I("v_lshlrev_b32 v4, 4, v4")
    I("v_lshl_add_u32 v5, v3, 5, v2")
    I("s_mov_b32 s%d, %d" % (S_T, stride))
    I("v_mul_lo_u32 v5, v5, s%d" % S_T)
    I("v_add_u32 v%d, v5, v4" % vg)
    I("v_bfe_u32 v4, v0, 2, 2")
    I("v_lshl_add_u32 v5, v2, 3, v4")
    I("v_lshlrev_b32 v5, 8, v5")
    I("v_xor_b32 v4, v4, v3")
    I("v_lshl_add_u32 v5, v4, 6, v5")
    I("v_and_b32 v4, 3, v0")
    I("v_lshl_add_u32 v5, v4, 3, v5")
    if order == 'kv':
        I("v_and_b32 v4, 2, v4")
        I("v_lshl_add_u32 v%d, v4, 3, v5" % vr)
        I("v_add_u32 v%d, 16, v%d" % (vr + 1, vr))
    else:
        I("v_mov_b32 v%d, v5" % vr)
        I("v_add_u32 v%d, 32, v%d" % (vr + 1, vr))
    I("v_add_u32 v%d, 0x10000, v%d" % (vr + 2, vr))
    I("v_add_u32 v%d, 0x10000, v%d" % (vr + 3, vr + 1))
    I("s_lshl_b32 s%d, s%d, 13" % (S_T + 1, S_WV))
    I("s_mov_b32 s%d, s%d" % (S_T, s_base))

    def issue(p):
        for jj in range(8):
            I("s_add_u32 m0, s%d, %d" % (S_T + 1, (p % 4) * 32768 + jj * 1024))
            I("s_add_u32 s%d, s%d, %d" % (S_T + 2, S_T, (p * 128 + 4 * jj) * stride))
            I("buffer_load_dwordx4 v%d, %s, s%d offen%s lds" % (vg, srd(S_AUX), S_T + 2, flags))
    I("s_barrier")
    for p in range(4):
        issue(p)
    for p in range(8):
        I("s_waitcnt vmcnt(%d)" % (8 * min(3, 7 - p)))
        I("s_barrier")
        if mid:
            mid(p)
        for k in range(4):
            for c in range(2):
                for u in range(2):
                    d = (2 * (4 * p + k) + c) * 4 + 2 * u
                    I("ds_read_b64_tr_b16 a[%d:%d], v%d offset:%d" % (d, d + 1, vr + c + 2 * ((p % 4) >> 1), (p & 1) * 32768 + k * 8192 + u * 1024))
            if k % 2 == 1:
                I("s_waitcnt lgkmcnt(0)")
        if p + 4 < 8:
            I("s_barrier")
            issue(p + 4)


def load_panel_tile(a, s_base, stride, wa, accs):
    I = a.I
    a.C("---- weight panel with the first blocks")
    vg, vr, vx, vf = 1, 168, 172, 176
    I("v_and_b32 v6, 15, v0")
    I("v_bfe_u32 v2, v0, 4, 2")
    I("v_lshrrev_b32 v3, 6, v0")
    I("v_lshlrev_b32 v4, 2, v2")
    I("v_xor_b32 v4, v4, v6")
    I("v_lshlrev_b32 v4, 4, v4")
    I("v_lshl_add_u32 v5, v3, 5, v2")
    I("s_mov_b32 s%d, %d" % (S_T, stride))
    I("v_mul_lo_u32 v7, v5, s%d" % S_T)
    I("v_add_u32 v%d, v7, v4" % vg)
    I("v_xor_b32 v4, v2, v6")
    I("v_lshlrev_b32 v4, 4, v4")
    I("v_lshl_add_u32 v%d, v5, 11, v4" % vx)
    for k in range(1, 4):
        I("v_xor_b32 v%d, %d, v%d" % (vx + k, 64 * k, vx))
    I("v_and_b32 v7, 8, v6")
    I("v_add_u32 v7, v7, v6")
    I("v_lshl_add_u32 v%d, v7, 8, v4" % vf)
    for k in range(1, 4):
        I("v_xor_b32 v%d, %d, v%d" % (vf + k, 64 * k, vf))
    for k in range(4):
        I("v_add_u32 v%d, 0x10000, v%d" % (vf + 4 + k, vf + k))
    I("v_bfe_u32 v4, v0, 2, 2")
    I("v_lshl_add_u32 v5, v2, 3, v4")
    I("v_lshlrev_b32 v5, 8, v5")
    I("v_xor_b32 v4, v4, v3")
    I("v_lshl_add_u32 v5, v4, 6, v5")
    I("v_and_b32 v4, 3, v0")
    I("v_lshl_add_u32 v5, v4, 3, v5")
    I("v_and_b32 v4, 2, v4")
    I("v_lshl_add_u32 v%d, v4, 3, v5" % vr)
    I("v_add_u32 v%d, 0x10000, v%d" % (vr + 1, vr))
    I("s_lshl_b32 s%d, s%d, 13" % (S_T + 1, S_WV))

    def issue(p, part):
        for jj in range(8):
            I("s_add_u32 m0, s%d, %d" % (S_T + 1, (p & 1) * 65536 + part * 32768 + jj * 1024))
            if part == 0:
                I("s_add_u32 s%d, s%d, %d" % (S_T + 2, s_base, (p * 128 + 4 * jj) * stride))
                I("buffer_load_dwordx4 v%d, %s, s%d offen lds" % (vg, srd(S_AUX), S_T + 2))
            else:
                I("s_mov_b32 s%d, %d" % (S_T + 2, p * 256 + jj * 8192))
                I("buffer_load_dwordx4 v%d, %s, s%d offen lds" % (vx + (jj & 1) + 2 * (jj >> 2), srd(S_SRC), S_T + 2))
    I("s_barrier")
    for p in range(2):
        issue(p, 0)
        issue(p, 1)
    for p in range(8):
        I("s_waitcnt vmcnt(%d)" % (16 if p < 7 else 0))
        I("s_barrier")
        for k in range(4):
            for c in range(2):
                for u in range(2):
                    d = (2 * (4 * p + k) + c) * 4 + 2 * u
                    I("ds_read_b64_tr_b16 a[%d:%d], v%d offset:%d" % (d, d + 1, vr + (p & 1), k * 8192 + u * 1024 + 16 * c))
            if k % 2 == 1:
                I("s_waitcnt lgkmcnt(0)")
        rd = lambda f: "ds_read_b128 %s, v%d offset:%d" % (v4(V_FR + 4 * (f % 8)), vf + 4 * (p & 1) + (f >> 3), 32768 + ((f >> 1) & 3) * 8192 + (f & 1) * 2048)
        for f in range(6):
            I(rd(f))
        if p + 2 < 8:
            I("s_barrier")
            issue(p + 2, 0)
        for f in range(32):
            k, b, t = f >> 3, (f >> 1) & 3, f & 1
            if f % 2 == 0:
                I("s_waitcnt lgkmcnt(%d)" % min(4, 30 - f))
            for c in range(2):
                w_, d = (2 * (4 * p + k) + c) * 4, v4(accs[b] + 4 * (2 * t + c))
                x, y = "a[%d:%d]" % (w_, w_ + 3), v4(V_FR + 4 * (f % 8))
                I("v_mfma_f32_16x16x32_bf16 %s, %s, %s, %s" % ((d, x, y, d) if wa else (d, y, x, d)))
                if c == 0 and f + 6 < 32:
                    I(rd(f + 6))
        if p + 2 < 8:
            I("s_barrier")
            issue(p + 2, 1)
    I("s_nop 7")


def load_panel_n(a, s_row, rowmap, srds, flags=""):
    I = a.I
    a.C("---- weight panel (rows)")
    vg, vr = V_FR, V_FR + 8
    I("v_and_b32 v1, 31, v0")
    I("v_bfe_u32 v2, v0, 5, 1")
    for i in range(8):
        I("v_add_u32 v3, %d, v2" % (2 * i))
        I("v_xor_b32 v4, v3, v1")
        I("v_lshlrev_b32 v4, 4, v4")
        if rowmap == 'il':
            I("v_lshlrev_b32 v3, 1, v3")
        I("v_add_u32 v3, s%d, v3" % s_row)
        I("v_lshl_add_u32 v%d, v3, 11, v4" % (vg + i))
    I("v_and_b32 v1, 15, v0")
    I("v_bfe_u32 v2, v0, 4, 2")
    I("v_lshrrev_b32 v3, 6, v0")
    I("v_lshlrev_b32 v3, 15, v3")
    I("v_lshl_add_u32 v3, v1, 9, v3")
    for k in range(4):
        I("v_add_u32 v4, %d, v2" % (4 * k))
        I("v_xor_b32 v4, v4, v1")
        I("v_lshl_add_u32 v%d, v4, 4, v3" % (vr + k))
    I("s_lshl_b32 s%d, s%d, 15" % (S_T + 1, S_WV))

    def issue(q):
        for c in range(2):
            I("s_mov_b32 s%d, %d" % (S_T + 2, q * 512 + (2048 * c if rowmap == 'il' else 0)))
            for i in range(8):
                I("s_add_u32 m0, s%d, %d" % (S_T + 1, (q & 1) * 16384 + c * 8192 + i * 1024))
                I("s_nop 0")
                I("buffer_load_dwordx4 v%d, %s, s%d offen%s lds" % (vg + i, srd(srds[c]), S_T + 2, flags))
    I("s_barrier")
    issue(0)
    issue(1)
    for q in range(4):
        I("s_waitcnt vmcnt(%d)" % (16 if q < 3 else 0))
        for k in range(8):
            for c in range(2):
                d = (2 * (8 * q + k) + c) * 4
                I("ds_read_b128 a[%d:%d], v%d offset:%d" % (d, d + 3, vr + (k & 3), (q & 1) * 16384 + c * 8192 + (k >> 2) * 256))
            if k % 4 == 3:
                I("s_waitcnt lgkmcnt(0)")
        if q + 2 < 4:
            issue(q + 2)
```

```python
from asmlib import *
from layout import *
from stream import *
import stream, os

EMU = E("EMUA", E("EMU", 0))
SEN0 = E("SEN0", 52)
TILE = E("TILE", 0)
TACC = (104, 120, 136, V_ACC + 16)
OSC = ["", " sc1", " nt", " sc1 nt"][E("OSC", 0)]
PROG_LAG = 1 if E("PUBW", 1) == 1 else 0
HSC = "" if E("HPLAIN", 0) else " sc1"
WS = srd(S_WSR)
S_VAL = 37
S_P0, S_P1, S_P2, S_P3 = 38, 39, 42, 43
S_K0, S_K1, S_K2, S_K3, S_K4, S_K5 = 44, 45, 46, 47, 48, 50
S_F1 = 51
S_SA, S_SB = 94, 95
S_LST = 61
S_PO = 7
S_CNT = 52
S_M = 56
V_ONE, V_SIG, V_ST, V_G = V_E, V_E + 1, V_E + 2, V_E + 3
V_X = V_E + 4
L_GATE = L_Q
ABORT = [None]
TLP = [None]
INI = [None]
NT = lambda k, d: " nt" if E(k, d) else ""


def cvt(d, x, y):
    return "v_cvt_pk_bf16_f32 v%d, v%d, v%d" % (d, x, y)


def common(a):
    I = a.I
    a.srd(S_WSR, ptr(D_WS), 0, WS_SIZE)
    I("s_mov_b32 s%d, 0" % S_SPIN)
    I("v_mov_b32 v%d, 1" % V_ONE)
    I("v_min_u32 v%d, 1, v0" % V_SIG)
    I("v_lshlrev_b32 v%d, 30, v%d" % (V_SIG, V_SIG))


def signal(s_off):
    return ('vm', "buffer_atomic_add v%d, v%d, %s, s%d offen sc1" % (V_ONE, V_SIG, WS, s_off), 'sig')


def spin_check(a):
    a.I("s_add_u32 s%d, s%d, 1" % (S_SPIN, S_SPIN))
    a.I("s_cmp_gt_u32 s%d, 0x%x" % (S_SPIN, SPIN_LIMIT))
    a.I("s_cbranch_scc1 %s" % ABORT[0])


def poll(a, srd_, s_off, target, mask=False, sleep=4):
    I = a.I
    rt, ok = a.uid("L_pl"), a.uid("L_plok")
    I("v_mov_b32 v2, 0")
    a.L(rt)
    I("buffer_load_dword v1, v2, %s, s%d offen sc1" % (srd(srd_), s_off))
    spin_check(a)
    I("s_waitcnt vmcnt(0)")
    I("v_readfirstlane_b32 s%d, v1" % (S_T + 1))
    if mask:
        I("s_and_b32 s%d, s%d, 0xffff" % (S_T + 2, S_T + 1))
    I("s_cmp_ge_u32 s%d, %d" % (S_T + 2 if mask else S_T + 1, target))
    I("s_cbranch_scc1 %s" % ok)
    I("s_sleep %d" % sleep)
    I("s_branch %s" % rt)
    a.L(ok)


def wait_init(a, bases):
    I = a.I
    a.srd(S_AUX2, ptr(D_DBG), 0, 256)
    I("s_mov_b32 s%d, %d" % (S_T, DB_INIT))
    poll(a, S_AUX2, S_T, 256, mask=True)
    bases(a, S_T + 1, S_EVEN, S_ODD, S_T)


def adv_plain(stream_):
    return ["s_add_u32 s%d, s%d, 1" % (S_DB, S_DB),
            "s_min_u32 s%d, s%d, 63" % (S_DB, S_DB),
            "s_lshl_b32 s%d, s%d, 16" % (S_NOF, S_DB)]


def start_plain(a):
    I = a.I
    for s in (S_B, S_DB, S_OFF, S_VAL):
        I("s_mov_b32 s%d, 0" % s)
    I("s_mov_b32 s%d, 64" % S_END)


def valid(*regs):
    return ["s_cmp_eq_u32 s%d, 0" % S_VAL] + ["s_cselect_b32 s%d, 0x%x, s%d" % (r, OOB, r) for r in regs]


def warm(a, srd_, nbytes, s_idx, nwg):
    I = a.I
    I("v_lshlrev_b32 v1, 4, v0")
    I("s_lshl_b32 s%d, s%d, 12" % (S_T, s_idx))
    lw = a.uid("L_warm")
    a.L(lw)
    for k in range(16):
        I("buffer_load_dwordx4 %s, v1, %s, s%d offen" % (v4(V_FR + 4 * k), srd(srd_), S_T))
        I("s_add_u32 s%d, s%d, 0x%x" % (S_T, S_T, nwg * 4096))
    I("s_waitcnt vmcnt(16)")
    I("s_cmp_lt_u32 s%d, 0x%x" % (S_T, nbytes))
    I("s_cbranch_scc1 %s" % lw)
    I("s_waitcnt vmcnt(0)")


def op_tile(a, d, tmp):
    I = a.I
    I("s_lshr_b32 s%d, s%d, 2" % (d, S_RK))
    if E("OPHALF", 1):
        I("s_or_b32 s%d, s%d, 4" % (tmp, d))
        I("s_cmp_eq_u32 s%d, 0" % S_XW)
        I("s_cselect_b32 s%d, s%d, s%d" % (d, tmp, d))
        I("s_and_b32 s%d, s%d, 3" % (tmp, d))
        I("s_cmp_eq_u32 s%d, 1" % S_XW)
        I("s_cselect_b32 s%d, s%d, s%d" % (d, tmp, d))


def wo_prefetch(a, va, junk):
    I = a.I
    n0, per = E("WPF0", 64), E("WPFN", 1)
    if n0 >= 64:
        return lambda: []
    a.srd(S_AUX, ptr(B_WO), 0, 8 * MB)
    I("s_and_b32 s%d, s%d, 3" % (S_T, S_RK))
    I("s_lshl_b32 s%d, s%d, 21" % (S_T, S_T))
    op_tile(a, S_T + 1, S_T + 2)
    I("s_lshl_b32 s%d, s%d, 8" % (S_T + 1, S_T + 1))
    I("s_add_u32 s%d, s%d, s%d" % (S_T, S_T, S_T + 1))
    I("v_lshrrev_b32 v1, 4, v0")
    I("v_lshlrev_b32 v1, 11, v1")
    I("v_and_b32 v2, 15, v0")
    I("v_lshl_add_u32 v1, v2, 4, v1")
    I("v_add_u32 v%d, s%d, v1" % (va, S_T))
    h = E("OPHALF", 1)
    I("s_lshr_b32 s%d, s%d, 4" % (S_SA, S_RK))
    I("s_mul_i32 s%d, s%d, 0x%x" % (S_SA, S_SA, 0x8000 * h))

    def items():
        out = []
        for k in range(per):
            lab = a.uid("L_nopf")
            out.append(["s_cmp_lt_u32 s%d, %d" % (S_B, n0), "s_cbranch_scc1 %s" % lab,
                        ('vm', "buffer_load_dwordx4 %s, v%d, %s, s%d offen" % (v4(junk), va, srd(S_AUX), S_SA), 'opt'),
                        "s_add_u32 s%d, s%d, 0x%x" % (S_SA, S_SA, 0x8000 << h), lab + ":"])
        return [(98, 127, out)]
    return items


def first_blocks(a, nwg, nb=4):
    I = a.I
    I("v_lshlrev_b32 v1, 4, v0")
    I("s_lshl_b32 s%d, s%d, 12" % (S_T, S_RK))
    for k in range(nb * 16 // nwg):
        I("buffer_load_dwordx4 %s, v1, %s, s%d offen" % (v4(V_ACC), srd(S_SRC), S_T))
        I("s_add_u32 s%d, s%d, %d" % (S_T, S_T, nwg * 4096))


def proj_panel(a):
    I = a.I
    I("s_mov_b32 s%d, s%d" % (S_T, S_XW))
    I("s_cmp_eq_u32 s%d, 1" % S_T)
    I("s_cselect_b32 s%d, s%d, s%d" % (S_AUX, ptr(B_WV), ptr(B_WK)))
    I("s_cselect_b32 s%d, s%d, s%d" % (S_AUX + 1, ptr(B_WV) + 1, ptr(B_WK) + 1))
    I("s_cmp_eq_u32 s%d, 2" % S_T)
    I("s_cselect_b32 s%d, s%d, s%d" % (S_AUX, ptr(B_WQ), S_AUX))
    I("s_cselect_b32 s%d, s%d, s%d" % (S_AUX + 1, ptr(B_WQ) + 1, S_AUX + 1))
    I("s_and_b32 s%d, s%d, 0xffff" % (S_AUX + 1, S_AUX + 1))
    I("s_mov_b32 s%d, 0x%x" % (S_AUX + 2, 8 * MB))
    I("s_mov_b32 s%d, 0x00020000" % (S_AUX + 3))
    I("s_mov_b32 s%d, s%d" % (S_K2, S_RK))
    if E("QSLEEP", 0):
        lab = a.uid("L_nosl")
        I("s_cmp_lg_u32 s%d, 2" % S_XW)
        I("s_cbranch_scc1 %s" % lab)
        for _ in range(E("QSLEEP", 0)):
            I("s_sleep 127")
        a.L(lab)
    I("s_lshl_b32 s%d, s%d, 8" % (S_K0, S_K2))
    a.srd(S_SRC, ptr(B_X), 0, 4 * MB)
    first_blocks(a, 32, E("NFBP", 8 if TILE else 4))
    if TILE:
        lv, le = a.uid("L_tv"), a.uid("L_te")
        for r in TACC:
            for i in range(16):
                I("v_mov_b32 v%d, 0" % (r + i))
        I("s_cmp_eq_u32 s%d, 1" % S_XW)
        I("s_cbranch_scc1 %s" % lv)
        load_panel_tile(a, S_K0, 8192, True, TACC)
        I("s_branch %s" % le)
        a.L(lv)
        load_panel_tile(a, S_K0, 8192, False, TACC)
        a.L(le)
    else:
        load_panel_t(a, S_K0, 8192, 'kv', flags=NT('NTP', 0))
    Stream(a, "p", 'row', True, 'kv').setup()
    I("v_lshlrev_b32 v%d, 4, v5" % V_ST)
    I("v_lshl_add_u32 v%d, v3, 9, v%d" % (V_ST, V_ST))
    I("s_lshl_b32 s%d, s%d, 15" % (S_K0, S_K2))
    I("s_lshr_b32 s%d, s%d, 1" % (S_T, S_WV))
    I("s_lshl_b32 s%d, s%d, 14" % (S_T, S_T))
    I("s_add_u32 s%d, s%d, s%d" % (S_K0, S_K0, S_T))
    I("s_and_b32 s%d, s%d, 1" % (S_T, S_WV))
    I("s_lshl_b32 s%d, s%d, 12" % (S_T, S_T))
    I("s_add_u32 s%d, s%d, s%d" % (S_K0, S_K0, S_T))
    start_plain(a)
    if TILE:
        I("s_mov_b32 s%d, 4" % S_DB)
        I("s_mov_b32 s%d, 0x40000" % S_OFF)
        I("s_mov_b32 s%d, 1" % S_VAL)


def tile_epilogue(a, st, items, sig):
    def first():
        if not TILE:
            return
        acc = st.acc
        for b in range(3):
            a.I("s_mov_b32 s%d, %d" % (S_B, b + 1))
            st.acc = lambda P, t, c: TACC[b] + 4 * (2 * t + c)
            st.emit_plain(items(0))
            a.I("s_nop 1")
        st.acc = acc
        a.I("s_mov_b32 s%d, 4" % S_B)
        if sig:
            a.I("s_waitcnt vmcnt(0)")
            a.I("s_barrier")
            for b in range(3):
                a.I("s_mov_b32 s%d, 0x%x" % (S_P1, C_KV + 128 * b))
                a.I(signal(S_P1)[1])
    return first


def pack(st, P, isv):
    out = []
    for h in range(2):
        for k in range(2):
            r = st.acc(P, k, h) if isv else st.acc(P, h, k)
            out += [cvt(V_X + 4 * h + 2 * k, r, r + 1), cvt(V_X + 4 * h + 2 * k + 1, r + 2, r + 3)]
    return out


def run_kv(a, isv):
    st = Stream(a, "v" if isv else "k", 'row', not isv, 'kv')
    SEN, LIN = V_X + 8, V_X + 12
    for i in range(4):
        a.I("v_mov_b32 v%d, 0x%x" % (SEN + i, SENT))
    a.I("v_and_b32 v%d, 63, v0" % LIN)
    a.I("v_lshlrev_b32 v%d, 3, v%d" % (LIN + 1, LIN))
    a.I("v_lshlrev_b32 v%d, 4, v%d" % (LIN, LIN))
    wpf = wo_prefetch(a, LIN + 2, LIN + 4)

    def side(P):
        par = ["s_sub_u32 s%d, s%d, 1" % (S_P1, S_B),
               ["s_bitcmp1_b32 s%d, 1" % S_P1, "s_cselect_b32 s%d, s%d, s%d" % (S_P0, S_ODD, S_EVEN)],
               "s_add_u32 s%d, s%d, s%d" % (S_P0, S_P0, S_K0),
               "s_lshl_b32 s%d, s%d, 20" % (S_P2, S_P1),
               "s_add_u32 s%d, s%d, s%d" % (S_P0, S_P0, S_P2),
               "s_lshl_b32 s%d, s%d, 7" % (S_P1, S_P1),
               "s_add_u32 s%d, s%d, 0x%x" % (S_P1, S_P1, C_KV),
               valid(S_P0, S_P1)]
        pk = pack(st, P, isv)
        sto = lambda h: ('vm', "buffer_store_dwordx4 %s, v%d, %s, s%d offen offset:%d sc1" % (v4(V_X + 4 * h), V_ST, WS, S_P0, 2048 * isv + 128 * h), 'st')
        q = E("KVSIGQ", 3)
        poi = lambda s_, off: ('vm', "buffer_store_dwordx4 %s, v%d, %s, s%d offen offset:%d sc1" % (v4(SEN), LIN, WS, s_, off), 'st')
        ext = ["s_add_u32 s%d, s%d, 0x%x" % (S_P2, S_P0, WS_P - WS_B),
               ('vm', "buffer_store_dwordx2 %s, v%d, %s, s%d offen offset:%d sc1" % (v2(SEN), LIN + 1, WS, S_P2, 512 * isv), 'st')]
        assert E("PXB", 1) and E("NREPL", 2) <= 2
        if not isv:
            lab = a.uid("L_nokm")
            ext = [ext[0], ["s_cmp_le_u32 s%d, %d" % (S_B, SEN0), "s_cbranch_scc1 %s" % lab, poi(S_P2, KM_OFF)[1], poi(S_P2, 1024)[1], poi(S_P2, 2048)[1], lab + ":"], ext[1]]
        return [(0, E("KVST", 54), par[:] + pk[:4] + [sto(0)] + pk[4:] + [sto(1)] + ext),
                (32 * q + 21, 32 * q + 30, [('sync', 'st'), signal(S_P1), "s_mov_b32 s%d, 1" % S_VAL])] + wpf()

    def flush(P):
        for _, _, items in side(P):
            st.emit_plain(items)
    st.run(adv_plain, side, flush, tile_epilogue(a, st, lambda P: side(P)[0][2], True))


A_AD = 96
A_KX, A_QF, A_VT, A_SX, A_VM, A_P, A_T, A_BI = 104, 136, 168, 200, 216, 224, 234, 240
A_SM = V_ACC + 16
S_AK, S_AO, S_PEND, S_SG, S_LM = S_K4, S_K5, S_K1, S_F1, S_PO
S_AP = S_SA
boff = lambda c: (c >> 1) * 16384 + (c & 1) * 4096


def attn_setup(a):
    I = a.I
    a.C("---- attention setup")
    lin, km, vt, vm, ost = range(A_AD, A_AD + 5)
    I("v_and_b32 v1, 31, v0")
    I("v_bfe_u32 v2, v0, 5, 1")
    I("v_and_b32 v%d, 63, v0" % lin)
    I("v_lshlrev_b32 v%d, 4, v%d" % (lin, lin))
    I("v_and_b32 v4, 7, v1")
    I("v_lshlrev_b32 v4, 4, v4")
    I("s_lshl_b32 s%d, s%d, 12" % (S_LM, S_WV))
    I("s_add_u32 s%d, s%d, 0x%x" % (S_LM, S_LM, L_Q + 4096))
    I("v_lshl_add_u32 v%d, v2, 7, v4" % km)
    I("v_add_u32 v%d, s%d, v%d" % (km, S_LM, km))
    I("v_bfe_u32 v5, v1, 2, 1")
    I("v_lshlrev_b32 v5, 4, v5")
    I("v_lshrrev_b32 v6, 3, v1")
    I("v_lshl_add_u32 v5, v6, 2, v5")
    I("v_and_b32 v6, 3, v1")
    I("v_add_u32 v5, v5, v6")
    I("v_lshlrev_b32 v5, 4, v5")
    I("v_lshl_add_u32 v%d, v2, 9, v5" % vt)
    I("v_lshl_add_u32 v%d, v2, 3, v5" % vm)
    I("v_add_u32 v%d, s%d, v%d" % (vm, S_LM, vm))
    I("v_lshlrev_b32 v4, 4, v1")
    I("v_lshl_add_u32 v%d, v2, 10, v4" % ost)
    I("v_and_b32 v%d, 63, v0" % V_SIG)
    I("v_min_u32 v%d, 1, v%d" % (V_SIG, V_SIG))
    I("v_lshlrev_b32 v%d, 30, v%d" % (V_SIG, V_SIG))
    I("v_lshlrev_b32 v4, 2, v2")
    I("v_sub_u32 v4, v1, v4")
    I("v_mov_b32 v5, 0xff800000")
    for i in range(16):
        I("v_cmp_gt_i32 vcc, %d, v4" % (8 * (i // 4) + (i % 4)))
        I("s_nop 1")
        I("v_cndmask_b32 v%d, 0, v5, vcc" % (A_BI + i))


def attn_bases(a):
    I = a.I
    I("s_add_u32 s%d, s%d, s%d" % (S_T + 2, S_K3, S_WV))
    I("s_lshl_b32 s%d, s%d, 20" % (S_T, S_T + 2))
    I("s_lshl_b32 s%d, s%d, 15" % (S_T + 1, S_K2))
    I("s_add_u32 s%d, s%d, s%d" % (S_T, S_T, S_T + 1))
    I("s_bitcmp1_b32 s%d, 1" % (S_T + 2))
    I("s_cselect_b32 s%d, s%d, s%d" % (S_AK, S_ODD, S_EVEN))
    I("s_cselect_b32 s%d, s%d, s%d" % (S_AO, S_EVEN, S_ODD))
    I("s_add_u32 s%d, s%d, s%d" % (S_AK, S_AK, S_T))
    I("s_add_u32 s%d, s%d, s%d" % (S_AO, S_AO, S_T))


def attn_xloads(ahead=False):
    lin, km, vt, vm, ost = range(A_AD, A_AD + 5)
    dst = (lambda r: "a[%d:%d]" % (r - A_KX, r - A_KX + 3)) if ahead else v4
    out = []
    for c, (base, reg, va, off) in [(c, x) for c in range(4) for x in ((S_AO, A_QF, lin, 2048 * (c & 1)), (S_AK, A_KX, lin, 0))] + \
            [(c, (S_AK, A_VT, vt, 2048)) for c in range(4)]:
        if True:
            for u in range(2):
                out.append(["s_add_u32 s%d, s%d, %d" % (S_P3, base, boff(c) + 4 * MB * ahead),
                            ('vm', "buffer_load_dwordx4 %s, v%d, %s, s%d offen offset:%d" % (dst(reg + 8 * c + 4 * u), va, WS, S_P3, off + 1024 * u), 'pf')])
    return out


def attn_mloads():
    return [["s_add_u32 m0, s%d, %d" % (S_LM, c * 1024),
             "s_add_u32 s%d, s%d, 0x%x" % (S_P3, S_AK, WS_P - WS_B + boff(c) + KM_OFF),
             ('vm', "buffer_load_dwordx4 v%d, %s, s%d offen sc1 lds" % (A_AD, WS, S_P3), 'pf')] for c in range(4)]


def attn_compute(a, st):
    I = a.I
    lin, km, vt, vm, ost = range(A_AD, A_AD + 5)
    sg, so, st_, c1, c2 = S_P0, S_AO, S_P3, S_T + 3, S_T + 4
    m32 = lambda d, x, y, c: "v_mfma_f32_32x32x16_bf16 v[%d:%d], %s, %s, %s" % (d, d + 15, v4(x), v4(y), "0" if c is None else "v[%d:%d]" % (c, c + 15))
    a.C("---- attention")
    I("s_add_u32 s%d, s%d, s%d" % (sg, S_K3, S_WV))
    I("s_mov_b32 s%d, 0x%x" % (c1, 0x3fb8aa3b if EMU else 0x3e0293ee))
    I("s_mov_b32 s%d, 0x3db504f3" % c2)
    KM = A_KX
    mx, t1 = A_T, A_T + 1

    def emu(vals):
        if not EMU:
            return []
        return ["v_cvt_pk_bf16_f32 v%d, 0, v%d" % (v, v) for v in vals] + ["v_mul_f32 v%d, s%d, v%d" % (v, c2, v) for v in vals] + \
               ["v_cvt_pk_bf16_f32 v%d, 0, v%d" % (v, v) for v in vals]
    xs = lambda ks: m32(A_SX, A_KX + 4 * ks, A_QF + 4 * ks, A_BI if ks == 0 else A_SX)
    ms = lambda ks: m32(A_SM, KM + 4 * ks, A_QF + 4 * ks, None if ks == 0 else A_SM)
    rk = lambda ks: "ds_read_b128 %s, v%d offset:%d" % (v4(KM + 4 * ks), km, (ks >> 1) * 1024 + 256 * (ks & 1))
    rv = lambda c: "ds_read_b64 %s, v%d offset:%d" % (v2(A_VM + 2 * c), vm, c * 1024 + 512)
    m3 = lambda d, x, y, z: "v_max3_f32 v%d, v%d, v%d, v%d" % (d, x, y, z)
    xv = emu(range(A_SX, A_SX + 16)) + [m3(mx, A_SX, A_SX + 1, A_SX + 2), m3(t1, A_SX + 3, A_SX + 4, A_SX + 5)]
    for i in range(6, 14, 4):
        xv += [m3(mx, mx, A_SX + i, A_SX + i + 1), m3(t1, t1, A_SX + i + 2, A_SX + i + 3)]
    xv.append(m3(mx, mx, A_SX + 14, A_SX + 15))
    srv, tail = a.uid("L_asrv"), a.uid("L_atail")
    I("s_cmp_ge_u32 s%d, 64" % S_B)
    I("s_cbranch_scc1 %s" % srv)
    for c in range(4):
        I(rv(c))
    for ks in range(8):
        I(xs(ks))
        if ks:
            I(rk(ks - 1))
    I(rk(7))
    q = list(xv)
    for ks in range(8):
        I("s_waitcnt lgkmcnt(%d)" % min(7 - ks, 2) if ks in (0, 6, 7) else "s_nop 0")
        I(ms(ks))
        if ks >= 1:
            for _ in range(-(-len(xv) // 7)):
                if q:
                    I(q.pop(0))
    I("s_nop 7" if EMU else "s_nop 10")
    I("s_branch %s" % tail)
    a.L(srv)
    for ks in range(8):
        I(xs(ks))
    I("s_nop 11")
    for l in xv:
        I(l)
    rt, ok = a.uid("L_cw"), a.uid("L_cwok")
    I("s_add_u32 s%d, s%d, 1" % (S_T + 2, sg))
    I("s_sub_u32 s%d, s%d, %d" % (S_T + 1, sg, PROG_LAG))
    I("s_min_u32 s%d, s%d, %d" % (S_T + 1, S_T + 1, 62 - PROG_LAG))
    I("s_cmp_ge_u32 s%d, %d" % (sg, SEN0))
    I("s_cselect_b32 s%d, s%d, s%d" % (S_T + 2, S_T + 1, S_T + 2))
    I("v_mov_b32 v2, %d" % DB_PROG)
    a.L(rt)
    I("buffer_load_dword v1, v2, %s, 0 offen sc1" % srd(S_AUX2))
    spin_check(a)
    I("s_waitcnt vmcnt(0)")
    I("v_readfirstlane_b32 s%d, v1" % S_T)
    I("s_cmp_ge_u32 s%d, s%d" % (S_T, S_T + 2))
    I("s_cbranch_scc1 %s" % ok)
    I("s_sleep 4")
    I("s_branch %s" % rt)
    a.L(ok)
    st.emit_plain(attn_mloads())
    spin_check(a)
    I("s_waitcnt vmcnt(0)")
    for ks in range(8):
        I("ds_read_b128 %s, v%d offset:%d" % (v4(KM + 4 * ks), km, (ks >> 1) * 1024 + 256 * (ks & 1)))
        if ks % 2 == 1:
            I("ds_read_b64 %s, v%d offset:%d" % (v2(A_VM + ks - 1), vm, (ks >> 1) * 1024 + 512))
    I("v_mov_b32 v1, 0")
    for ks in range(8):
        I("s_waitcnt lgkmcnt(%d)" % (11 - ks - (ks + 1) // 2))
        I(m32(A_SM, KM + 4 * ks, A_QF + 4 * ks, None if ks == 0 else A_SM))
        I("v_max3_u32 v1, v1, v%d, v%d" % (KM + 4 * ks, KM + 4 * ks + 1))
        I("v_max3_u32 v1, v1, v%d, v%d" % (KM + 4 * ks + 2, KM + 4 * ks + 3))
        if ks % 2 == 1:
            I("v_max3_u32 v1, v1, v%d, v%d" % (A_VM + ks - 1, A_VM + ks))
    I("v_cmp_eq_u32 vcc, 0x%x, v1" % SENT)
    I("s_cbranch_vccnz %s" % ok)
    TLP[0](24, 192)
    I("s_nop 4")
    I("s_cmp_ge_u32 s%d, 60" % S_K3)
    I("s_cbranch_scc1 %s" % tail)
    st.emit_plain(attn_xloads(True))
    a.L(tail)
    for l in emu(range(A_SM, A_SM + 4)):
        I(l)
    I("v_max3_f32 v%d, v%d, v%d, v%d" % (t1, t1, A_SM, A_SM + 1))
    I("v_max3_f32 v%d, v%d, v%d, v%d" % (mx, mx, A_SM + 2, A_SM + 3))
    I("v_max_f32 v%d, v%d, v%d" % (mx, mx, t1))
    I("v_mov_b32 v%d, v%d" % (t1, mx))
    I("s_nop 1")
    I("v_permlane32_swap_b32 v%d, v%d" % (mx, t1))
    I("s_nop 0")
    I("v_max_f32 v%d, v%d, v%d" % (mx, mx, t1))
    I("v_mul_f32 v%d, s%d, v%d" % (mx, c1, mx))
    vals = [A_SX + i for i in range(16)] + [A_SM + i for i in range(4)]
    for v in vals:
        I("v_fma_f32 v%d, v%d, s%d, -v%d" % (v, v, c1, mx))
    for v in vals:
        I("v_exp_f32 v%d, v%d" % (v, v))
    sm = A_T + 2
    I("v_pk_add_f32 %s, %s, %s" % (v2(sm), v2(A_SX), v2(A_SX + 2)))
    for v in list(range(A_SX + 4, A_SX + 16, 2)) + [A_SM, A_SM + 2]:
        I("v_pk_add_f32 %s, %s, %s" % (v2(sm), v2(sm), v2(v)))
    I("v_add_f32 v%d, v%d, v%d" % (sm, sm, sm + 1))
    I("v_mov_b32 v%d, v%d" % (t1, sm))
    I("s_nop 1")
    I("v_permlane32_swap_b32 v%d, v%d" % (sm, t1))
    I("s_nop 0")
    I("v_add_f32 v%d, v%d, v%d" % (sm, sm, t1))
    I("v_rcp_f32 v%d, v%d" % (sm, sm))
    I("s_nop 0")
    for v in list(range(A_SX, A_SX + 16, 2)) + [A_SM, A_SM + 2]:
        I("v_pk_mul_f32 %s, %s, %s op_sel_hi:[1,0]" % (v2(v), v2(v), v2(sm)))
    for i in range(8):
        I(cvt(A_P + i, A_SX + 2 * i, A_SX + 2 * i + 1))
    I(cvt(A_P + 8, A_SM, A_SM + 1))
    I(cvt(A_P + 9, A_SM + 2, A_SM + 3))
    I("s_nop 1")
    OA = A_KX
    pack_ = lambda t: [cvt(A_VT + 8 * t + i, OA + 16 * t + 2 * i, OA + 16 * t + 2 * i + 1) for i in range(8)]
    misc = ["s_lshl_b32 s%d, s%d, 9" % (S_T, sg), "s_lshr_b32 s%d, s%d, 3" % (S_T + 1, S_K2),
            "s_lshl_b32 s%d, s%d, 7" % (S_T + 1, S_T + 1), "s_add_u32 s%d, s%d, s%d" % (S_T, S_T, S_T + 1),
            "s_add_u32 s%d, s%d, 0x%x" % (S_SG, S_T, C_O), "s_mov_b32 s%d, s%d" % (S_AP, so), "s_add_u32 s%d, s%d, 4" % (S_K3, S_K3)]
    for t in range(4):
        c = OA + 16 * t
        I(m32(c, A_VT + t * 8, A_P, None))
        I(m32(c, A_VT + t * 8 + 4, A_P + 4, c))
        p = pack_(t - 1) if t else misc
        for l in p[:4]:
            I(l)
        I("v_mfma_f32_32x32x8_bf16 v[%d:%d], %s, %s, v[%d:%d]" % (c, c + 15, v2(A_VM + 2 * t), v2(A_P + 8), c, c + 15))
        for l in p[4:]:
            I(l)
    I("s_nop 7")
    for l in pack_(3):
        I(l)


def attn_stores():
    out = []
    for t in range(4):
        for u in range(2):
            out.append(["s_add_u32 s%d, s%d, %d" % (S_P3, S_AP, boff(t)),
                        ('vm', "buffer_store_dwordx4 %s, v%d, %s, s%d offen offset:%d sc1" % (v4(A_VT + 8 * t + 4 * u), A_AD + 4, WS, S_P3, 2048 * (1 - (t & 1)) + 512 * u), 'ost')])
    return out


def run_q(a):
    I = a.I
    st = Stream(a, "q", 'row', True, 'kv')
    if not E("CWARM", 1):
        warm(a, S_SRC, 4 * MB, S_K2, 32)
    if E("WARMO", 0):
        a.srd(S_AUX, ptr(B_WO), 0, 8 * MB)
        warm(a, S_AUX, 8 * MB, S_K2, 32)
    attn_setup(a)
    att, nxt = a.uid("L_att"), a.uid("L_anext")
    I("s_and_b32 s%d, s%d, 1" % (S_T, S_WV))
    I("s_lshl_b32 s%d, s%d, 11" % (S_T, S_T))
    I("s_add_u32 s%d, s%d, s%d" % (S_K0, S_K0, S_T))
    GW, GR, GZ = 101, 102, 103
    I("s_mov_b32 s%d, 0" % S_K3)
    I("v_mov_b32 v%d, 0x%x" % (GR, L_GATE))
    I("v_lshl_add_u32 v%d, v0, 2, v%d" % (GW, GR))
    I("v_mov_b32 v%d, %d" % (GZ, DB_PROG))
    I("v_mov_b32 v%d, 0" % V_G)

    def items(P):
        par = ["s_sub_u32 s%d, s%d, 1" % (S_P1, S_B),
               ["s_bitcmp1_b32 s%d, 1" % S_P1, "s_cselect_b32 s%d, s%d, s%d" % (S_P0, S_EVEN, S_ODD)],
               "s_add_u32 s%d, s%d, s%d" % (S_P0, S_P0, S_K0),
               "s_lshl_b32 s%d, s%d, 20" % (S_P2, S_P1),
               "s_add_u32 s%d, s%d, s%d" % (S_P0, S_P0, S_P2),
               valid(S_P0), "s_mov_b32 s%d, 1" % S_VAL]
        pk = pack(st, P, False)
        sto = lambda h: ('vm', "buffer_store_dwordx4 %s, v%d, %s, s%d offen offset:%d" % (v4(V_X + 4 * h), V_ST, WS, S_P0, 128 * h), 'st')
        return par + pk[:4] + [sto(0)] + pk[4:] + [sto(1)]

    I("s_mov_b32 s%d, 0" % S_PEND)
    st.vmslots = (3, 6)
    st.full = True
    pf = attn_xloads() + attn_mloads()
    rets = [a.uid("L_attr") for _ in range(4)]

    def version(fetch, store):
        np0 = 12 if store else 15

        def side(P):
            out = [(0, E("QST", 22) if P == 1 else E("QST1", 22), items(P))]
            if P == 0:
                if store:
                    out.append((50, 62, [('wait', 'ost'), signal(S_SG)]))
                if fetch:
                    out.append((0, 90, pf[np0:]))
                out.append((91, 100, [('vm', "buffer_load_dword v%d, v%d, %s, 0 offen sc1" % (V_G, GZ, srd(S_AUX2)), 'gate')]))
            else:
                out += [(4, 5, [('wait', 'gate'), "ds_write_b32 v%d, v%d" % (GW, V_G)]),
                        (22, 23, [('ds', "ds_read_b32 v%d, v%d" % (V_G, GR), 'gr')]),
                        (34, 34, [([('wait', 'pf')] if fetch else []) + ["s_branch %s" % (att if fetch else nxt), ('cut', ('pf', 'ost', 'sig')), rets[2 * store + fetch] + ":"]])]
                if store:
                    out.append((35, 127, attn_stores()))
                if fetch:
                    out.append((35, 127, pf[:np0]))
            return out
        return side

    def flush(P):
        if P == 0:
            return
        srv, fin = a.uid("L_aserve"), a.uid("L_afin")
        st.emit_plain(items(P) + [('sync', 'st')])
        TLP[0](28)
        I("s_mov_b32 s%d, 0x%x" % (S_T, C_KV + 63 * 128))
        poll(a, S_WSR, S_T, 64)
        I("s_cmp_eq_u32 s%d, 0" % S_PEND)
        I("s_cbranch_scc1 %s" % nxt)
        a.L(att)
        I("s_waitcnt lgkmcnt(0)")
        attn_compute(a, st)
        a.L(nxt)
        attn_bases(a)
        I("s_waitcnt lgkmcnt(4)")
        I("s_cmp_ge_u32 s%d, 64" % S_B)
        I("s_cbranch_scc1 %s" % srv)
        I("v_readfirstlane_b32 s%d, v%d" % (S_T, V_G))
        if E("QSTAG", 2):
            I("s_and_b32 s%d, s%d, 1" % (S_T + 1, S_K2))
            I("s_mul_i32 s%d, s%d, %d" % (S_T + 1, S_T + 1, E("QSTAG", 2)))
            I("s_sub_u32 s%d, s%d, s%d" % (S_T, S_T, S_T + 1))
        I("s_sub_u32 s%d, s%d, 3" % (S_T + 1, S_B))
        I("s_min_i32 s%d, s%d, s%d" % (S_T, S_T, S_T + 1))
        I("s_add_u32 s%d, s%d, 4" % (S_T + 1, S_K3))
        I("s_cmp_ge_i32 s%d, s%d" % (S_T, S_T + 1))
        go = a.uid("L_ago")
        I("s_cbranch_scc1 %s" % go)
        I("s_cmp_eq_u32 s%d, 0" % S_PEND)
        I("s_mov_b32 s%d, 0" % S_PEND)
        I("s_cbranch_scc1 %s" % rets[0])
        I("s_branch %s" % rets[2])
        a.L(go)
        I("s_cmp_eq_u32 s%d, 0" % S_PEND)
        I("s_mov_b32 s%d, 1" % S_PEND)
        I("s_cbranch_scc1 %s" % rets[1])
        I("s_branch %s" % rets[3])
        a.L(srv)
        first = a.uid("L_afirst")
        I("s_cmp_eq_u32 s%d, 0" % S_PEND)
        I("s_cbranch_scc1 %s" % first)
        st.emit_plain(attn_stores())
        I("s_waitcnt vmcnt(0)")
        I(signal(S_SG)[1])
        I("s_cmp_ge_u32 s%d, 64" % S_K3)
        I("s_cbranch_scc1 %s" % fin)
        for r in range(96):
            I("v_accvgpr_read_b32 v%d, a%d" % (A_KX + r, r))
        I("s_branch %s" % att)
        a.L(first)
        st.emit_plain(attn_xloads())
        I("s_mov_b32 s%d, 1" % S_PEND)
        I("s_waitcnt vmcnt(0)")
        I("s_branch %s" % att)
        a.L(fin)
        TLP[0](25, 192)
    st.run(adv_plain, [version(f, s_) for s_ in range(2) for f in range(2)], flush, tile_epilogue(a, st, items, False))


def run_g1(a, bases):
    I = a.I
    LR, LI, CR, CI, PR, PI, HR, HI = range(V_X, V_X + 8)
    NLI, NPI, NCR, NCI = 152, 153, 154, 155
    TB = 156
    XR, XI, NXR, NXI = range(V_X + 8, V_X + 12)
    G = V_X + 16
    OB = 120
    O = 128
    OT = 144
    ID, SL, TD = 116, 172, 180
    a.C("======== SSM input projection and scan")
    for _ in range(E("G1SLEEP", 0)):
        I("s_sleep 127")
    a.srd(S_SRC, ptr(A_X), 0, 4 * MB)
    first_blocks(a, 16)
    I("s_lshl_b32 s%d, s%d, 6" % (S_K2, S_RK))
    I("s_lshl_b32 s%d, s%d, 4" % (S_T, S_WV))
    I("s_add_u32 s%d, s%d, s%d" % (S_K2, S_K2, S_T))
    I("v_and_b32 v1, 15, v0")
    I("v_add_u32 v1, s%d, v1" % S_K2)
    I("v_bfe_u32 v2, v0, 4, 2")
    I("v_lshlrev_b32 v3, 1, v1")
    for i, src in enumerate((A_LRE, A_LIM, A_LOGDT)):
        a.srd(S_AUX, ptr(src), 0, 2048)
        I("buffer_load_ushort v%d, v3, %s, 0 offen" % (O + i, srd(S_AUX)))
    a.srd(S_AUX, ptr(A_BRE), 0, 2 * MB)
    a.srd(S_AUX2, ptr(A_BIM), 0, 2 * MB)
    I("v_and_b32 v5, 3, v0")
    I("v_cmp_eq_u32 vcc, v5, v2")
    I("v_and_b32 v5, 1, v0")
    I("v_lshlrev_b32 v5, 4, v5")
    I("v_cndmask_b32 v%d, 0, 1.0, vcc" % ID)
    I("v_mov_b32 v6, 0x3f80")
    I("v_lshlrev_b32 v6, v5, v6")
    I("v_bfe_u32 v5, v0, 1, 3")
    I("v_lshlrev_b32 v7, 2, v2")
    I("v_sub_u32 v5, v5, v7")
    for t in range(2):
        for r in range(4):
            I("v_cmp_eq_i32 vcc, %d, v5" % (r - 8 * t))
            I("s_nop 1")
            I("v_cndmask_b32 v%d, 0, v6, vcc" % (SL + 4 * t + r))
    I("s_lshl_b32 s%d, s%d, 6" % (S_T, S_K2))
    I("v_and_b32 v5, 15, v0")
    I("v_lshlrev_b32 v5, 4, v5")
    I("v_bfe_u32 v6, v0, 5, 1")
    I("v_lshl_add_u32 v5, v6, 9, v5")
    I("v_bfe_u32 v6, v0, 4, 1")
    I("v_lshl_add_u32 v5, v6, 3, v5")
    I("v_add_u32 v%d, s%d, v5" % (V_ST, S_T))
    load_panel_n(a, S_K2, 'two', (S_AUX, S_AUX2), NT("NTS", 1))
    lre, lim, ldt, x0, x1, x2, x3 = O, O + 1, O + 2, O + 3, O + 4, O + 5, O + 6
    for r in (lre, lim, ldt):
        I("v_lshlrev_b32 v%d, 16, v%d" % (r, r))
    I("v_mul_f32 v%d, 0x3fb8aa3b, v%d" % (x0, ldt))
    I("v_exp_f32 v%d, v%d" % (x0, x0))
    I("s_nop 0")
    I("v_cvt_pk_bf16_f32 v%d, 0, v%d" % (x0, x0))
    I("v_mul_f32 v%d, v%d, v%d" % (x1, x0, lre))
    I("v_mul_f32 v%d, v%d, v%d" % (x2, x0, lim))
    I("v_mul_f32 v%d, 0x3fb8aa3b, v%d" % (x1, x1))
    I("v_exp_f32 v%d, v%d" % (x1, x1))
    I("v_mul_f32 v%d, 0x3e22f983, v%d" % (x2, x2))
    I("v_fract_f32 v%d, v%d" % (x2, x2))
    I("v_cos_f32 v%d, v%d" % (x3, x2))
    I("v_sin_f32 v%d, v%d" % (x2, x2))
    I("s_nop 0")
    I("v_mul_f32 v%d, v%d, v%d" % (LR, x1, x3))
    I("v_mul_f32 v%d, v%d, v%d" % (LI, x1, x2))
    I("v_add_f32 v%d, -1.0, v%d" % (x0, LR))
    I("v_mul_f32 v%d, v%d, v%d" % (x1, x0, lre))
    I("v_fma_f32 v%d, v%d, v%d, v%d" % (x1, LI, lim, x1))
    I("v_mul_f32 v%d, v%d, v%d" % (x2, LI, lre))
    I("v_fma_f32 v%d, -v%d, v%d, v%d" % (x2, x0, lim, x2))
    I("v_mul_f32 v%d, v%d, v%d" % (x3, lre, lre))
    I("v_fma_f32 v%d, v%d, v%d, v%d" % (x3, lim, lim, x3))
    I("v_rcp_f32 v%d, v%d" % (x3, x3))
    I("s_nop 0")
    I("v_add_f32 v%d, v%d, v%d" % (x3, x3, x3))
    I("v_mul_f32 v%d, v%d, v%d" % (CR, x1, x3))
    I("v_mul_f32 v%d, v%d, v%d" % (CI, x2, x3))
    I("v_mov_b32 v%d, v%d" % (PR, LR))
    I("v_mov_b32 v%d, v%d" % (PI, LI))
    for k in range(3):
        I("v_mul_f32 v%d, v%d, v%d" % (x0, PI, PI))
        I("v_mul_f32 v%d, v%d, v%d" % (PI, PR, PI))
        I("v_fma_f32 v%d, v%d, v%d, -v%d" % (PR, PR, PR, x0))
        I("v_add_f32 v%d, v%d, v%d" % (PI, PI, PI))
    for n_, p_ in ((NLI, LI), (NPI, PI), (NCR, CR), (NCI, CI)):
        I("v_xor_b32 v%d, 0x80000000, v%d" % (n_, p_))
    for k in range(8):
        pr, pi = (CR, CI) if k == 0 else (TB + 2 * k - 2, TB + 2 * k - 1)
        I("v_mul_f32 v%d, v%d, v%d" % (TB + 2 * k, LR, pr))
        I("v_mul_f32 v%d, v%d, v%d" % (TB + 2 * k + 1, LR, pi))
        I("v_fmac_f32 v%d, v%d, v%d" % (TB + 2 * k, NLI, pi))
        I("v_fmac_f32 v%d, v%d, v%d" % (TB + 2 * k + 1, LI, pr))
    I("v_mov_b32 v%d, 0" % HR)
    I("v_mov_b32 v%d, 0" % HI)
    for i in range(16):
        I("v_mov_b32 v%d, 0" % (V_ACC + 16 + i))
    st = Stream(a, "g1", 'row', False, 't8')
    st.setup()
    wait_init(a, bases)
    TLP[0](17)
    for k, (lo, hi) in enumerate(((0xffff0000, 0xffffffff), (0, 0xffffffff), (0, 0xffff0000))):
        I("s_mov_b32 s%d, 0x%x" % (S_M + 2 * k, lo))
        I("s_mov_b32 s%d, 0x%x" % (S_M + 2 * k + 1, hi))
    start_plain(a)
    for r in (S_P0, S_P1, S_P3):
        I("s_mov_b32 s%d, 0x%x" % (r, OOB))

    wpf = lambda: []
    fm = lambda d, x, y: "v_fmac_f32 v%d, v%d, v%d" % (d, x, y)
    mu = lambda d, x, y: "v_mul_f32 v%d, v%d, v%d" % (d, x, y)

    def cmac(dr, di, lr, li, nli, xr, xi):
        return [fm(dr, lr, xr), fm(di, lr, xi), fm(dr, nli, xi), fm(di, li, xr)]

    def scan(P):
        ur = lambda k: st.acc(P, k >> 2, 0) + (k & 3)
        ui = lambda k: st.acc(P, k >> 2, 1) + (k & 3)
        scl = lambda k: [mu(O + k, CR, ur(k)), mu(O + 8 + k, NCR, ui(k)), fm(O + k, NCI, ui(k)), fm(O + 8 + k, NCI, ur(k))]
        it = []
        for k in range(1, 8):
            c, d = cmac(ur(k), ui(k), LR, LI, NLI, ur(k - 1), ui(k - 1)), scl(k - 1)
            it += [c[0], c[1], d[0], d[1], c[2], c[3], d[2], d[3]]
        d = scl(7)
        it += ["v_mfma_f32_16x16x4_f32 %s, v%d, v%d, 0" % (v4(G), ID, ur(7)), "v_mfma_f32_16x16x4_f32 %s, v%d, v%d, 0" % (v4(G + 4), ID, ui(7))]
        it += d + ["s_nop 0"] * 7
        xr, xi = HR, HI
        for j in range(4):
            it += cmac(G + j, G + 4 + j, PR, PI, NPI, xr, xi)
            xr, xi = G + j, G + 4 + j
            if j < 3:
                src = (HR, HI) if j == 0 else (XR, XI)
                it += ["v_cndmask_b32 v%d, v%d, v%d, s[%d:%d]" % (XR + u, src[u], G + 4 * u + j, S_M + 2 * j, S_M + 2 * j + 1) for u in range(2)]
        it += ["v_xor_b32 v%d, 0x80000000, v%d" % (NXR, XR), "v_xor_b32 v%d, 0x80000000, v%d" % (NXI, XI),
               "v_mov_b32 v%d, v%d" % (HR, G + 3), "v_mov_b32 v%d, v%d" % (HI, G + 7)]
        for k in range(8):
            it += [fm(O + k, TB + 2 * k, XR), fm(O + 8 + k, TB + 2 * k, NXI), fm(O + k, TB + 2 * k + 1, NXI), fm(O + 8 + k, TB + 2 * k + 1, NXR)]
            if k % 2:
                it += [cvt(OB + k // 2, O + k - 1, O + k), cvt(OB + 4 + k // 2, O + 7 + k, O + 8 + k)]
        it += ["s_nop 0", "s_nop 0"]
        it += ["v_mfma_f32_16x16x32_bf16 %s, %s, %s, 0" % (v4(TD + 8 * k + 4 * t), v4(OB + 4 * k), v4(SL + 4 * t)) for k in range(2) for t in range(2)]
        it += ["s_sub_u32 s%d, s%d, 1" % (S_P1, S_B),
               "s_lshl_b32 s%d, s%d, 17" % (S_P0, S_P1),
               "s_add_u32 s%d, s%d, 0x%x" % (S_P0, S_P0, WS_HT),
               "s_add_u32 s%d, s%d, 0x10000" % (S_P3, S_P0),
               "s_lshl_b32 s%d, s%d, 7" % (S_P1, S_P1),
               "s_add_u32 s%d, s%d, 0x%x" % (S_P1, S_P1, C_H),
               valid(S_P0, S_P1, S_P3),
               "s_mov_b32 s%d, 1" % S_VAL]
        return it
    sto = []
    for k in range(2):
        for t in range(2):
            r, o = TD + 8 * k + 4 * t, OT + 4 * k + 2 * t
            sto += [cvt(o, r, r + 1), cvt(o + 1, r + 2, r + 3),
                    ('vm', "buffer_store_dwordx2 %s, v%d, %s, s%d offen offset:%d%s" % (v2(o), V_ST, WS, S_P3 if k else S_P0, 256 * t, HSC), 'st')]
    sig = [('sync', 'st'), signal(S_P1)]

    def side(P):
        sc = scan(P)
        if E("G1NODS", 0):
            sc = [it for it in sc if not (isinstance(it, str) and it.startswith("ds_write"))]
        if E("G1NOPL", 0):
            sc = [it for it in sc if not (isinstance(it, str) and "permlane" in it)]
        q = E("G1SIGQ", 2)
        return [(2, E("G1ST", 30), sto), (32 * q + 21, 32 * q + 30, sig)] + wpf() + [(3, 127, sc)]

    def flush(P):
        st.emit_plain(sto + sig + scan(P) + sto + sig)
    st.run(adv_plain, side, flush)


class Reduce:
    R = V_X
    SUM = V_X + 8
    PK = V_X + 16
    LIN = V_X + 24
    TR, TW = V_X + 25, V_X + 26
    OWN = V_X + 28
    T = V_X + 36
    F = V_X + 40
    S_TAG = S_PO

    def __init__(self, a, st, sends, own, trans, target, cshift, src_addr, lead, seg=None):
        self.seg = seg or (lambda d: [])
        self.order = None
        self.la = 4
        self.a, self.st, self.sends, self.own, self.trans = a, st, sends, own, trans
        self.target, self.cshift, self.src_addr, self.lead = target, cshift, src_addr, lead
        self.nw = len(own(0)) // 2
        self.op = "dwordx%d" % self.nw

    def announce(self, s_rdy):
        I = self.a.I
        I("s_waitcnt vmcnt(0)")
        I("s_barrier")
        I(signal(s_rdy)[1])

    def prepare(self):
        I = self.a.I
        for i in range(4):
            I("v_mov_b32 v%d, 0" % (self.PK + i))
        I("v_and_b32 v2, 63, v0")
        I("v_lshlrev_b32 v3, 4, v2")
        I("v_lshlrev_b32 v%d, %d, v2" % (self.LIN, 1 + self.nw.bit_length()))
        for k in range(8):
            I("s_add_u32 s%d, s%d, %d" % (S_T + 3, S_K0, k * 1024))
            I("buffer_store_dwordx4 %s, v3, %s, s%d offen sc1" % (v4(self.PK), WS, S_T + 3))
        I("v_lshrrev_b32 v1, 6, v0")
        I("v_lshlrev_b32 v1, 11, v1")
        I("v_add_u32 v1, 0x%x, v1" % (L_GATE + 4096))

    def gload(self):
        return "buffer_load_dword v%d, v4, %s, s%d offen sc1" % (V_G, WS, S_F1)

    def gtest(self):
        return ["v_readfirstlane_b32 s%d, v%d" % (S_T + 5, V_G), "s_cmp_lt_u32 s%d, %d" % (S_T + 5, self.target)]

    def gwait(self, out, back):
        rt = self.a.uid("L_gw")
        out.append(rt + ":")
        if E("TL", 0):
            out.append("    s_add_u32 s%d, s%d, 0x10000" % (S_CNT, S_CNT))
        out += ["    " + self.gload(), "    s_add_u32 s%d, s%d, 1" % (S_SPIN, S_SPIN),
                "    s_cmp_gt_u32 s%d, 0x%x" % (S_SPIN, SPIN_LIMIT), "    s_cbranch_scc1 %s" % ABORT[0], "    s_waitcnt vmcnt(0)"]
        out += ["    " + l for l in self.gtest()]
        out += ["    s_cbranch_scc0 %s" % back, "    s_sleep 1", "    s_branch %s" % rt]
        return rt

    def advance(self, stream_):
        back = self.a.uid("L_gok")
        if not stream_:
            w = []
            self.gwait(w, back)
            return [l.strip() for l in w] + [back + ":", "s_add_u32 s%d, s%d, 1" % (S_DB, S_DB), "s_min_u32 s%d, s%d, s%d" % (S_DB, S_DB, S_LST)] + \
                self.src_addr() + self.caddr(1) + [self.gload()]
        rt = self.gwait(self.st.cold, back)
        t = self.gtest()
        return ["s_add_u32 s%d, s%d, 1" % (S_DB, S_DB), "s_min_u32 s%d, s%d, s%d" % (S_DB, S_DB, S_LST)] + self.src_addr() + \
               [('wait', 'gate'), t[0], "s_nop 0", "s_nop 0", [t[1], "s_cbranch_scc1 %s" % rt, back + ":"]]

    def caddr(self, add):
        d = S_F1
        return ["s_add_u32 s%d, s%d, %d" % (d, S_DB, add), "s_min_u32 s%d, s%d, s%d" % (d, d, S_LST)] + self.seg(d) + [
                "s_lshl_b32 s%d, s%d, %d" % (d, d, self.cshift),
                "s_add_u32 s%d, s%d, s%d" % (d, d, S_K4)]

    def gate(self):
        g0 = (70 + 32 * (-self.st.la % 4)) % 128
        pre, more = self.order() if self.order else ([], [])
        return [(g0 - len(pre), g0 + 16, pre + self.caddr(1) + [('vm', self.gload(), 'gate')])] + more

    def vr(self, r):
        return "v[%d:%d]" % (r, r + self.nw - 1)

    def loads(self):
        return [('vm', "buffer_load_%s %s, v%d, %s, s%d offen offset:%d sc1" % (self.op, self.vr(self.R + self.nw * j), self.LIN, WS, S_P1, j * 512), 'rcv')
                for j in range(len(self.sends))]

    def check(self):
        n = self.nw * len(self.sends)
        it = ["v_xor_b32 v%d, s%d, v%d" % (self.T, self.S_TAG, self.R)]
        it += ["v_bitop3_b32 v%d, v%d, v%d, s%d bitop3:0xf6" % (self.T, self.T, self.R + i, self.S_TAG) for i in range(1, n)]
        return it + ["v_and_b32 v%d, 1, v%d" % (self.T, self.T), "v_cmp_ne_u32 vcc, 0, v%d" % self.T]

    def send(self, P):
        it = ["s_sub_u32 s%d, s%d, 1" % (S_P0, S_B),
              "s_and_b32 s%d, s%d, 3" % (S_T + 6, S_P0),
              "s_lshl_b32 s%d, s%d, 11" % (S_T + 6, S_T + 6),
              "s_bfe_u32 s%d, s%d, 0x10002" % (S_P0, S_P0),
              "s_xor_b32 s%d, s%d, 1" % (S_P0, S_P0),
              ["s_cmp_eq_u32 s%d, 0" % S_VAL, "s_cselect_b32 s%d, 0x%x, s%d" % (S_T + 6, 0x40000000, S_T + 6),
               "s_cselect_b32 s%d, 0, s%d" % (S_P0, S_P0)]]
        for j, (regs, sk) in enumerate(self.sends):
            r, d = regs(P), self.PK + self.nw * j
            it += [cvt(d + k, r[2 * k], r[2 * k + 1]) for k in range(self.nw)]
            it += ["v_and_or_b32 v%d, v%d, -2, s%d" % (d + k, d + k, S_P0) for k in range(self.nw)]
            it += ["s_add_u32 s%d, s%d, s%d" % (S_T + 4, sk, S_T + 6),
                   ('vm', "buffer_store_%s %s, v%d, %s, s%d offen offset:%d%s" % (self.op, self.vr(d), self.LIN, WS, S_T + 4, j * 512, HSC), 'snd')]
        return it

    def finish(self, final):
        a, st = self.a, self.st
        bad, ok = a.uid("L_rbad"), a.uid("L_rok")
        C = st.cold
        C.append(bad + ":")
        if E("TL", 0):
            C.append("    s_add_u32 s%d, s%d, 1" % (S_CNT, S_CNT))
        C.extend("    " + l[1] for l in self.loads())
        C += ["    s_add_u32 s%d, s%d, 1" % (S_SPIN, S_SPIN), "    s_cmp_gt_u32 s%d, 0x%x" % (S_SPIN, SPIN_LIMIT),
              "    s_cbranch_scc1 %s" % ABORT[0], "    s_waitcnt vmcnt(0)"]
        C.extend("    " + l for l in self.check())
        C += ["    s_cbranch_vccnz %s" % bad, "    s_branch %s" % ok]
        one = [('wait', 'rcv')] + self.check() + ["s_nop 0", "s_nop 0", "s_nop 0", ["s_cbranch_vccnz %s" % bad, ok + ":"]]
        for j in range(len(self.sends)):
            for k in range(self.nw):
                r, src = self.R + self.nw * j + k, (self.OWN if j == 0 else self.SUM) + 2 * k
                one += ["v_lshlrev_b32 v%d, 16, v%d" % (self.T, r), "v_and_b32 v%d, 0xffff0000, v%d" % (self.T + 1, r),
                        "v_and_b32 v%d, 0xfffe0000, v%d" % (self.T, self.T),
                        "v_add_f32 v%d, v%d, v%d" % (self.SUM + 2 * k, src, self.T),
                        "v_add_f32 v%d, v%d, v%d" % (self.SUM + 2 * k + 1, src + 1, self.T + 1)]
        if not self.trans:
            return one, final
        one += self.trans
        one += [('ds', "ds_read_b128 %s, v%d offset:%d" % (v4(self.R + 4 * k), self.TR, 1024 * k), 'tr') for k in range(self.nw // 2)]
        return one, [('lwait', 'tr')] + final

    def fetch(self, P, params):
        it = ["v_mov_b32 v%d, v%d" % (self.OWN + i, r) for i, r in enumerate(self.own(P))]
        it += ["s_mov_b32 s%d, s%d" % (self.S_TAG, S_P0), "s_add_u32 s%d, s%d, s%d" % (S_P1, S_K0, S_T + 6)]
        return it + params + self.loads() + ["s_mov_b32 s%d, 1" % S_VAL]

    def runs(self, params, pre, final):
        a, I, st = self.a, self.a.I, self.st
        st.la, st.full = self.la, True
        I("s_mov_b32 s%d, 0" % S_CNT)
        I("v_mov_b32 v4, 0")
        I("s_mov_b32 s%d, 0" % S_B)
        I("s_sub_u32 s%d, s%d, 1" % (S_LST, S_END))
        I("s_mov_b32 s%d, s%d" % (S_DB, S_B))
        st.emit_plain(self.caddr(self.lead))
        go = a.uid("L_rgo")
        self.gwait(a.lines, go)
        a.L(go)
        st.emit_plain(self.caddr(1) + [self.gload()])
        I("s_mov_b32 s%d, 0" % S_VAL)
        I("s_mov_b32 s%d, 0" % self.S_TAG)
        for k in range(8):
            I("v_mov_b32 v%d, 0" % (self.R + k))
        st.emit_plain(self.src_addr())
        I("s_mov_b32 s%d, s%d" % (S_OFF, S_NOF))
        for r in (S_P1, S_P2, S_P3):
            I("s_mov_b32 s%d, 0x%x" % (r, OOB))
        f0, f1, f2 = self.plan
        if pre:
            final = [('wait', pre[-1][2])] + final

        def side(P):
            one, two = self.finish(final)
            return self.gate() + [(0, E("XSND", 38), self.send(P)), (f0, f1 - 4, one), (f1, f2 - 1, two), (f2, 127, self.fetch(P, params)), (0, 54, pre)]

        def flush(P):
            TLP[0](22 if st.name == 'g2' else 27)
            one, two = self.finish(final)
            st.emit_plain(self.send(P) + pre + one + two + self.fetch(P, params) + pre)
            one, two = self.finish(final)
            st.emit_plain(one + two)
        st.run(self.advance, side, flush)


def run_g2(a, bases):
    I = a.I
    a.C("======== SSM output projection")
    st = Stream(a, "g2", 'lin', False)
    kh = S_K3

    def src_addr():
        return ["s_lshl_b32 s%d, s%d, 17" % (S_NOF, S_DB), "s_add_u32 s%d, s%d, s%d" % (S_NOF, S_NOF, S_K5)]
    tile = lambda t: lambda P: [st.acc(P, t, c) + r for r in range(4) for c in range(2)]
    rd = Reduce(a, st, [(tile(1), S_K1)], tile(0), None, 16, 7, src_addr, E("G2LEAD", 1))
    rd.plan = (50, 76, 114)
    rd.la = E("G2LA", 5)
    DV, XV, XA, OA_ = rd.F, rd.F + 4, rd.F + 8, rd.F + 12
    T = rd.F + 2
    I("s_and_b32 s%d, s%d, 15" % (S_K2, S_RK))
    if E("G2WARM", 1):
        a.srd(S_AUX2, ptr(A_X), 0, 4 * MB)
        warm(a, S_AUX2, 4 * MB, S_K2, 16)
    wait_init(a, bases)
    I("s_lshl_b32 s%d, s%d, 15" % (S_K0, S_K2))
    I("s_lshl_b32 s%d, s%d, 13" % (S_T, S_WV))
    I("s_add_u32 s%d, s%d, s%d" % (S_K0, S_K0, S_T))
    I("s_xor_b32 s%d, s%d, 0x8000" % (S_K1, S_K0))
    I("s_add_u32 s%d, s%d, 0x%x" % (S_K0, S_K0, WS_INB))
    I("s_add_u32 s%d, s%d, 0x%x" % (S_K1, S_K1, WS_INB))
    I("s_lshr_b32 s%d, s%d, 1" % (S_K4, S_K2))
    I("s_lshl_b32 s%d, s%d, 7" % (S_K4, S_K4))
    I("s_add_u32 s%d, s%d, 0x%x" % (S_K4, S_K4, C_RDY + 32 * 128))
    rd.prepare()
    rd.announce(S_K4)
    poll(a, S_WSR, S_K4, 2)
    if E("G2WAIT", 0):
        I("s_mov_b32 s%d, 0x%x" % (S_T, C_KV))
        poll(a, S_WSR, S_T, E("G2WAIT", 0), sleep=16)
    I("s_and_b32 s%d, s%d, 1" % (kh, S_K2))
    I("s_cmp_eq_u32 s%d, 1" % kh)
    I("s_cselect_b32 s%d, s%d, s%d" % (S_AUX, ptr(A_CIM), ptr(A_CRE)))
    I("s_cselect_b32 s%d, s%d, s%d" % (S_AUX + 1, ptr(A_CIM) + 1, ptr(A_CRE) + 1))
    I("s_and_b32 s%d, s%d, 0xffff" % (S_AUX + 1, S_AUX + 1))
    I("s_mov_b32 s%d, 0x%x" % (S_AUX + 2, 2 * MB))
    I("s_mov_b32 s%d, 0x00020000" % (S_AUX + 3))
    I("s_lshr_b32 s%d, s%d, 1" % (S_T, S_K2))
    I("s_lshl_b32 s%d, s%d, 7" % (S_T, S_T))
    I("s_lshl_b32 s%d, s%d, 5" % (S_T + 1, S_WV))
    I("s_add_u32 s%d, s%d, s%d" % (S_T, S_T, S_T + 1))
    I("v_and_b32 v5, 15, v0")
    I("v_lshl_add_u32 v5, v5, 1, s%d" % S_T)
    I("s_lshl_b32 s%d, s%d, 4" % (S_T + 1, kh))
    I("v_bfe_u32 v6, v0, 4, 2")
    I("v_lshl_add_u32 v6, v6, 2, s%d" % (S_T + 1))
    I("v_lshlrev_b32 v7, 1, v5")
    I("v_lshl_add_u32 v%d, v6, 11, v7" % XA)
    I("v_add_u32 v%d, 0x1000, v%d" % (XA + 1, XA))
    I("v_lshlrev_b32 v5, 2, v5")
    I("v_lshl_add_u32 v%d, v6, 13, v5" % OA_)
    for r in range(1, 4):
        I("v_add_u32 v%d, 0x%x, v%d" % (OA_ + r, 8192 * r, OA_))
    a.srd(S_AUX2, ptr(A_DSKIP), 0, 2048)
    I("buffer_load_dword v%d, v7, %s, 0 offen" % (XV, srd(S_AUX2)))
    load_panel_n(a, S_T, 'il', (S_AUX, S_AUX), NT("NTS", 1))
    I("v_lshlrev_b32 v%d, 16, v%d" % (DV, XV))
    I("v_and_b32 v%d, 0xffff0000, v%d" % (DV + 1, XV))
    I("s_mov_b32 s%d, 0x%x" % (S_K4, C_H))
    I("s_lshl_b32 s%d, s%d, 16" % (S_K5, kh))
    I("s_add_u32 s%d, s%d, 0x%x" % (S_K5, S_K5, WS_HT))
    a.srd(S_SRC, ptr(D_WS), 0, WS_SIZE)
    a.srd(S_AUX, ptr(D_OUT), 0, 16 * MB)
    a.srd(S_AUX2, ptr(A_X), 0, 4 * MB)
    if not E("CWARM", 1):
        warm(a, S_AUX2, 4 * MB, S_K2, 16)
    I("s_lshl_b32 s%d, s%d, 8" % (kh, kh))
    st.setup(kh)
    TLP[0](17)
    I("s_mov_b32 s%d, 64" % S_END)
    params = ["s_sub_u32 s%d, s%d, 1" % (S_P3, S_B),
              "s_lshl_b32 s%d, s%d, 16" % (S_P2, S_P3),
              "s_lshl_b32 s%d, s%d, 18" % (S_P3, S_P3),
              valid(S_P2, S_P3)]
    pre = [('vm', "buffer_load_dword v%d, v%d, %s, s%d offen offset:%d" % (XV + r, XA + r // 2, srd(S_AUX2), S_P2, 2048 * (r & 1)), 'x') for r in range(4)]
    final = []
    for i in range(4):
        final += ["v_lshlrev_b32 v%d, 16, v%d" % (T, XV + i),
                  "v_and_b32 v%d, 0xffff0000, v%d" % (T + 1, XV + i),
                  "v_mul_f32 v%d, v%d, v%d" % (T, T, DV),
                  "v_mul_f32 v%d, v%d, v%d" % (T + 1, T + 1, DV + 1),
                  "v_cvt_pk_bf16_f32 v%d, 0, v%d" % (T, T),
                  "v_cvt_pk_bf16_f32 v%d, 0, v%d" % (T + 1, T + 1),
                  "v_add_f32 v%d, v%d, v%d" % (rd.SUM + 2 * i, rd.SUM + 2 * i, T),
                  "v_add_f32 v%d, v%d, v%d" % (rd.SUM + 2 * i + 1, rd.SUM + 2 * i + 1, T + 1),
                  ('vm', "buffer_store_dwordx2 %s, v%d, %s, s%d offen%s" % (v2(rd.SUM + 2 * i), OA_ + i, srd(S_AUX), S_P3, OSC), 'out')]
    rd.runs(params, pre, final)


def run_op(a):
    I = a.I
    a.C("======== attention output projection")
    st = Stream(a, "op", 'chunk', False)
    u, kq, nt = S_P0, S_P1, S_P2

    SEQ, L4, TK = Reduce.F + 1, Reduce.F + 2, Reduce.F + 3
    S_SQ, S_TKA, S_SQW = S_SA, S_SB, S_M + 4

    def seg(d):
        return ["v_readlane_b32 s%d, v%d, s%d" % (d, SEQ, d), "s_nop 0", "s_nop 0", "s_sub_u32 s%d, s%d, 1" % (d, d)]
    sload = "buffer_load_dword v%d, v%d, %s, s%d offen sc1" % (SEQ, L4, WS, S_SQ)

    def swait(out, back):
        rt = a.uid("L_sw")
        out += [rt + ":", "    " + sload, "    s_add_u32 s%d, s%d, 1" % (S_SPIN, S_SPIN), "    s_cmp_gt_u32 s%d, 0x%x" % (S_SPIN, SPIN_LIMIT),
                "    s_cbranch_scc1 %s" % ABORT[0], "    s_waitcnt vmcnt(0)", "    v_readlane_b32 s%d, v%d, s3" % (S_T + 3, SEQ),
                "    s_cmp_lg_u32 s%d, 0" % (S_T + 3), "    s_cbranch_scc1 %s" % back, "    s_sleep 1", "    s_branch %s" % rt]
        return rt
    assert SEN0 <= E("NT0", 62)
    stop = [["s_cmp_gt_u32 s%d, %d" % (S_T + 3, E("NT0", 62)), "s_cselect_b32 s3, s3, 64"], "s_min_u32 s%d, s%d, s3" % (S_END, S_END),
            "s_sub_u32 s%d, s%d, 1" % (S_LST, S_END)]

    def order():
        back = a.uid("L_sok")
        rt = swait(st.cold, back)
        pre = ["s_add_u32 s3, s%d, 2" % S_B, ('wait', 'seq'), "v_readlane_b32 s%d, v%d, s3" % (S_T + 3, SEQ), "s_nop 0", "s_nop 0",
               ["s_cmp_eq_u32 s%d, 0" % (S_T + 3), "s_cbranch_scc1 %s" % rt, back + ":"]] + stop
        return pre, [(0, 6, [["s_cmp_lt_u32 s%d, 57" % S_B, "s_cselect_b32 s%d, 1, 0" % (S_T + 2), "s_cselect_b32 s%d, 1, 0x80" % (S_T + 1)],
                             "v_mov_b32 v%d, s%d" % (TK, S_T + 2), ('vm', "buffer_atomic_add v%d, v%d, %s, s%d offen sc0 sc1" % (TK, V_SIG, WS, S_TKA), 'tk')]),
                     (8, 14, [('vm', sload, 'seq')]),
                     (60, 78, ["s_lshl_b32 s%d, s%d, 2" % (S_T + 2, S_B), "s_add_u32 s%d, s%d, s%d" % (S_T + 2, S_T + 2, S_SQW), ('wait', 'tk'),
                               "v_add_u32 v%d, s%d, v%d" % (TK, S_T + 1, TK),
                               ('vm', "buffer_store_dword v%d, v%d, %s, s%d offen offset:12 sc1" % (TK, V_SIG, WS, S_T + 2), 'sq')])]

    def src_addr():
        return ["s_mov_b32 s%d, s%d" % (S_T + 5, S_DB)] + seg(S_T + 5) + [
                ["s_bitcmp1_b32 s%d, 1" % (S_T + 5), "s_cselect_b32 s%d, s%d, s%d" % (S_NOF, S_EVEN, S_ODD)],
                "s_lshl_b32 s%d, s%d, 20" % (S_T + 5, S_T + 5),
                "s_add_u32 s%d, s%d, s%d" % (S_NOF, S_NOF, S_T + 5),
                "s_add_u32 s%d, s%d, s%d" % (S_NOF, S_NOF, S_K5)]
    part = lambda r: lambda P: [st.acc(P, t, c) + r for t in range(2) for c in range(2)]
    trans = ["ds_write2_b32 v%d, v%d, v%d offset0:%d offset1:%d" % (Reduce.TW, Reduce.SUM + 2 * t, Reduce.SUM + 2 * t + 1, 128 * t, 128 * t + 16) for t in range(2)]
    rd = Reduce(a, st, [(part(1), S_K1), (part(2), S_K2), (part(3), S_K3)], part(0), trans, 8, 9, src_addr, 0, seg)
    rd.plan = (56, 94, 104)
    rd.order = order
    OA_ = rd.F
    I("s_mov_b32 s%d, s%d" % (u, S_RK))
    I("s_and_b32 s%d, s%d, 3" % (kq, u))
    op_tile(a, nt, S_T)
    I("s_lshl_b32 s%d, s%d, 5" % (S_K0, S_XW))
    I("s_add_u32 s%d, s%d, s%d" % (S_K0, S_K0, u))
    I("s_lshl_b32 s%d, s%d, 15" % (S_K0, S_K0))
    I("s_lshl_b32 s%d, s%d, 13" % (S_T, S_WV))
    I("s_add_u32 s%d, s%d, s%d" % (S_K0, S_K0, S_T))
    for j, r in enumerate((S_K1, S_K2, S_K3)):
        I("s_xor_b32 s%d, s%d, 0x%x" % (r, S_K0, (j + 1) << 15))
        I("s_add_u32 s%d, s%d, 0x%x" % (r, r, WS_INB + INB_OP))
    I("s_add_u32 s%d, s%d, 0x%x" % (S_K0, S_K0, WS_INB + INB_OP))
    I("s_lshl_b32 s%d, s%d, 3" % (S_K4, S_XW))
    I("s_lshr_b32 s%d, s%d, 2" % (S_T, u))
    I("s_add_u32 s%d, s%d, s%d" % (S_K4, S_K4, S_T))
    I("s_lshl_b32 s%d, s%d, 8" % (S_SQ, S_K4))
    I("s_add_u32 s%d, s%d, 0x%x" % (S_SQ, S_SQ, C_SEQ))
    I("s_lshl_b32 s%d, s%d, 7" % (S_TKA, nt))
    I("s_add_u32 s%d, s%d, 0x%x" % (S_TKA, S_TKA, C_TKT))
    I("s_cmp_eq_u32 s%d, 0" % kq)
    I("s_cselect_b32 s%d, s%d, 0x40000000" % (S_TKA, S_TKA))
    I("s_cselect_b32 s%d, s%d, 0x40000000" % (S_SQW, S_SQ))
    I("s_lshl_b32 s%d, s%d, 7" % (S_K4, S_K4))
    I("s_add_u32 s%d, s%d, 0x%x" % (S_K4, S_K4, C_RDY))
    a.srd(S_AUX, ptr(B_WO), 0, 8 * MB)
    I("s_lshl_b32 s%d, s%d, 21" % (S_K5, kq))
    I("s_lshl_b32 s%d, s%d, 8" % (S_T, nt))
    I("s_add_u32 s%d, s%d, s%d" % (S_K5, S_K5, S_T))
    rd.prepare()
    I("v_add_u32 v%d, v1, v3" % rd.TR)
    I("v_and_b32 v2, 15, v0")
    I("v_lshl_add_u32 v1, v2, 2, v1")
    I("v_bfe_u32 v2, v0, 4, 2")
    I("v_lshl_add_u32 v%d, v2, 7, v1" % rd.TW)


    def mid(p):
        if p == 0:
            I(signal(S_K4)[1])
        elif p == 3:
            I("v_mov_b32 v%d, 3" % TK)
            I("buffer_atomic_add v%d, v%d, %s, s%d offen sc0 sc1" % (TK, V_SIG, WS, S_TKA))
        elif p == 7:
            for k in range(3):
                I("v_add_u32 v%d, %d, v%d" % (rd.R + k, k + 1, TK))
            I("buffer_store_dwordx3 v[%d:%d], v%d, %s, s%d offen sc1" % (rd.R, rd.R + 2, V_SIG, WS, S_SQW))
    load_panel_t(a, S_K5, 2048, 'nat', mid=mid)
    poll(a, S_WSR, S_K4, 4)
    I("s_lshl_b32 s%d, s%d, 9" % (S_T, nt))
    I("s_lshl_b32 s%d, s%d, 7" % (S_T + 1, S_WV))
    I("s_add_u32 s%d, s%d, s%d" % (S_T, S_T, S_T + 1))
    I("s_lshl_b32 s%d, s%d, 13" % (S_T + 1, kq))
    I("s_add_u32 s%d, s%d, s%d" % (S_T, S_T, S_T + 1))
    I("s_add_u32 s%d, s%d, 4096" % (S_T, S_T))
    I("v_bfe_u32 v1, v0, 3, 3")
    I("v_and_b32 v2, 7, v0")
    I("v_lshlrev_b32 v1, 15, v1")
    I("v_lshl_add_u32 v1, v2, 4, v1")
    I("v_add_u32 v%d, s%d, v1" % (OA_, S_T))
    I("s_lshl_b32 s%d, s%d, 7" % (S_K4, kq))
    I("s_add_u32 s%d, s%d, 0x%x" % (S_K4, S_K4, C_O))
    I("s_lshl_b32 s%d, s%d, 18" % (S_K5, kq))
    I("s_add_u32 s%d, s%d, 2048" % (S_K5, S_K5))
    a.srd(S_SRC, ptr(D_WS), 0, WS_SIZE)
    a.srd(S_AUX, ptr(D_OUT), 0, 16 * MB)
    I("s_lshl_b32 s%d, s%d, 4" % (kq, kq))
    st.setup(kq)
    TLP[0](21)
    I("v_and_b32 v%d, 63, v0" % L4)
    I("v_lshlrev_b32 v%d, 2, v%d" % (L4, L4))
    I("s_mov_b32 s%d, 62" % S_END)
    done = a.uid("L_opdone")
    for k in (1, 0):
        back = a.uid("L_sok")
        I("s_mov_b32 s3, %d" % k)
        if k == 0:
            I("v_readlane_b32 s%d, v%d, 0" % (S_T + 3, SEQ))
            I("s_cmp_lg_u32 s%d, 0" % (S_T + 3))
            I("s_cbranch_scc1 %s" % back)
        swait(a.lines, back)
        a.L(back)
        st.emit_plain(stop)
    I("s_cmp_eq_u32 s%d, 0" % S_END)
    I("s_cbranch_scc1 %s" % done)
    params = ["s_sub_u32 s%d, s%d, 1" % (S_P3, S_B), "s_and_b32 s%d, s%d, 63" % (S_P3, S_P3)] + seg(S_P3) + [
              "s_lshl_b32 s%d, s%d, 18" % (S_P3, S_P3),
              valid(S_P3)]
    final = ["v_cvt_pk_bf16_f32 v%d, 0, v%d" % (rd.SUM + i, rd.R + i) for i in range(4)]
    final += [('vm', "buffer_store_dwordx4 %s, v%d, %s, s%d offen%s" % (v4(rd.SUM), OA_, srd(S_AUX), S_P3, OSC), 'out')]
    rd.runs(params, [], final)
    a.L(done)


def worker(a, abort, bases, tlp, ini):
    I = a.I
    ABORT[0], TLP[0], INI[0] = abort, tlp, ini
    lv, lq, l1, l2, lop = (a.uid(x) for x in ("L_v", "L_q", "L_g1", "L_g2", "L_op"))
    common(a)
    I("s_cmp_eq_u32 s%d, 3" % S_XW)
    I("s_cbranch_scc1 %s" % l1)
    proj_panel(a)
    wait_init(a, bases)
    tlp(17)
    tlp(29)
    I("s_cmp_eq_u32 s%d, 2" % S_XW)
    I("s_cbranch_scc1 %s" % lq)
    I("s_cmp_eq_u32 s%d, 1" % S_XW)
    I("s_cbranch_scc1 %s" % lv)
    run_kv(a, False)
    tlp(18)
    I("s_branch %s" % lop)
    a.L(lv)
    run_kv(a, True)
    tlp(18)
    I("s_branch %s" % lop)
    a.L(lq)
    run_q(a)
    tlp(19)
    I("s_branch %s" % abort)
    a.L(l1)
    I("s_cmp_ge_u32 s%d, 16" % S_RK)
    I("s_cbranch_scc1 %s" % l2)
    run_g1(a, bases)
    tlp(20)
    I("s_branch %s" % lop)
    a.L(l2)
    run_g2(a, bases)
    tlp(15)
    a.L(lop)
    run_op(a)
    tlp(14)
```

```python
import sys, os
sys.path.insert(0, os.path.dirname(os.path.abspath(__file__)))
from asmlib import *
from layout import *
import chain2 as chain
import work

NAME = "concat_heads__ssm_conv_s5__memory_aug_recurrent_mem_tr__prompt"
HEADER = open(os.path.join(os.path.dirname(os.path.abspath(__file__)), "header.txt")).read()
E = chain.E
TL = E("TL", 0)

S_XW, S_RK, S_WV = 40, 41, 49
S_EVEN, S_ODD = 54, 55


def load_ptrs(a):
    I = a.I
    I("s_load_dwordx16 s[%d:%d], s[0:1], 0" % (PTR0, PTR0 + 15))
    I("s_load_dwordx16 s[%d:%d], s[0:1], 64" % (PTR0 + 16, PTR0 + 31))
    I("s_load_dwordx4 s[%d:%d], s[0:1], 128" % (PTR0 + 32, PTR0 + 35))
    I("s_load_dwordx2 s[%d:%d], s[0:1], 144" % (PTR0 + 36, PTR0 + 37))
    I("s_waitcnt lgkmcnt(0)")


def tl_probe(a, idx, v=249, tid=0):
    if not TL:
        return
    I = a.I
    I("s_memrealtime s[58:59]")
    I("s_memtime s[56:57]")
    q = 60 if v != 5 else 68
    a.srd(q, ptr(D_WS), WS_DBG + 0x80000, 65536)
    I("s_waitcnt lgkmcnt(0)")
    I("s_lshl_b32 s59, s2, 8")
    I("v_mov_b32 v%d, s58" % (v + 1))
    I("v_mov_b32 v%d, s56" % v)
    I("v_xor_b32 v%d, %d, v0" % (v + 2, tid))
    I("v_lshlrev_b32 v%d, 16, v%d" % (v + 2, v + 2))
    I("buffer_store_dword v%d, v%d, s[%d:%d], s59 offen offset:%d" % (v + 1, v + 2, q, q + 3, idx * 4))
    I("buffer_store_dword v%d, v%d, s[%d:%d], s59 offen offset:%d" % (v, v + 2, q, q + 3, 128 + idx * 4))
    if v == 5 and idx in (15, 14):
        I("v_mov_b32 v%d, s%d" % (v, work.S_CNT))
        I("buffer_store_dword v%d, v%d, s[%d:%d], s59 offen offset:%d" % (v, v + 2, q, q + 3, (idx - 14) * 4))


def role_ticket(a):
    I = a.I
    I("s_getreg_b32 s16, hwreg(HW_REG_XCC_ID)")
    I("s_and_b32 s16, s16, 7")
    if E("FAKEX", 0):
        I("s_mul_i32 s16, s2, 37")
        I("s_lshr_b32 s16, s16, 3")
        I("s_and_b32 s16, s16, 7")
        I("s_min_u32 s16, s16, 6")
    I("v_lshrrev_b32 v3, 6, v0")
    a.srd(12, ptr(D_DBG), 0, 256)
    I("v_readfirstlane_b32 s18, v3")
    I("s_lshl_b32 s3, s16, 5")
    I("v_mov_b32 v12, 1")
    I("v_lshlrev_b32 v13, 8, v0")
    I("buffer_atomic_add v12, v13, s[12:15], s3 offen offset:%d sc0 sc1" % DB_RANK)


def role_assign(a):
    I = a.I
    lab = a.uid("L_role")
    I("s_cmp_lg_u32 s18, 1")
    I("s_cbranch_scc1 %s" % lab)
    I("s_mov_b32 s7, 1")
    lw = a.uid("L_rolew")
    I("s_cmp_lg_u32 s16, %d" % E("VOTEX", 6))
    I("s_cbranch_scc1 %s" % lw)
    I("s_lshr_b32 s6, s2, 7")
    I("s_lshl_b32 s6, s6, 8")
    I("s_add_u32 s4, s4, s6")
    I("s_and_b32 s5, s2, 127")
    I("s_lshl_b32 s5, s5, 14")
    I("s_add_u32 s5, s5, s4")
    I("s_add_u32 s5, s5, 0x%x" % (WS_P + 64 * MB + 2048))
    I("s_add_u32 s12, s%d, s5" % ptr(D_WS))
    I("s_addc_u32 s13, s%d, 0" % (ptr(D_WS) + 1))
    I("s_mov_b32 s5, 0")
    I("s_mov_b32 s6, 0")
    I("s_atomic_add s5, s[12:13], 0x0 glc")
    I("s_atomic_add s6, s[12:13], 0x2000 glc")
    I("s_mov_b32 s24, -1")
    I("s_mov_b32 s25, -1")
    I("s_waitcnt lgkmcnt(0)")
    for pol in (0, 1, 1, 0)[:E("CALR", 2)]:
        I("s_mov_b32 s5, 0")
        I("s_memtime s[20:21]")
        I("s_waitcnt lgkmcnt(0)")
        I("s_atomic_add s5, s[12:13], 0x%x glc" % (pol * 8192))
        I("s_waitcnt lgkmcnt(0)")
        I("s_memtime s[22:23]")
        I("s_waitcnt lgkmcnt(0)")
        I("s_sub_u32 s22, s22, s20")
        I("s_min_u32 s%d, s%d, s22" % (24 + pol, 24 + pol))
    I("s_mov_b32 s6, 0x1000001")
    I("s_cmp_gt_u32 s25, s24")
    I("s_cselect_b32 s7, 0x10001, s6")
    I("s_min_u32 s24, s24, s25")
    I("s_cmp_lt_u32 s24, 600")
    I("s_cselect_b32 s7, s7, 1")
    a.L(lw)
    a.L(lab)
    I("v_lshlrev_b32 v2, 2, v0")
    I("s_waitcnt vmcnt(0)")
    I("ds_write_b32 v2, v12 offset:%d" % chain.L_ROLE)
    I("s_waitcnt lgkmcnt(0)")
    I("s_barrier")
    I("v_mov_b32 v2, 0")
    I("ds_read_b32 v4, v2 offset:%d" % chain.L_ROLE)
    lab = a.uid("L_nosig")
    I("s_waitcnt lgkmcnt(0)")
    I("v_readfirstlane_b32 s17, v4")
    I("s_cmp_lg_u32 s18, 1")
    I("s_cbranch_scc1 %s" % lab)
    lo = a.uid("L_noovf")
    I("s_cmp_lt_u32 s17, 32")
    I("s_cbranch_scc1 %s" % lo)
    I("s_mov_b32 s5, 1")
    I("s_atomic_add s5, s[%d:%d], 0x%x glc" % (ptr(D_DBG), ptr(D_DBG) + 1, DB_OVF))
    I("s_waitcnt lgkmcnt(0)")
    a.L(lo)
    I("s_atomic_add s7, s[%d:%d], 0x%x" % (ptr(D_DBG), ptr(D_DBG) + 1, DB_INIT))
    a.L(lab)


def role_overflow(a, abort):
    I = a.I
    ok, rt = a.uid("L_hasrole"), a.uid("L_ovw")
    I("s_cmp_lt_u32 s17, 32")
    I("s_cbranch_scc1 %s" % ok)
    a.srd(12, ptr(D_DBG), 0, 256)
    I("v_and_b32 v1, 7, v0")
    I("v_lshlrev_b32 v1, 5, v1")
    I("v_mov_b32 v2, 0")
    I("s_mov_b32 s3, 0")
    a.L(rt)
    I("buffer_load_dword v4, v2, s[12:15], 0 offen sc1")
    I("s_add_u32 s3, s3, 1")
    I("s_cmp_gt_u32 s3, 0x100000")
    I("s_cbranch_scc1 %s" % abort)
    I("s_waitcnt vmcnt(0)")
    I("v_readfirstlane_b32 s5, v4")
    I("s_and_b32 s5, s5, 0xffff")
    I("s_cmp_lt_u32 s5, 256")
    I("s_cbranch_scc1 %s" % rt)
    I("buffer_load_dword v4, v1, s[12:15], 0 offen offset:%d sc1" % DB_RANK)
    I("s_sub_u32 s17, s17, 32")
    I("s_waitcnt vmcnt(0)")
    for x in range(8):
        I("v_readlane_b32 s%d, v4, %d" % (20 + x, x))
    for x in range(7):
        I("s_max_u32 s5, s%d, 32" % (20 + x))
        I("s_sub_u32 s5, s5, 32")
        I("s_cmp_gt_u32 s16, %d" % x)
        I("s_cselect_b32 s5, s5, 0")
        I("s_add_u32 s17, s17, s5")
    for x in range(8):
        I("s_min_u32 s5, s%d, 32" % (20 + x))
        I("s_add_u32 s17, s17, s5")
        I("s_mov_b32 s16, %d" % x)
        I("s_cmp_lt_u32 s17, 32")
        I("s_cbranch_scc1 %s" % ok)
        I("s_sub_u32 s17, s17, 32")
    I("s_branch %s" % abort)
    a.L(ok)


def init(a):
    I = a.I
    role_ticket(a)
    a.srd(8, ptr(D_WS), XCH, XCH_BYTES)
    I("s_lshl_b32 s3, s2, 13")
    I("v_lshlrev_b32 v1, 4, v0")
    for i in range(4):
        I("v_mov_b32 v%d, 0x%x" % (4 + i, SENT))
    for i in range(2):
        I("buffer_store_dwordx4 v[4:7], v1, s[8:11], s3 offen sc1")
        I("s_add_u32 s3, s3, 4096")
    a.srd(8, ptr(D_WS), WS_P, 70 * MB)
    I("s_add_u32 s4, s8, 0x1fffff")
    I("s_and_b32 s4, s4, 0xffe00000")
    I("s_sub_u32 s4, s4, s8")
    if 'nowork' in chain.ABL:
        I("s_lshl_b32 s3, s2, 14")
        I("s_add_u32 s3, s3, s4")
        for k in range(16):
            for i in range(4):
                I("buffer_store_dwordx4 v[4:7], v1, s[8:11], s3 offen sc1")
                I("s_add_u32 s3, s3, 4096")
            I("s_add_u32 s3, s3, 0x%x" % (4 * MB - 16384))
    if 'warmkv' in chain.ABL:
        a.srd(8, ptr(D_WS), 0, 66 * MB)
        I("s_mul_i32 s3, s2, 66 * 4096")
        for i in range(4):
            I("v_mov_b32 v%d, 0" % (4 + i))
        for i in range(66):
            I("buffer_store_dwordx4 v[4:7], v1, s[8:11], s3 offen sc1")
            I("s_add_u32 s3, s3, 4096")
    a.srd(8, ptr(D_WS), WS_CNT, CNT_BYTES)
    I("s_lshl_b32 s3, s2, 12")
    for i in range(4):
        I("v_mov_b32 v%d, 0" % (8 + i))
    I("buffer_store_dwordx4 v[8:11], v1, s[8:11], s3 offen sc1")
    role_assign(a)


def kernel_chain(a, name):
    I = a.I
    a.raw(".globl %s\n.p2align 8\n.type %s,@function" % (name, name))
    a.L(name)
    I("s_cmp_lt_u32 s2, 256")
    I("s_cbranch_scc1 %s_go" % name)
    a.L("%s_end0" % name)
    I("s_endpgm")
    a.L("%s_go" % name)
    load_ptrs(a)
    tl_probe(a, 8)
    if E("CODEPF", 1):
        lab = a.uid("L_pc")
        I("s_getpc_b64 s[4:5]")
        a.L(lab)
        I("s_lshr_b32 s3, s2, 3")
        I("s_and_b32 s3, s3, 31")
        I("s_lshl_b32 s3, s3, 6")
        I("v_and_b32 v14, 63, v0")
        I("v_add_u32 v14, s3, v14")
        I("v_lshlrev_b32 v14, 6, v14")
        I("v_min_u32 v14, %s_end - %s, v14" % (name, lab))
        I("global_load_dword v15, v14, s[4:5]")
    init(a)
    tl_probe(a, 23)
    role_overflow(a, name + "_end0")
    I("s_cmp_ge_u32 s16, 4")
    I("s_cbranch_scc1 %s_worker" % name)
    chain.HOOK['done'] = lambda: tl_probe(a, 9)
    chain.HOOK['end'] = lambda: (I("s_barrier") if TL else None, tl_probe(a, 30), tl_probe(a, 10))
    chain.HOOK['loopstart'] = lambda: tl_probe(a, 11)
    chain.HOOK['weights'] = lambda: tl_probe(a, 16)
    chain.chain_main(a, name)
    a.L("%s_worker" % name)
    if 'nowork' not in chain.ABL:
        worker(a, name)

    a.L("%s_wend" % name)
    tl_probe(a, 10)
    a.L("%s_end" % name)
    I("s_endpgm")


def worker(a, name):
    I = a.I
    rm = os.environ.get("ROLEMAP", "0123")
    I("s_sub_u32 s%d, s16, 4" % S_XW)
    I("s_lshl_b32 s%d, s%d, 2" % (S_XW, S_XW))
    I("s_lshr_b32 s%d, 0x%s, s%d" % (S_XW, rm[::-1], S_XW))
    I("s_and_b32 s%d, s%d, 3" % (S_XW, S_XW))
    I("s_mov_b32 s%d, s17" % S_RK)
    I("s_mov_b32 s%d, s18" % S_WV)
    work.worker(a, name + "_wend", chain.block_bases, lambda i, tid=0: tl_probe(a, i, 5, tid), None)


def build():
    a = Asm()
    launches = [("chain_kernel", 256, 256, 163840)]
    out = HEADER
    for k, g, b, l in launches:
        out += "; @launch kernel=%s grid=(%d,1,1) block=(%d,1,1) lds=%d\n" % (k, g, b, l)
    if os.environ.get("CFG"):
        out += "; cfg:%s\n" % os.environ["CFG"]
    out += '.amdgcn_target "amdgcn-amd-amdhsa--gfx950"\n.text\n'
    kernel_chain(a, "chain_kernel")
    out += a.text()
    out += kernel_desc("chain_kernel")
    return out


if __name__ == "__main__":
    dst = sys.argv[1] if len(sys.argv) > 1 else "/code/%s.s" % NAME
    open(dst, "w").write(build())
    print("wrote", dst)
```
